```python
import torch

def _softmax(x, axis=-1):
    return torch.softmax(x, dim=axis)
def _gelu(x):
    return torch.nn.functional.gelu(x, approximate="tanh")
def _silu(x):
    return torch.nn.functional.silu(x)
def _sigmoid(x):
    return torch.sigmoid(x)
def _layernorm(x, axis=-1, eps=1e-5):
    m = x.mean(dim=axis, keepdim=True)
    v = x.var(dim=axis, keepdim=True, unbiased=False)
    return (x - m) / torch.sqrt(v + eps)
def _scatter_add(tgt, idx, src, axis=0):
    return tgt.clone().index_add_(axis, idx, src)
def _segment_sum(src, seg, n):
    out = torch.zeros((n,) + src.shape[1:], dtype=src.dtype)
    return out.index_add_(0, seg, src)
def _pad(x, pw):
    flat = tuple(v for pair in reversed(pw) for v in pair)
    return torch.nn.functional.pad(x, flat)

kernel_name = 'interleave_layers__gqa_block_cached__dense_activation_silu__decode'

def setup_inputs():

    _w = (lambda a: (lambda t: t.to(torch.bfloat16) if t.is_floating_point() else t)(torch.as_tensor(a)))
    def _A_setup():
        B, Sq, D = 2, 1, 512
        Hq, Hkv, Sk, Dh = 32, 8, 8192, 128
        assert Hq % Hkv == 0, (Hq, Hkv)
        return {
            "x": _w((lambda *s: torch.randn(*s, dtype=torch.bfloat16) * 0.1)(B, Sq, D)),
            "k_cache": _w((lambda *s: torch.randn(*s, dtype=torch.bfloat16) * 0.8)(B, Hkv, Sk, Dh)),
            "v_cache": _w((lambda *s: torch.randn(*s, dtype=torch.bfloat16) * 3.2)(B, Hkv, Sk, Dh)),
            "wq": _w((lambda *s: torch.randn(*s, dtype=torch.bfloat16) * 0.8)(D, Hq * Dh) * (D ** -0.5)),
            "wo": _w((lambda *s: torch.randn(*s, dtype=torch.bfloat16) * 3.2)(Hq * Dh, D) * ((Hq * Dh) ** -0.5)),
        }
    _A_in = _A_setup()

    def _B_setup():
        B, S, D, F = 2, 1, 512, 1792
        return {
            "x": _w((lambda *s: torch.randn(*s, dtype=torch.bfloat16) * 0.1)(B, S, D)),
            "w1": _w((lambda *s: torch.randn(*s, dtype=torch.bfloat16) * 1.6)(D, F) * (D ** -0.5)),
            "w2": _w((lambda *s: torch.randn(*s, dtype=torch.bfloat16) * 0.4)(F, D) * (F ** -0.5)),
        }
    _B_in = _B_setup()

    return {
        "A_x": _A_in["x"],
        "A_k_cache": _A_in["k_cache"],
        "A_v_cache": _A_in["v_cache"],
        "A_wq": _A_in["wq"],
        "A_wo": _A_in["wo"],
        "B_x": _B_in["x"],
        "B_w1": _B_in["w1"],
        "B_w2": _B_in["w2"],
    }

def reference(A_x, A_k_cache, A_v_cache, A_wq, A_wo, B_x, B_w1, B_w2):
    def _A_ref(x, k_cache, v_cache, wq, wo):
        B, Sq, D = x.shape
        Hq, Dh = 32, 128
        Hkv = k_cache.shape[1]
        rep = Hq // Hkv
        q = (lambda x, *d: x.permute(*d))((x @ wq).reshape(B, Sq, Hq, Dh), 0, 2, 1, 3)
        k = (lambda x, n, axis: torch.repeat_interleave(x, n, dim=axis))(k_cache, rep, axis=1)
        v = (lambda x, n, axis: torch.repeat_interleave(x, n, dim=axis))(v_cache, rep, axis=1)
        scores = torch.einsum("bhqd,bhkd->bhqk", q, k) * (Dh ** -0.5)
        p = _softmax(scores, axis=-1)
        o = torch.einsum("bhqk,bhkd->bhqd", p, v)
        return (lambda x, *d: x.permute(*d))(o, 0, 2, 1, 3).reshape(B, Sq, Hq * Dh) @ wo

    def _B_ref(x, w1, w2):
        h = torch.einsum("bsd,df->bsf", x, w1)
        h = _silu(h)
        out = torch.einsum("bsf,fd->bsd", h, w2)
        return out

    x = A_x
    x = x + _A_ref(_layernorm(x, axis=-1), A_k_cache, A_v_cache, A_wq, A_wo)
    x = x + _B_ref(_layernorm(x, axis=-1), B_w1, B_w2)
    x = x + _A_ref(_layernorm(x, axis=-1), A_k_cache, A_v_cache, A_wq, A_wo)
    x = x + _B_ref(_layernorm(x, axis=-1), B_w1, B_w2)
    return x
```

```python
import re

TRANS = ("v_exp_f32","v_log_f32","v_rcp_f32","v_rsq_f32","v_sqrt_f32","v_sin_f32","v_cos_f32")

def regs_of(op):
    op = op.strip()
    op = op.lstrip('-')
    m = re.fullmatch(r"abs\((.*)\)", op)
    if m: op = m.group(1)
    m = re.fullmatch(r"\|(.*)\|", op)
    if m: op = m.group(1)
    m = re.fullmatch(r"([vas])\[(\d+):(\d+)\]", op)
    if m: return {(m.group(1), i) for i in range(int(m.group(2)), int(m.group(3))+1)}
    m = re.fullmatch(r"([vas])(\d+)", op)
    if m: return {(m.group(1), int(m.group(2)))}
    if op == "vcc": return {("s","vcc")}
    if op in ("vcc_lo","vcc_hi"): return {("s","vcc")}
    if op == "exec": return {("s","exec")}
    if op == "m0": return {("s","m0")}
    return set()

class Ins:
    def __init__(self, text):
        self.text = text
        t = text.split(";")[0].strip()
        self.label = t.endswith(":")
        self.directive = t.startswith(".")
        parts = t.split(None, 1)
        self.mn = parts[0] if parts else ""
        rest = parts[1] if len(parts) > 1 else ""
        ops = []; cur = ""; depth = 0
        for ch in rest:
            if ch == "[": depth += 1
            if ch == "]": depth -= 1
            if ch == "," and depth == 0: ops.append(cur.strip()); cur = ""
            else: cur += ch
        if cur.strip(): ops.append(cur.strip())
        self.mods = ""
        if ops:
            l = ops[-1].split(None, 1)
            ops[-1] = l[0]
            if len(l) > 1: self.mods = l[1]
        self.ops = ops
        mn = self.mn
        self.mfma = mn.startswith("v_mfma") or mn.startswith("v_smfmac")
        self.valu = mn.startswith("v_") and not self.mfma
        self.trans = any(mn.startswith(x) for x in TRANS)
        self.dpp = self.valu and ("_dpp" in mn or "row_" in self.mods or "quad_perm" in self.mods)
        self.perml = mn.startswith("v_permlane")
        self.rdlane = mn.startswith("v_readlane") or mn.startswith("v_readfirstlane")
        self.vmem = mn.startswith("buffer_") or mn.startswith("global_")
        self.ds = mn.startswith("ds_")
        self.salu = mn.startswith("s_")
        self.dst = set(); self.src = set(); self.srcC = set(); self.srcAB = set()
        R = [regs_of(o) for o in ops]
        if self.label or self.directive or not mn: return
        if self.mfma:
            self.dst = R[0]; self.srcAB = R[1] | R[2]; self.srcC = R[3] if len(R) > 3 else set()
            if mn.startswith("v_smfmac"):
                self.srcC = R[0]; self.srcAB = R[1] | R[2] | R[3]
            self.src = self.srcAB | self.srcC
        elif self.valu:
            if self.perml:
                self.dst = R[0] | R[1]; self.src = R[0] | R[1]
            elif mn.startswith("v_cmp"):
                self.dst = R[0]; self.src = set().union(*R[1:])
            else:
                self.dst = R[0]; self.src = set().union(*R[1:]) if len(R) > 1 else set()
                if mn.startswith("v_fmac") or mn.startswith("v_mac") or self.dpp: self.src |= R[0]
                if mn.startswith("v_add_co") or mn.startswith("v_addc_co"): self.dst |= R[1]
                if mn.startswith("v_cndmask") and len(ops) == 3: self.src |= {("s","vcc")}
        elif self.vmem:
            islds = " lds" in (" " + self.mods) or mn.startswith("global_load_lds")
            if "load" in mn and not islds:
                self.dst = R[0]; self.src = set().union(*R[1:])
            else:
                self.src = set().union(*R)
                if islds: self.src |= {("s","m0")}
            self.islds = islds
            self.store = "store" in mn or "atomic" in mn
        elif self.ds:
            if mn.startswith("ds_read") or mn.startswith("ds_bpermute") or mn.startswith("ds_swizzle"):
                self.dst = R[0]; self.src = set().union(*R[1:])
            else:
                self.src = set().union(*R)
        elif self.salu:
            if mn.startswith("s_cmp") or mn.startswith("s_cbranch") or mn in ("s_branch","s_waitcnt","s_nop","s_barrier","s_sleep","s_endpgm","s_setprio") or mn.startswith("s_bitcmp"):
                self.src = set().union(*R) if R else set()
            else:
                self.dst = R[0] if R else set(); self.src = set().union(*R[1:]) if len(R) > 1 else set()
                if "saveexec" in mn: self.dst |= {("s","exec")}
    def states(self):
        if self.label or self.directive or not self.mn: return 0
        if self.mn == "s_nop": return int(self.ops[0]) + 1
        return 1

def need(prev, cur):
    n = 0
    vregs = lambda s: {r for r in s if r[0] in "va"}
    sregs = lambda s: {r for r in s if r[0] == "s"}
    if prev.valu:
        pw = prev.dst
        if cur.mfma and vregs(pw) & cur.src: n = max(n, 2)
        if cur.dpp and vregs(pw) & cur.src: n = max(n, 2)
        if cur.perml and vregs(pw) & cur.src: n = max(n, 2)
        if cur.rdlane and vregs(pw) & cur.src: n = max(n, 1)
        if prev.trans and cur.valu and not cur.trans and vregs(pw) & cur.src: n = max(n, 1)
        if prev.trans and (cur.mfma or cur.vmem or cur.ds) and vregs(pw) & cur.src: n = max(n, 2)
        if cur.valu and sregs(pw) & cur.src: n = max(n, 2)
        if cur.rdlane and sregs(pw) & cur.src: n = max(n, 4)
        if cur.vmem and sregs(pw) & cur.src: n = max(n, 5)
        if cur.salu and sregs(pw) & cur.src and prev.rdlane: n = max(n, 1)
    if prev.mn.startswith("v_dot") and vregs(prev.dst) & (cur.src | cur.dst):
        same_acc = cur.mn == prev.mn and len(cur.ops) > 3 and regs_of(cur.ops[3]) == prev.dst and not (prev.dst & (regs_of(cur.ops[1]) | regs_of(cur.ops[2])))
        if not same_acc: n = max(n, 3)
    if prev.mfma:
        passes = 8 if "32x32" in prev.mn else 4
        base = {4: 8, 8: 12}[passes]
        if cur.mfma:
            if prev.dst & cur.srcAB: n = max(n, base)
            if prev.dst & cur.srcC and prev.dst != cur.srcC: n = max(n, {4: 6, 8: 10}[passes])
            if prev.dst & cur.dst and not (prev.dst & cur.srcC): n = max(n, base)
        elif cur.valu or cur.vmem or cur.ds:
            if prev.dst & (cur.src | cur.dst): n = max(n, base)
            if cur.valu and prev.srcC & cur.dst: n = max(n, {4: 3, 8: 7}[passes])
    if prev.salu and ("s","m0") in prev.dst and cur.vmem and getattr(cur, "islds", False): n = max(n, 1)
    if prev.vmem and getattr(prev, "store", False) and ("x3" in prev.mn or "x4" in prev.mn):
        if (cur.valu or cur.mfma) and vregs(prev.src) & cur.dst: n = max(n, 2)
    if prev.ds and prev.mn in ("ds_write_b128","ds_write_b96") and cur.valu and vregs(prev.src) & cur.dst: n = max(n, 1)
    return n

class Asm:
    def __init__(self):
        self.L = []
        self.vq = []
        self.nopcount = 0
    def raw(self, text):
        self.L.append(Ins(text))
    def __call__(self, text, tag=None, cond=False):
        for line in text.strip().split("\n"):
            line = line.strip()
            if not line or line.startswith(";"): continue
            ins = Ins(line)
            if not (ins.label or ins.directive):
                dist = 0; req = 0
                for p in reversed(self.L):
                    if dist >= 20: break
                    r = need(p, ins) - dist
                    if r > req: req = r
                    dist += p.states()
                if req > 0:
                    self.nopcount += req
                    while req > 0:
                        k = min(req, 16)
                        self.L.append(Ins(f"s_nop {k-1}")); req -= k
            self.L.append(ins)
            if ins.vmem:
                self.vq.append((tag, cond))
    def vwait(self, tag, extra=""):
        idx = max(i for i, (t, c) in enumerate(self.vq) if t == tag)
        n = sum(1 for (t, c) in self.vq[idx+1:] if not c)
        n = min(n, 63)
        self(f"s_waitcnt vmcnt({n}){extra}")
    def text(self):
        return "\n".join(i.text for i in self.L) + "\n"
```

```python
import sys, math, struct
sys.path.insert(0, "gen")
from asmlib import Asm

NAME = "interleave_layers__gqa_block_cached__dense_activation_silu__decode"
out = sys.argv[1]
O = dict(kv.split("=") for kv in sys.argv[2:])
PROF = int(O.get("prof", 0))
SWZ = int(O.get("swz", 13))
SLEEP_B = int(O.get("sb", 14)); SLEEP_E = int(O.get("se", 14))
FORCE_SLOW = int(O.get("slow", 0))
WPOL = {"nt": " nt", "none": ""}[O.get("wpol", "nt")]
def f2u(x): return struct.unpack("<I", struct.pack("<f", x))[0]
LOG2E = 1.4426950408889634
QSCALE = LOG2E / math.sqrt(128.0)

QS, ML, HS, YS, ZS, OS = 0, 16384, 24576, 32768, 49152, 65536
LS = 65536 + 262144
WS_BYTES = 2 * LS
PROF_OFF = 16 << 20
LWQ, LWO, LW1, LW2 = 0, 32768, 65536, 81920
XB = 96256; RED0 = 98304; RED1 = RED0 + 1024; REDA = RED0 + 2048; ST0 = RED0 + 2560; MB = RED0 + 2688; OB = RED0 + 3072
LDS_BYTES = OB + 8192
sX, sK, sV, sWQ, sWO, sW1, sW2, sOUT, sDBG, sWS = 4, 6, 8, 10, 12, 16, 18, 20, 22, 24
rK, rV, rWQ, rWO, rW1, rW2, rWS = 28, 32, 36, 40, 44, 48, 52
sg, sb, sj, sw, sFAST, sLAYER, sBUD = 56, 57, 58, 59, 60, 61, 62
sSELLO, sSELHI = 63, 64
sQpub, sQget, sMLpub, sMLget, sHpub, sHget, sYpub, sYget, sZpub, sZget, sOpub, sOget = range(65, 77)
sYget1, sZget1 = 77, 78
sT0, sT1, sT2, sT3 = 26, 27, 14, 15
sKb, sVb = 79, 80
sSTAMP = 82
def srd(r): return f"s[{r}:{r+3}]"
def sp(r): return f"s[{r}:{r+1}]"
vL, vXBw, vXBr, vRED, vREDA, vOad, vMLad, vGad, vHad, vQad, vPAIR, vOBw = range(0, 12)
vSEL = 12
vX = 16
vOBr, vOpub, vMBw, vMBr, vST, vZpub = 20, 21, 22, 23, 24, 25
vKo, vVo = 26, 27
vQ = 28
vD0, vD1 = 44, 48
vROT = 52
vACC = 64
vR = 96
vPROF = 224 + 31
def vq(r, n=4): return f"v[{r}:{r+n-1}]"
def aq(r, n=4): return f"a[{r}:{r+n-1}]"
aK, aWQ, aWO, aW1, aW2 = 0, 128, 160, 192, 208

A = Asm()
uid = [0]
def lab(p):
    uid[0] += 1
    return f"L_{p}{uid[0]}"
def exec_set(lo, hi):
    A(f"s_mov_b32 exec_lo, {lo:#x}\ns_mov_b32 exec_hi, {hi:#x}")
def exec_all(): A("s_mov_b64 exec, -1")
nst = [0]
def stamp(i):
    if PROF: A(f"s_memrealtime s[{sSTAMP+2*i}:{sSTAMP+2*i+1}]")
def flush_stamps(base, n):
    if not PROF: return
    A("s_waitcnt lgkmcnt(0)")
    for i in range(n): A(f"v_writelane_b32 v{vPROF}, s{sSTAMP+2*i}, {base+i}")

def retry(loop):
    g = lab("gv")
    A(f"s_sub_u32 s{sBUD}, s{sBUD}, 1\ns_cbranch_scc0 {loop}\ns_mov_b32 s{sBUD}, 0")

def pub_store(ins, cond=True):
    a, b = lab("ps"), lab("pe")
    A(f"s_cmp_eq_u32 s{sFAST}, 0\ns_cbranch_scc1 {a}")
    A(ins, cond=True)
    A(f"s_branch {b}\n{a}:")
    A(ins + " sc1", cond=True)
    A(f"{b}:")

hdr = open(f"cdna_kernels/{NAME}.s.ref").read().split("\n")
H = [l for l in hdr if l.startswith(";") and "@launch" not in l and not l.startswith("; Override") and not l.startswith("; grid=ceil")]
H.append(f"; @launch grid=(256,1,1) block=(256,1,1) lds={LDS_BYTES}")
A.raw('.amdgcn_target "amdgcn-amd-amdhsa--gfx950"')
A.raw(".text"); A.raw(f".globl {NAME}_kernel"); A.raw(".p2align 8"); A.raw(f".type {NAME}_kernel,@function")
A.raw(f"{NAME}_kernel:")

stamp(0)
A(f"""
s_cmp_ge_u32 s2, 256
s_cbranch_scc1 L_end
s_load_dwordx16 s[4:19], s[0:1], 0
s_load_dwordx4 s[20:23], s[0:1], 64
s_load_dwordx2 s[24:25], s[0:1], 80
v_lshrrev_b32 v30, 6, v0
v_and_b32 v{vL}, 63, v0
s_and_b32 s{sg}, s2, 7
v_readfirstlane_b32 s{sw}, v30
s_lshr_b32 s{sj}, s2, 3
s_lshr_b32 s{sb}, s{sj}, 4
s_and_b32 s{sj}, s{sj}, 15
v_and_b32 v31, 15, v{vL}          ; n
v_lshrrev_b32 v32, 4, v{vL}       ; q
""")
tn, tq = 31, 32
A(f"""
s_lshl_b32 s{sT0}, s2, 2
s_add_u32 s{sT0}, s{sT0}, s{sw}
s_mul_i32 s{sT0}, s{sT0}, {SWZ}
s_and_b32 s{sT0}, s{sT0}, 31      ; r
s_lshl_b32 s{sT1}, s{sb}, 3
s_add_u32 s{sT1}, s{sT1}, s{sg}   ; bg
s_lshl_b32 s{sVb}, s{sT1}, 21
s_lshl_b32 s3, s{sj}, 17
s_add_u32 s{sVb}, s{sVb}, s3
s_lshl_b32 s3, s{sw}, 15
s_add_u32 s{sVb}, s{sVb}, s3
s_and_b32 s3, s{sT0}, 28
s_lshl_b32 s3, s3, 10
s_add_u32 s{sKb}, s{sVb}, s3
s_lshl_b32 s3, s{sT0}, 10
s_add_u32 s{sVb}, s{sVb}, s3
s_and_b32 s3, s{sT0}, 3
v_and_b32 v33, 3, v{vL}
v_xor_b32 v33, s3, v33
v_lshlrev_b32 v{vKo}, 10, v33
v_lshrrev_b32 v33, 2, v{tn}
v_lshl_add_u32 v{vKo}, v33, 8, v{vKo}
v_lshl_add_u32 v{vKo}, v{tq}, 4, v{vKo}
v_lshlrev_b32 v{vVo}, 4, v{vL}
; x address: b*1024 + 256w + 16n + 8(q&1)
v_and_b32 v33, 1, v{tq}
v_lshlrev_b32 v33, 3, v33
v_lshl_add_u32 v33, v{tn}, 4, v33      ; 16n+8(q&1)
s_lshl_b32 s3, s{sb}, 10
s_lshl_b32 s{sT0}, s{sw}, 8
s_add_u32 s3, s3, s{sT0}
v_add_u32 v34, s3, v33
v_lshrrev_b32 v35, 2, v{vL}
v_and_b32 v36, 3, v{vL}
v_lshlrev_b32 v36, 4, v36
v_lshl_add_u32 v37, v35, 13, v36
v_lshl_add_u32 v64, v35, 10, v36
s_waitcnt lgkmcnt(0)
""")
vWQo, vWOo, vW1o, vW2o = 37, 64, 65, 66
def mksrd(r, p, nbytes):
    A(f"s_mov_b32 s{r}, s{p}\ns_and_b32 s{r+1}, s{p+1}, 0xffff\ns_mov_b32 s{r+2}, {nbytes:#x}\ns_mov_b32 s{r+3}, 0x20000")
A(f"global_load_dwordx2 v[38:39], v34, {sp(sX)}", tag="x")
mksrd(rWQ, sWQ, 512*4096*2); mksrd(rK, sK, 1 << 25)
A(f"""
s_lshl_b32 s{sT2}, s{sw}, 20
s_lshl_b32 s3, s{sg}, 10
s_add_u32 s{sT2}, s{sT2}, s3
s_lshl_b32 s3, s{sj}, 6
s_add_u32 s{sT2}, s{sT2}, s3
s_lshl_b32 s{sT3}, s{sw}, 13
""")
def kload(n):
    unit, s = n >> 2, n & 3
    if s == 0: A(f"s_xor_b32 s{sT0}, s{sKb}, {unit*4096}")
    A(f"buffer_load_dwordx4 {aq(aK+4*n)}, v{vKo}, {srd(rK)}, s{sT0} offen offset:{64*s} nt", tag=f"K{n}")
def vload(n):
    A(f"s_xor_b32 s{sT1}, s{sVb}, {n*1024}")
    A(f"buffer_load_dwordx4 {vq(vR+32+4*n)}, v{vVo}, {srd(rV)}, s{sT1} offen nt", tag=f"V{n}")
def dma(vo, r, soff_expr_reg, m0reg, m0add, soffadd, tag, cond=False):
    A(f"s_add_u32 m0, s{m0reg}, {m0add}\ns_add_u32 s3, s{soff_expr_reg}, {soffadd}")
    A(f"buffer_load_dwordx4 v{vo}, {srd(r)}, s3 offen{WPOL} lds", tag=tag, cond=cond)
for i in range(8):
    dma(vWQo, rWQ, sT2, sT3, LWQ + 1024*i, i << 17, f"WQ{i}")
    kload(i)
stamp(1)
mksrd(rV, sV, 1 << 25); mksrd(rWO, sWO, 4096*512*2); mksrd(rW1, sW1, 512*1792*2); mksrd(rW2, sW2, 1792*512*2); mksrd(rWS, sWS, WS_BYTES)
A(f"""
s_mov_b32 s{sLAYER}, 0
s_mov_b32 s{sBUD}, 400000
s_mov_b32 s{sSELLO}, 0x05040100
s_mov_b32 s{sSELHI}, 0x07060302
s_lshl_b32 s{sT1}, s{sg}, 1
s_add_u32 s{sT1}, s{sT1}, s{sb}          ; gb
s_lshl_b32 s{sQget}, s{sT1}, 10
s_lshl_b32 s3, s{sj}, 6
s_add_u32 s{sQpub}, s{sQget}, s3
s_lshl_b32 s{sMLget}, s{sT1}, 9
s_add_u32 s{sHget}, s{sMLget}, {HS}
s_add_u32 s{sMLget}, s{sMLget}, {ML}
s_lshl_b32 s3, s{sj}, 5
s_add_u32 s{sMLpub}, s{sMLget}, s3
s_add_u32 s{sHpub}, s{sHget}, s3
s_lshl_b32 s{sOget}, s{sT1}, 14
s_add_u32 s{sOget}, s{sOget}, {OS}
s_lshl_b32 s3, s{sj}, 10
s_add_u32 s{sOpub}, s{sOget}, s3
s_lshl_b32 s{sYget}, s{sb}, 13
s_add_u32 s{sYget}, s{sYget}, {YS}
s_add_u32 s{sYget1}, s{sYget}, 4096
s_add_u32 s{sZget}, s{sYget}, {ZS-YS}
s_add_u32 s{sZget1}, s{sZget}, 4096
s_lshl_b32 s3, s{sg}, 10
s_add_u32 s{sYpub}, s{sYget}, s3
s_lshl_b32 s3, s{sj}, 6
s_add_u32 s{sYpub}, s{sYpub}, s3
s_add_u32 s{sZpub}, s{sYpub}, {ZS-YS}
""")
A(f"""
s_lshl_b32 s3, s{sw}, 9
s_add_u32 s3, s3, {XB}
v_add_u32 v{vXBw}, s3, v33                 ; XB[w] + 16n + 8(q&1)
v_lshrrev_b32 v40, 3, v{tn}                ; m>=8
v_lshlrev_b32 v40, 8, v40
v_lshl_add_u32 v40, v{tq}, 4, v40
v_add_u32 v{vXBr}, s3, v40
v_lshlrev_b32 v41, 2, v{vL}
v_add_u32 v40, s3, v41
v_mov_b32 v42, 0x3f803f80
ds_write_b32 v40, v42 offset:256
s_lshl_b32 s3, s{sw}, 2
s_add_u32 s{sT1}, s3, {RED0}
v_lshlrev_b32 v40, 4, v{vL}
v_add_u32 v{vRED}, s{sT1}, v40
v_lshrrev_b32 v42, 5, v{vL}
v_lshl_add_u32 v42, v42, 4, v{tn}
v_lshlrev_b32 v42, 4, v42
s_add_u32 s{sT1}, s3, {REDA}
v_add_u32 v{vREDA}, s{sT1}, v42
s_add_u32 s{sT1}, s3, {ST0}
v_mov_b32 v{vST}, s{sT1}
v_and_b32 v42, 3, v{vL}                    ; h
v_lshlrev_b32 v43, 4, v42
v_add_u32 v{vMBr}, {MB}, v43
v_add_u32 v{vMBw}, s3, v{vMBr}
; O loads: n*1024 + w*256 + q*16
s_lshl_b32 s3, s{sw}, 8
v_lshlrev_b32 v43, 4, v{tq}
v_lshl_add_u32 v{vOad}, v{tn}, 10, v43
v_add_u32 v{vOad}, s3, v{vOad}
; gather: q*1024 + 256w + 16n
v_lshlrev_b32 v44, 4, v{tn}
v_lshl_add_u32 v44, v{tq}, 10, v44
v_add_u32 v{vGad}, s3, v44
v_mov_b32 v{vHad}, v43                     ; 16q
; Q loads: h*256 + 16q
v_lshl_add_u32 v{vQad}, v42, 8, v43
v_lshl_add_u32 v44, v{tq}, 2, v42
v_lshlrev_b32 v44, 5, v44
s_lshl_b32 s3, s{sw}, 3
v_add_u32 v{vMLad}, s3, v44
v_lshrrev_b32 v44, 1, v{vL}
v_lshlrev_b32 v{vPAIR}, 2, v44
s_lshl_b32 s3, s{sw}, 11
s_add_u32 s3, s3, {OB}
v_lshlrev_b32 v44, 4, v{tn}
v_add_u32 v{vOBw}, s3, v44
s_lshl_b32 s3, s{sw}, 9
s_add_u32 s3, s3, {OB}
v_add_u32 v{vOBr}, s3, v41
; O publish: h*256 + w*64 + (l>>2)*4
v_and_b32 v44, 60, v{vL}
v_lshl_add_u32 v44, v42, 8, v44
s_lshl_b32 s3, s{sw}, 6
v_add_u32 v{vOpub}, s3, v44
; z publish: w*32 + q*8
s_lshl_b32 s3, s{sw}, 5
v_lshlrev_b32 v44, 3, v{tq}
v_add_u32 v{vZpub}, s3, v44
v_lshrrev_b32 v44, 1, v{vL}
v_and_b32 v45, 1, v{vL}
v_lshlrev_b32 v45, 4, v45
v_mul_u32_u24 v{vW1o}, 3584, v44
v_add_u32 v{vW1o}, v{vW1o}, v45
v_lshl_add_u32 v{vW2o}, v44, 10, v45
; SEL
v_and_b32 v44, 1, v{tn}
v_lshlrev_b32 v44, 4, v44
v_mov_b32 v45, 0x3f80
v_lshlrev_b32 v45, v44, v45
v_lshrrev_b32 v44, 1, v{tn}
""")
for i in range(4):
    A(f"v_cmp_eq_u32 vcc, {i}, v44\nv_cndmask_b32 v{vSEL+i}, 0, v45, vcc")
vTq, vTo, vT1, vT2 = 67, 68, 69, 70
A(f"""
v_lshrrev_b32 v44, 2, v{tn}               ; r
v_and_b32 v45, 3, v{tn}                   ; c
v_lshlrev_b32 v45, 3, v45                 ; 8c
v_lshl_add_u32 v46, v{tq}, 3, v44         ; 8q+r
s_lshl_b32 s3, s{sw}, 13
v_lshl_add_u32 v{vTq}, v46, 6, v45
v_add_u32 v{vTq}, s3, v{vTq}              ; LWQ(0) + (128w+8q+r)*64 + 8c
v_and_b32 v47, 1, v44
v_lshrrev_b32 v48, 1, v44
v_lshl_add_u32 v47, v48, 3, v47           ; (r&1)+8(r>>1)
v_lshl_add_u32 v47, v{tq}, 5, v47         ; +32q
v_lshl_add_u32 v{vTo}, v47, 6, v45
s_add_u32 s3, s3, {LWO}
v_add_u32 v{vTo}, s3, v{vTo}
v_lshl_add_u32 v47, v46, 5, v45           ; (8q+r)*32 + 8c
s_lshl_b32 s3, s{sw}, 12
s_add_u32 s3, s3, {LW1}
v_add_u32 v{vT1}, s3, v47
s_mul_i32 s3, s{sw}, 7168
s_add_u32 s3, s3, {LW2}
v_add_u32 v{vT2}, s3, v47
""")
lc = lab("clr")
A(f"s_cmp_lg_u32 s{sw}, 0\ns_cbranch_scc1 {lc}")
A(f"""
v_and_b32 v44, 15, v{vL}                  ; p
v_mov_b32 v45, s{sQpub}
v_add_u32 v45, {LS}, v45
v_mov_b32 v46, s{sMLpub}
v_subrev_u32 v46, 64, v46
v_cmp_le_u32 vcc, 4, v44
v_cndmask_b32 v45, v45, v46, vcc
v_mov_b32 v46, s{sHpub}
v_subrev_u32 v46, 96, v46
v_cmp_le_u32 vcc, 6, v44
v_cndmask_b32 v45, v45, v46, vcc
v_mov_b32 v46, s{sYpub}
v_subrev_u32 v46, 128, v46
v_cmp_le_u32 vcc, 8, v44
v_cndmask_b32 v45, v45, v46, vcc
v_mov_b32 v46, s{sZpub}
v_subrev_u32 v46, 192, v46
v_cmp_le_u32 vcc, 12, v44
v_cndmask_b32 v45, v45, v46, vcc
v_lshl_add_u32 v45, v44, 4, v45
v_and_b32 v46, 16, v{vL}
v_cmp_ne_u32 vcc, 0, v46
v_cmp_le_u32 s[{sT0}:{sT0+1}], 4, v44
s_and_b64 vcc, vcc, s[{sT0}:{sT0+1}]
v_mov_b32 v46, {LS}
v_cndmask_b32 v46, 0, v46, vcc
v_add_u32 v45, v45, v46
v_mov_b32 v48, -1
v_mov_b32 v49, -1
v_mov_b32 v50, -1
v_mov_b32 v51, -1
s_add_u32 s3, s{sOpub}, {LS}
""")
A(f"buffer_store_dwordx4 v[48:51], v{vVo}, {srd(rWS)}, s{sOpub} offen sc1", cond=True)
A(f"buffer_store_dwordx4 v[48:51], v{vVo}, {srd(rWS)}, s3 offen sc1", cond=True)
exec_set(0xffffffff, 0)
A(f"buffer_store_dwordx4 v[48:51], v45, {srd(rWS)}, 0 offen sc1", cond=True)
exec_all()
A(f"{lc}:")

pend = []
for n in range(8, 32): pend.append(("K", n))
pend += [("WO", i) for i in range(8)] + [("W1", 0), ("W2", 0)]
pend += [("V", n) for n in range(32)]
def stream(k=1, upto=None):
    while pend and (k > 0 or upto):
        kind, n = pend.pop(0)
        if kind == "K": kload(n)
        elif kind == "V": vload(n)
        elif kind == "WO":
            if n == 0:
                A(f"""
s_lshl_b32 s{sT2}, s{sg}, 19
s_lshl_b32 s3, s{sw}, 17
s_add_u32 s{sT2}, s{sT2}, s3
s_lshl_b32 s3, s{sj}, 6
s_add_u32 s{sT2}, s{sT2}, s3
s_lshl_b32 s{sT3}, s{sw}, 13""")
            dma(vWOo, rWO, sT2, sT3, LWO + 1024*n, n << 14, f"WO{n}")
        elif kind == "W1":
            l1 = lab("w1s")
            A(f"""
s_cmp_ge_u32 s{sj}, 14
s_cbranch_scc1 {l1}
s_mul_i32 s{sT2}, s{sw}, {128*3584}
s_mul_i32 s3, s{sg}, 448
s_add_u32 s{sT2}, s{sT2}, s3
s_lshl_b32 s3, s{sj}, 5
s_add_u32 s{sT2}, s{sT2}, s3
s_lshl_b32 s{sT3}, s{sw}, 12""")
            for i in range(4): dma(vW1o, rW1, sT2, sT3, LW1 + 1024*i, i*32*3584, "W1", cond=True)
            A(f"{l1}:")
        elif kind == "W2":
            l2 = lab("w2s")
            A(f"""
s_cmp_ge_u32 s{sw}, 2
s_cbranch_scc1 {l2}
s_mul_i32 s{sT2}, s{sg}, {224*1024}
s_lshl_b32 s3, s{sj}, 6
s_add_u32 s{sT2}, s{sT2}, s3
s_lshl_b32 s3, s{sw}, 5
s_add_u32 s{sT2}, s{sT2}, s3
s_mul_i32 s{sT3}, s{sw}, 7168""")
            for i in range(7): dma(vW2o, rW2, sT2, sT3, LW2 + 1024*i, i*32*1024, "W2", cond=True)
            A(f"{l2}:")
        k -= 1
        if upto and (kind, n) == upto: break
        if upto is None and k <= 0: break

def tr_reads(adst, vbase, steps, tiles, sstep, tstep, second):
    for t in range(tiles):
        for s in range(steps):
            d = adst + (t*steps + s)*4
            A(f"ds_read_b64_tr_b16 a[{d}:{d+1}], v{vbase} offset:{s*sstep + t*tstep}")
            A(f"ds_read_b64_tr_b16 a[{d+2}:{d+3}], v{vbase} offset:{s*sstep + t*tstep + second}")

vXP = 28
vXA = 32
vG0 = 48
vS, vSQ, vTm = 30, 31, 56
def xproc(aW, tiles, red_off, st_off, skip_label=None, filler=None):
    exec_set(0xffffffff, 0)
    A(f"ds_write_b64 v{vXBw}, v[{vXP}:{vXP+1}]")
    exec_all()
    if tiles:
        for s in range(4): A(f"ds_read_b128 {vq(vXA+4*s)}, v{vXBr} offset:{64*s}")
    A(f"""
v_lshlrev_b32 v{vX}, 16, v{vXP}
v_and_b32 v{vX+1}, 0xffff0000, v{vXP}
v_lshlrev_b32 v{vX+2}, 16, v{vXP+1}
v_and_b32 v{vX+3}, 0xffff0000, v{vXP+1}""")
    if skip_label: A(f"s_cbranch_scc1 {skip_label}")
    A(f"""
v_add_f32 v{vS}, v{vX}, v{vX+1}
v_mul_f32 v{vSQ}, v{vX}, v{vX}
v_add_f32 v{vTm}, v{vX+2}, v{vX+3}
v_fmac_f32 v{vSQ}, v{vX+1}, v{vX+1}
v_add_f32 v{vS}, v{vS}, v{vTm}
v_fmac_f32 v{vSQ}, v{vX+2}, v{vX+2}
v_fmac_f32 v{vSQ}, v{vX+3}, v{vX+3}""")
    for r in (8, 4):
        A(f"v_add_f32_dpp v{vS}, v{vS}, v{vS} row_ror:{r} row_mask:0xf bank_mask:0xf")
        A(f"v_add_f32_dpp v{vSQ}, v{vSQ}, v{vSQ} row_ror:{r} row_mask:0xf bank_mask:0xf")
    if filler: filler()
    A("s_waitcnt lgkmcnt(0)")
    dp = [f"v_add_f32_dpp v{vS}, v{vS}, v{vS} row_ror:2 row_mask:0xf bank_mask:0xf",
          f"v_add_f32_dpp v{vSQ}, v{vSQ}, v{vSQ} row_ror:2 row_mask:0xf bank_mask:0xf",
          f"v_add_f32_dpp v{vS}, v{vS}, v{vS} row_ror:1 row_mask:0xf bank_mask:0xf",
          f"v_add_f32_dpp v{vSQ}, v{vSQ}, v{vSQ} row_ror:1 row_mask:0xf bank_mask:0xf",
          f"v_add_f32_dpp v{vS}, v{vS}, v{vS} row_bcast:15 row_mask:0xa bank_mask:0xf",
          f"v_add_f32_dpp v{vSQ}, v{vSQ}, v{vSQ} row_bcast:15 row_mask:0xa bank_mask:0xf"]
    for s in range(4):
        for t in range(tiles):
            c = "0" if s == 0 else vq(vG0+4*t)
            A(f"v_mfma_f32_16x16x32_bf16 {vq(vG0+4*t)}, {vq(vXA+4*s)}, {aq(aW+(t*4+s)*4)}, {c}")
        for _ in range(2):
            if dp: A(dp.pop(0))
    exec_set(0x10000, 0)
    A(f"ds_write2_b32 v{vST}, v{vS}, v{vSQ} offset0:{st_off//4} offset1:{st_off//4+4}")
    exec_all()
    if tiles == 2:
        A(f"v_mov_b32_dpp v{vG0}, v{vG0+4} quad_perm:[0,1,2,3] row_mask:0xa bank_mask:0xf")
    A(f"ds_write_b32 v{vRED}, v{vG0} offset:{red_off}")

def ln_final(red_off, st_off):
    A(f"""
ds_read_b128 v[28:31], v{vRED} offset:{red_off}
ds_read_b128 v[32:35], v{vRED} offset:{red_off+512}
ds_read_b128 v[36:39], v{vST} offset:{st_off}
ds_read_b128 v[40:43], v{vST} offset:{st_off+16}
s_mov_b32 s3, {f2u(1.0/512):#x}
s_waitcnt lgkmcnt(0)
v_add_f32 v36, v36, v37
v_add_f32 v38, v38, v39
v_add_f32 v40, v40, v41
v_add_f32 v42, v42, v43
v_add_f32 v36, v36, v38
v_add_f32 v40, v40, v42
v_mul_f32 v36, s3, v36                ; mean
v_mov_b32 v41, {f2u(1e-5):#x}
v_fmac_f32 v41, s3, v40               ; E[x^2] + eps
v_add_f32 v28, v28, v29
v_fma_f32 v41, -v36, v36, v41
v_add_f32 v30, v30, v31
v_max_f32 v41, {f2u(1e-5):#x}, v41
v_add_f32 v32, v32, v33
v_rsq_f32 v41, v41
v_add_f32 v34, v34, v35
v_add_f32 v28, v28, v30
v_add_f32 v32, v32, v34
v_fma_f32 v28, -v36, v32, v28
v_mul_f32 v28, v28, v41
""")
def pack_pairs(v, t):
    A(f"v_mov_b32_dpp v{t}, v{v} quad_perm:[1,0,3,2] row_mask:0xf bank_mask:0xf\nv_cvt_pk_bf16_f32 v{v}, v{v}, v{t}")

stream(4)
A.vwait("WQ7")
stamp(2)
tr_reads(aWQ, vTq, 4, 2, 2048, 32, 256)
A(f"v_cmp_gt_u32 vcc, 32, v{vL}\nv_cndmask_b32 v{vXP}, 0, v38, vcc\nv_cndmask_b32 v{vXP+1}, 0, v39, vcc")
xproc(aWQ, 2, 0, 0, filler=lambda: stream(2))
stream(2)
A("s_waitcnt lgkmcnt(0)\ns_barrier")
lq = lab("q1")
A(f"s_cmp_lg_u32 s{sw}, 0\ns_cbranch_scc1 {lq}")
ln_final(0, 0)
A(f"v_mul_f32 v28, {f2u(QSCALE):#x}, v28")
pack_pairs(28, 29)
exec_set(0x55555555, 0)
A(f"buffer_store_dword v28, v{vPAIR}, {srd(rWS)}, s{sQpub} offen sc1", tag="q1", cond=True)
exec_all()
A(f"{lq}:")
stamp(3)
stream(8)
lf = lab("flag")
A(f"s_cmp_lg_u32 s{sw}, 0\ns_cbranch_scc1 {lf}")
A.vwait("q1")
A(f"""
s_getreg_b32 s3, hwreg(HW_REG_XCC_ID, 0, 4)
s_or_b32 s3, s3, 0x80
v_mov_b32 v28, s3
s_lshl_b32 s3, s{sb}, 3
s_add_u32 s3, s3, s{sg}
s_lshl_b32 s3, s3, 4
s_add_u32 s3, s3, s{sj}
v_mov_b32 v29, s3""")
exec_set(1, 0)
A(f"global_store_byte v29, v28, {sp(sDBG)} sc1", cond=True)
exec_all()
A(f"{lf}:")
stream(upto=("V", int(O.get("cenpos", 3))))
A(f"v_and_b32 v28, 15, v{vL}\nv_lshlrev_b32 v28, 4, v28")
A(f"global_load_dwordx4 v[32:35], v28, {sp(sDBG)} sc1", tag="cen")
stream(8)
A.vwait("cen")
lcen, lcok = lab("cen"), lab("cok")
A(f"""
{lcen}:
v_and_b32 v36, v32, v33
v_and_b32 v37, v34, v35
v_and_b32 v36, v36, v37
v_and_b32 v36, 0x80808080, v36
v_cmp_eq_u32 vcc, 0x80808080, v36
s_lshl_b32 s3, s{sb}, 3
s_lshr_b32 s{sT2}, vcc_lo, s3
s_and_b32 s{sT2}, s{sT2}, 0xff
s_cmp_eq_u32 s{sT2}, 0xff
s_cbranch_scc1 {lcok}
s_sleep 8""")
A(f"global_load_dwordx4 v[32:35], v28, {sp(sDBG)} sc1", cond=True)
A("s_waitcnt vmcnt(0)")
retry(lcen)
A(f"{lcok}:")
stamp(4)
for s in range(4):
    A(f"buffer_load_dwordx4 {vq(vQ+4*s) if s else 'v[36:39]'}, v{vQad}, {srd(rWS)}, s{sQget} offen offset:{64*s} sc1", tag="Q") if False else None
A(f"""
v_alignbit_b32 v36, v32, v32, 8
v_xor_b32 v36, v36, v32
v_xor_b32 v37, v32, v33
v_xor_b32 v33, v32, v34
v_xor_b32 v34, v32, v35
v_or_b32 v36, v36, v37
v_or3_b32 v36, v36, v33, v34
v_cmp_eq_u32 vcc, 0, v36
s_add_u32 s3, s3, s{sg}
s_lshr_b32 s{sFAST}, vcc_lo, s3
s_and_b32 s{sFAST}, s{sFAST}, {0 if FORCE_SLOW else 1}""")
for s in range(4):
    A(f"buffer_load_dwordx4 {vq(vQ+4*s)}, v{vQad}, {srd(rWS)}, s{sQget} offen offset:{64*s} sc1", tag="Q")
A(f"""
s_getpc_b64 s[{sT2}:{sT2+1}]
L_pc:
s_add_u32 s{sT2}, s{sT2}, L_comb-L_pc
s_addc_u32 s{sT2+1}, s{sT2+1}, 0
s_lshr_b32 s3, s2, 3
s_and_b32 s3, s3, 7
s_lshl_b32 s3, s3, 10
v_add_u32 v60, s3, v{vVo}""")
A(f"global_load_dwordx4 v[56:59], v60, s[{sT2}:{sT2+1}]", tag="pf")
tr_reads(aWO, vTo, 4, 2, 128, 32, 1024)
tr_reads(aW1, vT1, 4, 1, 1024, 0, 128)
lw2 = lab("w2r")
A(f"s_cmp_ge_u32 s{sw}, 2\ns_cbranch_scc1 {lw2}")
tr_reads(aW2, vT2, 7, 1, 1024, 0, 128)
A(f"{lw2}:")
stream(7)
A.vwait("pf")
stamp(5)

def qk(filler=None, check=None):
    tiles = [(t, u) for t in range(4) for u in range(2)]
    def dreg(k):
        t, u = tiles[k]
        return (vD0 if u == 0 else vD1) if t == 0 else vROT + 4*(k % 3)
    def sel(k):
        t, u = tiles[k]
        if t == 0: return []
        return [f"v_mov_b32_dpp v{(vD0 if u == 0 else vD1)+r}, v{dreg(k)+r} quad_perm:[0,1,2,3] row_mask:0xf bank_mask:{1 << t:#x}" for r in range(4)]
    for k in range(8):
        ex = sel(k-2) if k >= 2 else []
        if check and k < 2: ex = check[k]
        for s in range(4):
            c = "0" if s == 0 else vq(dreg(k))
            A(f"v_mfma_f32_16x16x32_bf16 {vq(dreg(k))}, {aq(aK+16*k+4*s)}, {vq(vQ+4*s)}, {c}")
            per = (len(ex) + (3 - s)) // (4 - s)
            for _ in range(per): A(ex.pop(0))
        if filler: filler(k)
    for k in (6, 7):
        for i in sel(k): A(i)
vM, vTt, vLs, vP = 32, 33, 34, 28
vF = 36
vMM = 40
def softmax():
    A(f"""
v_max3_f32 v{vM}, v{vD0}, v{vD0+1}, v{vD0+2}
v_max3_f32 v{vTt}, v{vD0+3}, v{vD1}, v{vD1+1}
v_max3_f32 v{vM}, v{vM}, v{vD1+2}, v{vD1+3}
v_max_f32 v{vM}, v{vM}, v{vTt}
v_max_f32_dpp v{vM}, v{vM}, v{vM} row_ror:4 row_mask:0xf bank_mask:0xf
v_max_f32_dpp v{vM}, v{vM}, v{vM} row_ror:8 row_mask:0xf bank_mask:0xf
v_mov_b32 v{vTt}, v{vM}
v_permlane16_swap_b32 v{vM}, v{vTt}
v_max_f32 v{vM}, v{vM}, v{vTt}
v_mov_b32 v{vTt}, v{vM}
v_permlane32_swap_b32 v{vM}, v{vTt}
v_max_f32 v{vM}, v{vM}, v{vTt}""")
    for r in range(8): A(f"v_sub_f32 v{vD0+r}, v{vD0+r}, v{vM}")
    A(f"ds_write_b32 v{vMBw}, v{vM}")
    for r in range(8): A(f"v_exp_f32 v{vD0+r}, v{vD0+r}")
    for p in range(4): A(f"v_cvt_pk_bf16_f32 v{vP+p}, v{vD0+2*p}, v{vD0+2*p+1}")
def aop(t): return vP if t == 0 else vROT + 4*(t-1)
def shifts(t): return [f"v_mov_b32_dpp v{aop(t)+p}, v{vP+p} row_ror:{16-4*t} row_mask:0xf bank_mask:0xf" for p in range(4)]
def lsum_ops():
    return [f"v_add_f32 v{vLs}, v{vD0}, v{vD0+1}", f"v_add_f32 v{vTt}, v{vD0+2}, v{vD0+3}",
            f"v_add_f32 v{vLs}, v{vLs}, v{vD1}", f"v_add_f32 v{vTt}, v{vTt}, v{vD1+1}",
            f"v_add_f32 v{vLs}, v{vLs}, v{vD1+2}", f"v_add_f32 v{vTt}, v{vTt}, v{vD1+3}",
            f"v_add_f32 v{vLs}, v{vLs}, v{vTt}",
            f"v_add_f32_dpp v{vLs}, v{vLs}, v{vLs} row_ror:4 row_mask:0xf bank_mask:0xf",
            f"v_add_f32_dpp v{vLs}, v{vLs}, v{vLs} row_ror:8 row_mask:0xf bank_mask:0xf",
            f"v_mov_b32 v{vTt}, v{vLs}", f"v_permlane16_swap_b32 v{vLs}, v{vTt}", f"v_add_f32 v{vLs}, v{vLs}, v{vTt}",
            f"v_mov_b32 v{vTt}, v{vLs}", f"v_permlane32_swap_b32 v{vLs}, v{vTt}", f"v_add_f32 v{vLs}, v{vLs}, v{vTt}",
            f"ds_write_b32 v{vMBw}, v{vLs} offset:64"]
def fw_ops():
    return [f"ds_read_b128 {vq(vF)}, v{vMBr}", "s_waitcnt lgkmcnt(0)",
            f"v_max3_f32 v{vMM}, v{vF}, v{vF+1}, v{vF+2}", f"v_max_f32 v{vMM}, v{vMM}, v{vF+3}"] + \
           [f"v_sub_f32 v{vF+i}, v{vF+i}, v{vMM}" for i in range(4)] + [f"v_exp_f32 v{vF+i}, v{vF+i}" for i in range(4)]
def pv_mfma(t, jd):
    c = "0" if t == 0 else vq(vACC+4*jd)
    A(f"v_mfma_f32_16x16x32_bf16 {vq(vACC+4*jd)}, {vq(aop(t))}, {vq(vR+32*t+4*jd)}, {c}")

qk(filler=lambda k: stream(2))
stream(40)
softmax()
for t in (1, 2, 3):
    for i in shifts(t): A(i)
for i in lsum_ops(): A(i)
stamp(6)
for t in range(4):
    A.vwait(f"V{8*t+7}")
    raw = vR + 32*(t+1); dst = vR + 32*t
    for jd in range(8):
        for p in range(4):
            A(f"v_perm_b32 v{dst+4*jd+p}, v{raw+4*(2*p+1)+(jd>>1)}, v{raw+4*(2*p)+(jd>>1)}, s{sSELHI if jd & 1 else sSELLO}")
        if jd: pv_mfma(t, jd-1)
    pv_mfma(t, 7)
    if t == 1:
        A("s_waitcnt lgkmcnt(0)\ns_barrier")
        for i in fw_ops(): A(i)
stamp(7)
flush_stamps(0, 8)

A("L_comb:")
exec_set(0xffff, 0)
for jd in range(8): A(f"ds_write_b128 v{vOBw}, {vq(vACC+4*jd)} offset:{256*jd}")
exec_all()
A("s_waitcnt lgkmcnt(0)\ns_barrier")
for w in range(4): A(f"ds_read2st64_b32 v[{44+2*w}:{45+2*w}], v{vOBr} offset0:{8*w} offset1:{8*w+1}")
A(f"ds_read_b128 v[52:55], v{vMBr} offset:64")
A("s_waitcnt lgkmcnt(1)")
A(f"v_mul_f32 v44, v{vF}, v44\nv_mul_f32 v45, v{vF}, v45")
for w in range(1, 4): A(f"v_fmac_f32 v44, v{vF+w}, v{44+2*w}\nv_fmac_f32 v45, v{vF+w}, v{45+2*w}")
A("v_cvt_pk_bf16_f32 v44, v44, v45")
pub_store(f"buffer_store_dword v44, v{vOpub}, {srd(rWS)}, s{sOpub} offen")
lm = lab("ml")
A(f"s_cmp_lg_u32 s{sw}, 0\ns_cbranch_scc1 {lm}")
A(f"""
s_waitcnt lgkmcnt(0)
v_mul_f32 v{vMM+1}, v{vF}, v52
v_fmac_f32 v{vMM+1}, v{vF+1}, v53
v_fmac_f32 v{vMM+1}, v{vF+2}, v54
v_fmac_f32 v{vMM+1}, v{vF+3}, v55
v_lshlrev_b32 v46, 3, v{vL}""")
exec_set(0xf, 0)
pub_store(f"buffer_store_dwordx2 v[{vMM}:{vMM+1}], v46, {srd(rWS)}, s{sMLpub} offen")
exec_all()
A(f"{lm}:")
stamp(0)
vO = 28; vml = 44; vDy = 48
la, laok = lab("pa"), lab("paok")
A(f"{la}:")
for s in range(4): A(f"buffer_load_dwordx4 {vq(vO+4*s)}, v{vOad}, {srd(rWS)}, s{sOget} offen offset:{64*s} sc1")
A(f"buffer_load_dwordx2 v[{vml}:{vml+1}], v{vMLad}, {srd(rWS)}, s{sMLget} offen sc1")
A("s_waitcnt vmcnt(0)")
chk = [f"v_max3_u32 v56, v{vml}, v{vml+1}, v{vO}"] + [f"v_max3_u32 v56, v56, v{vO+1+2*i}, v{vO+2+2*i}" for i in range(7)] + [f"v_max_u32 v56, v56, v{vO+15}"]
for s in range(4):
    for t in range(2):
        c = "0" if s == 0 else vq(vDy+4*t)
        A(f"v_mfma_f32_16x16x32_bf16 {vq(vDy+4*t)}, {vq(vO+4*s)}, {aq(aWO+(t*4+s)*4)}, {c}")
        for _ in range(2):
            if chk: A(chk.pop(0))
A(f"v_cmp_eq_u32 vcc, -1, v56\ns_cbranch_vccz {laok}")
retry(la)
A(f"{laok}:")
stamp(1)
A(f"""
v_max_f32_dpp v57, v{vml}, v{vml} quad_perm:[1,0,3,2] row_mask:0xf bank_mask:0xf
v_max_f32_dpp v57, v57, v57 quad_perm:[2,3,0,1] row_mask:0xf bank_mask:0xf
v_mov_b32 v58, v57
v_permlane16_swap_b32 v57, v58
v_max_f32 v57, v57, v58
v_mov_b32 v58, v57
v_permlane32_swap_b32 v57, v58
v_max_f32 v57, v57, v58
v_sub_f32 v57, v{vml}, v57
v_exp_f32 v57, v57
v_mul_f32 v58, v57, v{vml+1}
v_mul_f32_dpp v60, v57, v{vDy} quad_perm:[0,0,0,0] row_mask:0xf bank_mask:0xf
v_mul_f32_dpp v61, v57, v{vDy+4} quad_perm:[0,0,0,0] row_mask:0xf bank_mask:0xf
v_add_f32_dpp v58, v58, v58 quad_perm:[1,0,3,2] row_mask:0xf bank_mask:0xf
v_fmac_f32_dpp v60, v57, v{vDy+1} quad_perm:[1,1,1,1] row_mask:0xf bank_mask:0xf
v_fmac_f32_dpp v61, v57, v{vDy+5} quad_perm:[1,1,1,1] row_mask:0xf bank_mask:0xf
v_add_f32_dpp v58, v58, v58 quad_perm:[2,3,0,1] row_mask:0xf bank_mask:0xf
v_fmac_f32_dpp v60, v57, v{vDy+2} quad_perm:[2,2,2,2] row_mask:0xf bank_mask:0xf
v_fmac_f32_dpp v61, v57, v{vDy+6} quad_perm:[2,2,2,2] row_mask:0xf bank_mask:0xf
v_mov_b32 v59, v58
v_fmac_f32_dpp v60, v57, v{vDy+3} quad_perm:[3,3,3,3] row_mask:0xf bank_mask:0xf
v_fmac_f32_dpp v61, v57, v{vDy+7} quad_perm:[3,3,3,3] row_mask:0xf bank_mask:0xf
v_permlane16_swap_b32 v58, v59
v_add_f32 v58, v58, v59
v_permlane32_swap_b32 v60, v61
v_mov_b32 v59, v58
v_add_f32 v60, v60, v61
v_permlane32_swap_b32 v58, v59
v_mov_b32 v61, v60
v_add_f32 v58, v58, v59
v_permlane16_swap_b32 v60, v61
v_rcp_f32 v58, v58
v_add_f32 v60, v60, v61
v_mul_f32 v60, v60, v58
ds_write_b32 v{vREDA}, v60
s_waitcnt lgkmcnt(0)
s_barrier""")
ly, ly2 = lab("y"), lab("y2")
A(f"s_cmp_lg_u32 s{sw}, 0\ns_cbranch_scc1 {ly}")
A(f"""
ds_read_b128 v[28:31], v{vRED} offset:{REDA-RED0}
s_waitcnt lgkmcnt(0)
v_add_f32 v28, v28, v29
v_add_f32 v30, v30, v31
v_add_f32 v28, v28, v30""")
pack_pairs(28, 29)
exec_set(0x55555555, 0)
A(f"buffer_store_dword v28, v{vPAIR}, {srd(rWS)}, s{sYpub} offen sc1")
exec_all()
A(f"s_branch {ly2}\n{ly}:\ns_sleep 2\n{ly2}:")
stamp(2)
A(f"s_sleep {SLEEP_B}")
def gather(s0, s1, lp):
    lg, lok = lab(lp), lab(lp + "ok")
    A(f"{lg}:")
    A(f"buffer_load_dwordx4 v[32:35], v{vGad}, {srd(rWS)}, s{s0} offen sc1")
    A(f"buffer_load_dwordx4 v[36:39], v{vGad}, {srd(rWS)}, s{s1} offen sc1")
    A(f"""s_waitcnt vmcnt(1)
v_mfma_f32_16x16x32_bf16 v[40:43], {vq(vSEL)}, v[32:35], {vq(vX)}
s_waitcnt vmcnt(0)
v_mfma_f32_16x16x32_bf16 v[40:43], {vq(vSEL)}, v[36:39], v[40:43]
v_cmp_u_f32 vcc, v40, v40
s_cbranch_vccz {lok}""")
    retry(lg)
    A(f"{lok}:")
    A(f"v_cvt_pk_bf16_f32 v{vXP}, v40, v41\nv_cvt_pk_bf16_f32 v{vXP+1}, v42, v43")
gather(sYget, sYget1, "gb")
stamp(3)
lb = lab("nof")
A(f"s_cmp_ge_u32 s{sj}, 14")
xproc(aW1, 1, RED1-RED0, 32, skip_label=lb)
A(f"{lb}:\ns_waitcnt lgkmcnt(0)\ns_barrier")
lh = lab("h")
A(f"s_cmp_lg_u32 s{sw}, 0\ns_cbranch_scc1 {lh}\ns_cmp_ge_u32 s{sj}, 14\ns_cbranch_scc1 {lh}")
ln_final(RED1-RED0, 32)
A(f"""
v_mul_f32 v29, {f2u(-LOG2E):#x}, v28
v_exp_f32 v29, v29
v_add_f32 v29, 1.0, v29
v_rcp_f32 v29, v29
v_mul_f32 v28, v28, v29""")
pack_pairs(28, 29)
exec_set(0x5555, 0)
pub_store(f"buffer_store_dword v28, v{vPAIR}, {srd(rWS)}, s{sHpub} offen")
exec_all()
A(f"{lh}:")
stamp(4)
ld, ldok, ldsk = lab("pd"), lab("pdok"), lab("pdsk")
A(f"s_cmp_ge_u32 s{sw}, 2\ns_cbranch_scc1 {ldsk}")
A(f"{ld}:")
for s in range(7): A(f"buffer_load_dwordx4 {vq(28+4*s)}, v{vHad}, {srd(rWS)}, s{sHget} offen offset:{64*s} sc1")
for s in range(7):
    A(f"s_waitcnt vmcnt({6-s})")
    A(f"v_mfma_f32_16x16x32_bf16 v[56:59], {aq(aW2+4*s)}, {vq(28+4*s)}, {'0' if s == 0 else 'v[56:59]'}")
A(f"v_cmp_u_f32 vcc, v56, v56\ns_cbranch_vccz {ldok}")
retry(ld)
A(f"{ldok}:")
A("v_cvt_pk_bf16_f32 v56, v56, v57\nv_cvt_pk_bf16_f32 v57, v58, v59")
exec_set(0x00010001, 0x00010001)
A(f"buffer_store_dwordx2 v[56:57], v{vZpub}, {srd(rWS)}, s{sZpub} offen sc1")
exec_all()
A(f"{ldsk}:")
stamp(5)
A(f"s_cmp_lg_u32 s{sLAYER}, 0\ns_cbranch_scc1 L_final")
A("s_barrier")
A(f"s_sleep {SLEEP_E}")
gather(sZget, sZget1, "ge")
stamp(6)
xproc(aWQ, 2, 0, 0)
A(f"s_add_u32 s{rWS}, s{rWS}, {LS}\ns_addc_u32 s{rWS+1}, s{rWS+1}, 0\ns_mov_b32 s{rWS+2}, {LS:#x}\ns_mov_b32 s{sLAYER}, 1")
A("s_waitcnt lgkmcnt(0)\ns_barrier")
lq2 = lab("q2")
A(f"s_cmp_lg_u32 s{sw}, 0\ns_cbranch_scc1 {lq2}")
ln_final(0, 0)
A(f"v_mul_f32 v28, {f2u(QSCALE):#x}, v28")
pack_pairs(28, 29)
exec_set(0x55555555, 0)
pub_store(f"buffer_store_dword v28, v{vPAIR}, {srd(rWS)}, s{sQpub} offen")
exec_all()
A(f"{lq2}:")
stamp(7)
lg, lgok = lab("pg"), lab("pgok")
A(f"{lg}:")
for s in range(4): A(f"buffer_load_dwordx4 {vq(vQ+4*s)}, v{vQad}, {srd(rWS)}, s{sQget} offen offset:{64*s} sc1")
A("s_waitcnt vmcnt(0)")
A(f"v_max3_u32 v60, v{vQ}, v{vQ+1}, v{vQ+2}")
A(f"v_max3_u32 v61, v{vQ+3}, v{vQ+4}, v{vQ+5}")
for i in range(2): A(f"v_max3_u32 v60, v60, v{vQ+6+4*i}, v{vQ+7+4*i}\nv_max3_u32 v61, v61, v{vQ+8+4*i}, v{vQ+9+4*i}")
A(f"v_max3_u32 v60, v60, v{vQ+14}, v{vQ+15}\nv_max_u32 v60, v60, v61")
A(f"v_cmp_eq_u32 vcc, -1, v60\ns_cbranch_vccz {lgok}")
retry(lg)
A(f"{lgok}:")
stamp(8)
qk()
softmax()
ex = shifts(1) + shifts(2) + shifts(3) + lsum_ops()
for t in range(4):
    if t == 2:
        while ex: A(ex.pop(0))
        A("s_waitcnt lgkmcnt(0)\ns_barrier")
        ex = fw_ops()
    for jd in range(8):
        pv_mfma(t, jd)
        for _ in range(2):
            if ex: A(ex.pop(0))
while ex: A(ex.pop(0))
stamp(9)
flush_stamps(16, 10)
A("s_branch L_comb")
A("L_final:")
A(f"s_or_b32 s3, s{sg}, s{sj}\ns_cmp_lg_u32 s3, 0\ns_cbranch_scc1 L_done")
A(f"s_sleep {int(O.get('sf', 6))}")
gather(sZget, sZget1, "gf")
A(f"""
s_lshl_b32 s3, s{sb}, 10
s_lshl_b32 s{sT0}, s{sw}, 8
s_add_u32 s3, s3, s{sT0}
s_lshl_b32 s{sT0}, s{sw}, 9
s_add_u32 s{sT0}, s{sT0}, {XB}
s_sub_u32 s3, s3, s{sT0}
v_add_u32 v30, s3, v{vXBw}""")
exec_set(0xffffffff, 0)
A(f"global_store_dwordx2 v30, v[{vXP}:{vXP+1}], {sp(sOUT)}")
exec_all()
A("L_done:")
if PROF:
    stamp(6)
    flush_stamps(32, 7)
    A(f"""
s_lshl_b32 s3, s2, 2
s_add_u32 s3, s3, s{sw}
s_lshl_b32 s3, s3, 8
s_add_u32 s3, s3, {PROF_OFF}
v_lshlrev_b32 v30, 2, v{vL}
v_add_u32 v30, s3, v30
global_store_dword v30, v{vPROF}, {sp(sWS)}""")
A("L_end:\ns_endpgm")
A.raw('.section .rodata,"a"'); A.raw(".p2align 6"); A.raw(f".amdhsa_kernel {NAME}_kernel")
for l in ["next_free_vgpr 512", "next_free_sgpr 102", "accum_offset 256", "group_segment_fixed_size 0", "kernarg_size 88",
          "user_sgpr_count 2", "user_sgpr_kernarg_segment_ptr 1", "system_sgpr_workgroup_id_x 1"]:
    A.raw("  .amdhsa_" + l)
A.raw(".end_amdhsa_kernel")
open(out, "w").write("\n".join(H) + "\n" + A.text())
print("instrs", len(A.L), "nops inserted", A.nopcount, file=sys.stderr)
```

```python
import sys, math, struct
sys.path.insert(0, "gen")
from asmlib import Asm

NAME = "interleave_layers__gqa_block_cached__dense_activation_silu__decode"
out = sys.argv[1]
O = dict(kv.split("=") for kv in sys.argv[2:])
def opt(k, d): return type(d)(O.get(k, d))
PROF = opt("prof", 0); SWZ = opt("swz", 13)
SLEEP_B = opt("sb", 14); SLEEP_E = opt("se", 14); SLEEP_F = opt("sf", 6)
FORCE_SLOW = opt("slow", 0); EXP = opt("exp", "")
POL = {"nt": " nt", "none": "", "sc1": " sc1"}
WQPOL = POL[opt("wqpol", "nt")]; PFPOL = POL[opt("pfpol", "none")]; WPOL = POL[opt("wpol", "none")]
DROP = opt("drop", "").split(",")
WOS = opt("wos", -1)
WOSTEP = opt("wostep", 2)
def f2u(x): return struct.unpack("<I", struct.pack("<f", x))[0]
LOG2E = 1.4426950408889634
QSCALE = LOG2E / math.sqrt(128.0)

QS, ML, HS, YS, ZS, OS = 0, 16384, 24576, 32768, 49152, 65536
LS = 65536 + 262144
EPO = 2 * LS; FLG = EPO + 1024
WS_BYTES = FLG + 2048
PROF_OFF = 16 << 20
LWQ = 0; KST = 32768; LW2 = LWQ
XB = KST + 4 * 28672; RED0 = XB + 2048; RED1 = RED0 + 1024; REDA = RED0 + 2048; ST0 = RED0 + 2560; MB = RED0 + 2688; OB = RED0 + 3072
LDS_BYTES = OB + 8192
assert LDS_BYTES <= 163840
sX, sK, sV, sWQ, sWO, sW1, sW2, sOUT, sDBG, sWS = 4, 6, 8, 10, 12, 16, 18, 20, 22, 24
rK, rV, rWQ, rWO, rW1, rW2, rWS = 28, 32, 36, 40, 44, 48, 52
sg, sb, sj, sw, sFAST, sLAYER, sBUD = 56, 57, 58, 59, 60, 61, 62
sSELLO, sSELHI = 63, 64
sQpub, sQget, sMLpub, sMLget, sHpub, sHget, sYpub, sYget, sZpub, sZget, sOpub, sOget = range(65, 77)
sYget1, sZget1 = 77, 78
sT0, sT1, sT2, sT3 = 26, 27, 14, 15
sOclr = 81; sWOb = 21 + 80
sVb, sKm, sTAG0, sTAG1 = 79, 80, 22, 23
sSTAMP = 82
def srd(r): return f"s[{r}:{r+3}]"
def sp(r): return f"s[{r}:{r+1}]"
vL, vXBw, vXBr, vRED, vREDA, vOad, vMLad, vGad, vHad, vQad, vPAIR, vOBw = range(0, 12)
vSEL = 12; vX = 16
vOBr, vOpub, vMBw, vMBr, vST, vZpub = 20, 21, 22, 23, 24, 25
vQP = vOad
vVo = 26; vTrO = 27
vQ = 28; vD0, vD1 = 44, 48; vROT = 52; vACC = 64; vR = 96
vPROF = 255
vW1o, vW2o, vT1, vT2 = 224, 225, 226, 227
def vq(r, n=4): return f"v[{r}:{r+n-1}]"
def aq(r, n=4): return f"a[{r}:{r+n-1}]"
aK, aWQ, aWO, aW1, aW2 = 0, 128, 160, 192, 208

A = Asm()
uid = [0]
def lab(p):
    uid[0] += 1
    return f"L_{p}{uid[0]}"
def exec_set(lo, hi): A(f"s_mov_b32 exec_lo, {lo:#x}\ns_mov_b32 exec_hi, {hi:#x}")
def exec_all(): A("s_mov_b64 exec, -1")
def stamp(i):
    if PROF: A(f"s_memrealtime s[{sSTAMP+2*i}:{sSTAMP+2*i+1}]")
def flush_stamps(base, n):
    if not PROF: return
    A("s_waitcnt lgkmcnt(0)")
    for i in range(n): A(f"v_writelane_b32 v{vPROF}, s{sSTAMP+2*i}, {base+i}")
def retry(loop):
    A(f"s_sub_u32 s{sBUD}, s{sBUD}, 1\ns_cbranch_scc0 {loop}\ns_mov_b32 s{sBUD}, 0")
def pub_store(ins):
    a, b = lab("ps"), lab("pe")
    A(f"s_cmp_eq_u32 s{sFAST}, 0\ns_cbranch_scc1 {a}")
    A(ins, cond=True)
    A(f"s_branch {b}\n{a}:")
    A(ins + " sc1", cond=True)
    A(f"{b}:")

hdr = open(f"cdna_kernels/{NAME}.s.ref").read().split("\n")
H = [l for l in hdr if l.startswith(";") and "@launch" not in l and not l.startswith("; Override") and not l.startswith("; grid=ceil")]
H.append(f"; @launch grid=(256,1,1) block=(256,1,1) lds={LDS_BYTES}")
A.raw('.amdgcn_target "amdgcn-amd-amdhsa--gfx950"')
A.raw(".text"); A.raw(f".globl {NAME}_kernel"); A.raw(".p2align 8"); A.raw(f".type {NAME}_kernel,@function")
A.raw(f"{NAME}_kernel:")

tn, tq = 31, 32
vKo = vR
vKr = vR + 4
vK7 = vR + 8
vWQo = vR + 12; vTq = vR + 13; vWOo = 228; vPF = 35
stamp(0)
A(f"""
s_cmp_ge_u32 s2, 256
s_cbranch_scc1 L_end
s_load_dwordx16 s[4:19], s[0:1], 0
s_load_dwordx2 s[20:21], s[0:1], 64
s_load_dwordx2 s[24:25], s[0:1], 80
v_lshrrev_b32 v30, 6, v0
v_and_b32 v{vL}, 63, v0
s_and_b32 s{sg}, s2, 7
v_readfirstlane_b32 s{sw}, v30
s_lshr_b32 s{sj}, s2, 3
s_lshr_b32 s{sb}, s{sj}, 4
s_and_b32 s{sj}, s{sj}, 15
v_and_b32 v{tn}, 15, v{vL}
v_lshrrev_b32 v{tq}, 4, v{vL}
s_lshl_b32 s{sT0}, s2, 2
s_add_u32 s{sT0}, s{sT0}, s{sw}
s_mul_i32 s{sT0}, s{sT0}, {SWZ}
s_and_b32 s{sT0}, s{sT0}, 31      ; r
s_lshl_b32 s{sT1}, s{sb}, 3
s_add_u32 s{sT1}, s{sT1}, s{sg}   ; bg
s_lshl_b32 s{sVb}, s{sT1}, 21
s_lshl_b32 s3, s{sj}, 17
s_add_u32 s{sVb}, s{sVb}, s3
s_lshl_b32 s3, s{sw}, 15
s_add_u32 s{sVb}, s{sVb}, s3
s_lshl_b32 s3, s{sT0}, 10
s_add_u32 s{sVb}, s{sVb}, s3
s_mul_i32 s{sKm}, s{sw}, 28672
s_add_u32 s{sKm}, s{sKm}, {KST}
v_lshlrev_b32 v{vVo}, 4, v{vL}
v_mov_b32 v{vKo}, v{vVo}
v_xor_b32 v{vKo+1}, 64, v{vVo}
v_xor_b32 v{vKo+2}, 128, v{vVo}
v_xor_b32 v{vKo+3}, 192, v{vVo}
v_and_b32 v33, 1, v{tq}
v_lshlrev_b32 v33, 3, v33
v_lshl_add_u32 v33, v{tn}, 4, v33      ; 16n+8(q&1)
s_lshl_b32 s3, s{sb}, 10
s_lshl_b32 s{sT0}, s{sw}, 8
s_add_u32 s3, s3, s{sT0}
v_add_u32 v34, s3, v33
v_lshrrev_b32 v35, 2, v{vL}
v_and_b32 v36, 3, v{vL}
v_lshlrev_b32 v36, 4, v36
v_lshl_add_u32 v{vWQo}, v35, 13, v36
s_lshl_b32 s3, s{sb}, 7
s_add_u32 s3, s3, {EPO}
v_mov_b32 v37, s3
s_lshl_b32 s{sBUD}, s{sw}, 20
s_lshl_b32 s3, s{sg}, 10
s_add_u32 s{sBUD}, s{sBUD}, s3
s_lshl_b32 s3, s{sj}, 6
s_add_u32 s{sBUD}, s{sBUD}, s3
s_lshl_b32 s{sLAYER}, s{sw}, 13
s_waitcnt lgkmcnt(0)
""")
def mksrd(r, p, nbytes):
    A(f"s_mov_b32 s{r}, s{p}\ns_and_b32 s{r+1}, s{p+1}, 0xffff\ns_mov_b32 s{r+2}, {nbytes:#x}\ns_mov_b32 s{r+3}, 0x20000")
mksrd(rWQ, sWQ, 512*4096*2); mksrd(rK, sK, 1 << 25)
A(f"global_load_dwordx2 v[40:41], v37, {sp(sWS)} sc1", tag="ep")
A(f"global_load_dwordx2 v[38:39], v34, {sp(sX)}", tag="x")
def kdma(n):
    k, i = n >> 2, n & 3
    if k < 7: A(f"s_add_u32 m0, s{sKm}, {k*4096 + i*1024}")
    else: A(f"s_lshl_b32 s3, s{sw}, 13\ns_add_u32 m0, s3, {LWQ + i*1024}")
    A(f"s_xor_b32 s{sT0}, s{sVb}, {n*1024}")
    A(f"buffer_load_dwordx4 v{vKo+i}, {srd(rK)}, s{sT0} offen nt lds", tag=f"K{n}")
def kread(k):
    A.vwait(f"K{4*k+3}")
    for s in range(4):
        if k < 7: A(f"ds_read_b128 {aq(aK+16*k+4*s)}, v{vKr+s} offset:{k*4096}")
        else: A(f"ds_read_b128 {aq(aK+16*k+4*s)}, v{vK7+s}")
def vload(n):
    A(f"s_xor_b32 s{sT1}, s{sVb}, {n*1024}")
    A(f"buffer_load_dwordx4 {vq(vR+32+4*n)}, v{vVo}, {srd(rV)}, s{sT1} offen nt", tag=f"V{n}")
def dma(vo, r, sbase, m0reg, m0add, soffadd, tag, pol, cond=False):
    if tag[:2] in DROP:
        A.vq.append((tag, True)); return
    A(f"s_add_u32 m0, s{m0reg}, {m0add}\ns_add_u32 s3, s{sbase}, {soffadd}")
    A(f"buffer_load_dwordx4 v{vo}, {srd(r)}, s3 offen{pol} lds", tag=tag, cond=cond)
KI = opt("ki", 1)
nK = [0]
for i in range(8):
    dma(vWQo, rWQ, sBUD, sLAYER, LWQ + 1024*i, i << 17, f"WQ{i}", WQPOL)
    for _ in range(KI): kdma(nK[0]); nK[0] += 1
stamp(1)
mksrd(rV, sV, 1 << 25); mksrd(rWO, sWO, 4096*512*2); mksrd(rW1, sW1, 512*1792*2); mksrd(rW2, sW2, 1792*512*2); mksrd(rWS, sWS, WS_BYTES)
A(f"""
s_mov_b32 s{sLAYER}, 0
s_mov_b32 s{sBUD}, 400000
s_mov_b32 s{sSELLO}, 0x05040100
s_mov_b32 s{sSELHI}, 0x07060302
s_lshl_b32 s{sT1}, s{sg}, 1
s_add_u32 s{sT1}, s{sT1}, s{sb}          ; gb
s_lshl_b32 s{sQget}, s{sT1}, 10
s_and_b32 s3, s{sj}, 3
s_lshl_b32 s3, s3, 8
s_add_u32 s{sQpub}, s{sQget}, s3
s_lshr_b32 s3, s{sj}, 2
s_lshl_b32 s3, s3, 4
s_add_u32 s{sQpub}, s{sQpub}, s3
s_lshl_b32 s{sMLget}, s{sT1}, 9
s_add_u32 s{sHget}, s{sMLget}, {HS}
s_add_u32 s{sMLget}, s{sMLget}, {ML}
s_lshl_b32 s3, s{sj}, 5
s_add_u32 s{sT2}, s{sMLget}, s3
s_add_u32 s{sHpub}, s{sHget}, s3
s_lshl_b32 s3, s{sj}, 3
s_add_u32 s{sMLpub}, s{sMLget}, s3
s_lshl_b32 s3, s{sw}, 7
s_add_u32 s{sMLget}, s{sMLget}, s3
s_lshl_b32 s{sOget}, s{sT1}, 14
s_add_u32 s{sOget}, s{sOget}, {OS}
s_lshl_b32 s3, s{sj}, 10
s_add_u32 s{sOclr}, s{sOget}, s3
s_lshl_b32 s3, s{sj}, 4
s_add_u32 s{sOpub}, s{sOget}, s3
s_lshl_b32 s3, s{sw}, 10
s_add_u32 s{sOpub}, s{sOpub}, s3
s_lshl_b32 s3, s{sw}, 12
s_add_u32 s{sOget}, s{sOget}, s3
s_lshl_b32 s{sYget}, s{sb}, 13
s_add_u32 s{sYget}, s{sYget}, {YS}
s_add_u32 s{sYget1}, s{sYget}, 4096
s_add_u32 s{sZget}, s{sYget}, {ZS-YS}
s_add_u32 s{sZget1}, s{sZget}, 4096
s_lshl_b32 s3, s{sg}, 10
s_add_u32 s{sYpub}, s{sYget}, s3
s_lshl_b32 s3, s{sj}, 6
s_add_u32 s{sYpub}, s{sYpub}, s3
s_add_u32 s{sZpub}, s{sYpub}, {ZS-YS}
""")
lc = lab("clr")
A(f"s_cmp_lg_u32 s{sw}, {99 if 'clr' in DROP else 0}\ns_cbranch_scc1 {lc}")
A(f"""
v_mul_u32_u24 v45, 48, v{tn}
v_add_u32 v45, s{sQpub}, v45
v_mov_b32 v46, s{sT2}
v_subrev_u32 v46, 64, v46
v_cmp_le_u32 vcc, 4, v{tn}
v_cndmask_b32 v45, v45, v46, vcc
v_mov_b32 v46, s{sHpub}
v_subrev_u32 v46, 96, v46
v_cmp_le_u32 vcc, 6, v{tn}
v_cndmask_b32 v45, v45, v46, vcc
v_mov_b32 v46, s{sYpub}
v_subrev_u32 v46, 128, v46
v_cmp_le_u32 vcc, 8, v{tn}
v_cndmask_b32 v45, v45, v46, vcc
v_mov_b32 v46, s{sZpub}
v_subrev_u32 v46, 192, v46
v_cmp_le_u32 vcc, 12, v{tn}
v_cndmask_b32 v45, v45, v46, vcc
v_lshl_add_u32 v45, v{tn}, 4, v45
v_mul_u32_u24 v46, {LS}, v{tq}
v_add_u32 v45, v45, v46
v_mov_b32 v48, -1
v_mov_b32 v49, -1
v_mov_b32 v50, -1
v_mov_b32 v51, -1
s_add_u32 s3, s{sOclr}, {LS}
""")
exec_set(0xffffffff, 0)
A(f"buffer_store_dwordx4 v[48:51], v45, {srd(rWS)}, 0 offen sc1", cond=True)
exec_all()
A(f"buffer_store_dwordx4 v[48:51], v{vVo}, {srd(rWS)}, s{sOclr} offen sc1", cond=True)
A(f"buffer_store_dwordx4 v[48:51], v{vVo}, {srd(rWS)}, s3 offen sc1", tag="clr", cond=True)
A(f"{lc}:")
A(f"""
s_lshl_b32 s3, s{sw}, 9
s_add_u32 s3, s3, {XB}
v_add_u32 v{vXBw}, s3, v33
v_lshrrev_b32 v44, 3, v{tn}
v_lshlrev_b32 v44, 8, v44
v_lshl_add_u32 v44, v{tq}, 4, v44
v_add_u32 v{vXBr}, s3, v44
v_lshlrev_b32 v47, 2, v{vL}                ; 4l
v_add_u32 v44, s3, v47
v_mov_b32 v42, 0x3f803f80
ds_write_b32 v44, v42 offset:256
s_lshl_b32 s3, s{sw}, 2
s_add_u32 s{sT1}, s3, {RED0}
v_add_u32 v{vRED}, s{sT1}, v{vVo}
v_lshrrev_b32 v46, 5, v{vL}
v_lshl_add_u32 v46, v46, 4, v{tn}
v_lshlrev_b32 v46, 4, v46
s_add_u32 s{sT1}, s3, {REDA}
v_add_u32 v{vREDA}, s{sT1}, v46
s_add_u32 s{sT1}, s3, {ST0}
v_mov_b32 v{vST}, s{sT1}
v_and_b32 v42, 3, v{vL}                    ; h
v_lshlrev_b32 v43, 4, v42
v_add_u32 v{vMBw}, {MB}, v43
v_add_u32 v{vMBw}, s3, v{vMBw}
s_lshl_b32 s3, s{sw}, 8
v_lshlrev_b32 v43, 4, v{tq}                ; 16q
v_add_u32 v{vMBr}, {MB}, v43
v_lshrrev_b32 v44, 3, v{vL}
v_and_b32 v46, 6, v{vL}
v_lshlrev_b32 v46, 1, v46
v_lshl_add_u32 v{vQP}, v44, 6, v46
v_lshlrev_b32 v44, 4, v{tn}
v_lshl_add_u32 v44, v{tq}, 10, v44
v_add_u32 v{vGad}, s3, v44
v_mov_b32 v{vHad}, v43
v_lshlrev_b32 v44, 4, v42
v_lshl_add_u32 v{vQad}, v{tq}, 6, v44
v_lshl_add_u32 v44, v{tq}, 2, v42
v_lshlrev_b32 v{vMLad}, 3, v44
v_lshrrev_b32 v44, 1, v{vL}
v_lshlrev_b32 v{vPAIR}, 2, v44
s_lshl_b32 s3, s{sw}, 11
s_add_u32 s3, s3, {OB}
v_lshlrev_b32 v44, 4, v{tn}
v_add_u32 v{vOBw}, s3, v44
s_lshl_b32 s3, s{sw}, 9
s_add_u32 s3, s3, {OB}
v_lshl_add_u32 v44, v{tq}, 2, v44
v_add_u32 v{vOBr}, s3, v44
v_lshrrev_b32 v44, 2, v{tn}
v_lshlrev_b32 v44, 8, v44
v_lshl_add_u32 v44, v42, 2, v44
v_lshl_add_u32 v{vOpub}, v{tq}, 12, v44
s_and_b32 s3, s{sw}, 1
s_lshl_b32 s3, s3, 5
v_lshlrev_b32 v44, 3, v{tq}
v_add_u32 v{vZpub}, s3, v44
v_mul_u32_u24 v44, 1088, v42
v_lshrrev_b32 v45, 2, v{tn}
v_lshl_add_u32 v44, v45, 8, v44
v_add_u32 v44, v44, v43
s_lshl_b32 s3, s{sw}, 13
""")
for s in range(4):
    A(f"v_xor_b32 v46, {64*s}, v44\nv_add_u32 v{vKr+s}, s{sKm}, v46\nv_add_u32 v{vK7+s}, s3, v46")
A(f"""
v_and_b32 v44, 1, v{tn}
v_lshlrev_b32 v44, 4, v44
v_mov_b32 v46, 0x3f80
v_lshlrev_b32 v46, v44, v46
v_lshrrev_b32 v44, 1, v{tn}
""")
for i in range(4):
    A(f"v_cmp_eq_u32 vcc, {i}, v44\nv_cndmask_b32 v{vSEL+i}, 0, v46, vcc")
A(f"""
v_lshlrev_b32 v44, 3, v42                 ; 8c
v_lshl_add_u32 v46, v{tq}, 3, v45         ; 8q+r
v_lshl_add_u32 v{vTq}, v46, 6, v44
v_add_u32 v{vTq}, s3, v{vTq}
v_and_b32 v47, 1, v45
v_lshrrev_b32 v43, 1, v45
v_lshl_add_u32 v47, v43, 3, v47
v_lshl_add_u32 v47, v{tq}, 5, v47
v_lshl_add_u32 v{vTrO}, v47, 6, v44
v_add_u32 v{vTrO}, s{sKm}, v{vTrO}
""")

pend = [("K", n) for n in range(nK[0], 32)]
for n in range(32):
    pend.append(("V", n))
    if WOS >= 0 and n >= WOS and (n - WOS) % WOSTEP == 0 and (n - WOS) // WOSTEP < 8: pend.append(("WO", (n - WOS) // WOSTEP))
kr = [0]
def stream(k=1, upto=None):
    while pend and (k > 0 or upto):
        kind, n = pend.pop(0)
        if kind == "K":
            kdma(n)
        elif kind == "WO":
            if n == 0:
                assert kr[0] >= 2
                A(f"""s_waitcnt lgkmcnt(0)
v_lshrrev_b32 v111, 2, v{vL}
v_and_b32 v112, 3, v{vL}
v_lshlrev_b32 v112, 4, v112
v_lshl_add_u32 v111, v111, 10, v112
s_lshl_b32 s{sWOb}, s{sg}, 19
s_lshl_b32 s3, s{sw}, 17
s_add_u32 s{sWOb}, s{sWOb}, s3
s_lshl_b32 s3, s{sj}, 6
s_add_u32 s{sWOb}, s{sWOb}, s3""")
            dma(111, rWO, sWOb, sKm, 1024*n, n << 14, f"WO{n}", WQPOL)
            continue
        else:
            vload(n)
        pos = n if kind == "K" else 32 + n
        if allow_kread[0]:
            while kr[0] < 8 and 4*kr[0] + 3 + opt("klag", 8) <= pos:
                kread(kr[0]); kr[0] += 1
        k -= 1
        if upto and (kind, n) == upto: break
        if upto is None and k <= 0: break
allow_kread = [False]

def tr_reads(adst, vbase, steps, tiles, sstep, tstep, second):
    for t in range(tiles):
        for s in range(steps):
            d = adst + (t*steps + s)*4
            A(f"ds_read_b64_tr_b16 a[{d}:{d+1}], v{vbase} offset:{s*sstep + t*tstep}")
            A(f"ds_read_b64_tr_b16 a[{d+2}:{d+3}], v{vbase} offset:{s*sstep + t*tstep + second}")

vXP = 28; vXA = 32; vG0 = 48
vS, vSQ, vTm = 30, 31, 56
def xproc(aW, tiles, red_off, st_off, skip_label=None, filler=None):
    exec_set(0xffffffff, 0)
    A(f"ds_write_b64 v{vXBw}, v[{vXP}:{vXP+1}]")
    exec_all()
    for s in range(4): A(f"ds_read_b128 {vq(vXA+4*s)}, v{vXBr} offset:{64*s}")
    A(f"""
v_lshlrev_b32 v{vX}, 16, v{vXP}
v_and_b32 v{vX+1}, 0xffff0000, v{vXP}
v_lshlrev_b32 v{vX+2}, 16, v{vXP+1}
v_and_b32 v{vX+3}, 0xffff0000, v{vXP+1}""")
    if skip_label: A(f"s_cbranch_scc1 {skip_label}")
    A(f"""
v_add_f32 v{vS}, v{vX}, v{vX+1}
v_mul_f32 v{vSQ}, v{vX}, v{vX}
v_add_f32 v{vTm}, v{vX+2}, v{vX+3}
v_fmac_f32 v{vSQ}, v{vX+1}, v{vX+1}
v_add_f32 v{vS}, v{vS}, v{vTm}
v_fmac_f32 v{vSQ}, v{vX+2}, v{vX+2}
v_fmac_f32 v{vSQ}, v{vX+3}, v{vX+3}""")
    for r in (8, 4):
        A(f"v_add_f32_dpp v{vS}, v{vS}, v{vS} row_ror:{r} row_mask:0xf bank_mask:0xf")
        A(f"v_add_f32_dpp v{vSQ}, v{vSQ}, v{vSQ} row_ror:{r} row_mask:0xf bank_mask:0xf")
    if filler: filler()
    A("s_waitcnt lgkmcnt(0)")
    dp = [f"v_add_f32_dpp v{vS}, v{vS}, v{vS} row_ror:2 row_mask:0xf bank_mask:0xf",
          f"v_add_f32_dpp v{vSQ}, v{vSQ}, v{vSQ} row_ror:2 row_mask:0xf bank_mask:0xf",
          f"v_add_f32_dpp v{vS}, v{vS}, v{vS} row_ror:1 row_mask:0xf bank_mask:0xf",
          f"v_add_f32_dpp v{vSQ}, v{vSQ}, v{vSQ} row_ror:1 row_mask:0xf bank_mask:0xf",
          f"v_add_f32_dpp v{vS}, v{vS}, v{vS} row_bcast:15 row_mask:0xa bank_mask:0xf",
          f"v_add_f32_dpp v{vSQ}, v{vSQ}, v{vSQ} row_bcast:15 row_mask:0xa bank_mask:0xf"]
    for s in range(4):
        for t in range(tiles):
            c = "0" if s == 0 else vq(vG0+4*t)
            A(f"v_mfma_f32_16x16x32_bf16 {vq(vG0+4*t)}, {vq(vXA+4*s)}, {aq(aW+(t*4+s)*4)}, {c}")
        for _ in range(2):
            if dp: A(dp.pop(0))
    exec_set(0x10000, 0)
    A(f"ds_write2_b32 v{vST}, v{vS}, v{vSQ} offset0:{st_off//4} offset1:{st_off//4+4}")
    exec_all()
    if tiles == 2:
        A(f"v_mov_b32_dpp v{vG0}, v{vG0+4} quad_perm:[0,1,2,3] row_mask:0xa bank_mask:0xf")
    A(f"ds_write_b32 v{vRED}, v{vG0} offset:{red_off}")

def ln_final(red_off, st_off):
    A(f"""
ds_read_b128 v[36:39], v{vST} offset:{st_off}
ds_read_b128 v[40:43], v{vST} offset:{st_off+16}
ds_read_b128 v[28:31], v{vRED} offset:{red_off}
ds_read_b128 v[32:35], v{vRED} offset:{red_off+512}
s_mov_b32 s3, {f2u(1.0/512):#x}
v_mov_b32 v44, {f2u(1e-5):#x}
s_waitcnt lgkmcnt(0)
v_add_f32 v36, v36, v37
v_add_f32 v38, v38, v39
v_add_f32 v40, v40, v41
v_add_f32 v42, v42, v43
v_add_f32 v36, v36, v38
v_add_f32 v40, v40, v42
v_mul_f32 v36, s3, v36                ; mean
v_fma_f32 v41, s3, v40, v44           ; E[x^2] + eps
v_add_f32 v28, v28, v29
v_fma_f32 v41, -v36, v36, v41
v_add_f32 v30, v30, v31
v_max_f32 v41, v44, v41
v_add_f32 v32, v32, v33
v_rsq_f32 v41, v41
v_add_f32 v34, v34, v35
v_add_f32 v28, v28, v30
v_add_f32 v32, v32, v34
v_fma_f32 v28, -v36, v32, v28
v_mul_f32 v28, v28, v41
""")
def pack_pairs(v, t):
    A(f"v_mov_b32_dpp v{t}, v{v} quad_perm:[1,0,3,2] row_mask:0xf bank_mask:0xf\nv_cvt_pk_bf16_f32 v{v}, v{v}, v{t}")

stream(opt("pre1", 4))
A.vwait("WQ7")
stamp(2)
A(f"v_readfirstlane_b32 s{sTAG0}, v40\nv_readfirstlane_b32 s{sTAG1}, v41")
tr_reads(aWQ, vTq, 4, 2, 2048, 32, 256)
A(f"s_add_u32 s{sTAG0}, s{sTAG0}, 1\ns_andn2_b32 s{sTAG1}, s{sTAG1}, 15")
A(f"v_cmp_gt_u32 vcc, 32, v{vL}\nv_cndmask_b32 v{vXP}, 0, v38, vcc\nv_cndmask_b32 v{vXP+1}, 0, v39, vcc")
xproc(aWQ, 2, 0, 0, filler=lambda: stream(2))
stream(2)
A("s_waitcnt lgkmcnt(0)\ns_barrier")
lq = lab("q1")
A(f"s_cmp_lg_u32 s{sw}, 0\ns_cbranch_scc1 {lq}")
A.vwait("clr")
A(f"""
s_getreg_b32 s3, hwreg(HW_REG_XCC_ID, 0, 4)
s_or_b32 s3, s3, s{sTAG1}
v_mov_b32 v46, s{sTAG0}
v_mov_b32 v47, s3
s_lshl_b32 s3, s{sb}, 3
s_add_u32 s3, s3, s{sg}
s_lshl_b32 s3, s3, 4
s_add_u32 s3, s3, s{sj}
s_lshl_b32 s3, s3, 3
s_add_u32 s3, s3, {FLG}
v_mov_b32 v45, 0""")
exec_set(1, 0)
A(f"buffer_store_dwordx2 v[46:47], v45, {srd(rWS)}, s3 offen sc1", cond=True)
exec_all()
ln_final(0, 0)
A(f"v_mul_f32 v28, {f2u(QSCALE):#x}, v28")
pack_pairs(28, 29)
exec_set(0x55555555, 0)
A(f"buffer_store_dword v28, v{vQP}, {srd(rWS)}, s{sQpub} offen sc1", tag="q1", cond=True)
exec_all()
A(f"{lq}:")
stamp(3)
allow_kread[0] = True
CEN = opt("cenpos", 30)
def upto_pos(p): return ("K", p) if p < 32 else ("V", p - 32)
stream(upto=upto_pos(CEN))
A(f"s_lshl_b32 s{sT2}, s{sb}, 10\ns_add_u32 s{sT2}, s{sT2}, {FLG}")
A(f"buffer_load_dwordx4 v[32:35], v{vVo}, {srd(rWS)}, s{sT2} offen sc1", tag="cen")
stream(opt("cenlag", 8))
A.vwait("cen")
lcen, lcok = lab("cen"), lab("cok")
A(f"""
{lcen}:
v_xor_b32 v36, s{sTAG0}, v32
v_xor_b32 v37, s{sTAG0}, v34
v_xor_b32 v38, s{sTAG1}, v33
v_xor_b32 v39, s{sTAG1}, v35
v_or_b32 v40, v38, v39
v_and_b32 v40, -16, v40
v_or3_b32 v36, v36, v37, v40
v_cmp_ne_u32 vcc, 0, v36
s_cbranch_vccz {lcok}
{"s_branch "+lcok if "cen" in DROP else ""}
s_sleep 4""")
A(f"buffer_load_dwordx4 v[32:35], v{vVo}, {srd(rWS)}, s{sT2} offen sc1", cond=True)
A("s_waitcnt vmcnt(0)")
retry(lcen)
A(f"{lcok}:")
stamp(4)
A(f"""
s_getreg_b32 s3, hwreg(HW_REG_XCC_ID, 0, 4)
v_xor_b32 v38, s3, v38
v_xor_b32 v39, s3, v39
v_or_b32 v38, v38, v39
v_cmp_eq_u32 vcc, 0, v38
s_lshl_b32 s3, s{sg}, 3
s_lshr_b64 s[{sT2}:{sT2+1}], vcc, s3
s_and_b32 s{sT2}, s{sT2}, 0xff
s_cmp_eq_u32 s{sT2}, 0xff
s_cselect_b32 s{sFAST}, {0 if FORCE_SLOW else 1}, 0""")
def wo_pf():
    A(f"""
s_lshr_b32 s3, s2, 3
s_lshl_b32 s3, s3, 2
s_add_u32 s3, s3, s{sw}
s_lshl_b32 s3, s3, 12
s_lshl_b32 s{sT2}, s{sg}, 19
s_add_u32 s{sT2}, s{sT2}, s3
v_lshlrev_b32 v110, 7, v{vL}""")
    exec_set(0xffffffff, 0)
    if "pfo" not in DROP: A(f"buffer_load_dword a250, v110, {srd(rWO)}, s{sT2} offen{PFPOL}", tag="pfo")
    exec_all()
def qloads():
    for s in range(4):
        A(f"buffer_load_dwordx4 {vq(vQ+4*s)}, v{vQad}, {srd(rWS)}, s{sQget} offen offset:{256*s} sc1", tag="Q")
stream(upto=upto_pos(opt("qpos", 40)))
qloads()
stream(opt("qlag", 7))
A.vwait("Q")
lq1, lq1ok = lab("ql"), lab("qlok")
def qcheck(t0, t1):
    A(f"v_max3_u32 v{t0}, v{vQ}, v{vQ+1}, v{vQ+2}")
    A(f"v_max3_u32 v{t1}, v{vQ+3}, v{vQ+4}, v{vQ+5}")
    for i in range(2): A(f"v_max3_u32 v{t0}, v{t0}, v{vQ+6+4*i}, v{vQ+7+4*i}\nv_max3_u32 v{t1}, v{t1}, v{vQ+8+4*i}, v{vQ+9+4*i}")
    A(f"v_max3_u32 v{t0}, v{t0}, v{vQ+14}, v{vQ+15}\nv_max_u32 v{t0}, v{t0}, v{t1}")
    A(f"v_cmp_eq_u32 vcc, -1, v{t0}")
A(f"{lq1}:")
qcheck(60, 61)
A(f"s_cbranch_vccz {lq1ok}")
if "cen" in DROP: A(f"s_branch {lq1ok}")
for s in range(4):
    A(f"buffer_load_dwordx4 {vq(vQ+4*s)}, v{vQad}, {srd(rWS)}, s{sQget} offen offset:{256*s} sc1", cond=True)
A("s_waitcnt vmcnt(0)")
retry(lq1)
A(f"{lq1ok}:")
assert kr[0] == 8
A("s_waitcnt lgkmcnt(0)")
stamp(5)

def qk(filler=None):
    tiles = [(t, u) for t in range(4) for u in range(2)]
    def dreg(k):
        t, u = tiles[k]
        return (vD0 if u == 0 else vD1) if t == 0 else vROT + 4*(k % 3)
    def sel(k):
        t, u = tiles[k]
        if t == 0: return []
        return [f"v_mov_b32_dpp v{(vD0 if u == 0 else vD1)+r}, v{dreg(k)+r} quad_perm:[0,1,2,3] row_mask:0xf bank_mask:{1 << t:#x}" for r in range(4)]
    for k in range(8):
        ex = sel(k-2) if k >= 2 else []
        for s in range(4):
            c = "0" if s == 0 else vq(dreg(k))
            A(f"v_mfma_f32_16x16x32_bf16 {vq(dreg(k))}, {aq(aK+16*k+4*s)}, {vq(vQ+4*s)}, {c}")
            if ex: A(ex.pop(0))
        if filler: filler(k)
    for k in (6, 7):
        for i in sel(k): A(i)
vM, vTt, vLs, vP = 32, 33, 34, 28
vF = 36; vMM = 40
def softmax():
    A(f"""
v_max3_f32 v{vM}, v{vD0}, v{vD0+1}, v{vD0+2}
v_max3_f32 v{vTt}, v{vD0+3}, v{vD1}, v{vD1+1}
v_max3_f32 v{vM}, v{vM}, v{vD1+2}, v{vD1+3}
v_max_f32 v{vM}, v{vM}, v{vTt}
v_max_f32_dpp v{vM}, v{vM}, v{vM} row_ror:4 row_mask:0xf bank_mask:0xf
v_max_f32_dpp v{vM}, v{vM}, v{vM} row_ror:8 row_mask:0xf bank_mask:0xf
v_mov_b32 v{vTt}, v{vM}
v_permlane16_swap_b32 v{vM}, v{vTt}
v_max_f32 v{vM}, v{vM}, v{vTt}
v_mov_b32 v{vTt}, v{vM}
v_permlane32_swap_b32 v{vM}, v{vTt}
v_max_f32 v{vM}, v{vM}, v{vTt}""")
    for r in range(8): A(f"v_sub_f32 v{vD0+r}, v{vD0+r}, v{vM}")
    A(f"ds_write_b32 v{vMBw}, v{vM}")
    for r in range(8): A(f"v_exp_f32 v{vD0+r}, v{vD0+r}")
    for p in range(4): A(f"v_cvt_pk_bf16_f32 v{vP+p}, v{vD0+2*p}, v{vD0+2*p+1}")
def aop(t): return vP if t == 0 else vROT + 4*(t-1)
def shifts(t): return [f"v_mov_b32_dpp v{aop(t)+p}, v{vP+p} row_ror:{16-4*t} row_mask:0xf bank_mask:0xf" for p in range(4)]
def lsum_ops():
    return [f"v_add_f32 v{vLs}, v{vD0}, v{vD0+1}", f"v_add_f32 v{vTt}, v{vD0+2}, v{vD0+3}",
            f"v_add_f32 v{vLs}, v{vLs}, v{vD1}", f"v_add_f32 v{vTt}, v{vTt}, v{vD1+1}",
            f"v_add_f32 v{vLs}, v{vLs}, v{vD1+2}", f"v_add_f32 v{vTt}, v{vTt}, v{vD1+3}",
            f"v_add_f32 v{vLs}, v{vLs}, v{vTt}",
            f"v_add_f32_dpp v{vLs}, v{vLs}, v{vLs} row_ror:4 row_mask:0xf bank_mask:0xf",
            f"v_add_f32_dpp v{vLs}, v{vLs}, v{vLs} row_ror:8 row_mask:0xf bank_mask:0xf",
            f"v_mov_b32 v{vTt}, v{vLs}", f"v_permlane16_swap_b32 v{vLs}, v{vTt}", f"v_add_f32 v{vLs}, v{vLs}, v{vTt}",
            f"v_mov_b32 v{vTt}, v{vLs}", f"v_permlane32_swap_b32 v{vLs}, v{vTt}", f"v_add_f32 v{vLs}, v{vLs}, v{vTt}",
            f"ds_write_b32 v{vMBw}, v{vLs} offset:64"]
def fw_ops():
    return [f"ds_read_b128 {vq(vF)}, v{vMBr}", "s_waitcnt lgkmcnt(0)",
            f"v_max3_f32 v{vMM}, v{vF}, v{vF+1}, v{vF+2}", f"v_max_f32 v{vMM}, v{vMM}, v{vF+3}"] + \
           [f"v_sub_f32 v{vF+i}, v{vF+i}, v{vMM}" for i in range(4)] + [f"v_exp_f32 v{vF+i}, v{vF+i}" for i in range(4)]
def pv_mfma(t, jd):
    c = "0" if t == 0 else vq(vACC+4*jd)
    A(f"v_mfma_f32_16x16x32_bf16 {vq(vACC+4*jd)}, {vq(aop(t))}, {vq(vR+32*t+4*jd)}, {c}")

def wo_dma():
    A(f"""
s_lshl_b32 s{sT2}, s{sg}, 19
s_lshl_b32 s3, s{sw}, 17
s_add_u32 s{sT2}, s{sT2}, s3
s_lshl_b32 s3, s{sj}, 6
s_add_u32 s{sT2}, s{sT2}, s3""")
    for n in range(8): dma(vWOo, rWO, sT2, sKm, 1024*n, n << 14, f"WO{n}", WPOL)

def tail_pf():
    A(f"""
v_lshlrev_b32 v{vPF}, 7, v{vL}
s_lshr_b32 s{sT3}, s2, 3
s_lshl_b32 s{sT3}, s{sT3}, 2
s_add_u32 s{sT3}, s{sT3}, s{sw}          ; u = jj*4+w, 0..127
s_mul_i32 s{sT2}, s{sT3}, {4*3584}
s_mul_i32 s3, s{sg}, 448
s_add_u32 s{sT2}, s{sT2}, s3
v_lshrrev_b32 v41, 2, v{vL}
v_mul_u32_u24 v41, 3584, v41
v_and_b32 v42, 3, v{vL}
v_lshl_add_u32 v41, v42, 7, v41
v_add_u32 v42, 60, v41""")
    exec_set(0xffff, 0)
    if "pf1" not in DROP: A(f"buffer_load_dword a251, v42, {srd(rW1)}, s{sT2} offen{PFPOL}", tag="pf1")
    A(f"""
s_mul_i32 s{sT2}, s{sT3}, {14*128}
s_mul_i32 s3, s{sg}, {224*1024}
s_add_u32 s{sT2}, s{sT2}, s3""")
    exec_set(0x3fff, 0)
    if "pf1" not in DROP: A(f"buffer_load_dword a252, v{vPF}, {srd(rW2)}, s{sT2} offen{PFPOL}", tag="pf2")
    exec_all()
    lw = lab("wu"); lw2 = lab("wu")
    A(f"""
s_and_b32 s3, s{sw}, 1
s_mul_i32 s3, s3, {LS}
s_cmp_ge_u32 s{sw}, 2
s_cbranch_scc1 {lw}
s_add_u32 s3, s3, s{sOclr}
v_and_b32 v41, 7, v{vL}
v_lshlrev_b32 v41, 7, v41
s_branch {lw2}
{lw}:
v_add_u32 v41, s{sQpub}, v{vPF}
s_sub_u32 s{sT2}, s{sMLpub}, 256
v_add_u32 v42, s{sT2}, v{vPF}
v_cmp_le_u32 vcc, 2, v{vL}
v_cndmask_b32 v41, v41, v42, vcc
v_mov_b32 v42, s{sHpub}
v_cmp_le_u32 vcc, 6, v{vL}
v_cndmask_b32 v41, v41, v42, vcc
{lw2}:""")
    exec_set(0xff, 0)
    A(f"buffer_load_dword a253, v41, {srd(rWS)}, s3 offen sc1", tag="wu")
    A(f"""
s_getpc_b64 s[{sT2}:{sT2+1}]
L_pc:
s_add_u32 s{sT2}, s{sT2}, L_comb-L_pc
s_addc_u32 s{sT2+1}, s{sT2+1}, 0""")
    exec_all()
    A(f"v_min_u32 v42, L_end-L_comb, v{vPF}")
    A(f"global_load_dword a254, v42, s[{sT2}:{sT2+1}]", tag="pfc")

qk(filler=lambda k: (stream(2), wo_pf() if (k == opt('pfok', 2) and WOS < 0) else None))
stream(40)
softmax()
for t in (1, 2, 3):
    for i in shifts(t): A(i)
for i in lsum_ops(): A(i)
stamp(6)
for t in range(4):
    A.vwait(f"V{8*t+7}")
    raw = vR + 32*(t+1); dst = vR + 32*t
    for jd in range(8):
        for p in range(4):
            A(f"v_perm_b32 v{dst+4*jd+p}, v{raw+4*(2*p+1)+(jd>>1)}, v{raw+4*(2*p)+(jd>>1)}, s{sSELHI if jd & 1 else sSELLO}")
        if jd: pv_mfma(t, jd-1)
    pv_mfma(t, 7)
    if t == 1:
        A("s_waitcnt lgkmcnt(0)\ns_barrier")
        for i in fw_ops(): A(i)
    if t == opt("pfg", 1): tail_pf()
stamp(7)
flush_stamps(0, 8)
if EXP == "stream": A("s_branch L_done")

A("L_comb:")
exec_set(0xffff, 0)
for jd in range(8): A(f"ds_write_b128 v{vOBw}, {vq(vACC+4*jd)} offset:{256*jd}")
exec_all()
A("s_waitcnt lgkmcnt(0)\ns_barrier")
for w in range(4): A(f"ds_read2st64_b32 v[{44+2*w}:{45+2*w}], v{vOBr} offset0:{8*w} offset1:{8*w+1}")
A(f"ds_read_b128 v[52:55], v{vMBr} offset:64")
A("s_waitcnt lgkmcnt(1)" if not PROF else "s_waitcnt lgkmcnt(0)")
A(f"v_mul_f32 v44, v{vF}, v44\nv_mul_f32 v45, v{vF}, v45")
for w in range(1, 4): A(f"v_fmac_f32 v44, v{vF+w}, v{44+2*w}\nv_fmac_f32 v45, v{vF+w}, v{45+2*w}")
A("v_cvt_pk_bf16_f32 v44, v44, v45")
pub_store(f"buffer_store_dword v44, v{vOpub}, {srd(rWS)}, s{sOpub} offen")
lm = lab("ml")
A(f"s_cmp_lg_u32 s{sw}, 0\ns_cbranch_scc1 {lm}")
A(f"""
s_waitcnt lgkmcnt(0)
v_mul_f32 v{vMM+1}, v{vF}, v52
v_fmac_f32 v{vMM+1}, v{vF+1}, v53
v_fmac_f32 v{vMM+1}, v{vF+2}, v54
v_fmac_f32 v{vMM+1}, v{vF+3}, v55
v_lshlrev_b32 v46, 3, v{vL}""")
exec_set(0x00010001, 0x00010001)
pub_store(f"buffer_store_dwordx2 v[{vMM}:{vMM+1}], v46, {srd(rWS)}, s{sMLpub} offen")
exec_all()
A(f"{lm}:")
stamp(0)
vO = 28; vml = 44; vDy = 48
la, laok, la0 = lab("pa"), lab("paok"), lab("pa0")
def a_loads():
    for s in range(4): A(f"buffer_load_dwordx4 {vq(vO+4*s)}, v{vVo}, {srd(rWS)}, s{sOget} offen offset:{1024*s} sc1")
    A(f"buffer_load_dwordx2 v[{vml}:{vml+1}], v{vMLad}, {srd(rWS)}, s{sMLget} offen sc1")
A(f"s_cmp_lg_u32 s{sLAYER}, 0\ns_cbranch_scc1 {la}")
A(f"""
v_lshrrev_b32 v56, 2, v{vL}
v_and_b32 v57, 3, v{vL}
v_lshlrev_b32 v57, 4, v57
v_lshl_add_u32 v{vWOo}, v56, 10, v57""")
if WOS < 0: wo_dma()
A(f"""
v_lshrrev_b32 v56, 1, v{vL}
v_and_b32 v57, 1, v{vL}
v_lshlrev_b32 v57, 4, v57
v_mul_u32_u24 v{vW1o}, 3584, v56
v_add_u32 v{vW1o}, v{vW1o}, v57
v_lshrrev_b32 v56, 2, v{vL}
v_and_b32 v57, 3, v{vL}
v_lshlrev_b32 v58, 4, v57
v_lshl_add_u32 v{vW2o}, v56, 10, v58
v_and_b32 v56, 3, v56                     ; r
v_lshrrev_b32 v58, 4, v{vL}               ; q
v_lshl_add_u32 v56, v58, 3, v56           ; 8q+r
v_lshlrev_b32 v57, 3, v57                 ; 8c
v_lshl_add_u32 v58, v56, 5, v57
s_add_u32 s3, s{sKm}, 8192
v_add_u32 v{vT1}, s3, v58
v_lshl_add_u32 v58, v56, 6, v57
s_and_b32 s3, s{sw}, 1
s_lshl_b32 s3, s3, 5
s_add_u32 s3, s3, {LW2}
v_add_u32 v{vT2}, s3, v58""")
a_loads()
A("s_waitcnt vmcnt(5)")
if PROF == 2: stamp(4)
tr_reads(aWO, vTrO, 4, 2, 128, 32, 1024)
A(f"s_waitcnt lgkmcnt(0)\ns_branch {la0}")
A(f"{la}:")
a_loads()
A(f"{la0}:")
A("s_waitcnt vmcnt(0)")
chk = [f"v_max3_u32 v56, v{vml}, v{vml+1}, v{vO}"] + [f"v_max3_u32 v56, v56, v{vO+1+2*i}, v{vO+2+2*i}" for i in range(7)] + [f"v_max_u32 v56, v56, v{vO+15}"]
for s in range(4):
    for t in range(2):
        c = "0" if s == 0 else vq(vDy+4*t)
        A(f"v_mfma_f32_16x16x32_bf16 {vq(vDy+4*t)}, {vq(vO+4*s)}, {aq(aWO+(t*4+s)*4)}, {c}")
        for _ in range(2):
            if chk: A(chk.pop(0))
A(f"v_cmp_eq_u32 vcc, -1, v56\ns_cbranch_vccz {laok}")
retry(la)
A(f"{laok}:")
stamp(1)
A(f"""
v_max_f32_dpp v57, v{vml}, v{vml} quad_perm:[1,0,3,2] row_mask:0xf bank_mask:0xf
v_max_f32_dpp v57, v57, v57 quad_perm:[2,3,0,1] row_mask:0xf bank_mask:0xf
v_mov_b32 v58, v57
v_permlane16_swap_b32 v57, v58
v_max_f32 v57, v57, v58
v_mov_b32 v58, v57
v_permlane32_swap_b32 v57, v58
v_max_f32 v57, v57, v58
v_sub_f32 v57, v{vml}, v57
v_exp_f32 v57, v57
v_mul_f32 v58, v57, v{vml+1}
v_mul_f32_dpp v60, v57, v{vDy} quad_perm:[0,0,0,0] row_mask:0xf bank_mask:0xf
v_mul_f32_dpp v61, v57, v{vDy+4} quad_perm:[0,0,0,0] row_mask:0xf bank_mask:0xf
v_add_f32_dpp v58, v58, v58 quad_perm:[1,0,3,2] row_mask:0xf bank_mask:0xf
v_fmac_f32_dpp v60, v57, v{vDy+1} quad_perm:[1,1,1,1] row_mask:0xf bank_mask:0xf
v_fmac_f32_dpp v61, v57, v{vDy+5} quad_perm:[1,1,1,1] row_mask:0xf bank_mask:0xf
v_add_f32_dpp v58, v58, v58 quad_perm:[2,3,0,1] row_mask:0xf bank_mask:0xf
v_fmac_f32_dpp v60, v57, v{vDy+2} quad_perm:[2,2,2,2] row_mask:0xf bank_mask:0xf
v_fmac_f32_dpp v61, v57, v{vDy+6} quad_perm:[2,2,2,2] row_mask:0xf bank_mask:0xf
v_mov_b32 v59, v58
v_fmac_f32_dpp v60, v57, v{vDy+3} quad_perm:[3,3,3,3] row_mask:0xf bank_mask:0xf
v_fmac_f32_dpp v61, v57, v{vDy+7} quad_perm:[3,3,3,3] row_mask:0xf bank_mask:0xf
v_permlane16_swap_b32 v58, v59
v_add_f32 v58, v58, v59
v_permlane32_swap_b32 v60, v61
v_mov_b32 v59, v58
v_add_f32 v60, v60, v61
v_permlane32_swap_b32 v58, v59
v_mov_b32 v61, v60
v_add_f32 v58, v58, v59
v_permlane16_swap_b32 v60, v61
v_rcp_f32 v58, v58
v_add_f32 v60, v60, v61
v_mul_f32 v60, v60, v58
ds_write_b32 v{vREDA}, v60
s_waitcnt lgkmcnt(0)
s_barrier""")
ly, ly2, ly3 = lab("y"), lab("y2"), lab("y3")
A(f"s_cmp_lg_u32 s{sw}, 0\ns_cbranch_scc1 {ly}")
A(f"""
ds_read_b128 v[28:31], v{vRED} offset:{REDA-RED0}
s_waitcnt lgkmcnt(0)
v_add_f32 v28, v28, v29
v_add_f32 v30, v30, v31
v_add_f32 v28, v28, v30""")
pack_pairs(28, 29)
exec_set(0x55555555, 0)
A(f"buffer_store_dword v28, v{vPAIR}, {srd(rWS)}, s{sYpub} offen sc1")
exec_all()
A(f"s_branch {ly2}\n{ly}:\ns_sleep 2\n{ly2}:")
stamp(2)
lnd, lnd2 = lab("nd"), lab("nd")
A(f"s_cmp_lg_u32 s{sLAYER}, 0\ns_cbranch_scc1 {lnd}")
A(f"""
s_mul_i32 s{sT2}, s{sw}, {128*3584}
s_mul_i32 s3, s{sg}, 448
s_add_u32 s{sT2}, s{sT2}, s3
s_lshl_b32 s3, s{sj}, 5
s_add_u32 s{sT2}, s{sT2}, s3
s_cmp_ge_u32 s{sj}, 14
s_cbranch_scc1 {lnd2}""")
for i in range(4): dma(vW1o, rW1, sT2, sKm, 8192 + 1024*i, i*32*3584, "W1", WPOL, cond=True)
A(f"""{lnd2}:
s_mul_i32 s{sT2}, s{sg}, {224*1024}
s_lshl_b32 s3, s{sj}, 6
s_add_u32 s{sT2}, s{sT2}, s3
s_lshl_b32 s3, s{sw}, 14
s_add_u32 s{sT2}, s{sT2}, s3
s_lshl_b32 s{sT3}, s{sw}, 10""")
for i in range(3): dma(vW2o, rW2, sT2, sT3, LW2 + 4096*i, i*64*1024, "W2", WPOL, cond=True)
A(f"s_cmp_ge_u32 s{sw}, 2\ns_cbranch_scc1 {ly3}")
dma(vW2o, rW2, sT2, sT3, LW2 + 4096*3, 3*64*1024, "W2", WPOL, cond=True)
A(f"{ly3}:\ns_sleep {opt('sb0', 6)}")
lnd3 = lab("nd")
A(f"s_branch {lnd3}\n{lnd}:\ns_sleep {SLEEP_B}\n{lnd3}:")
def gather(s0, s1, lp, mid=None):
    lg, lok = lab(lp), lab(lp + "ok")
    A(f"{lg}:")
    A(f"buffer_load_dwordx4 v[32:35], v{vGad}, {srd(rWS)}, s{s0} offen sc1")
    A(f"buffer_load_dwordx4 v[36:39], v{vGad}, {srd(rWS)}, s{s1} offen sc1")
    A(f"""s_waitcnt vmcnt(1)
v_mfma_f32_16x16x32_bf16 v[40:43], {vq(vSEL)}, v[32:35], {vq(vX)}
s_waitcnt vmcnt(0)
v_mfma_f32_16x16x32_bf16 v[40:43], {vq(vSEL)}, v[36:39], v[40:43]""")
    if mid: mid()
    A(f"""v_cmp_u_f32 vcc, v40, v40
s_cbranch_vccz {lok}""")
    retry(lg)
    A(f"{lok}:")
    A(f"v_cvt_pk_bf16_f32 v{vXP}, v40, v41\nv_cvt_pk_bf16_f32 v{vXP+1}, v42, v43")
def w1mid():
    l = lab("w1r")
    A(f"s_cmp_lg_u32 s{sLAYER}, 0\ns_cbranch_scc1 {l}")
    tr_reads(aW1, vT1, 4, 1, 1024, 0, 128)
    A(f"{l}:\ns_nop 5")
gather(sYget, sYget1, "gb", mid=w1mid)
stamp(3)
lb = lab("nof")
A(f"s_cmp_ge_u32 s{sj}, 14")
xproc(aW1, 1, RED1-RED0, 32, skip_label=lb)
A(f"{lb}:\ns_waitcnt lgkmcnt(0)\ns_barrier")
lh = lab("h")
A(f"s_cmp_lg_u32 s{sw}, 0\ns_cbranch_scc1 {lh}\ns_cmp_ge_u32 s{sj}, 14\ns_cbranch_scc1 {lh}")
ln_final(RED1-RED0, 32)
A(f"""
v_mul_f32 v29, {f2u(-LOG2E):#x}, v28
v_exp_f32 v29, v29
v_add_f32 v29, 1.0, v29
v_rcp_f32 v29, v29
v_mul_f32 v28, v28, v29""")
pack_pairs(28, 29)
exec_set(0x5555, 0)
pub_store(f"buffer_store_dword v28, v{vPAIR}, {srd(rWS)}, s{sHpub} offen")
exec_all()
A(f"{lh}:")
if PROF != 2: stamp(4)
ld, ldok, ldsk = lab("pd"), lab("pdok"), lab("pdsk")
A(f"s_cmp_lt_u32 s{sw}, 2\ns_cbranch_scc1 {ldsk}")
A(f"s_cmp_lg_u32 s{sLAYER}, 0\ns_cbranch_scc1 {ld}")
tr_reads(aW2, vT2, 7, 1, 2048, 0, 256)
A("s_waitcnt lgkmcnt(0)")
A(f"{ld}:")
for s in range(7): A(f"buffer_load_dwordx4 {vq(28+4*s)}, v{vHad}, {srd(rWS)}, s{sHget} offen offset:{64*s} sc1")
for s in range(7):
    A(f"s_waitcnt vmcnt({6-s})")
    A(f"v_mfma_f32_16x16x32_bf16 v[56:59], {aq(aW2+4*s)}, {vq(28+4*s)}, {'0' if s == 0 else 'v[56:59]'}")
A(f"v_cmp_u_f32 vcc, v56, v56\ns_cbranch_vccz {ldok}")
retry(ld)
A(f"{ldok}:")
A("v_cvt_pk_bf16_f32 v56, v56, v57\nv_cvt_pk_bf16_f32 v57, v58, v59")
exec_set(0x00010001, 0x00010001)
A(f"buffer_store_dwordx2 v[56:57], v{vZpub}, {srd(rWS)}, s{sZpub} offen sc1")
exec_all()
A(f"{ldsk}:")
stamp(5)
A(f"s_cmp_lg_u32 s{sLAYER}, 0\ns_cbranch_scc1 L_final")
A("s_barrier")
A(f"s_sleep {SLEEP_E}")
gather(sZget, sZget1, "ge")
stamp(6)
xproc(aWQ, 2, 0, 0)
A(f"s_add_u32 s{rWS}, s{rWS}, {LS}\ns_addc_u32 s{rWS+1}, s{rWS+1}, 0\ns_mov_b32 s{rWS+2}, {WS_BYTES-LS:#x}\ns_mov_b32 s{sLAYER}, 1")
A("s_waitcnt lgkmcnt(0)\ns_barrier")
lq2 = lab("q2")
A(f"s_cmp_lg_u32 s{sw}, 0\ns_cbranch_scc1 {lq2}")
ln_final(0, 0)
A(f"v_mul_f32 v28, {f2u(QSCALE):#x}, v28")
pack_pairs(28, 29)
exec_set(0x55555555, 0)
pub_store(f"buffer_store_dword v28, v{vQP}, {srd(rWS)}, s{sQpub} offen")
exec_all()
A(f"{lq2}:")
stamp(7)
lg, lgok = lab("pg"), lab("pgok")
A(f"{lg}:")
qloads()
A("s_waitcnt vmcnt(0)")
qcheck(60, 61)
A(f"s_cbranch_vccz {lgok}")
retry(lg)
A(f"{lgok}:")
stamp(8)
qk()
softmax()
ex = shifts(1) + shifts(2) + shifts(3) + lsum_ops()
for t in range(4):
    if t == 2:
        while ex: A(ex.pop(0))
        A("s_waitcnt lgkmcnt(0)\ns_barrier")
        ex = fw_ops()
    for jd in range(8):
        pv_mfma(t, jd)
        for _ in range(2):
            if ex: A(ex.pop(0))
while ex: A(ex.pop(0))
stamp(9)
flush_stamps(16, 10)
A("s_branch L_comb")
A("L_final:")
A(f"s_or_b32 s3, s{sg}, s{sj}\ns_cmp_lg_u32 s3, 0\ns_cbranch_scc1 L_done")
A(f"s_sleep {SLEEP_F}")
gather(sZget, sZget1, "gf")
A(f"""
s_lshl_b32 s3, s{sb}, 10
s_lshl_b32 s{sT0}, s{sw}, 8
s_add_u32 s3, s3, s{sT0}
s_lshl_b32 s{sT0}, s{sw}, 9
s_add_u32 s{sT0}, s{sT0}, {XB}
s_sub_u32 s3, s3, s{sT0}
v_add_u32 v30, s3, v{vXBw}""")
exec_set(0xffffffff, 0)
A(f"global_store_dwordx2 v30, v[{vXP}:{vXP+1}], {sp(sOUT)}")
A(f"""s_barrier
s_lshl_b32 s3, s{sb}, 7
s_add_u32 s3, s3, {EPO}
v_mov_b32 v30, s3
v_mov_b32 v31, s{sTAG0}""")
exec_set(1, 0)
A(f"global_store_dword v30, v31, {sp(sWS)} sc1")
exec_all()
A("L_done:")
if PROF:
    stamp(6)
    flush_stamps(32, 7)
    A(f"""
s_lshl_b32 s3, s2, 2
s_add_u32 s3, s3, s{sw}
s_lshl_b32 s3, s3, 8
s_add_u32 s3, s3, {PROF_OFF}
v_lshlrev_b32 v30, 2, v{vL}
v_add_u32 v30, s3, v30
global_store_dword v30, v{vPROF}, {sp(sWS)}""")
A("L_end:\ns_endpgm")
A.raw('.section .rodata,"a"'); A.raw(".p2align 6"); A.raw(f".amdhsa_kernel {NAME}_kernel")
for l in ["next_free_vgpr 512", "next_free_sgpr 102", "accum_offset 256", "group_segment_fixed_size 0", "kernarg_size 88",
          "user_sgpr_count 2", "user_sgpr_kernarg_segment_ptr 1", "system_sgpr_workgroup_id_x 1"]:
    A.raw("  .amdhsa_" + l)
A.raw(".end_amdhsa_kernel")
open(out, "w").write("\n".join(H) + "\n" + A.text())
print("instrs", len(A.L), "nops inserted", A.nopcount, file=sys.stderr)
```

```python
import sys, math, struct
sys.path.insert(0, "gen")
from asmlib import Asm

NAME = "interleave_layers__gqa_block_cached__dense_activation_silu__decode"
out = sys.argv[1]
O = dict(kv.split("=") for kv in sys.argv[2:])
def opt(k, d): return type(d)(O.get(k, d))
PROF = opt("prof", 0); SWZ = opt("swz", 13)
SLEEP_B = opt("sb", 14); SLEEP_E = opt("se", 14); SLEEP_F = opt("sf", 6)
FORCE_SLOW = opt("slow", 0); EXP = opt("exp", "")
POL = {"nt": " nt", "none": "", "sc1": " sc1"}
WQPOL = POL[opt("wqpol", "nt")]; PFPOL = POL[opt("pfpol", "none")]; WPOL = POL[opt("wpol", "none")]
DROP = opt("drop", "").split(",")
INS = opt("ins", 0)
WPOS0 = opt("wpos0", 20); WSTEP = opt("wstep", 2); MBG = opt("mbg", 1)
WOS = opt("wos", -1)
WOSTEP = opt("wostep", 2)
def f2u(x): return struct.unpack("<I", struct.pack("<f", x))[0]
LOG2E = 1.4426950408889634
QSCALE = LOG2E / math.sqrt(128.0)

QS, ML, HS, YS, ZS, OS = 0, 16384, 24576, 32768, 49152, 65536
LS = 65536 + 262144
EPO = 2 * LS; FLG = EPO + 1024
WS_BYTES = FLG + 2048
PROF_OFF = 16 << 20
LWQ = 0; KST = 32768; LW2 = LWQ
XB = KST + 4 * 28672; RED0 = XB + 2048; RED1 = RED0 + 1024; REDA = RED0 + 2048; ST0 = RED0 + 2560; MB = RED0 + 2688; OB = RED0 + 3072
LDS_BYTES = OB + 8192
assert LDS_BYTES <= 163840
sX, sK, sV, sWQ, sWO, sW1, sW2, sOUT, sDBG, sWS = 4, 6, 8, 10, 12, 16, 18, 20, 22, 24
rK, rV, rWQ, rWO, rW1, rW2, rWS = 28, 32, 36, 40, 44, 48, 52
sg, sb, sj, sw, sFAST, sLAYER, sBUD = 56, 57, 58, 59, 60, 61, 62
sSELLO, sSELHI = 63, 64
sQpub, sQget, sMLpub, sMLget, sHpub, sHget, sYpub, sYget, sZpub, sZget, sOpub, sOget = range(65, 77)
sYget1, sZget1 = 77, 78
sT0, sT1, sT2, sT3 = 26, 27, 14, 15
sjf = 21 + 77
sOclr = 81; sWOb = 21 + 80
sVb, sKm, sTAG0, sTAG1 = 79, 80, 22, 23
sSTAMP = 82
def srd(r): return f"s[{r}:{r+3}]"
def sp(r): return f"s[{r}:{r+1}]"
vL, vXBw, vXBr, vRED, vREDA, vOad, vMLad, vGad, vHad, vQad, vPAIR, vOBw = range(0, 12)
vSEL = 12; vX = 16
vOBr, vOpub, vMBw, vMBr, vST, vZpub = 20, 21, 22, 23, 24, 25
vQP = vOad
vVo = 26; vTrO = 27
vQ = 28; vD0, vD1 = 44, 48; vROT = 52; vACC = 64; vR = 96
vPROF = 255
vW1o, vW2o, vT1, vT2 = 224, 225, 226, 227
def vq(r, n=4): return f"v[{r}:{r+n-1}]"
def aq(r, n=4): return f"a[{r}:{r+n-1}]"
aK, aWQ, aWO, aW1, aW2 = 0, 128, 160, 192, 208

A = Asm()
uid = [0]
def lab(p):
    uid[0] += 1
    return f"L_{p}{uid[0]}"
def exec_set(lo, hi): A(f"s_mov_b32 exec_lo, {lo:#x}\ns_mov_b32 exec_hi, {hi:#x}")
def exec_all(): A("s_mov_b64 exec, -1")
def sreg(i): return sSTAMP + 2*i if i < 8 else {8: 0, 9: 100}[i]
def stamp(i):
    if PROF: A(f"s_memrealtime s[{sreg(i)}:{sreg(i)+1}]")
def flush_stamps(base, n):
    if not PROF: return
    A("s_waitcnt lgkmcnt(0)")
    for i in range(n): A(f"v_writelane_b32 v{vPROF}, s{sreg(i)}, {base+i}")
def retry(loop):
    A(f"s_sub_u32 s{sBUD}, s{sBUD}, 1\ns_cbranch_scc0 {loop}\ns_mov_b32 s{sBUD}, 0")
def pub_store(ins):
    a, b = lab("ps"), lab("pe")
    A(f"s_cmp_eq_u32 s{sFAST}, 0\ns_cbranch_scc1 {a}")
    A(ins, cond=True)
    A(f"s_branch {b}\n{a}:")
    A(ins + " sc1", cond=True)
    A(f"{b}:")

hdr = open(f"cdna_kernels/{NAME}.s.ref").read().split("\n")
H = [l for l in hdr if l.startswith(";") and "@launch" not in l and not l.startswith("; Override") and not l.startswith("; grid=ceil")]
H.append(f"; @launch grid=(256,1,1) block=(256,1,1) lds={LDS_BYTES}")
A.raw('.amdgcn_target "amdgcn-amd-amdhsa--gfx950"')
A.raw(".text"); A.raw(f".globl {NAME}_kernel"); A.raw(".p2align 8"); A.raw(f".type {NAME}_kernel,@function")
A.raw(f"{NAME}_kernel:")

tn, tq = 31, 32
vKo = vR
vKr = vR + 4
vK7 = vR + 8
vWQo = vR + 12; vTq = vR + 13; vWOo = 228; vPF = 35
stamp(0)
A(f"""
s_cmp_ge_u32 s2, 256
s_cbranch_scc1 L_end
s_load_dwordx16 s[4:19], s[0:1], 0
s_load_dwordx2 s[20:21], s[0:1], 64
s_load_dwordx2 s[24:25], s[0:1], 80
v_lshrrev_b32 v30, 6, v0
v_and_b32 v{vL}, 63, v0
s_and_b32 s{sg}, s2, 7
v_readfirstlane_b32 s{sw}, v30
s_lshr_b32 s{sj}, s2, 3
s_lshr_b32 s{sb}, s{sj}, 4
s_and_b32 s{sj}, s{sj}, 15
s_and_b32 s3, s{sj}, 6
s_cmp_eq_u32 s3, {6 if opt('perm', 1) else 99}
s_cselect_b32 s3, 8, 0
s_xor_b32 s{sjf}, s{sj}, s3
v_and_b32 v{tn}, 15, v{vL}
v_lshrrev_b32 v{tq}, 4, v{vL}
s_lshl_b32 s{sT0}, s2, 2
s_add_u32 s{sT0}, s{sT0}, s{sw}
s_mul_i32 s{sT0}, s{sT0}, {SWZ}
s_and_b32 s{sT0}, s{sT0}, 31      ; r
s_lshl_b32 s{sT1}, s{sb}, 3
s_add_u32 s{sT1}, s{sT1}, s{sg}   ; bg
s_lshl_b32 s{sVb}, s{sT1}, 21
s_lshl_b32 s3, s{sj}, 17
s_add_u32 s{sVb}, s{sVb}, s3
s_lshl_b32 s3, s{sw}, 15
s_add_u32 s{sVb}, s{sVb}, s3
s_lshl_b32 s3, s{sT0}, 10
s_add_u32 s{sVb}, s{sVb}, s3
s_mul_i32 s{sKm}, s{sw}, 28672
s_add_u32 s{sKm}, s{sKm}, {KST}
v_lshlrev_b32 v{vVo}, 4, v{vL}
v_mov_b32 v{vKo}, v{vVo}
v_xor_b32 v{vKo+1}, 64, v{vVo}
v_xor_b32 v{vKo+2}, 128, v{vVo}
v_xor_b32 v{vKo+3}, 192, v{vVo}
v_and_b32 v33, 1, v{tq}
v_lshlrev_b32 v33, 3, v33
v_lshl_add_u32 v33, v{tn}, 4, v33      ; 16n+8(q&1)
s_lshl_b32 s3, s{sb}, 10
s_lshl_b32 s{sT0}, s{sw}, 8
s_add_u32 s3, s3, s{sT0}
v_add_u32 v34, s3, v33
v_lshrrev_b32 v35, 2, v{vL}
v_and_b32 v36, 3, v{vL}
v_lshlrev_b32 v36, 4, v36
v_lshl_add_u32 v{vWQo}, v35, 13, v36
s_lshl_b32 s3, s{sb}, 7
s_add_u32 s3, s3, {EPO}
v_mov_b32 v37, s3
s_lshl_b32 s{sBUD}, s{sw}, 20
s_lshl_b32 s3, s{sg}, 10
s_add_u32 s{sBUD}, s{sBUD}, s3
s_lshl_b32 s3, s{sj}, 6
s_add_u32 s{sBUD}, s{sBUD}, s3
s_lshl_b32 s{sLAYER}, s{sw}, 13
s_waitcnt lgkmcnt(0)
""")
def mksrd(r, p, nbytes):
    A(f"s_mov_b32 s{r}, s{p}\ns_and_b32 s{r+1}, s{p+1}, 0xffff\ns_mov_b32 s{r+2}, {nbytes:#x}\ns_mov_b32 s{r+3}, 0x20000")
EARLY = opt('early', 1); CW = opt('cw', 0)
def scalars():
    A(f"""
s_mov_b32 s{sSELLO}, 0x05040100
s_mov_b32 s{sSELHI}, 0x07060302
s_lshl_b32 s{sT1}, s{sg}, 1
s_add_u32 s{sT1}, s{sT1}, s{sb}          ; gb
s_lshl_b32 s{sQget}, s{sT1}, 10
s_and_b32 s3, s{sj}, 3
s_lshl_b32 s3, s3, 8
s_add_u32 s{sQpub}, s{sQget}, s3
s_lshr_b32 s3, s{sj}, 2
s_lshl_b32 s3, s3, 4
s_add_u32 s{sQpub}, s{sQpub}, s3
s_lshl_b32 s{sMLget}, s{sT1}, 9
s_add_u32 s{sHget}, s{sMLget}, {HS}
s_add_u32 s{sMLget}, s{sMLget}, {ML}
s_lshl_b32 s3, s{sj}, 5
s_add_u32 s{sT2}, s{sMLget}, s3
s_lshl_b32 s3, s{sjf}, 5
s_add_u32 s{sHpub}, s{sHget}, s3
s_lshl_b32 s3, s{sj}, 3
s_add_u32 s{sMLpub}, s{sMLget}, s3
s_lshl_b32 s3, s{sw}, 7
s_add_u32 s{sMLget}, s{sMLget}, s3
s_lshl_b32 s{sOget}, s{sT1}, 14
s_add_u32 s{sOget}, s{sOget}, {OS}
s_lshl_b32 s3, s{sj}, 10
s_add_u32 s{sOclr}, s{sOget}, s3
s_lshl_b32 s3, s{sj}, 4
s_add_u32 s{sOpub}, s{sOget}, s3
s_lshl_b32 s3, s{sw}, 10
s_add_u32 s{sOpub}, s{sOpub}, s3
s_lshl_b32 s3, s{sw}, 12
s_add_u32 s{sOget}, s{sOget}, s3
s_lshl_b32 s{sYget}, s{sb}, 13
s_add_u32 s{sYget}, s{sYget}, {YS}
s_add_u32 s{sYget1}, s{sYget}, 4096
s_add_u32 s{sZget}, s{sYget}, {ZS-YS}
s_add_u32 s{sZget1}, s{sZget}, 4096
s_lshl_b32 s3, s{sg}, 10
s_add_u32 s{sYpub}, s{sYget}, s3
s_lshl_b32 s3, s{sj}, 6
s_add_u32 s{sYpub}, s{sYpub}, s3
s_add_u32 s{sZpub}, s{sYpub}, {ZS-YS}
""")
def clears():
    lc = lab("clr")
    A(f"s_cmp_lg_u32 s{sw}, {99 if 'clr' in DROP else CW}\ns_cbranch_scc1 {lc}")
    A(f"""
v_mul_u32_u24 v45, 48, v{tn}
v_add_u32 v45, s{sQpub}, v45
v_mov_b32 v46, s{sT2}
v_subrev_u32 v46, 64, v46
v_cmp_le_u32 vcc, 4, v{tn}
v_cndmask_b32 v45, v45, v46, vcc
v_mov_b32 v46, s{sHpub}
v_subrev_u32 v46, 96, v46
v_cmp_le_u32 vcc, 6, v{tn}
v_cndmask_b32 v45, v45, v46, vcc
v_mov_b32 v46, s{sYpub}
v_subrev_u32 v46, 128, v46
v_cmp_le_u32 vcc, 8, v{tn}
v_cndmask_b32 v45, v45, v46, vcc
v_mov_b32 v46, s{sZpub}
v_subrev_u32 v46, 192, v46
v_cmp_le_u32 vcc, 12, v{tn}
v_cndmask_b32 v45, v45, v46, vcc
v_lshl_add_u32 v45, v{tn}, 4, v45
v_mul_u32_u24 v46, {LS}, v{tq}
v_add_u32 v45, v45, v46
v_mov_b32 v48, -1
v_mov_b32 v49, -1
v_mov_b32 v50, -1
v_mov_b32 v51, -1
s_add_u32 s3, s{sOclr}, {LS}
""")
    exec_set(0xffffffff, 0)
    A(f"buffer_store_dwordx4 v[48:51], v45, {srd(rWS)}, 0 offen sc1", cond=True)
    exec_all()
    A(f"buffer_store_dwordx4 v[48:51], v{vVo}, {srd(rWS)}, s{sOclr} offen sc1", cond=True)
    A(f"buffer_store_dwordx4 v[48:51], v{vVo}, {srd(rWS)}, s3 offen sc1", tag="clr", cond=True)
    A(f"{lc}:")
def flag_store():
    A(f"""
v_readfirstlane_b32 s{sTAG0}, v40
v_readfirstlane_b32 s{sTAG1}, v41
s_getreg_b32 s3, hwreg(HW_REG_XCC_ID, 0, 4)
s_add_u32 s{sTAG0}, s{sTAG0}, 1
s_andn2_b32 s{sTAG1}, s{sTAG1}, 15
s_or_b32 s3, s3, s{sTAG1}
v_mov_b32 v46, s{sTAG0}
v_mov_b32 v47, s3
s_lshl_b32 s3, s{sb}, 3
s_add_u32 s3, s3, s{sg}
s_lshl_b32 s3, s3, 4
s_add_u32 s3, s3, s{sj}
s_lshl_b32 s3, s3, 3
s_add_u32 s3, s3, {FLG}
v_mov_b32 v45, 0""")
    exec_set(1, 0)
    A(f"buffer_store_dwordx2 v[46:47], v45, {srd(rWS)}, s3 offen sc1", cond=True)
    exec_all()
mksrd(rWQ, sWQ, 512*4096*2); mksrd(rK, sK, 1 << 25); mksrd(rWS, sWS, WS_BYTES)
A(f"global_load_dwordx2 v[40:41], v37, {sp(sWS)} sc1", tag="ep")
A(f"global_load_dwordx2 v[38:39], v34, {sp(sX)}", tag="x")
if EARLY:
    l_ = lab("ec")
    A(f"s_cmp_lg_u32 s{sw}, {CW}\ns_cbranch_scc1 {l_}")
    scalars(); clears()
    A(f"{l_}:")
def kdma(n):
    k, i = n >> 2, n & 3
    if k < 7: A(f"s_add_u32 m0, s{sKm}, {k*4096 + i*1024}")
    else: A(f"s_lshl_b32 s3, s{sw}, 13\ns_add_u32 m0, s3, {LWQ + i*1024}")
    A(f"s_xor_b32 s{sT0}, s{sVb}, {n*1024}")
    A(f"buffer_load_dwordx4 v{vKo+i}, {srd(rK)}, s{sT0} offen nt lds", tag=f"K{n}")
def kread(k):
    A.vwait(f"K{4*k+3}")
    for s in range(4):
        if k < 7: A(f"ds_read_b128 {aq(aK+16*k+4*s)}, v{vKr+s} offset:{k*4096}")
        else: A(f"ds_read_b128 {aq(aK+16*k+4*s)}, v{vK7+s}")
def vload(n):
    A(f"s_xor_b32 s{sT1}, s{sVb}, {n*1024}")
    A(f"buffer_load_dwordx4 {vq(vR+32+4*n)}, v{vVo}, {srd(rV)}, s{sT1} offen nt", tag=f"V{n}")
def dma(vo, r, sbase, m0reg, m0add, soffadd, tag, pol, cond=False):
    if tag[:2] in DROP:
        A.vq.append((tag, True)); return
    A(f"s_add_u32 m0, s{m0reg}, {m0add}\ns_add_u32 s3, s{sbase}, {soffadd}")
    A(f"buffer_load_dwordx4 v{vo}, {srd(r)}, s3 offen{pol} lds", tag=tag, cond=cond)
KI = opt("ki", 1)
nK = [0]
for i in range(8):
    dma(vWQo, rWQ, sBUD, sLAYER, LWQ + 1024*i, i << 17, f"WQ{i}", WQPOL)
    for _ in range(KI): kdma(nK[0]); nK[0] += 1
    if EARLY and i == opt("flagpos", 3):
        l_ = lab("ef")
        A(f"s_cmp_lg_u32 s{sw}, {CW}\ns_cbranch_scc1 {l_}")
        A.vwait("clr")
        flag_store()
        A(f"{l_}:")
stamp(1)
mksrd(rV, sV, 1 << 25); mksrd(rWO, sWO, 4096*512*2); mksrd(rW1, sW1, 512*1792*2); mksrd(rW2, sW2, 1792*512*2)
if not EARLY: scalars(); clears()
else:
    l_ = lab('sc')
    A(f's_cmp_eq_u32 s{sw}, {CW}\ns_cbranch_scc1 {l_}')
    scalars()
    A(f'{l_}:')
A(f's_mov_b32 s{sLAYER}, 0\ns_mov_b32 s{sBUD}, 400000')
A(f"""
s_lshl_b32 s3, s{sw}, 9
s_add_u32 s3, s3, {XB}
v_add_u32 v{vXBw}, s3, v33
v_lshrrev_b32 v44, 3, v{tn}
v_lshlrev_b32 v44, 8, v44
v_lshl_add_u32 v44, v{tq}, 4, v44
v_add_u32 v{vXBr}, s3, v44
v_lshlrev_b32 v47, 2, v{vL}                ; 4l
v_add_u32 v44, s3, v47
v_mov_b32 v42, 0x3f803f80
ds_write_b32 v44, v42 offset:256
s_lshl_b32 s3, s{sw}, 2
s_add_u32 s{sT1}, s3, {RED0}
v_add_u32 v{vRED}, s{sT1}, v{vVo}
v_lshrrev_b32 v46, 5, v{vL}
v_lshl_add_u32 v46, v46, 4, v{tn}
v_lshlrev_b32 v46, 4, v46
s_add_u32 s{sT1}, s3, {REDA}
v_add_u32 v{vREDA}, s{sT1}, v46
s_add_u32 s{sT1}, s3, {ST0}
v_mov_b32 v{vST}, s{sT1}
v_and_b32 v42, 3, v{vL}                    ; h
v_lshlrev_b32 v43, 4, v42
v_add_u32 v{vMBw}, {MB}, v43
v_add_u32 v{vMBw}, s3, v{vMBw}
s_lshl_b32 s3, s{sw}, 8
v_lshlrev_b32 v43, 4, v{tq}                ; 16q
v_add_u32 v{vMBr}, {MB}, v43
v_lshrrev_b32 v44, 3, v{vL}
v_and_b32 v46, 6, v{vL}
v_lshlrev_b32 v46, 1, v46
v_lshl_add_u32 v{vQP}, v44, 6, v46
v_lshlrev_b32 v44, 4, v{tn}
v_lshl_add_u32 v44, v{tq}, 10, v44
v_add_u32 v{vGad}, s3, v44
v_mov_b32 v{vHad}, v43
v_lshlrev_b32 v44, 4, v42
v_lshl_add_u32 v{vQad}, v{tq}, 6, v44
v_lshl_add_u32 v44, v{tq}, 2, v42
v_lshlrev_b32 v{vMLad}, 3, v44
v_lshrrev_b32 v44, 1, v{vL}
v_lshlrev_b32 v{vPAIR}, 2, v44
s_lshl_b32 s3, s{sw}, 11
s_add_u32 s3, s3, {OB}
v_lshlrev_b32 v44, 4, v{tn}
v_add_u32 v{vOBw}, s3, v44
s_lshl_b32 s3, s{sw}, 9
s_add_u32 s3, s3, {OB}
v_lshl_add_u32 v44, v{tq}, 2, v44
v_add_u32 v{vOBr}, s3, v44
v_lshrrev_b32 v44, 2, v{tn}
v_lshlrev_b32 v44, 8, v44
v_lshl_add_u32 v44, v42, 2, v44
v_lshl_add_u32 v{vOpub}, v{tq}, 12, v44
s_and_b32 s3, s{sw}, 1
s_lshl_b32 s3, s3, 5
v_lshlrev_b32 v44, 3, v{tq}
v_add_u32 v{vZpub}, s3, v44
v_mul_u32_u24 v44, 1088, v42
v_lshrrev_b32 v45, 2, v{tn}
v_lshl_add_u32 v44, v45, 8, v44
v_add_u32 v44, v44, v43
s_lshl_b32 s3, s{sw}, 13
""")
for s in range(4):
    A(f"v_xor_b32 v46, {64*s}, v44\nv_add_u32 v{vKr+s}, s{sKm}, v46\nv_add_u32 v{vK7+s}, s3, v46")
A(f"""
v_and_b32 v44, 1, v{tn}
v_lshlrev_b32 v44, 4, v44
v_mov_b32 v46, 0x3f80
v_lshlrev_b32 v46, v44, v46
v_lshrrev_b32 v44, 1, v{tn}
""")
for i in range(4):
    A(f"v_cmp_eq_u32 vcc, {i}, v44\nv_cndmask_b32 v{vSEL+i}, 0, v46, vcc")
A(f"""
v_lshlrev_b32 v44, 3, v42                 ; 8c
v_lshl_add_u32 v46, v{tq}, 3, v45         ; 8q+r
v_lshl_add_u32 v{vTq}, v46, 6, v44
v_add_u32 v{vTq}, s3, v{vTq}
v_and_b32 v47, 1, v45
v_lshrrev_b32 v43, 1, v45
v_lshl_add_u32 v47, v43, 3, v47
v_lshl_add_u32 v47, v{tq}, 5, v47
v_lshl_add_u32 v{vTrO}, v47, 6, v44
v_add_u32 v{vTrO}, s{sKm}, v{vTrO}
""")

base = [("K", n) for n in range(nK[0], 32)] + [("V", n) for n in range(32)]
wl = [("WO", i) for i in range(8)] + [("W1", i) for i in range(4)] + [("W2", i) for i in range(4)]
if opt("worder", 0) == 1: wl = [("W1", i) for i in range(4)] + [("W2", i) for i in range(4)] + [("WO", i) for i in range(8)]
pend = []
for kind, n in base:
    pend.append((kind, n))
    pos = n if kind == "K" else 32 + n
    if INS and wl and pos >= WPOS0 and (pos - WPOS0) % WSTEP == 0: pend.append(wl.pop(0))
if INS: assert not wl
wfirst = [True]
sW1b, sW2b = 100, 99
kr = [0]
def stream(k=1, upto=None):
    while pend and (k > 0 or upto):
        kind, n = pend.pop(0)
        if kind == "K":
            kdma(n)
        elif kind in ("WO", "W1", "W2"):
            if wfirst[0]:
                wfirst[0] = False
                assert kr[0] >= 3
                A(f"""s_waitcnt lgkmcnt(0)
v_lshrrev_b32 v111, 2, v{vL}
v_and_b32 v112, 3, v{vL}
v_lshlrev_b32 v112, 4, v112
v_lshl_add_u32 v111, v111, 10, v112
v_lshrrev_b32 v112, 1, v{vL}
v_mul_u32_u24 v112, 3584, v112
v_and_b32 v113, 1, v{vL}
v_lshl_add_u32 v112, v113, 4, v112
s_lshl_b32 s{sWOb}, s{sg}, 19
s_lshl_b32 s3, s{sw}, 17
s_add_u32 s{sWOb}, s{sWOb}, s3
s_lshl_b32 s3, s{sj}, 6
s_add_u32 s{sWOb}, s{sWOb}, s3
s_mul_i32 s{sW2b}, s{sg}, {224*1024}
s_add_u32 s{sW2b}, s{sW2b}, s3
s_lshl_b32 s3, s{sw}, 14
s_add_u32 s{sW2b}, s{sW2b}, s3
s_mul_i32 s{sW1b}, s{sw}, {128*3584}
s_mul_i32 s3, s{sg}, 448
s_add_u32 s{sW1b}, s{sW1b}, s3
s_lshl_b32 s3, s{sjf}, 5
s_add_u32 s{sW1b}, s{sW1b}, s3
s_lshl_b32 s{sT3}, s{sw}, 13""")
            if kind == "WO": dma(111, rWO, sWOb, sKm, 1024*n, n << 14, f"WO{n}", WQPOL)
            elif kind == "W1":
                l_ = lab("w1")
                A(f"s_cmp_ge_u32 s{sjf}, 14\ns_cbranch_scc1 {l_}")
                dma(112, rW1, sW1b, sKm, 8192 + 1024*n, n*32*3584, "W1", WQPOL, cond=True)
                A(f"{l_}:")
            else:
                l_ = lab("w2")
                A(f"s_lshl_b32 s{sT3}, s{sw}, 13")
                if n == 3: A(f"s_cmp_ge_u32 s{sw}, 2\ns_cbranch_scc1 {l_}")
                dma(111, rW2, sW2b, sT3, LWQ + 4096 + 1024*n, n*64*1024, "W2", WQPOL, cond=True)
                A(f"{l_}:")
            continue
        else:
            vload(n)
        pos = n if kind == "K" else 32 + n
        if allow_kread[0]:
            while kr[0] < 8 and 4*kr[0] + 3 + opt("klag", 8) <= pos:
                kread(kr[0]); kr[0] += 1
        k -= 1
        if upto and (kind, n) == upto: break
        if upto is None and k <= 0: break
allow_kread = [False]

def tr_reads(adst, vbase, steps, tiles, sstep, tstep, second):
    for t in range(tiles):
        for s in range(steps):
            d = adst + (t*steps + s)*4
            A(f"ds_read_b64_tr_b16 a[{d}:{d+1}], v{vbase} offset:{s*sstep + t*tstep}")
            A(f"ds_read_b64_tr_b16 a[{d+2}:{d+3}], v{vbase} offset:{s*sstep + t*tstep + second}")

vXP = 28; vXA = 32; vG0 = 48
vS, vSQ, vTm = 30, 31, 56
def xproc(aW, tiles, red_off, st_off, skip_label=None, filler=None):
    exec_set(0xffffffff, 0)
    A(f"ds_write_b64 v{vXBw}, v[{vXP}:{vXP+1}]")
    exec_all()
    for s in range(4): A(f"ds_read_b128 {vq(vXA+4*s)}, v{vXBr} offset:{64*s}")
    A(f"""
v_lshlrev_b32 v{vX}, 16, v{vXP}
v_and_b32 v{vX+1}, 0xffff0000, v{vXP}
v_lshlrev_b32 v{vX+2}, 16, v{vXP+1}
v_and_b32 v{vX+3}, 0xffff0000, v{vXP+1}""")
    if skip_label: A(f"s_cbranch_scc1 {skip_label}")
    A(f"""
v_add_f32 v{vS}, v{vX}, v{vX+1}
v_mul_f32 v{vSQ}, v{vX}, v{vX}
v_add_f32 v{vTm}, v{vX+2}, v{vX+3}
v_fmac_f32 v{vSQ}, v{vX+1}, v{vX+1}
v_add_f32 v{vS}, v{vS}, v{vTm}
v_fmac_f32 v{vSQ}, v{vX+2}, v{vX+2}
v_fmac_f32 v{vSQ}, v{vX+3}, v{vX+3}""")
    for r in (8, 4):
        A(f"v_add_f32_dpp v{vS}, v{vS}, v{vS} row_ror:{r} row_mask:0xf bank_mask:0xf")
        A(f"v_add_f32_dpp v{vSQ}, v{vSQ}, v{vSQ} row_ror:{r} row_mask:0xf bank_mask:0xf")
    if filler: filler()
    A("s_waitcnt lgkmcnt(0)")
    dp = [f"v_add_f32_dpp v{vS}, v{vS}, v{vS} row_ror:2 row_mask:0xf bank_mask:0xf",
          f"v_add_f32_dpp v{vSQ}, v{vSQ}, v{vSQ} row_ror:2 row_mask:0xf bank_mask:0xf",
          f"v_add_f32_dpp v{vS}, v{vS}, v{vS} row_ror:1 row_mask:0xf bank_mask:0xf",
          f"v_add_f32_dpp v{vSQ}, v{vSQ}, v{vSQ} row_ror:1 row_mask:0xf bank_mask:0xf",
          f"v_add_f32_dpp v{vS}, v{vS}, v{vS} row_bcast:15 row_mask:0xa bank_mask:0xf",
          f"v_add_f32_dpp v{vSQ}, v{vSQ}, v{vSQ} row_bcast:15 row_mask:0xa bank_mask:0xf"]
    for s in range(4):
        for t in range(tiles):
            c = "0" if s == 0 else vq(vG0+4*t)
            A(f"v_mfma_f32_16x16x32_bf16 {vq(vG0+4*t)}, {vq(vXA+4*s)}, {aq(aW+(t*4+s)*4)}, {c}")
        for _ in range(2):
            if dp: A(dp.pop(0))
    exec_set(0x10000, 0)
    A(f"ds_write2_b32 v{vST}, v{vS}, v{vSQ} offset0:{st_off//4} offset1:{st_off//4+4}")
    exec_all()
    if tiles == 2:
        A(f"v_mov_b32_dpp v{vG0}, v{vG0+4} quad_perm:[0,1,2,3] row_mask:0xa bank_mask:0xf")
    A(f"ds_write_b32 v{vRED}, v{vG0} offset:{red_off}")

def ln_final(red_off, st_off):
    A(f"""
ds_read_b128 v[36:39], v{vST} offset:{st_off}
ds_read_b128 v[40:43], v{vST} offset:{st_off+16}
ds_read_b128 v[28:31], v{vRED} offset:{red_off}
ds_read_b128 v[32:35], v{vRED} offset:{red_off+512}
s_mov_b32 s3, {f2u(1.0/512):#x}
v_mov_b32 v44, {f2u(1e-5):#x}
s_waitcnt lgkmcnt(0)
v_add_f32 v36, v36, v37
v_add_f32 v38, v38, v39
v_add_f32 v40, v40, v41
v_add_f32 v42, v42, v43
v_add_f32 v36, v36, v38
v_add_f32 v40, v40, v42
v_mul_f32 v36, s3, v36                ; mean
v_fma_f32 v41, s3, v40, v44           ; E[x^2] + eps
v_add_f32 v28, v28, v29
v_fma_f32 v41, -v36, v36, v41
v_add_f32 v30, v30, v31
v_max_f32 v41, v44, v41
v_add_f32 v32, v32, v33
v_rsq_f32 v41, v41
v_add_f32 v34, v34, v35
v_add_f32 v28, v28, v30
v_add_f32 v32, v32, v34
v_fma_f32 v28, -v36, v32, v28
v_mul_f32 v28, v28, v41
""")
def pack_pairs(v, t):
    A(f"v_mov_b32_dpp v{t}, v{v} quad_perm:[1,0,3,2] row_mask:0xf bank_mask:0xf\nv_cvt_pk_bf16_f32 v{v}, v{v}, v{t}")

stream(opt("pre1", 4))
A.vwait("WQ7")
stamp(2)
A(f"v_readfirstlane_b32 s{sTAG0}, v40\nv_readfirstlane_b32 s{sTAG1}, v41")
tr_reads(aWQ, vTq, 4, 2, 2048, 32, 256)
A(f"s_add_u32 s{sTAG0}, s{sTAG0}, 1\ns_andn2_b32 s{sTAG1}, s{sTAG1}, 15")
A(f"v_cmp_gt_u32 vcc, 32, v{vL}\nv_cndmask_b32 v{vXP}, 0, v38, vcc\nv_cndmask_b32 v{vXP+1}, 0, v39, vcc")
xproc(aWQ, 2, 0, 0, filler=lambda: stream(2))
stream(2)
A("s_waitcnt lgkmcnt(0)\ns_barrier")
lq = lab("q1")
A(f"s_cmp_lg_u32 s{sw}, 0\ns_cbranch_scc1 {lq}")
if not EARLY:
    A.vwait("clr"); flag_store()
ln_final(0, 0)
A(f"v_mul_f32 v28, {f2u(QSCALE):#x}, v28")
pack_pairs(28, 29)
exec_set(0x55555555, 0)
A(f"buffer_store_dword v28, v{vQP}, {srd(rWS)}, s{sQpub} offen sc1", tag="q1", cond=True)
exec_all()
A(f"{lq}:")
stamp(3)
allow_kread[0] = True
CEN = opt("cenpos", 30)
def upto_pos(p): return ("K", p) if p < 32 else ("V", p - 32)
stream(upto=upto_pos(CEN))
A(f"s_lshl_b32 s{sT2}, s{sb}, 10\ns_add_u32 s{sT2}, s{sT2}, {FLG}")
A(f"buffer_load_dwordx4 v[32:35], v{vVo}, {srd(rWS)}, s{sT2} offen sc1", tag="cen")
stream(opt("cenlag", 8))
A.vwait("cen")
lcen, lcok = lab("cen"), lab("cok")
A(f"""
{lcen}:
v_xor_b32 v36, s{sTAG0}, v32
v_xor_b32 v37, s{sTAG0}, v34
v_xor_b32 v38, s{sTAG1}, v33
v_xor_b32 v39, s{sTAG1}, v35
v_or_b32 v40, v38, v39
v_and_b32 v40, -16, v40
v_or3_b32 v36, v36, v37, v40
v_cmp_ne_u32 vcc, 0, v36
s_cbranch_vccz {lcok}
{"s_branch "+lcok if "cen" in DROP else ""}
s_sleep 4""")
A(f"buffer_load_dwordx4 v[32:35], v{vVo}, {srd(rWS)}, s{sT2} offen sc1", cond=True)
A("s_waitcnt vmcnt(0)")
retry(lcen)
A(f"{lcok}:")
stamp(4)
A(f"""
s_getreg_b32 s3, hwreg(HW_REG_XCC_ID, 0, 4)
v_xor_b32 v38, s3, v38
v_xor_b32 v39, s3, v39
v_or_b32 v38, v38, v39
v_cmp_eq_u32 vcc, 0, v38
s_lshl_b32 s3, s{sg}, 3
s_lshr_b64 s[{sT2}:{sT2+1}], vcc, s3
s_and_b32 s{sT2}, s{sT2}, 0xff
s_cmp_eq_u32 s{sT2}, 0xff
s_cselect_b32 s{sFAST}, {0 if FORCE_SLOW else 1}, 0""")
def wo_pf():
    A(f"""
s_lshr_b32 s3, s2, 3
s_lshl_b32 s3, s3, 2
s_add_u32 s3, s3, s{sw}
s_lshl_b32 s3, s3, 12
s_lshl_b32 s{sT2}, s{sg}, 19
s_add_u32 s{sT2}, s{sT2}, s3""")
    for i in range(4):
        A(f"buffer_load_dwordx4 a[248:251], v{vVo}, {srd(rWO)}, s{sT2} offen offset:{1024*i}{PFPOL}", tag="pfo")
def qloads():
    for s in range(4):
        A(f"buffer_load_dwordx4 {vq(vQ+4*s)}, v{vQad}, {srd(rWS)}, s{sQget} offen offset:{256*s} sc1", tag="Q")
stream(upto=upto_pos(opt("qpos", 40)))
qloads()
stream(opt("qlag", 7))
A.vwait("Q")
lq1, lq1ok = lab("ql"), lab("qlok")
def qcheck(t0, t1):
    A(f"v_max3_u32 v{t0}, v{vQ}, v{vQ+1}, v{vQ+2}")
    A(f"v_max3_u32 v{t1}, v{vQ+3}, v{vQ+4}, v{vQ+5}")
    for i in range(2): A(f"v_max3_u32 v{t0}, v{t0}, v{vQ+6+4*i}, v{vQ+7+4*i}\nv_max3_u32 v{t1}, v{t1}, v{vQ+8+4*i}, v{vQ+9+4*i}")
    A(f"v_max3_u32 v{t0}, v{t0}, v{vQ+14}, v{vQ+15}\nv_max_u32 v{t0}, v{t0}, v{t1}")
    A(f"v_cmp_eq_u32 vcc, -1, v{t0}")
A(f"{lq1}:")
qcheck(60, 61)
A(f"s_cbranch_vccz {lq1ok}")
if "cen" in DROP: A(f"s_branch {lq1ok}")
for s in range(4):
    A(f"buffer_load_dwordx4 {vq(vQ+4*s)}, v{vQad}, {srd(rWS)}, s{sQget} offen offset:{256*s} sc1", cond=True)
A("s_waitcnt vmcnt(0)")
retry(lq1)
A(f"{lq1ok}:")
assert kr[0] == 8
A("s_waitcnt lgkmcnt(0)")
stamp(5)

def qk(filler=None):
    tiles = [(t, u) for t in range(4) for u in range(2)]
    def dreg(k):
        t, u = tiles[k]
        return (vD0 if u == 0 else vD1) if t == 0 else vROT + 4*(k % 3)
    def sel(k):
        t, u = tiles[k]
        if t == 0: return []
        return [f"v_mov_b32_dpp v{(vD0 if u == 0 else vD1)+r}, v{dreg(k)+r} quad_perm:[0,1,2,3] row_mask:0xf bank_mask:{1 << t:#x}" for r in range(4)]
    for k in range(8):
        ex = sel(k-2) if k >= 2 else []
        for s in range(4):
            c = "0" if s == 0 else vq(dreg(k))
            A(f"v_mfma_f32_16x16x32_bf16 {vq(dreg(k))}, {aq(aK+16*k+4*s)}, {vq(vQ+4*s)}, {c}")
            if ex: A(ex.pop(0))
        if filler: filler(k)
    for k in (6, 7):
        for i in sel(k): A(i)
vM, vTt, vLs, vP = 32, 33, 34, 28
vF = 36; vMM = 40
def softmax():
    A(f"""
v_max3_f32 v{vM}, v{vD0}, v{vD0+1}, v{vD0+2}
v_max3_f32 v{vTt}, v{vD0+3}, v{vD1}, v{vD1+1}
v_max3_f32 v{vM}, v{vM}, v{vD1+2}, v{vD1+3}
v_max_f32 v{vM}, v{vM}, v{vTt}
v_max_f32_dpp v{vM}, v{vM}, v{vM} row_ror:4 row_mask:0xf bank_mask:0xf
v_max_f32_dpp v{vM}, v{vM}, v{vM} row_ror:8 row_mask:0xf bank_mask:0xf
v_mov_b32 v{vTt}, v{vM}
v_permlane16_swap_b32 v{vM}, v{vTt}
v_max_f32 v{vM}, v{vM}, v{vTt}
v_mov_b32 v{vTt}, v{vM}
v_permlane32_swap_b32 v{vM}, v{vTt}
v_max_f32 v{vM}, v{vM}, v{vTt}""")
    for r in range(8): A(f"v_sub_f32 v{vD0+r}, v{vD0+r}, v{vM}")
    A(f"ds_write_b32 v{vMBw}, v{vM}")
    for r in range(8): A(f"v_exp_f32 v{vD0+r}, v{vD0+r}")
    for p in range(4): A(f"v_cvt_pk_bf16_f32 v{vP+p}, v{vD0+2*p}, v{vD0+2*p+1}")
def aop(t): return vP if t == 0 else vROT + 4*(t-1)
def shifts(t): return [f"v_mov_b32_dpp v{aop(t)+p}, v{vP+p} row_ror:{16-4*t} row_mask:0xf bank_mask:0xf" for p in range(4)]
def lsum_ops():
    return [f"v_add_f32 v{vLs}, v{vD0}, v{vD0+1}", f"v_add_f32 v{vTt}, v{vD0+2}, v{vD0+3}",
            f"v_add_f32 v{vLs}, v{vLs}, v{vD1}", f"v_add_f32 v{vTt}, v{vTt}, v{vD1+1}",
            f"v_add_f32 v{vLs}, v{vLs}, v{vD1+2}", f"v_add_f32 v{vTt}, v{vTt}, v{vD1+3}",
            f"v_add_f32 v{vLs}, v{vLs}, v{vTt}",
            f"v_add_f32_dpp v{vLs}, v{vLs}, v{vLs} row_ror:4 row_mask:0xf bank_mask:0xf",
            f"v_add_f32_dpp v{vLs}, v{vLs}, v{vLs} row_ror:8 row_mask:0xf bank_mask:0xf",
            f"v_mov_b32 v{vTt}, v{vLs}", f"v_permlane16_swap_b32 v{vLs}, v{vTt}", f"v_add_f32 v{vLs}, v{vLs}, v{vTt}",
            f"v_mov_b32 v{vTt}, v{vLs}", f"v_permlane32_swap_b32 v{vLs}, v{vTt}", f"v_add_f32 v{vLs}, v{vLs}, v{vTt}",
            f"ds_write_b32 v{vMBw}, v{vLs} offset:64"]
def fw_ops():
    return [f"ds_read_b128 {vq(vF)}, v{vMBr}", "s_waitcnt lgkmcnt(0)",
            f"v_max3_f32 v{vMM}, v{vF}, v{vF+1}, v{vF+2}", f"v_max_f32 v{vMM}, v{vMM}, v{vF+3}"] + \
           [f"v_sub_f32 v{vF+i}, v{vF+i}, v{vMM}" for i in range(4)] + [f"v_exp_f32 v{vF+i}, v{vF+i}" for i in range(4)]
def pv_mfma(t, jd):
    c = "0" if t == 0 else vq(vACC+4*jd)
    A(f"v_mfma_f32_16x16x32_bf16 {vq(vACC+4*jd)}, {vq(aop(t))}, {vq(vR+32*t+4*jd)}, {c}")

def wo_dma():
    A(f"""
s_lshl_b32 s{sT2}, s{sg}, 19
s_lshl_b32 s3, s{sw}, 17
s_add_u32 s{sT2}, s{sT2}, s3
s_lshl_b32 s3, s{sj}, 6
s_add_u32 s{sT2}, s{sT2}, s3""")
    for n in range(8): dma(vWOo, rWO, sT2, sKm, 1024*n, n << 14, f"WO{n}", WPOL)

def tail_pf():
    A(f"""
v_lshlrev_b32 v{vPF}, 7, v{vL}
s_lshr_b32 s{sT3}, s2, 3
s_lshl_b32 s{sT3}, s{sT3}, 2
s_add_u32 s{sT3}, s{sT3}, s{sw}          ; u = jj*4+w, 0..127
s_mul_i32 s{sT2}, s{sT3}, {4*3584}
s_mul_i32 s3, s{sg}, 448
s_add_u32 s{sT2}, s{sT2}, s3
v_lshrrev_b32 v41, 5, v{vL}
v_mul_u32_u24 v41, 3584, v41
v_and_b32 v42, 31, v{vL}
v_lshl_add_u32 v41, v42, 4, v41
s_add_u32 s3, s{sT2}, {2*3584}""")
    exec_set(0x0fffffff, 0x0fffffff)
    if "pf1" not in DROP and not INS:
        A(f"buffer_load_dwordx4 a[248:251], v41, {srd(rW1)}, s{sT2} offen{PFPOL}", tag="pf1")
        A(f"buffer_load_dwordx4 a[248:251], v41, {srd(rW1)}, s3 offen{PFPOL}", tag="pf1")
    A(f"""
s_mul_i32 s{sT2}, s{sT3}, {14*128}
s_mul_i32 s3, s{sg}, {224*1024}
s_add_u32 s{sT2}, s{sT2}, s3""")
    exec_set(0xffffffff, 0x00ffffff)
    if "pf1" not in DROP and not INS:
        A(f"buffer_load_dwordx4 a[248:251], v{vVo}, {srd(rW2)}, s{sT2} offen{PFPOL}", tag="pf2")
        A(f"buffer_load_dwordx4 a[248:251], v{vVo}, {srd(rW2)}, s{sT2} offen offset:896{PFPOL}", tag="pf2")
    exec_all()
    lw = lab("wu"); lw2 = lab("wu")
    A(f"""
s_and_b32 s3, s{sw}, 1
s_mul_i32 s3, s3, {LS}
s_cmp_ge_u32 s{sw}, 2
s_cbranch_scc1 {lw}
s_add_u32 s3, s3, s{sOclr}
v_and_b32 v41, 7, v{vL}
v_lshlrev_b32 v41, 7, v41
s_branch {lw2}
{lw}:
v_add_u32 v41, s{sQpub}, v{vPF}
s_sub_u32 s{sT2}, s{sMLpub}, 256
v_add_u32 v42, s{sT2}, v{vPF}
v_cmp_le_u32 vcc, 2, v{vL}
v_cndmask_b32 v41, v41, v42, vcc
v_mov_b32 v42, s{sHpub}
v_cmp_le_u32 vcc, 6, v{vL}
v_cndmask_b32 v41, v41, v42, vcc
{lw2}:""")
    exec_set(0xff, 0)
    A(f"buffer_load_dword a253, v41, {srd(rWS)}, s3 offen sc1", tag="wu")
    A(f"""
s_getpc_b64 s[{sT2}:{sT2+1}]
L_pc:
s_add_u32 s{sT2}, s{sT2}, L_comb-L_pc
s_addc_u32 s{sT2+1}, s{sT2+1}, 0""")
    exec_all()
    A(f"v_min_u32 v42, L_end-L_comb, v{vPF}")
    A(f"global_load_dword a254, v42, s[{sT2}:{sT2+1}]", tag="pfc")

qk(filler=lambda k: (stream(2), wo_pf() if (k == opt('pfok', 2) and not INS) else None))
stream(40)
softmax()
for t in (1, 2, 3):
    for i in shifts(t): A(i)
for i in lsum_ops(): A(i)
stamp(6)
for t in range(4):
    A.vwait(f"V{8*t+7}")
    raw = vR + 32*(t+1); dst = vR + 32*t
    for jd in range(8):
        for p in range(4):
            A(f"v_perm_b32 v{dst+4*jd+p}, v{raw+4*(2*p+1)+(jd>>1)}, v{raw+4*(2*p)+(jd>>1)}, s{sSELHI if jd & 1 else sSELLO}")
        if jd: pv_mfma(t, jd-1)
    pv_mfma(t, 7)
    if t == MBG:
        A("s_waitcnt lgkmcnt(0)\ns_barrier")
        for i in fw_ops(): A(i)
        if INS:
            A(f"""
v_lshrrev_b32 v44, 2, v{vL}
v_and_b32 v44, 3, v44                     ; r
v_and_b32 v45, 3, v{vL}
v_lshlrev_b32 v45, 3, v45                 ; 8c
v_lshrrev_b32 v46, 4, v{vL}               ; q
v_lshl_add_u32 v47, v46, 3, v44           ; 8q+r
v_lshl_add_u32 v47, v47, 5, v45
s_add_u32 s3, s{sKm}, 8192
v_add_u32 v47, s3, v47                    ; w1
v_and_b32 v48, 1, v46
v_lshl_add_u32 v44, v48, 3, v44
v_lshl_add_u32 v44, v44, 6, v45
v_lshrrev_b32 v46, 1, v46
v_lshl_add_u32 v44, v46, 13, v44
s_and_b32 s3, s{sw}, 1
s_lshl_b32 s3, s3, 5
v_add_u32 v44, s3, v44                    ; w2""")
            tr_reads(aWO, vTrO, 4, 2, 128, 32, 1024)
            tr_reads(aW1, 47, 4, 1, 1024, 0, 128)
            for st in range(7):
                o_ = LWQ + 4096 + ((2*st) & 3)*8192 + (st >> 1)*1024
                A(f"ds_read_b64_tr_b16 a[{aW2+4*st}:{aW2+4*st+1}], v44 offset:{o_}")
                A(f"ds_read_b64_tr_b16 a[{aW2+4*st+2}:{aW2+4*st+3}], v44 offset:{o_+256}")
    if t == opt("pfg", 1):
        if opt('pfok', 2) == 99 and not INS: wo_pf()
        tail_pf()
stamp(7)
flush_stamps(0, 8)
if EXP == "stream": A("s_branch L_done")

A("L_comb:")
exec_set(0xffff, 0)
for jd in range(8): A(f"ds_write_b128 v{vOBw}, {vq(vACC+4*jd)} offset:{256*jd}")
exec_all()
A("s_waitcnt lgkmcnt(0)\ns_barrier")
for w in range(4): A(f"ds_read2st64_b32 v[{44+2*w}:{45+2*w}], v{vOBr} offset0:{8*w} offset1:{8*w+1}")
A(f"ds_read_b128 v[52:55], v{vMBr} offset:64")
A("s_waitcnt lgkmcnt(1)" if not PROF else "s_waitcnt lgkmcnt(0)")
A(f"v_mul_f32 v44, v{vF}, v44\nv_mul_f32 v45, v{vF}, v45")
for w in range(1, 4): A(f"v_fmac_f32 v44, v{vF+w}, v{44+2*w}\nv_fmac_f32 v45, v{vF+w}, v{45+2*w}")
A("v_cvt_pk_bf16_f32 v44, v44, v45")
pub_store(f"buffer_store_dword v44, v{vOpub}, {srd(rWS)}, s{sOpub} offen")
lm = lab("ml")
A(f"s_cmp_lg_u32 s{sw}, 0\ns_cbranch_scc1 {lm}")
A(f"""
s_waitcnt lgkmcnt(0)
v_mul_f32 v{vMM+1}, v{vF}, v52
v_fmac_f32 v{vMM+1}, v{vF+1}, v53
v_fmac_f32 v{vMM+1}, v{vF+2}, v54
v_fmac_f32 v{vMM+1}, v{vF+3}, v55
v_lshlrev_b32 v46, 3, v{vL}""")
exec_set(0x00010001, 0x00010001)
pub_store(f"buffer_store_dwordx2 v[{vMM}:{vMM+1}], v46, {srd(rWS)}, s{sMLpub} offen")
exec_all()
A(f"{lm}:")
stamp(0)
vO = 28; vml = 44; vDy = 48
la, laok, la0 = lab("pa"), lab("paok"), lab("pa0")
def a_loads():
    for s in range(4): A(f"buffer_load_dwordx4 {vq(vO+4*s)}, v{vVo}, {srd(rWS)}, s{sOget} offen offset:{1024*s} sc1")
    A(f"buffer_load_dwordx2 v[{vml}:{vml+1}], v{vMLad}, {srd(rWS)}, s{sMLget} offen sc1")
A(f"s_cmp_lg_u32 s{sLAYER}, 0\ns_cbranch_scc1 {la}")
NOEMIT0 = len(A.L)
A(f"""
v_lshrrev_b32 v56, 2, v{vL}
v_and_b32 v57, 3, v{vL}
v_lshlrev_b32 v57, 4, v57
v_lshl_add_u32 v{vWOo}, v56, 10, v57""")
if WOS < 0: wo_dma()
A(f"""
v_lshrrev_b32 v56, 1, v{vL}
v_and_b32 v57, 1, v{vL}
v_lshlrev_b32 v57, 4, v57
v_mul_u32_u24 v{vW1o}, 3584, v56
v_add_u32 v{vW1o}, v{vW1o}, v57
v_lshrrev_b32 v56, 2, v{vL}
v_and_b32 v57, 3, v{vL}
v_lshlrev_b32 v58, 4, v57
v_lshl_add_u32 v{vW2o}, v56, 10, v58
v_and_b32 v56, 3, v56                     ; r
v_lshrrev_b32 v58, 4, v{vL}               ; q
v_lshl_add_u32 v56, v58, 3, v56           ; 8q+r
v_lshlrev_b32 v57, 3, v57                 ; 8c
v_lshl_add_u32 v58, v56, 5, v57
s_add_u32 s3, s{sKm}, 8192
v_add_u32 v{vT1}, s3, v58
v_lshl_add_u32 v58, v56, 6, v57
s_and_b32 s3, s{sw}, 1
s_lshl_b32 s3, s3, 5
s_add_u32 s3, s3, {LW2}
v_add_u32 v{vT2}, s3, v58""")
a_loads()
A("s_waitcnt vmcnt(5)")
if PROF == 2: stamp(4)
tr_reads(aWO, vTrO, 4, 2, 128, 32, 1024)
A(f"s_waitcnt lgkmcnt(0)\ns_branch {la0}")
if INS: del A.L[NOEMIT0-2:]
A(f"{la}:")
a_loads()
A(f"{la0}:")
A("s_waitcnt vmcnt(0)")
chk = [f"v_max3_u32 v56, v{vml}, v{vml+1}, v{vO}"] + [f"v_max3_u32 v56, v56, v{vO+1+2*i}, v{vO+2+2*i}" for i in range(7)] + [f"v_max_u32 v56, v56, v{vO+15}"]
for s in range(4):
    for t in range(2):
        c = "0" if s == 0 else vq(vDy+4*t)
        A(f"v_mfma_f32_16x16x32_bf16 {vq(vDy+4*t)}, {vq(vO+4*s)}, {aq(aWO+(t*4+s)*4)}, {c}")
        for _ in range(2):
            if chk: A(chk.pop(0))
A(f"v_cmp_eq_u32 vcc, -1, v56\ns_cbranch_vccz {laok}")
retry(la)
A(f"{laok}:")
stamp(1)
A(f"""
v_max_f32_dpp v57, v{vml}, v{vml} quad_perm:[1,0,3,2] row_mask:0xf bank_mask:0xf
v_max_f32_dpp v57, v57, v57 quad_perm:[2,3,0,1] row_mask:0xf bank_mask:0xf
v_mov_b32 v58, v57
v_permlane16_swap_b32 v57, v58
v_max_f32 v57, v57, v58
v_mov_b32 v58, v57
v_permlane32_swap_b32 v57, v58
v_max_f32 v57, v57, v58
v_sub_f32 v57, v{vml}, v57
v_exp_f32 v57, v57
v_mul_f32 v58, v57, v{vml+1}
v_mul_f32_dpp v60, v57, v{vDy} quad_perm:[0,0,0,0] row_mask:0xf bank_mask:0xf
v_mul_f32_dpp v61, v57, v{vDy+4} quad_perm:[0,0,0,0] row_mask:0xf bank_mask:0xf
v_add_f32_dpp v58, v58, v58 quad_perm:[1,0,3,2] row_mask:0xf bank_mask:0xf
v_fmac_f32_dpp v60, v57, v{vDy+1} quad_perm:[1,1,1,1] row_mask:0xf bank_mask:0xf
v_fmac_f32_dpp v61, v57, v{vDy+5} quad_perm:[1,1,1,1] row_mask:0xf bank_mask:0xf
v_add_f32_dpp v58, v58, v58 quad_perm:[2,3,0,1] row_mask:0xf bank_mask:0xf
v_fmac_f32_dpp v60, v57, v{vDy+2} quad_perm:[2,2,2,2] row_mask:0xf bank_mask:0xf
v_fmac_f32_dpp v61, v57, v{vDy+6} quad_perm:[2,2,2,2] row_mask:0xf bank_mask:0xf
v_mov_b32 v59, v58
v_fmac_f32_dpp v60, v57, v{vDy+3} quad_perm:[3,3,3,3] row_mask:0xf bank_mask:0xf
v_fmac_f32_dpp v61, v57, v{vDy+7} quad_perm:[3,3,3,3] row_mask:0xf bank_mask:0xf
v_permlane16_swap_b32 v58, v59
v_add_f32 v58, v58, v59
v_permlane32_swap_b32 v60, v61
v_mov_b32 v59, v58
v_add_f32 v60, v60, v61
v_permlane32_swap_b32 v58, v59
v_mov_b32 v61, v60
v_add_f32 v58, v58, v59
v_permlane16_swap_b32 v60, v61
v_rcp_f32 v58, v58
v_add_f32 v60, v60, v61
v_mul_f32 v60, v60, v58
ds_write_b32 v{vREDA}, v60
s_waitcnt lgkmcnt(0)
s_barrier""")
ly, ly2, ly3 = lab("y"), lab("y2"), lab("y3")
A(f"s_cmp_lg_u32 s{sw}, 0\ns_cbranch_scc1 {ly}")
A(f"""
ds_read_b128 v[28:31], v{vRED} offset:{REDA-RED0}
s_waitcnt lgkmcnt(0)
v_add_f32 v28, v28, v29
v_add_f32 v30, v30, v31
v_add_f32 v28, v28, v30""")
pack_pairs(28, 29)
exec_set(0x55555555, 0)
A(f"buffer_store_dword v28, v{vPAIR}, {srd(rWS)}, s{sYpub} offen sc1")
exec_all()
A(f"s_branch {ly2}\n{ly}:\ns_sleep 2\n{ly2}:")
stamp(2)
lnd, lnd2 = lab("nd"), lab("nd")
NOEMIT1 = len(A.L)
A(f"s_cmp_lg_u32 s{sLAYER}, 0\ns_cbranch_scc1 {lnd}")
A(f"""
s_mul_i32 s{sT2}, s{sw}, {128*3584}
s_mul_i32 s3, s{sg}, 448
s_add_u32 s{sT2}, s{sT2}, s3
s_lshl_b32 s3, s{sjf}, 5
s_add_u32 s{sT2}, s{sT2}, s3
s_cmp_ge_u32 s{sjf}, 14
s_cbranch_scc1 {lnd2}""")
for i in range(4): dma(vW1o, rW1, sT2, sKm, 8192 + 1024*i, i*32*3584, "W1", WPOL, cond=True)
A(f"""{lnd2}:
s_mul_i32 s{sT2}, s{sg}, {224*1024}
s_lshl_b32 s3, s{sj}, 6
s_add_u32 s{sT2}, s{sT2}, s3
s_lshl_b32 s3, s{sw}, 14
s_add_u32 s{sT2}, s{sT2}, s3
s_lshl_b32 s{sT3}, s{sw}, 10""")
for i in range(3): dma(vW2o, rW2, sT2, sT3, LW2 + 4096*i, i*64*1024, "W2", WPOL, cond=True)
A(f"s_cmp_ge_u32 s{sw}, 2\ns_cbranch_scc1 {ly3}")
dma(vW2o, rW2, sT2, sT3, LW2 + 4096*3, 3*64*1024, "W2", WPOL, cond=True)
A(f"{ly3}:\ns_sleep {opt('sb0', 6)}")
lnd3 = lab("nd")
if INS:
    del A.L[NOEMIT1:]
    A(f"s_sleep {SLEEP_B}")
else: A(f"s_branch {lnd3}\n{lnd}:\ns_sleep {SLEEP_B}\n{lnd3}:")
def gather(s0, s1, lp, mid=None):
    lg, lok = lab(lp), lab(lp + "ok")
    A(f"{lg}:")
    A(f"buffer_load_dwordx4 v[32:35], v{vGad}, {srd(rWS)}, s{s0} offen sc1")
    A(f"buffer_load_dwordx4 v[36:39], v{vGad}, {srd(rWS)}, s{s1} offen sc1")
    A(f"""s_waitcnt vmcnt(1)
v_mfma_f32_16x16x32_bf16 v[40:43], {vq(vSEL)}, v[32:35], {vq(vX)}
s_waitcnt vmcnt(0)
v_mfma_f32_16x16x32_bf16 v[40:43], {vq(vSEL)}, v[36:39], v[40:43]""")
    if mid: mid()
    A(f"""v_cmp_u_f32 vcc, v40, v40
s_cbranch_vccz {lok}""")
    retry(lg)
    A(f"{lok}:")
    A(f"v_cvt_pk_bf16_f32 v{vXP}, v40, v41\nv_cvt_pk_bf16_f32 v{vXP+1}, v42, v43")
def w1mid():
    l = lab("w1r")
    A(f"s_cmp_lg_u32 s{sLAYER}, 0\ns_cbranch_scc1 {l}")
    tr_reads(aW1, vT1, 4, 1, 1024, 0, 128)
    A(f"{l}:\ns_nop 5")
gather(sYget, sYget1, "gb", mid=None if INS else w1mid)
stamp(3)
lb = lab("nof")
A(f"s_cmp_ge_u32 s{sjf}, 14")
xproc(aW1, 1, RED1-RED0, 32, skip_label=lb)
A(f"{lb}:\ns_waitcnt lgkmcnt(0)\ns_barrier")
lh = lab("h")
A(f"s_cmp_lg_u32 s{sw}, 0\ns_cbranch_scc1 {lh}\ns_cmp_ge_u32 s{sjf}, 14\ns_cbranch_scc1 {lh}")
ln_final(RED1-RED0, 32)
A(f"""
v_mul_f32 v29, {f2u(-LOG2E):#x}, v28
v_exp_f32 v29, v29
v_add_f32 v29, 1.0, v29
v_rcp_f32 v29, v29
v_mul_f32 v28, v28, v29""")
pack_pairs(28, 29)
exec_set(0x5555, 0)
pub_store(f"buffer_store_dword v28, v{vPAIR}, {srd(rWS)}, s{sHpub} offen")
exec_all()
A(f"{lh}:")
if PROF != 2: stamp(4)
ld, ldok, ldsk = lab("pd"), lab("pdok"), lab("pdsk")
A(f"s_cmp_lt_u32 s{sw}, 2\ns_cbranch_scc1 {ldsk}")
if not INS:
    A(f"s_cmp_lg_u32 s{sLAYER}, 0\ns_cbranch_scc1 {ld}")
    tr_reads(aW2, vT2, 7, 1, 2048, 0, 256)
    A("s_waitcnt lgkmcnt(0)")
A(f"{ld}:")
for s in range(7): A(f"buffer_load_dwordx4 {vq(28+4*s)}, v{vHad}, {srd(rWS)}, s{sHget} offen offset:{64*s} sc1")
for s in range(7):
    A(f"s_waitcnt vmcnt({6-s})")
    A(f"v_mfma_f32_16x16x32_bf16 v[56:59], {aq(aW2+4*s)}, {vq(28+4*s)}, {'0' if s == 0 else 'v[56:59]'}")
A(f"v_cmp_u_f32 vcc, v56, v56\ns_cbranch_vccz {ldok}")
retry(ld)
A(f"{ldok}:")
A("v_cvt_pk_bf16_f32 v56, v56, v57\nv_cvt_pk_bf16_f32 v57, v58, v59")
exec_set(0x00010001, 0x00010001)
A(f"buffer_store_dwordx2 v[56:57], v{vZpub}, {srd(rWS)}, s{sZpub} offen sc1")
exec_all()
A(f"{ldsk}:")
stamp(5)
A(f"s_cmp_lg_u32 s{sLAYER}, 0\ns_cbranch_scc1 L_final")
A("s_barrier")
A(f"s_sleep {SLEEP_E}")
gather(sZget, sZget1, "ge")
stamp(6)
xproc(aWQ, 2, 0, 0)
A(f"s_add_u32 s{rWS}, s{rWS}, {LS}\ns_addc_u32 s{rWS+1}, s{rWS+1}, 0\ns_mov_b32 s{rWS+2}, {WS_BYTES-LS:#x}\ns_mov_b32 s{sLAYER}, 1")
A("s_waitcnt lgkmcnt(0)\ns_barrier")
lq2 = lab("q2")
A(f"s_cmp_lg_u32 s{sw}, 0\ns_cbranch_scc1 {lq2}")
ln_final(0, 0)
A(f"v_mul_f32 v28, {f2u(QSCALE):#x}, v28")
pack_pairs(28, 29)
exec_set(0x55555555, 0)
pub_store(f"buffer_store_dword v28, v{vQP}, {srd(rWS)}, s{sQpub} offen")
exec_all()
A(f"{lq2}:")
stamp(7)
lg, lgok = lab("pg"), lab("pgok")
A(f"{lg}:")
qloads()
A("s_waitcnt vmcnt(0)")
qcheck(60, 61)
A(f"s_cbranch_vccz {lgok}")
retry(lg)
A(f"{lgok}:")
stamp(8)
qk()
softmax()
ex = shifts(1) + shifts(2) + shifts(3) + lsum_ops()
for t in range(4):
    if t == 2:
        while ex: A(ex.pop(0))
        A("s_waitcnt lgkmcnt(0)\ns_barrier")
        ex = fw_ops()
    for jd in range(8):
        pv_mfma(t, jd)
        for _ in range(2):
            if ex: A(ex.pop(0))
while ex: A(ex.pop(0))
stamp(9)
flush_stamps(16, 10)
A("s_branch L_comb")
A("L_final:")
A(f"s_or_b32 s3, s{sg}, s{sj}\ns_cmp_lg_u32 s3, 0\ns_cbranch_scc1 L_done")
A(f"s_sleep {SLEEP_F}")
gather(sZget, sZget1, "gf")
A(f"""
s_lshl_b32 s3, s{sb}, 10
s_lshl_b32 s{sT0}, s{sw}, 8
s_add_u32 s3, s3, s{sT0}
s_lshl_b32 s{sT0}, s{sw}, 9
s_add_u32 s{sT0}, s{sT0}, {XB}
s_sub_u32 s3, s3, s{sT0}
v_add_u32 v30, s3, v{vXBw}""")
exec_set(0xffffffff, 0)
A(f"global_store_dwordx2 v30, v[{vXP}:{vXP+1}], {sp(sOUT)}")
A(f"""s_barrier
s_lshl_b32 s3, s{sb}, 7
s_add_u32 s3, s3, {EPO}
v_mov_b32 v30, s3
v_mov_b32 v31, s{sTAG0}""")
exec_set(1, 0)
A(f"global_store_dword v30, v31, {sp(sWS)} sc1")
exec_all()
A("L_done:")
if PROF:
    stamp(6)
    flush_stamps(32, 7)
    A(f"""
s_lshl_b32 s3, s2, 2
s_add_u32 s3, s3, s{sw}
s_lshl_b32 s3, s3, 8
s_add_u32 s3, s3, {PROF_OFF}
v_lshlrev_b32 v30, 2, v{vL}
v_add_u32 v30, s3, v30
global_store_dword v30, v{vPROF}, {sp(sWS)}""")
A("L_end:\ns_endpgm")
A.raw('.section .rodata,"a"'); A.raw(".p2align 6"); A.raw(f".amdhsa_kernel {NAME}_kernel")
for l in ["next_free_vgpr 512", "next_free_sgpr 102", "accum_offset 256", "group_segment_fixed_size 0", "kernarg_size 88",
          "user_sgpr_count 2", "user_sgpr_kernarg_segment_ptr 1", "system_sgpr_workgroup_id_x 1"]:
    A.raw("  .amdhsa_" + l)
A.raw(".end_amdhsa_kernel")
open(out, "w").write("\n".join(H) + "\n" + A.text())
print("instrs", len(A.L), "nops inserted", A.nopcount, file=sys.stderr)
```

```python
import sys, math, struct
sys.path.insert(0, "gen")
from asmlib import Asm

NAME = "interleave_layers__gqa_block_cached__dense_activation_silu__decode"
out = sys.argv[1]
O = dict(kv.split("=") for kv in sys.argv[2:])
def opt(k, d): return type(d)(O.get(k, d))
PROF = opt("prof", 0); SWZ = opt("swz", 13)
SLEEP_B = opt("sb", 14); SLEEP_E = opt("se", 14); SLEEP_F = opt("sf", 6)
FORCE_SLOW = opt("slow", 0); EXP = opt("exp", "")
POL = {"nt": " nt", "none": "", "sc1": " sc1"}
WQPOL = POL[opt("wqpol", "nt")]; PFPOL = POL[opt("pfpol", "none")]; WPOL = POL[opt("wpol", "none")]
DROP = opt("drop", "").split(",")
INS = opt("ins", 0)
WPOS0 = opt("wpos0", 20); WSTEP = opt("wstep", 2); MBG = opt("mbg", 1)
WOS = opt("wos", -1)
WOSTEP = opt("wostep", 2)
def f2u(x): return struct.unpack("<I", struct.pack("<f", x))[0]
LOG2E = 1.4426950408889634
QSCALE = LOG2E / math.sqrt(128.0)

QS, ML, HS, YS, ZS, OS = 0, 16384, 24576, 32768, 49152, 65536
LS = 65536 + 262144
EPO = 2 * LS; FLG = EPO + 1024
WS_BYTES = FLG + 2048
PROF_OFF = 16 << 20
LWQ = 0; KST = 32768; LW2 = LWQ
XB = KST + 4 * 28672; RED0 = XB + 2048; RED1 = RED0 + 1024; REDA = RED0 + 2048; ST0 = RED0 + 2560; MB = RED0 + 2688; OB = RED0 + 3072
LDS_BYTES = OB + 8192
assert LDS_BYTES <= 163840
sX, sK, sV, sWQ, sWO, sW1, sW2, sOUT, sDBG, sWS = 4, 6, 8, 10, 12, 16, 18, 20, 22, 24
rK, rV, rWQ, rWO, rW1, rW2, rWS = 28, 32, 36, 40, 44, 48, 52
sg, sb, sj, sw, sFAST, sLAYER, sBUD = 56, 57, 58, 59, 60, 61, 62
sSELLO, sSELHI = 63, 64
sQpub, sQget, sMLpub, sMLget, sHpub, sHget, sYpub, sYget, sZpub, sZget, sOpub, sOget = range(65, 77)
sYget1, sZget1 = 77, 78
sT0, sT1, sT2, sT3 = 26, 27, 14, 15
sjf = 21 + 77
sOclr = 81; sWOb = 21 + 80
sVb, sKm, sTAG0, sTAG1 = 79, 80, 22, 23
sSTAMP = 82
def srd(r): return f"s[{r}:{r+3}]"
def sp(r): return f"s[{r}:{r+1}]"
vL, vXBw, vXBr, vRED, vREDA, vOad, vMLad, vGad, vHad, vQad, vPAIR, vOBw = range(0, 12)
vSEL = 12; vX = 16
vOBr, vOpub, vMBw, vMBr, vST, vZpub = 20, 21, 22, 23, 24, 25
vQP = vOad
vVo = 26; vTrO = 27
vQ = 28; vD0, vD1 = 44, 48; vROT = 52; vACC = 64; vR = 96
vPROF = 255
vW1o, vW2o, vT1, vT2 = 224, 225, 226, 227
def vq(r, n=4): return f"v[{r}:{r+n-1}]"
def aq(r, n=4): return f"a[{r}:{r+n-1}]"
aK, aWQ, aWO, aW1, aW2 = 0, 128, 160, 192, 208

A = Asm()
uid = [0]
def lab(p):
    uid[0] += 1
    return f"L_{p}{uid[0]}"
def exec_set(lo, hi): A(f"s_mov_b32 exec_lo, {lo:#x}\ns_mov_b32 exec_hi, {hi:#x}")
def exec_all(): A("s_mov_b64 exec, -1")
def sreg(i): return sSTAMP + 2*i if i < 8 else {8: 0, 9: 100}[i]
def stamp(i):
    if PROF: A(f"s_memrealtime s[{sreg(i)}:{sreg(i)+1}]")
def flush_stamps(base, n):
    if not PROF: return
    A("s_waitcnt lgkmcnt(0)")
    for i in range(n): A(f"v_writelane_b32 v{vPROF}, s{sreg(i)}, {base+i}")
def retry(loop):
    A(f"s_sub_u32 s{sBUD}, s{sBUD}, 1\ns_cbranch_scc0 {loop}\ns_mov_b32 s{sBUD}, 0")
def pub_store(ins):
    a, b = lab("ps"), lab("pe")
    A(f"s_cmp_eq_u32 s{sFAST}, 0\ns_cbranch_scc1 {a}")
    A(ins, cond=True)
    A(f"s_branch {b}\n{a}:")
    A(ins + " sc1", cond=True)
    A(f"{b}:")

hdr = open(f"cdna_kernels/{NAME}.s.ref").read().split("\n")
H = [l for l in hdr if l.startswith(";") and "@launch" not in l and not l.startswith("; Override") and not l.startswith("; grid=ceil")]
H.append(f"; @launch grid=(256,1,1) block=(256,1,1) lds={LDS_BYTES}")
A.raw('.amdgcn_target "amdgcn-amd-amdhsa--gfx950"')
A.raw(".text"); A.raw(f".globl {NAME}_kernel"); A.raw(".p2align 8"); A.raw(f".type {NAME}_kernel,@function")
A.raw(f"{NAME}_kernel:")

tn, tq = 31, 32
vKo = vR
vKr = vR + 4
vK7 = vR + 8
vWQo = vR + 12; vTq = vR + 13; vWOo = 228; vPF = 35
stamp(0)
A(f"""
s_cmp_ge_u32 s2, 256
s_cbranch_scc1 L_end
s_load_dwordx16 s[4:19], s[0:1], 0
s_load_dwordx2 s[20:21], s[0:1], 64
s_load_dwordx2 s[24:25], s[0:1], 80
v_lshrrev_b32 v30, 6, v0
v_and_b32 v{vL}, 63, v0
s_and_b32 s{sg}, s2, 7
v_readfirstlane_b32 s{sw}, v30
s_lshr_b32 s{sj}, s2, 3
s_lshr_b32 s{sb}, s{sj}, 4
s_and_b32 s{sj}, s{sj}, 15
s_and_b32 s3, s{sj}, 6
s_cmp_eq_u32 s3, {6 if opt('perm', 1) else 99}
s_cselect_b32 s3, 8, 0
s_xor_b32 s{sjf}, s{sj}, s3
v_and_b32 v{tn}, 15, v{vL}
v_lshrrev_b32 v{tq}, 4, v{vL}
s_lshl_b32 s{sT0}, s2, 2
s_add_u32 s{sT0}, s{sT0}, s{sw}
s_mul_i32 s{sT0}, s{sT0}, {SWZ}
s_and_b32 s{sT0}, s{sT0}, 31      ; r
s_lshl_b32 s{sT1}, s{sb}, 3
s_add_u32 s{sT1}, s{sT1}, s{sg}   ; bg
s_lshl_b32 s{sVb}, s{sT1}, 21
s_lshl_b32 s3, s{sj}, 17
s_add_u32 s{sVb}, s{sVb}, s3
s_lshl_b32 s3, s{sw}, 15
s_add_u32 s{sVb}, s{sVb}, s3
s_lshl_b32 s3, s{sT0}, 10
s_add_u32 s{sVb}, s{sVb}, s3
s_mul_i32 s{sKm}, s{sw}, 28672
s_add_u32 s{sKm}, s{sKm}, {KST}
v_lshlrev_b32 v{vVo}, 4, v{vL}
v_mov_b32 v{vKo}, v{vVo}
v_xor_b32 v{vKo+1}, 64, v{vVo}
v_xor_b32 v{vKo+2}, 128, v{vVo}
v_xor_b32 v{vKo+3}, 192, v{vVo}
v_and_b32 v33, 1, v{tq}
v_lshlrev_b32 v33, 3, v33
v_lshl_add_u32 v33, v{tn}, 4, v33      ; 16n+8(q&1)
s_lshl_b32 s3, s{sb}, 10
s_lshl_b32 s{sT0}, s{sw}, 8
s_add_u32 s3, s3, s{sT0}
v_add_u32 v34, s3, v33
v_lshrrev_b32 v35, 2, v{vL}
v_and_b32 v36, 3, v{vL}
v_lshlrev_b32 v36, 4, v36
v_lshl_add_u32 v{vWQo}, v35, 13, v36
s_lshl_b32 s3, s{sb}, 7
s_add_u32 s3, s3, {EPO}
v_mov_b32 v37, s3
s_lshl_b32 s{sBUD}, s{sw}, 20
s_lshl_b32 s3, s{sg}, 10
s_add_u32 s{sBUD}, s{sBUD}, s3
s_lshl_b32 s3, s{sj}, 6
s_add_u32 s{sBUD}, s{sBUD}, s3
s_lshl_b32 s{sLAYER}, s{sw}, 13
s_waitcnt lgkmcnt(0)
""")
def mksrd(r, p, nbytes):
    A(f"s_mov_b32 s{r}, s{p}\ns_and_b32 s{r+1}, s{p+1}, 0xffff\ns_mov_b32 s{r+2}, {nbytes:#x}\ns_mov_b32 s{r+3}, 0x20000")
EARLY = opt('early', 1); CW = opt('cw', 0)
def scalars():
    A(f"""
s_mov_b32 s{sSELLO}, 0x05040100
s_mov_b32 s{sSELHI}, 0x07060302
s_lshl_b32 s{sT1}, s{sg}, 1
s_add_u32 s{sT1}, s{sT1}, s{sb}          ; gb
s_lshl_b32 s{sQget}, s{sT1}, 10
s_and_b32 s3, s{sj}, 3
s_lshl_b32 s3, s3, 8
s_add_u32 s{sQpub}, s{sQget}, s3
s_lshr_b32 s3, s{sj}, 2
s_lshl_b32 s3, s3, 4
s_add_u32 s{sQpub}, s{sQpub}, s3
s_lshl_b32 s{sMLget}, s{sT1}, 9
s_add_u32 s{sHget}, s{sMLget}, {HS}
s_add_u32 s{sMLget}, s{sMLget}, {ML}
s_lshl_b32 s3, s{sj}, 5
s_add_u32 s{sT2}, s{sMLget}, s3
s_lshl_b32 s3, s{sjf}, 5
s_add_u32 s{sHpub}, s{sHget}, s3
s_lshl_b32 s3, s{sj}, 3
s_add_u32 s{sMLpub}, s{sMLget}, s3
s_lshl_b32 s3, s{sw}, 7
s_add_u32 s{sMLget}, s{sMLget}, s3
s_lshl_b32 s{sOget}, s{sT1}, 14
s_add_u32 s{sOget}, s{sOget}, {OS}
s_lshl_b32 s3, s{sj}, 10
s_add_u32 s{sOclr}, s{sOget}, s3
s_lshl_b32 s3, s{sj}, 4
s_add_u32 s{sOpub}, s{sOget}, s3
s_lshl_b32 s3, s{sw}, 10
s_add_u32 s{sOpub}, s{sOpub}, s3
s_lshl_b32 s3, s{sw}, 12
s_add_u32 s{sOget}, s{sOget}, s3
s_lshl_b32 s{sYget}, s{sb}, 13
s_add_u32 s{sYget}, s{sYget}, {YS}
s_add_u32 s{sYget1}, s{sYget}, 4096
s_add_u32 s{sZget}, s{sYget}, {ZS-YS}
s_add_u32 s{sZget1}, s{sZget}, 4096
s_lshl_b32 s3, s{sg}, 10
s_add_u32 s{sYpub}, s{sYget}, s3
s_lshl_b32 s3, s{sj}, 6
s_add_u32 s{sYpub}, s{sYpub}, s3
s_add_u32 s{sZpub}, s{sYpub}, {ZS-YS}
""")
def clears():
    lc = lab("clr")
    A(f"s_cmp_lg_u32 s{sw}, {99 if 'clr' in DROP else CW}\ns_cbranch_scc1 {lc}")
    A(f"""
v_mul_u32_u24 v45, 48, v{tn}
v_add_u32 v45, s{sQpub}, v45
v_mov_b32 v46, s{sT2}
v_subrev_u32 v46, 64, v46
v_cmp_le_u32 vcc, 4, v{tn}
v_cndmask_b32 v45, v45, v46, vcc
v_mov_b32 v46, s{sHpub}
v_subrev_u32 v46, 96, v46
v_cmp_le_u32 vcc, 6, v{tn}
v_cndmask_b32 v45, v45, v46, vcc
v_mov_b32 v46, s{sYpub}
v_subrev_u32 v46, 128, v46
v_cmp_le_u32 vcc, 8, v{tn}
v_cndmask_b32 v45, v45, v46, vcc
v_mov_b32 v46, s{sZpub}
v_subrev_u32 v46, 192, v46
v_cmp_le_u32 vcc, 12, v{tn}
v_cndmask_b32 v45, v45, v46, vcc
v_lshl_add_u32 v45, v{tn}, 4, v45
v_mul_u32_u24 v46, {LS}, v{tq}
v_add_u32 v45, v45, v46
v_mov_b32 v48, -1
v_mov_b32 v49, -1
v_mov_b32 v50, -1
v_mov_b32 v51, -1
s_add_u32 s3, s{sOclr}, {LS}
""")
    exec_set(0xffffffff, 0)
    A(f"buffer_store_dwordx4 v[48:51], v45, {srd(rWS)}, 0 offen sc1", cond=True)
    exec_all()
    A(f"buffer_store_dwordx4 v[48:51], v{vVo}, {srd(rWS)}, s{sOclr} offen sc1", cond=True)
    A(f"buffer_store_dwordx4 v[48:51], v{vVo}, {srd(rWS)}, s3 offen sc1", tag="clr", cond=True)
    A(f"{lc}:")
def flag_store():
    A(f"""
v_readfirstlane_b32 s{sTAG0}, v40
v_readfirstlane_b32 s{sTAG1}, v41
s_getreg_b32 s3, hwreg(HW_REG_XCC_ID, 0, 4)
s_add_u32 s{sTAG0}, s{sTAG0}, 1
s_andn2_b32 s{sTAG1}, s{sTAG1}, 15
s_or_b32 s3, s3, s{sTAG1}
v_mov_b32 v46, s{sTAG0}
v_mov_b32 v47, s3
s_lshl_b32 s3, s{sb}, 3
s_add_u32 s3, s3, s{sg}
s_lshl_b32 s3, s3, 4
s_add_u32 s3, s3, s{sj}
s_lshl_b32 s3, s3, 3
s_add_u32 s3, s3, {FLG}
v_mov_b32 v45, 0""")
    exec_set(1, 0)
    A(f"buffer_store_dwordx2 v[46:47], v45, {srd(rWS)}, s3 offen sc1", cond=True)
    exec_all()
mksrd(rWQ, sWQ, 512*4096*2); mksrd(rK, sK, 1 << 25); mksrd(rWS, sWS, WS_BYTES)
A(f"global_load_dwordx2 v[40:41], v37, {sp(sWS)} sc1", tag="ep")
A(f"global_load_dwordx2 v[38:39], v34, {sp(sX)}", tag="x")
if EARLY:
    l_ = lab("ec")
    A(f"s_cmp_lg_u32 s{sw}, {CW}\ns_cbranch_scc1 {l_}")
    scalars(); clears()
    A(f"{l_}:")
def kdma(n):
    k, i = n >> 2, n & 3
    if k < 7: A(f"s_add_u32 m0, s{sKm}, {k*4096 + i*1024}")
    else: A(f"s_lshl_b32 s3, s{sw}, 13\ns_add_u32 m0, s3, {LWQ + i*1024}")
    A(f"s_xor_b32 s{sT0}, s{sVb}, {n*1024}")
    A(f"buffer_load_dwordx4 v{vKo+i}, {srd(rK)}, s{sT0} offen nt lds", tag=f"K{n}")
def kread(k):
    A.vwait(f"K{4*k+3}")
    for s in range(4):
        if k < 7: A(f"ds_read_b128 {aq(aK+16*k+4*s)}, v{vKr+s} offset:{k*4096}")
        else: A(f"ds_read_b128 {aq(aK+16*k+4*s)}, v{vK7+s}")
def vload(n):
    A(f"s_xor_b32 s{sT1}, s{sVb}, {n*1024}")
    A(f"buffer_load_dwordx4 {vq(vR+32+4*n)}, v{vVo}, {srd(rV)}, s{sT1} offen nt", tag=f"V{n}")
def dma(vo, r, sbase, m0reg, m0add, soffadd, tag, pol, cond=False):
    if tag[:2] in DROP:
        A.vq.append((tag, True)); return
    A(f"s_add_u32 m0, s{m0reg}, {m0add}\ns_add_u32 s3, s{sbase}, {soffadd}")
    A(f"buffer_load_dwordx4 v{vo}, {srd(r)}, s3 offen{pol} lds", tag=tag, cond=cond)
KI = opt("ki", 1)
nK = [0]
def early_flag():
    l_ = lab("ef")
    A(f"s_cmp_lg_u32 s{sw}, {CW}\ns_cbranch_scc1 {l_}")
    A.vwait("clr")
    flag_store()
    A(f"{l_}:")
if opt("wqpf", 0):
    A(f"""
s_lshr_b32 s3, s2, 3
s_lshl_b32 s3, s3, 2
s_add_u32 s3, s3, s{sw}
s_lshl_b32 s{sT0}, s3, 15
s_lshl_b32 s3, s{sg}, 10
s_add_u32 s{sT0}, s{sT0}, s3""")
    for i in range(4):
        A(f"buffer_load_dwordx4 a[248:251], v{vVo}, {srd(rWQ)}, s{sT0} offen{PFPOL}")
        if i < 3: A(f"s_add_u32 s{sT0}, s{sT0}, 8192")
    for i in range(opt("kpre", 8)):
        kdma(nK[0]); nK[0] += 1
        if i == opt("flagpos", 3): early_flag()
    for i in range(8): dma(vWQo, rWQ, sBUD, sLAYER, LWQ + 1024*i, i << 17, f"WQ{i}", WPOL)
else:
    for i in range(8):
        dma(vWQo, rWQ, sBUD, sLAYER, LWQ + 1024*i, i << 17, f"WQ{i}", WQPOL)
        for _ in range(KI): kdma(nK[0]); nK[0] += 1
        if EARLY and i == opt("flagpos", 3): early_flag()
stamp(1)
mksrd(rV, sV, 1 << 25); mksrd(rWO, sWO, 4096*512*2); mksrd(rW1, sW1, 512*1792*2); mksrd(rW2, sW2, 1792*512*2)
if not EARLY: scalars(); clears()
else:
    l_ = lab('sc')
    A(f's_cmp_eq_u32 s{sw}, {CW}\ns_cbranch_scc1 {l_}')
    scalars()
    A(f'{l_}:')
A(f's_mov_b32 s{sLAYER}, 0\ns_mov_b32 s{sBUD}, 400000')
A(f"""
s_lshl_b32 s3, s{sw}, 9
s_add_u32 s3, s3, {XB}
v_add_u32 v{vXBw}, s3, v33
v_lshrrev_b32 v44, 3, v{tn}
v_lshlrev_b32 v44, 8, v44
v_lshl_add_u32 v44, v{tq}, 4, v44
v_add_u32 v{vXBr}, s3, v44
v_lshlrev_b32 v47, 2, v{vL}                ; 4l
v_add_u32 v44, s3, v47
v_mov_b32 v42, 0x3f803f80
ds_write_b32 v44, v42 offset:256
s_lshl_b32 s3, s{sw}, 2
s_add_u32 s{sT1}, s3, {RED0}
v_add_u32 v{vRED}, s{sT1}, v{vVo}
v_lshrrev_b32 v46, 5, v{vL}
v_lshl_add_u32 v46, v46, 4, v{tn}
v_lshlrev_b32 v46, 4, v46
s_add_u32 s{sT1}, s3, {REDA}
v_add_u32 v{vREDA}, s{sT1}, v46
s_add_u32 s{sT1}, s3, {ST0}
v_mov_b32 v{vST}, s{sT1}
v_and_b32 v42, 3, v{vL}                    ; h
v_lshlrev_b32 v43, 4, v42
v_add_u32 v{vMBw}, {MB}, v43
v_add_u32 v{vMBw}, s3, v{vMBw}
s_lshl_b32 s3, s{sw}, 8
v_lshlrev_b32 v43, 4, v{tq}                ; 16q
v_add_u32 v{vMBr}, {MB}, v43
v_lshrrev_b32 v44, 3, v{vL}
v_and_b32 v46, 6, v{vL}
v_lshlrev_b32 v46, 1, v46
v_lshl_add_u32 v{vQP}, v44, 6, v46
v_lshlrev_b32 v44, 4, v{tn}
v_lshl_add_u32 v44, v{tq}, 10, v44
v_add_u32 v{vGad}, s3, v44
v_mov_b32 v{vHad}, v43
v_lshlrev_b32 v44, 4, v42
v_lshl_add_u32 v{vQad}, v{tq}, 6, v44
v_lshl_add_u32 v44, v{tq}, 2, v42
v_lshlrev_b32 v{vMLad}, 3, v44
v_lshrrev_b32 v44, 1, v{vL}
v_lshlrev_b32 v{vPAIR}, 2, v44
s_lshl_b32 s3, s{sw}, 11
s_add_u32 s3, s3, {OB}
v_lshlrev_b32 v44, 4, v{tn}
v_add_u32 v{vOBw}, s3, v44
s_lshl_b32 s3, s{sw}, 9
s_add_u32 s3, s3, {OB}
v_lshl_add_u32 v44, v{tq}, 2, v44
v_add_u32 v{vOBr}, s3, v44
v_lshrrev_b32 v44, 2, v{tn}
v_lshlrev_b32 v44, 8, v44
v_lshl_add_u32 v44, v42, 2, v44
v_lshl_add_u32 v{vOpub}, v{tq}, 12, v44
s_and_b32 s3, s{sw}, 1
s_lshl_b32 s3, s3, 5
v_lshlrev_b32 v44, 3, v{tq}
v_add_u32 v{vZpub}, s3, v44
v_mul_u32_u24 v44, 1088, v42
v_lshrrev_b32 v45, 2, v{tn}
v_lshl_add_u32 v44, v45, 8, v44
v_add_u32 v44, v44, v43
s_lshl_b32 s3, s{sw}, 13
""")
for s in range(4):
    A(f"v_xor_b32 v46, {64*s}, v44\nv_add_u32 v{vKr+s}, s{sKm}, v46\nv_add_u32 v{vK7+s}, s3, v46")
A(f"""
v_and_b32 v44, 1, v{tn}
v_lshlrev_b32 v44, 4, v44
v_mov_b32 v46, 0x3f80
v_lshlrev_b32 v46, v44, v46
v_lshrrev_b32 v44, 1, v{tn}
""")
for i in range(4):
    A(f"v_cmp_eq_u32 vcc, {i}, v44\nv_cndmask_b32 v{vSEL+i}, 0, v46, vcc")
A(f"""
v_lshlrev_b32 v44, 3, v42                 ; 8c
v_lshl_add_u32 v46, v{tq}, 3, v45         ; 8q+r
v_lshl_add_u32 v{vTq}, v46, 6, v44
v_add_u32 v{vTq}, s3, v{vTq}
v_and_b32 v47, 1, v45
v_lshrrev_b32 v43, 1, v45
v_lshl_add_u32 v47, v43, 3, v47
v_lshl_add_u32 v47, v{tq}, 5, v47
v_lshl_add_u32 v{vTrO}, v47, 6, v44
v_add_u32 v{vTrO}, s{sKm}, v{vTrO}
""")

base = [("K", n) for n in range(nK[0], 32)] + [("V", n) for n in range(32)]
wl = [("WO", i) for i in range(8)] + [("W1", i) for i in range(4)] + [("W2", i) for i in range(4)]
if opt("worder", 0) == 1: wl = [("W1", i) for i in range(4)] + [("W2", i) for i in range(4)] + [("WO", i) for i in range(8)]
pend = []
for kind, n in base:
    pend.append((kind, n))
    pos = n if kind == "K" else 32 + n
    if INS and wl and pos >= WPOS0 and (pos - WPOS0) % WSTEP == 0: pend.append(wl.pop(0))
if INS: assert not wl
wfirst = [True]
sW1b, sW2b = 100, 99
kr = [0]
def stream(k=1, upto=None):
    while pend and (k > 0 or upto):
        kind, n = pend.pop(0)
        if kind == "K":
            kdma(n)
        elif kind in ("WO", "W1", "W2"):
            if wfirst[0]:
                wfirst[0] = False
                assert kr[0] >= 3
                A(f"""s_waitcnt lgkmcnt(0)
v_lshrrev_b32 v111, 2, v{vL}
v_and_b32 v112, 3, v{vL}
v_lshlrev_b32 v112, 4, v112
v_lshl_add_u32 v111, v111, 10, v112
v_lshrrev_b32 v112, 1, v{vL}
v_mul_u32_u24 v112, 3584, v112
v_and_b32 v113, 1, v{vL}
v_lshl_add_u32 v112, v113, 4, v112
s_lshl_b32 s{sWOb}, s{sg}, 19
s_lshl_b32 s3, s{sw}, 17
s_add_u32 s{sWOb}, s{sWOb}, s3
s_lshl_b32 s3, s{sj}, 6
s_add_u32 s{sWOb}, s{sWOb}, s3
s_mul_i32 s{sW2b}, s{sg}, {224*1024}
s_add_u32 s{sW2b}, s{sW2b}, s3
s_lshl_b32 s3, s{sw}, 14
s_add_u32 s{sW2b}, s{sW2b}, s3
s_mul_i32 s{sW1b}, s{sw}, {128*3584}
s_mul_i32 s3, s{sg}, 448
s_add_u32 s{sW1b}, s{sW1b}, s3
s_lshl_b32 s3, s{sjf}, 5
s_add_u32 s{sW1b}, s{sW1b}, s3
s_lshl_b32 s{sT3}, s{sw}, 13""")
            if kind == "WO": dma(111, rWO, sWOb, sKm, 1024*n, n << 14, f"WO{n}", WQPOL)
            elif kind == "W1":
                l_ = lab("w1")
                A(f"s_cmp_ge_u32 s{sjf}, 14\ns_cbranch_scc1 {l_}")
                dma(112, rW1, sW1b, sKm, 8192 + 1024*n, n*32*3584, "W1", WQPOL, cond=True)
                A(f"{l_}:")
            else:
                l_ = lab("w2")
                A(f"s_lshl_b32 s{sT3}, s{sw}, 13")
                if n == 3: A(f"s_cmp_ge_u32 s{sw}, 2\ns_cbranch_scc1 {l_}")
                dma(111, rW2, sW2b, sT3, LWQ + 4096 + 1024*n, n*64*1024, "W2", WQPOL, cond=True)
                A(f"{l_}:")
            continue
        else:
            vload(n)
        pos = n if kind == "K" else 32 + n
        if allow_kread[0]:
            while kr[0] < 8 and 4*kr[0] + 3 + opt("klag", 8) <= pos:
                kread(kr[0]); kr[0] += 1
        k -= 1
        if upto and (kind, n) == upto: break
        if upto is None and k <= 0: break
allow_kread = [False]

def tr_reads(adst, vbase, steps, tiles, sstep, tstep, second):
    for t in range(tiles):
        for s in range(steps):
            d = adst + (t*steps + s)*4
            A(f"ds_read_b64_tr_b16 a[{d}:{d+1}], v{vbase} offset:{s*sstep + t*tstep}")
            A(f"ds_read_b64_tr_b16 a[{d+2}:{d+3}], v{vbase} offset:{s*sstep + t*tstep + second}")

vXP = 28; vXA = 32; vG0 = 48
vS, vSQ, vTm = 30, 31, 56
def xproc(aW, tiles, red_off, st_off, skip_label=None, filler=None):
    exec_set(0xffffffff, 0)
    A(f"ds_write_b64 v{vXBw}, v[{vXP}:{vXP+1}]")
    exec_all()
    for s in range(4): A(f"ds_read_b128 {vq(vXA+4*s)}, v{vXBr} offset:{64*s}")
    A(f"""
v_lshlrev_b32 v{vX}, 16, v{vXP}
v_and_b32 v{vX+1}, 0xffff0000, v{vXP}
v_lshlrev_b32 v{vX+2}, 16, v{vXP+1}
v_and_b32 v{vX+3}, 0xffff0000, v{vXP+1}""")
    if skip_label: A(f"s_cbranch_scc1 {skip_label}")
    A(f"""
v_add_f32 v{vS}, v{vX}, v{vX+1}
v_mul_f32 v{vSQ}, v{vX}, v{vX}
v_add_f32 v{vTm}, v{vX+2}, v{vX+3}
v_fmac_f32 v{vSQ}, v{vX+1}, v{vX+1}
v_add_f32 v{vS}, v{vS}, v{vTm}
v_fmac_f32 v{vSQ}, v{vX+2}, v{vX+2}
v_fmac_f32 v{vSQ}, v{vX+3}, v{vX+3}""")
    for r in (8, 4):
        A(f"v_add_f32_dpp v{vS}, v{vS}, v{vS} row_ror:{r} row_mask:0xf bank_mask:0xf")
        A(f"v_add_f32_dpp v{vSQ}, v{vSQ}, v{vSQ} row_ror:{r} row_mask:0xf bank_mask:0xf")
    if filler: filler()
    A("s_waitcnt lgkmcnt(0)")
    dp = [f"v_add_f32_dpp v{vS}, v{vS}, v{vS} row_ror:2 row_mask:0xf bank_mask:0xf",
          f"v_add_f32_dpp v{vSQ}, v{vSQ}, v{vSQ} row_ror:2 row_mask:0xf bank_mask:0xf",
          f"v_add_f32_dpp v{vS}, v{vS}, v{vS} row_ror:1 row_mask:0xf bank_mask:0xf",
          f"v_add_f32_dpp v{vSQ}, v{vSQ}, v{vSQ} row_ror:1 row_mask:0xf bank_mask:0xf",
          f"v_add_f32_dpp v{vS}, v{vS}, v{vS} row_bcast:15 row_mask:0xa bank_mask:0xf",
          f"v_add_f32_dpp v{vSQ}, v{vSQ}, v{vSQ} row_bcast:15 row_mask:0xa bank_mask:0xf"]
    for s in range(4):
        for t in range(tiles):
            c = "0" if s == 0 else vq(vG0+4*t)
            A(f"v_mfma_f32_16x16x32_bf16 {vq(vG0+4*t)}, {vq(vXA+4*s)}, {aq(aW+(t*4+s)*4)}, {c}")
        for _ in range(2):
            if dp: A(dp.pop(0))
    exec_set(0x10000, 0)
    A(f"ds_write2_b32 v{vST}, v{vS}, v{vSQ} offset0:{st_off//4} offset1:{st_off//4+4}")
    exec_all()
    if tiles == 2:
        A(f"v_mov_b32_dpp v{vG0}, v{vG0+4} quad_perm:[0,1,2,3] row_mask:0xa bank_mask:0xf")
    A(f"ds_write_b32 v{vRED}, v{vG0} offset:{red_off}")

def ln_final(red_off, st_off):
    A(f"""
ds_read_b128 v[36:39], v{vST} offset:{st_off}
ds_read_b128 v[40:43], v{vST} offset:{st_off+16}
ds_read_b128 v[28:31], v{vRED} offset:{red_off}
ds_read_b128 v[32:35], v{vRED} offset:{red_off+512}
s_mov_b32 s3, {f2u(1.0/512):#x}
v_mov_b32 v44, {f2u(1e-5):#x}
s_waitcnt lgkmcnt(0)
v_add_f32 v36, v36, v37
v_add_f32 v38, v38, v39
v_add_f32 v40, v40, v41
v_add_f32 v42, v42, v43
v_add_f32 v36, v36, v38
v_add_f32 v40, v40, v42
v_mul_f32 v36, s3, v36                ; mean
v_fma_f32 v41, s3, v40, v44           ; E[x^2] + eps
v_add_f32 v28, v28, v29
v_fma_f32 v41, -v36, v36, v41
v_add_f32 v30, v30, v31
v_max_f32 v41, v44, v41
v_add_f32 v32, v32, v33
v_rsq_f32 v41, v41
v_add_f32 v34, v34, v35
v_add_f32 v28, v28, v30
v_add_f32 v32, v32, v34
v_fma_f32 v28, -v36, v32, v28
v_mul_f32 v28, v28, v41
""")
def pack_pairs(v, t):
    A(f"v_mov_b32_dpp v{t}, v{v} quad_perm:[1,0,3,2] row_mask:0xf bank_mask:0xf\nv_cvt_pk_bf16_f32 v{v}, v{v}, v{t}")

stream(opt("pre1", 4))
A.vwait("WQ7")
stamp(2)
A(f"v_readfirstlane_b32 s{sTAG0}, v40\nv_readfirstlane_b32 s{sTAG1}, v41")
tr_reads(aWQ, vTq, 4, 2, 2048, 32, 256)
A(f"s_add_u32 s{sTAG0}, s{sTAG0}, 1\ns_andn2_b32 s{sTAG1}, s{sTAG1}, 15")
A(f"v_cmp_gt_u32 vcc, 32, v{vL}\nv_cndmask_b32 v{vXP}, 0, v38, vcc\nv_cndmask_b32 v{vXP+1}, 0, v39, vcc")
xproc(aWQ, 2, 0, 0, filler=lambda: stream(2))
stream(2)
A("s_waitcnt lgkmcnt(0)\ns_barrier")
lq = lab("q1")
A(f"s_cmp_lg_u32 s{sw}, 0\ns_cbranch_scc1 {lq}")
if not EARLY:
    A.vwait("clr"); flag_store()
ln_final(0, 0)
A(f"v_mul_f32 v28, {f2u(QSCALE):#x}, v28")
pack_pairs(28, 29)
exec_set(0x55555555, 0)
A(f"buffer_store_dword v28, v{vQP}, {srd(rWS)}, s{sQpub} offen sc1", tag="q1", cond=True)
exec_all()
A(f"{lq}:")
stamp(3)
allow_kread[0] = True
CEN = opt("cenpos", 30)
def upto_pos(p): return ("K", p) if p < 32 else ("V", p - 32)
stream(upto=upto_pos(CEN))
A(f"s_lshl_b32 s{sT2}, s{sb}, 10\ns_add_u32 s{sT2}, s{sT2}, {FLG}")
A(f"buffer_load_dwordx4 v[32:35], v{vVo}, {srd(rWS)}, s{sT2} offen sc1", tag="cen")
stream(opt("cenlag", 8))
A.vwait("cen")
lcen, lcok = lab("cen"), lab("cok")
A(f"""
{lcen}:
v_xor_b32 v36, s{sTAG0}, v32
v_xor_b32 v37, s{sTAG0}, v34
v_xor_b32 v38, s{sTAG1}, v33
v_xor_b32 v39, s{sTAG1}, v35
v_or_b32 v40, v38, v39
v_and_b32 v40, -16, v40
v_or3_b32 v36, v36, v37, v40
v_cmp_ne_u32 vcc, 0, v36
s_cbranch_vccz {lcok}
{"s_branch "+lcok if "cen" in DROP else ""}
s_sleep 4""")
A(f"buffer_load_dwordx4 v[32:35], v{vVo}, {srd(rWS)}, s{sT2} offen sc1", cond=True)
A("s_waitcnt vmcnt(0)")
retry(lcen)
A(f"{lcok}:")
stamp(4)
A(f"""
s_getreg_b32 s3, hwreg(HW_REG_XCC_ID, 0, 4)
v_xor_b32 v38, s3, v38
v_xor_b32 v39, s3, v39
v_or_b32 v38, v38, v39
v_cmp_eq_u32 vcc, 0, v38
s_lshl_b32 s3, s{sg}, 3
s_lshr_b64 s[{sT2}:{sT2+1}], vcc, s3
s_and_b32 s{sT2}, s{sT2}, 0xff
s_cmp_eq_u32 s{sT2}, 0xff
s_cselect_b32 s{sFAST}, {0 if FORCE_SLOW else 1}, 0""")
def wo_pf():
    A(f"""
s_lshr_b32 s3, s2, 3
s_lshl_b32 s3, s3, 2
s_add_u32 s3, s3, s{sw}
s_lshl_b32 s3, s3, 12
s_lshl_b32 s{sT2}, s{sg}, 19
s_add_u32 s{sT2}, s{sT2}, s3""")
    for i in range(4):
        A(f"buffer_load_dwordx4 a[248:251], v{vVo}, {srd(rWO)}, s{sT2} offen offset:{1024*i}{PFPOL}", tag="pfo")
def qloads():
    for s in range(4):
        A(f"buffer_load_dwordx4 {vq(vQ+4*s)}, v{vQad}, {srd(rWS)}, s{sQget} offen offset:{256*s} sc1", tag="Q")
stream(upto=upto_pos(opt("qpos", 40)))
qloads()
stream(opt("qlag", 7))
A.vwait("Q")
lq1, lq1ok = lab("ql"), lab("qlok")
def qcheck(t0, t1):
    A(f"v_max3_u32 v{t0}, v{vQ}, v{vQ+1}, v{vQ+2}")
    A(f"v_max3_u32 v{t1}, v{vQ+3}, v{vQ+4}, v{vQ+5}")
    for i in range(2): A(f"v_max3_u32 v{t0}, v{t0}, v{vQ+6+4*i}, v{vQ+7+4*i}\nv_max3_u32 v{t1}, v{t1}, v{vQ+8+4*i}, v{vQ+9+4*i}")
    A(f"v_max3_u32 v{t0}, v{t0}, v{vQ+14}, v{vQ+15}\nv_max_u32 v{t0}, v{t0}, v{t1}")
    A(f"v_cmp_eq_u32 vcc, -1, v{t0}")
A(f"{lq1}:")
qcheck(60, 61)
A(f"s_cbranch_vccz {lq1ok}")
if "cen" in DROP: A(f"s_branch {lq1ok}")
for s in range(4):
    A(f"buffer_load_dwordx4 {vq(vQ+4*s)}, v{vQad}, {srd(rWS)}, s{sQget} offen offset:{256*s} sc1", cond=True)
A("s_waitcnt vmcnt(0)")
retry(lq1)
A(f"{lq1ok}:")
assert kr[0] == 8
A("s_waitcnt lgkmcnt(0)")
stamp(5)

def qk(filler=None):
    tiles = [(t, u) for t in range(4) for u in range(2)]
    def dreg(k):
        t, u = tiles[k]
        return (vD0 if u == 0 else vD1) if t == 0 else vROT + 4*(k % 3)
    def sel(k):
        t, u = tiles[k]
        if t == 0: return []
        return [f"v_mov_b32_dpp v{(vD0 if u == 0 else vD1)+r}, v{dreg(k)+r} quad_perm:[0,1,2,3] row_mask:0xf bank_mask:{1 << t:#x}" for r in range(4)]
    for k in range(8):
        ex = sel(k-2) if k >= 2 else []
        for s in range(4):
            c = "0" if s == 0 else vq(dreg(k))
            A(f"v_mfma_f32_16x16x32_bf16 {vq(dreg(k))}, {aq(aK+16*k+4*s)}, {vq(vQ+4*s)}, {c}")
            if ex: A(ex.pop(0))
        if filler: filler(k)
    for k in (6, 7):
        for i in sel(k): A(i)
vM, vTt, vLs, vP = 32, 33, 34, 28
vF = 36; vMM = 40
def softmax():
    A(f"""
v_max3_f32 v{vM}, v{vD0}, v{vD0+1}, v{vD0+2}
v_max3_f32 v{vTt}, v{vD0+3}, v{vD1}, v{vD1+1}
v_max3_f32 v{vM}, v{vM}, v{vD1+2}, v{vD1+3}
v_max_f32 v{vM}, v{vM}, v{vTt}
v_max_f32_dpp v{vM}, v{vM}, v{vM} row_ror:4 row_mask:0xf bank_mask:0xf
v_max_f32_dpp v{vM}, v{vM}, v{vM} row_ror:8 row_mask:0xf bank_mask:0xf
v_mov_b32 v{vTt}, v{vM}
v_permlane16_swap_b32 v{vM}, v{vTt}
v_max_f32 v{vM}, v{vM}, v{vTt}
v_mov_b32 v{vTt}, v{vM}
v_permlane32_swap_b32 v{vM}, v{vTt}
v_max_f32 v{vM}, v{vM}, v{vTt}""")
    for r in range(8): A(f"v_sub_f32 v{vD0+r}, v{vD0+r}, v{vM}")
    A(f"ds_write_b32 v{vMBw}, v{vM}")
    for r in range(8): A(f"v_exp_f32 v{vD0+r}, v{vD0+r}")
    for p in range(4): A(f"v_cvt_pk_bf16_f32 v{vP+p}, v{vD0+2*p}, v{vD0+2*p+1}")
def aop(t): return vP if t == 0 else vROT + 4*(t-1)
def shifts(t): return [f"v_mov_b32_dpp v{aop(t)+p}, v{vP+p} row_ror:{16-4*t} row_mask:0xf bank_mask:0xf" for p in range(4)]
def lsum_ops():
    return [f"v_add_f32 v{vLs}, v{vD0}, v{vD0+1}", f"v_add_f32 v{vTt}, v{vD0+2}, v{vD0+3}",
            f"v_add_f32 v{vLs}, v{vLs}, v{vD1}", f"v_add_f32 v{vTt}, v{vTt}, v{vD1+1}",
            f"v_add_f32 v{vLs}, v{vLs}, v{vD1+2}", f"v_add_f32 v{vTt}, v{vTt}, v{vD1+3}",
            f"v_add_f32 v{vLs}, v{vLs}, v{vTt}",
            f"v_add_f32_dpp v{vLs}, v{vLs}, v{vLs} row_ror:4 row_mask:0xf bank_mask:0xf",
            f"v_add_f32_dpp v{vLs}, v{vLs}, v{vLs} row_ror:8 row_mask:0xf bank_mask:0xf",
            f"v_mov_b32 v{vTt}, v{vLs}", f"v_permlane16_swap_b32 v{vLs}, v{vTt}", f"v_add_f32 v{vLs}, v{vLs}, v{vTt}",
            f"v_mov_b32 v{vTt}, v{vLs}", f"v_permlane32_swap_b32 v{vLs}, v{vTt}", f"v_add_f32 v{vLs}, v{vLs}, v{vTt}",
            f"ds_write_b32 v{vMBw}, v{vLs} offset:64"]
def fw_ops():
    return [f"ds_read_b128 {vq(vF)}, v{vMBr}", "s_waitcnt lgkmcnt(0)",
            f"v_max3_f32 v{vMM}, v{vF}, v{vF+1}, v{vF+2}", f"v_max_f32 v{vMM}, v{vMM}, v{vF+3}"] + \
           [f"v_sub_f32 v{vF+i}, v{vF+i}, v{vMM}" for i in range(4)] + [f"v_exp_f32 v{vF+i}, v{vF+i}" for i in range(4)]
def pv_mfma(t, jd):
    c = "0" if t == 0 else vq(vACC+4*jd)
    A(f"v_mfma_f32_16x16x32_bf16 {vq(vACC+4*jd)}, {vq(aop(t))}, {vq(vR+32*t+4*jd)}, {c}")

def wo_dma():
    A(f"""
s_lshl_b32 s{sT2}, s{sg}, 19
s_lshl_b32 s3, s{sw}, 17
s_add_u32 s{sT2}, s{sT2}, s3
s_lshl_b32 s3, s{sj}, 6
s_add_u32 s{sT2}, s{sT2}, s3""")
    for n in range(8): dma(vWOo, rWO, sT2, sKm, 1024*n, n << 14, f"WO{n}", WPOL)

def w12_pf(t0, t1):
    A(f"""
s_lshr_b32 s{sT3}, s2, 3
s_lshl_b32 s{sT3}, s{sT3}, 2
s_add_u32 s{sT3}, s{sT3}, s{sw}          ; u = jj*4+w, 0..127
s_mul_i32 s{sT2}, s{sT3}, {4*3584}
s_mul_i32 s3, s{sg}, 448
s_add_u32 s{sT2}, s{sT2}, s3
v_lshrrev_b32 v{t0}, 5, v{vL}
v_mul_u32_u24 v{t0}, 3584, v{t0}
v_and_b32 v{t1}, 31, v{vL}
v_lshl_add_u32 v{t0}, v{t1}, 4, v{t0}
s_add_u32 s3, s{sT2}, {2*3584}""")
    exec_set(0x0fffffff, 0x0fffffff)
    if "pf1" not in DROP and not INS:
        A(f"buffer_load_dwordx4 a[248:251], v{t0}, {srd(rW1)}, s{sT2} offen{PFPOL}", tag="pf1")
        A(f"buffer_load_dwordx4 a[248:251], v{t0}, {srd(rW1)}, s3 offen{PFPOL}", tag="pf1")
    A(f"""
s_mul_i32 s{sT2}, s{sT3}, {14*128}
s_mul_i32 s3, s{sg}, {224*1024}
s_add_u32 s{sT2}, s{sT2}, s3""")
    exec_set(0xffffffff, 0x00ffffff)
    if "pf1" not in DROP and not INS:
        A(f"buffer_load_dwordx4 a[248:251], v{vVo}, {srd(rW2)}, s{sT2} offen{PFPOL}", tag="pf2")
        A(f"buffer_load_dwordx4 a[248:251], v{vVo}, {srd(rW2)}, s{sT2} offen offset:896{PFPOL}", tag="pf2")
    exec_all()
def tail_pf():
    A(f"v_lshlrev_b32 v{vPF}, 7, v{vL}")
    if opt('w12', 0) == 0: w12_pf(41, 42)
    lw = lab("wu"); lw2 = lab("wu")
    A(f"""
s_and_b32 s3, s{sw}, 1
s_mul_i32 s3, s3, {LS}
s_cmp_ge_u32 s{sw}, 2
s_cbranch_scc1 {lw}
s_add_u32 s3, s3, s{sOclr}
v_and_b32 v41, 7, v{vL}
v_lshlrev_b32 v41, 7, v41
s_branch {lw2}
{lw}:
v_add_u32 v41, s{sQpub}, v{vPF}
s_sub_u32 s{sT2}, s{sMLpub}, 256
v_add_u32 v42, s{sT2}, v{vPF}
v_cmp_le_u32 vcc, 2, v{vL}
v_cndmask_b32 v41, v41, v42, vcc
v_mov_b32 v42, s{sHpub}
v_cmp_le_u32 vcc, 6, v{vL}
v_cndmask_b32 v41, v41, v42, vcc
{lw2}:""")
    exec_set(0xff, 0)
    A(f"buffer_load_dword a253, v41, {srd(rWS)}, s3 offen sc1", tag="wu")
    A(f"""
s_getpc_b64 s[{sT2}:{sT2+1}]
L_pc:
s_add_u32 s{sT2}, s{sT2}, L_comb-L_pc
s_addc_u32 s{sT2+1}, s{sT2+1}, 0""")
    exec_all()
    A(f"v_min_u32 v42, L_end-L_comb, v{vPF}")
    A(f"global_load_dword a254, v42, s[{sT2}:{sT2+1}]", tag="pfc")

qk(filler=lambda k: (stream(2), wo_pf() if (k == opt('pfok', 2) and not INS) else None))
stream(40)
softmax()
for t in (1, 2, 3):
    for i in shifts(t): A(i)
for i in lsum_ops(): A(i)
stamp(6)
for t in range(4):
    A.vwait(f"V{8*t+7}")
    raw = vR + 32*(t+1); dst = vR + 32*t
    for jd in range(8):
        for p in range(4):
            A(f"v_perm_b32 v{dst+4*jd+p}, v{raw+4*(2*p+1)+(jd>>1)}, v{raw+4*(2*p)+(jd>>1)}, s{sSELHI if jd & 1 else sSELLO}")
        if jd: pv_mfma(t, jd-1)
    pv_mfma(t, 7)
    if t == MBG:
        A("s_waitcnt lgkmcnt(0)\ns_barrier")
        for i in fw_ops(): A(i)
        if INS:
            A(f"""
v_lshrrev_b32 v44, 2, v{vL}
v_and_b32 v44, 3, v44                     ; r
v_and_b32 v45, 3, v{vL}
v_lshlrev_b32 v45, 3, v45                 ; 8c
v_lshrrev_b32 v46, 4, v{vL}               ; q
v_lshl_add_u32 v47, v46, 3, v44           ; 8q+r
v_lshl_add_u32 v47, v47, 5, v45
s_add_u32 s3, s{sKm}, 8192
v_add_u32 v47, s3, v47                    ; w1
v_and_b32 v48, 1, v46
v_lshl_add_u32 v44, v48, 3, v44
v_lshl_add_u32 v44, v44, 6, v45
v_lshrrev_b32 v46, 1, v46
v_lshl_add_u32 v44, v46, 13, v44
s_and_b32 s3, s{sw}, 1
s_lshl_b32 s3, s3, 5
v_add_u32 v44, s3, v44                    ; w2""")
            tr_reads(aWO, vTrO, 4, 2, 128, 32, 1024)
            tr_reads(aW1, 47, 4, 1, 1024, 0, 128)
            for st in range(7):
                o_ = LWQ + 4096 + ((2*st) & 3)*8192 + (st >> 1)*1024
                A(f"ds_read_b64_tr_b16 a[{aW2+4*st}:{aW2+4*st+1}], v44 offset:{o_}")
                A(f"ds_read_b64_tr_b16 a[{aW2+4*st+2}:{aW2+4*st+3}], v44 offset:{o_+256}")
    if t == opt("pfg", 1):
        if opt('pfok', 2) == 99 and not INS: wo_pf()
        tail_pf()
stamp(7)
flush_stamps(0, 8)
if EXP == "stream": A("s_branch L_done")

A("L_comb:")
exec_set(0xffff, 0)
for jd in range(8): A(f"ds_write_b128 v{vOBw}, {vq(vACC+4*jd)} offset:{256*jd}")
exec_all()
A("s_waitcnt lgkmcnt(0)\ns_barrier")
for w in range(4): A(f"ds_read2st64_b32 v[{44+2*w}:{45+2*w}], v{vOBr} offset0:{8*w} offset1:{8*w+1}")
A(f"ds_read_b128 v[52:55], v{vMBr} offset:64")
A("s_waitcnt lgkmcnt(1)" if not PROF else "s_waitcnt lgkmcnt(0)")
A(f"v_mul_f32 v44, v{vF}, v44\nv_mul_f32 v45, v{vF}, v45")
for w in range(1, 4): A(f"v_fmac_f32 v44, v{vF+w}, v{44+2*w}\nv_fmac_f32 v45, v{vF+w}, v{45+2*w}")
A("v_cvt_pk_bf16_f32 v44, v44, v45")
pub_store(f"buffer_store_dword v44, v{vOpub}, {srd(rWS)}, s{sOpub} offen")
lm = lab("ml")
A(f"s_cmp_lg_u32 s{sw}, 0\ns_cbranch_scc1 {lm}")
A(f"""
s_waitcnt lgkmcnt(0)
v_mul_f32 v{vMM+1}, v{vF}, v52
v_fmac_f32 v{vMM+1}, v{vF+1}, v53
v_fmac_f32 v{vMM+1}, v{vF+2}, v54
v_fmac_f32 v{vMM+1}, v{vF+3}, v55
v_lshlrev_b32 v46, 3, v{vL}""")
exec_set(0x00010001, 0x00010001)
pub_store(f"buffer_store_dwordx2 v[{vMM}:{vMM+1}], v46, {srd(rWS)}, s{sMLpub} offen")
exec_all()
A(f"{lm}:")
stamp(0)
vO = 28; vml = 44; vDy = 48
la, laok, la0 = lab("pa"), lab("paok"), lab("pa0")
def a_loads():
    for s in range(4): A(f"buffer_load_dwordx4 {vq(vO+4*s)}, v{vVo}, {srd(rWS)}, s{sOget} offen offset:{1024*s} sc1")
    A(f"buffer_load_dwordx2 v[{vml}:{vml+1}], v{vMLad}, {srd(rWS)}, s{sMLget} offen sc1")
A(f"s_cmp_lg_u32 s{sLAYER}, 0\ns_cbranch_scc1 {la}")
NOEMIT0 = len(A.L)
A(f"""
v_lshrrev_b32 v56, 2, v{vL}
v_and_b32 v57, 3, v{vL}
v_lshlrev_b32 v57, 4, v57
v_lshl_add_u32 v{vWOo}, v56, 10, v57""")
if WOS < 0: wo_dma()
if opt('w12', 0) == 2: w12_pf(62, 63)
A(f"""
v_lshrrev_b32 v56, 1, v{vL}
v_and_b32 v57, 1, v{vL}
v_lshlrev_b32 v57, 4, v57
v_mul_u32_u24 v{vW1o}, 3584, v56
v_add_u32 v{vW1o}, v{vW1o}, v57
v_lshrrev_b32 v56, 2, v{vL}
v_and_b32 v57, 3, v{vL}
v_lshlrev_b32 v58, 4, v57
v_lshl_add_u32 v{vW2o}, v56, 10, v58
v_and_b32 v56, 3, v56                     ; r
v_lshrrev_b32 v58, 4, v{vL}               ; q
v_lshl_add_u32 v56, v58, 3, v56           ; 8q+r
v_lshlrev_b32 v57, 3, v57                 ; 8c
v_lshl_add_u32 v58, v56, 5, v57
s_add_u32 s3, s{sKm}, 8192
v_add_u32 v{vT1}, s3, v58
v_lshl_add_u32 v58, v56, 6, v57
s_and_b32 s3, s{sw}, 1
s_lshl_b32 s3, s3, 5
s_add_u32 s3, s3, {LW2}
v_add_u32 v{vT2}, s3, v58""")
a_loads()
A("s_waitcnt vmcnt(5)")
if PROF == 2: stamp(4)
tr_reads(aWO, vTrO, 4, 2, 128, 32, 1024)
A(f"s_waitcnt lgkmcnt(0)\ns_branch {la0}")
if INS: del A.L[NOEMIT0-2:]
A(f"{la}:")
a_loads()
A(f"{la0}:")
A("s_waitcnt vmcnt(0)")
chk = [f"v_max3_u32 v56, v{vml}, v{vml+1}, v{vO}"] + [f"v_max3_u32 v56, v56, v{vO+1+2*i}, v{vO+2+2*i}" for i in range(7)] + [f"v_max_u32 v56, v56, v{vO+15}"]
for s in range(4):
    for t in range(2):
        c = "0" if s == 0 else vq(vDy+4*t)
        A(f"v_mfma_f32_16x16x32_bf16 {vq(vDy+4*t)}, {vq(vO+4*s)}, {aq(aWO+(t*4+s)*4)}, {c}")
        for _ in range(2):
            if chk: A(chk.pop(0))
A(f"v_cmp_eq_u32 vcc, -1, v56\ns_cbranch_vccz {laok}")
retry(la)
A(f"{laok}:")
stamp(1)
if opt('w12', 0) == 1 and not INS:
    l_ = lab("pf")
    A(f"s_cmp_lg_u32 s{sLAYER}, 0\ns_cbranch_scc1 {l_}")
    w12_pf(62, 63)
    A(f"{l_}:")
A(f"""
v_max_f32_dpp v57, v{vml}, v{vml} quad_perm:[1,0,3,2] row_mask:0xf bank_mask:0xf
v_max_f32_dpp v57, v57, v57 quad_perm:[2,3,0,1] row_mask:0xf bank_mask:0xf
v_mov_b32 v58, v57
v_permlane16_swap_b32 v57, v58
v_max_f32 v57, v57, v58
v_mov_b32 v58, v57
v_permlane32_swap_b32 v57, v58
v_max_f32 v57, v57, v58
v_sub_f32 v57, v{vml}, v57
v_exp_f32 v57, v57
v_mul_f32 v58, v57, v{vml+1}
v_mul_f32_dpp v60, v57, v{vDy} quad_perm:[0,0,0,0] row_mask:0xf bank_mask:0xf
v_mul_f32_dpp v61, v57, v{vDy+4} quad_perm:[0,0,0,0] row_mask:0xf bank_mask:0xf
v_add_f32_dpp v58, v58, v58 quad_perm:[1,0,3,2] row_mask:0xf bank_mask:0xf
v_fmac_f32_dpp v60, v57, v{vDy+1} quad_perm:[1,1,1,1] row_mask:0xf bank_mask:0xf
v_fmac_f32_dpp v61, v57, v{vDy+5} quad_perm:[1,1,1,1] row_mask:0xf bank_mask:0xf
v_add_f32_dpp v58, v58, v58 quad_perm:[2,3,0,1] row_mask:0xf bank_mask:0xf
v_fmac_f32_dpp v60, v57, v{vDy+2} quad_perm:[2,2,2,2] row_mask:0xf bank_mask:0xf
v_fmac_f32_dpp v61, v57, v{vDy+6} quad_perm:[2,2,2,2] row_mask:0xf bank_mask:0xf
v_mov_b32 v59, v58
v_fmac_f32_dpp v60, v57, v{vDy+3} quad_perm:[3,3,3,3] row_mask:0xf bank_mask:0xf
v_fmac_f32_dpp v61, v57, v{vDy+7} quad_perm:[3,3,3,3] row_mask:0xf bank_mask:0xf
v_permlane16_swap_b32 v58, v59
v_add_f32 v58, v58, v59
v_permlane32_swap_b32 v60, v61
v_mov_b32 v59, v58
v_add_f32 v60, v60, v61
v_permlane32_swap_b32 v58, v59
v_mov_b32 v61, v60
v_add_f32 v58, v58, v59
v_permlane16_swap_b32 v60, v61
v_rcp_f32 v58, v58
v_add_f32 v60, v60, v61
v_mul_f32 v60, v60, v58
ds_write_b32 v{vREDA}, v60
s_waitcnt lgkmcnt(0)
s_barrier""")
ly, ly2, ly3 = lab("y"), lab("y2"), lab("y3")
A(f"s_cmp_lg_u32 s{sw}, 0\ns_cbranch_scc1 {ly}")
A(f"""
ds_read_b128 v[28:31], v{vRED} offset:{REDA-RED0}
s_waitcnt lgkmcnt(0)
v_add_f32 v28, v28, v29
v_add_f32 v30, v30, v31
v_add_f32 v28, v28, v30""")
pack_pairs(28, 29)
exec_set(0x55555555, 0)
A(f"buffer_store_dword v28, v{vPAIR}, {srd(rWS)}, s{sYpub} offen sc1")
exec_all()
A(f"s_branch {ly2}\n{ly}:\ns_sleep 2\n{ly2}:")
stamp(2)
lnd, lnd2 = lab("nd"), lab("nd")
NOEMIT1 = len(A.L)
A(f"s_cmp_lg_u32 s{sLAYER}, 0\ns_cbranch_scc1 {lnd}")
A(f"""
s_mul_i32 s{sT2}, s{sw}, {128*3584}
s_mul_i32 s3, s{sg}, 448
s_add_u32 s{sT2}, s{sT2}, s3
s_lshl_b32 s3, s{sjf}, 5
s_add_u32 s{sT2}, s{sT2}, s3
s_cmp_ge_u32 s{sjf}, 14
s_cbranch_scc1 {lnd2}""")
for i in range(4): dma(vW1o, rW1, sT2, sKm, 8192 + 1024*i, i*32*3584, "W1", WPOL, cond=True)
A(f"""{lnd2}:
s_mul_i32 s{sT2}, s{sg}, {224*1024}
s_lshl_b32 s3, s{sj}, 6
s_add_u32 s{sT2}, s{sT2}, s3
s_lshl_b32 s3, s{sw}, 14
s_add_u32 s{sT2}, s{sT2}, s3
s_lshl_b32 s{sT3}, s{sw}, 10""")
for i in range(3): dma(vW2o, rW2, sT2, sT3, LW2 + 4096*i, i*64*1024, "W2", WPOL, cond=True)
A(f"s_cmp_ge_u32 s{sw}, 2\ns_cbranch_scc1 {ly3}")
dma(vW2o, rW2, sT2, sT3, LW2 + 4096*3, 3*64*1024, "W2", WPOL, cond=True)
A(f"{ly3}:\ns_sleep {opt('sb0', 6)}")
lnd3 = lab("nd")
if INS:
    del A.L[NOEMIT1:]
    A(f"s_sleep {SLEEP_B}")
else: A(f"s_branch {lnd3}\n{lnd}:\ns_sleep {SLEEP_B}\n{lnd3}:")
def gather(s0, s1, lp, mid=None):
    lg, lok = lab(lp), lab(lp + "ok")
    A(f"{lg}:")
    A(f"buffer_load_dwordx4 v[32:35], v{vGad}, {srd(rWS)}, s{s0} offen sc1")
    A(f"buffer_load_dwordx4 v[36:39], v{vGad}, {srd(rWS)}, s{s1} offen sc1")
    A(f"""s_waitcnt vmcnt(1)
v_mfma_f32_16x16x32_bf16 v[40:43], {vq(vSEL)}, v[32:35], {vq(vX)}
s_waitcnt vmcnt(0)
v_mfma_f32_16x16x32_bf16 v[40:43], {vq(vSEL)}, v[36:39], v[40:43]""")
    if mid: mid()
    A(f"""v_cmp_u_f32 vcc, v40, v40
s_cbranch_vccz {lok}""")
    retry(lg)
    A(f"{lok}:")
    A(f"v_cvt_pk_bf16_f32 v{vXP}, v40, v41\nv_cvt_pk_bf16_f32 v{vXP+1}, v42, v43")
def w1mid():
    l = lab("w1r")
    A(f"s_cmp_lg_u32 s{sLAYER}, 0\ns_cbranch_scc1 {l}")
    tr_reads(aW1, vT1, 4, 1, 1024, 0, 128)
    A(f"{l}:\ns_nop 5")
gather(sYget, sYget1, "gb", mid=None if INS else w1mid)
stamp(3)
lb = lab("nof")
A(f"s_cmp_ge_u32 s{sjf}, 14")
xproc(aW1, 1, RED1-RED0, 32, skip_label=lb)
A(f"{lb}:\ns_waitcnt lgkmcnt(0)\ns_barrier")
lh = lab("h")
A(f"s_cmp_lg_u32 s{sw}, 0\ns_cbranch_scc1 {lh}\ns_cmp_ge_u32 s{sjf}, 14\ns_cbranch_scc1 {lh}")
ln_final(RED1-RED0, 32)
A(f"""
v_mul_f32 v29, {f2u(-LOG2E):#x}, v28
v_exp_f32 v29, v29
v_add_f32 v29, 1.0, v29
v_rcp_f32 v29, v29
v_mul_f32 v28, v28, v29""")
pack_pairs(28, 29)
exec_set(0x5555, 0)
pub_store(f"buffer_store_dword v28, v{vPAIR}, {srd(rWS)}, s{sHpub} offen")
exec_all()
A(f"{lh}:")
if PROF != 2: stamp(4)
ld, ldok, ldsk = lab("pd"), lab("pdok"), lab("pdsk")
A(f"s_cmp_lt_u32 s{sw}, 2\ns_cbranch_scc1 {ldsk}")
if not INS:
    A(f"s_cmp_lg_u32 s{sLAYER}, 0\ns_cbranch_scc1 {ld}")
    tr_reads(aW2, vT2, 7, 1, 2048, 0, 256)
    A("s_waitcnt lgkmcnt(0)")
A(f"{ld}:")
for s in range(7): A(f"buffer_load_dwordx4 {vq(28+4*s)}, v{vHad}, {srd(rWS)}, s{sHget} offen offset:{64*s} sc1")
for s in range(7):
    A(f"s_waitcnt vmcnt({6-s})")
    A(f"v_mfma_f32_16x16x32_bf16 v[56:59], {aq(aW2+4*s)}, {vq(28+4*s)}, {'0' if s == 0 else 'v[56:59]'}")
A(f"v_cmp_u_f32 vcc, v56, v56\ns_cbranch_vccz {ldok}")
retry(ld)
A(f"{ldok}:")
A("v_cvt_pk_bf16_f32 v56, v56, v57\nv_cvt_pk_bf16_f32 v57, v58, v59")
exec_set(0x00010001, 0x00010001)
A(f"buffer_store_dwordx2 v[56:57], v{vZpub}, {srd(rWS)}, s{sZpub} offen sc1")
exec_all()
A(f"{ldsk}:")
stamp(5)
A(f"s_cmp_lg_u32 s{sLAYER}, 0\ns_cbranch_scc1 L_final")
A("s_barrier")
A(f"s_sleep {SLEEP_E}")
gather(sZget, sZget1, "ge")
stamp(6)
xproc(aWQ, 2, 0, 0)
A(f"s_add_u32 s{rWS}, s{rWS}, {LS}\ns_addc_u32 s{rWS+1}, s{rWS+1}, 0\ns_mov_b32 s{rWS+2}, {WS_BYTES-LS:#x}\ns_mov_b32 s{sLAYER}, 1")
A("s_waitcnt lgkmcnt(0)\ns_barrier")
lq2 = lab("q2")
A(f"s_cmp_lg_u32 s{sw}, 0\ns_cbranch_scc1 {lq2}")
ln_final(0, 0)
A(f"v_mul_f32 v28, {f2u(QSCALE):#x}, v28")
pack_pairs(28, 29)
exec_set(0x55555555, 0)
pub_store(f"buffer_store_dword v28, v{vQP}, {srd(rWS)}, s{sQpub} offen")
exec_all()
A(f"{lq2}:")
stamp(7)
lg, lgok = lab("pg"), lab("pgok")
A(f"{lg}:")
qloads()
A("s_waitcnt vmcnt(0)")
qcheck(60, 61)
A(f"s_cbranch_vccz {lgok}")
retry(lg)
A(f"{lgok}:")
stamp(8)
qk()
softmax()
ex = shifts(1) + shifts(2) + shifts(3) + lsum_ops()
for t in range(4):
    if t == 2:
        while ex: A(ex.pop(0))
        A("s_waitcnt lgkmcnt(0)\ns_barrier")
        ex = fw_ops()
    for jd in range(8):
        pv_mfma(t, jd)
        for _ in range(2):
            if ex: A(ex.pop(0))
while ex: A(ex.pop(0))
stamp(9)
flush_stamps(16, 10)
A("s_branch L_comb")
A("L_final:")
A(f"s_or_b32 s3, s{sg}, s{sj}\ns_cmp_lg_u32 s3, 0\ns_cbranch_scc1 L_done")
A(f"s_sleep {SLEEP_F}")
gather(sZget, sZget1, "gf")
A(f"""
s_lshl_b32 s3, s{sb}, 10
s_lshl_b32 s{sT0}, s{sw}, 8
s_add_u32 s3, s3, s{sT0}
s_lshl_b32 s{sT0}, s{sw}, 9
s_add_u32 s{sT0}, s{sT0}, {XB}
s_sub_u32 s3, s3, s{sT0}
v_add_u32 v30, s3, v{vXBw}""")
exec_set(0xffffffff, 0)
A(f"global_store_dwordx2 v30, v[{vXP}:{vXP+1}], {sp(sOUT)}")
A(f"""s_barrier
s_lshl_b32 s3, s{sb}, 7
s_add_u32 s3, s3, {EPO}
v_mov_b32 v30, s3
v_mov_b32 v31, s{sTAG0}""")
exec_set(1, 0)
A(f"global_store_dword v30, v31, {sp(sWS)} sc1")
exec_all()
A("L_done:")
if PROF:
    stamp(6)
    flush_stamps(32, 7)
    A(f"""
s_lshl_b32 s3, s2, 2
s_add_u32 s3, s3, s{sw}
s_lshl_b32 s3, s3, 8
s_add_u32 s3, s3, {PROF_OFF}
v_lshlrev_b32 v30, 2, v{vL}
v_add_u32 v30, s3, v30
global_store_dword v30, v{vPROF}, {sp(sWS)}""")
A("L_end:\ns_endpgm")
A.raw('.section .rodata,"a"'); A.raw(".p2align 6"); A.raw(f".amdhsa_kernel {NAME}_kernel")
for l in ["next_free_vgpr 512", "next_free_sgpr 102", "accum_offset 256", "group_segment_fixed_size 0", "kernarg_size 88",
          "user_sgpr_count 2", "user_sgpr_kernarg_segment_ptr 1", "system_sgpr_workgroup_id_x 1"]:
    A.raw("  .amdhsa_" + l)
A.raw(".end_amdhsa_kernel")
open(out, "w").write("\n".join(H) + "\n" + A.text())
print("instrs", len(A.L), "nops inserted", A.nopcount, file=sys.stderr)
```

```python
import sys, math, struct
sys.path.insert(0, "gen")
from asmlib import Asm

NAME = "interleave_layers__gqa_block_cached__dense_activation_silu__decode"
out = sys.argv[1]
O = dict(kv.split("=") for kv in sys.argv[2:])
def opt(k, d): return type(d)(O.get(k, d))
PROF = opt("prof", 0); SWZ = opt("swz", 13)
SLEEP_B = opt("sb", 14); SLEEP_E = opt("se", 14); SLEEP_F = opt("sf", 6)
FORCE_SLOW = opt("slow", 0); EXP = opt("exp", "")
POL = {"nt": " nt", "none": "", "sc1": " sc1"}
PFO = POL[opt("pfo", "none")]; PF12 = POL[opt("pf12", "none")]; PFQ = POL[opt("pfq", "none")]; WPOL = POL[opt("wpol", "none")]
CW = opt("cw", 3); DROP = opt("drop", "").split(","); CLRP = " sc1" + POL[opt("clrpol", "none")]
W12PF = opt("w12pf", 1)
INO = opt("ino", 0); IN12 = opt("in12", 0)
WPOS0 = opt("wpos0", 20); WSTEP = opt("wstep", 2); MBG = opt("mbg", 1)
def f2u(x): return struct.unpack("<I", struct.pack("<f", x))[0]
LOG2E = 1.4426950408889634
QSCALE = LOG2E / math.sqrt(128.0)

ML, HS, YS, ZS, OS = 16384, 24576, 32768, 49152, 65536
QP = 65536 + 262144
LS = QP + 131072
EPO = 2 * LS; FLG = EPO + 1024; CS = FLG + 3072
WS_BYTES = CS + 65536
PROF_OFF = 16 << 20
LWQ = 0; KST = 16384; LW2 = LWQ
XB = KST + 4 * 32768; RED0 = XB + 2048; RED1 = RED0 + 1024; REDA = RED0 + 2048; ST0 = RED0 + 2560; MB = RED0 + 2688; OB = RED0 + 3072
QB = OB; XQ = RED0
LDS_BYTES = OB + 8192
assert LDS_BYTES <= 163840
sX, sK, sV, sWQ, sWO, sW1, sW2, sOUT, sWS = 4, 6, 8, 10, 12, 16, 18, 20, 24
rK, rV, rWQ, rWO, rW1, rW2, rWS = 28, 32, 36, 40, 44, 48, 52
sg, sb, sj, sw, sFAST, sLAYER, sBUD = 56, 57, 58, 59, 60, 61, 62
sSELLO, sSELHI = 63, 64
sQpub, sQget, sMLpub, sMLget, sHpub, sHget, sYpub, sYget, sZpub, sZget, sOpub, sOget = range(65, 77)
sYget1, sZget1 = 77, 78
sT0, sT1, sT2, sT3 = 26, 27, 14, 15
sVb, sKm, sOclr = 79, 80, 81
sTAG0, sTAG1 = 22, 23
sjf, sU, skq = 98, 99, 21 + 80
sCEN = 11
sYo, sZo = 4, 5
sSTAMP = 82
def srd(r): return f"s[{r}:{r+3}]"
def sp(r): return f"s[{r}:{r+1}]"
vL, vXBw, vXBr, vRED, vREDA, vQP, vMLad, vGad, vHad, vQad, vPAIR, vOBw = range(0, 12)
vSEL = 12; vX = 16
vOBr, vOpub, vMBw, vMBr, vST, vZpub = 20, 21, 22, 23, 24, 25
vVo = 26; vXQw = 27
aCS = 236; aXQr = 238; aQBw = 239
vQ = 28; vD0, vD1 = 44, 48; vROT = 52; vACC = 64; vR = 96
vPROF = 255
vW1o, vW2o, vT1, vT2, vTrO = 224, 225, 226, 227, 228
vSEL2 = 232
def vq(r, n=4): return f"v[{r}:{r+n-1}]"
def aq(r, n=4): return f"a[{r}:{r+n-1}]"
aK, aWQ, aWO, aW1, aW2 = 0, 128, 160, 192, 208
DUMMY = "a[248:251]"

A = Asm()
uid = [0]
def lab(p):
    uid[0] += 1
    return f"L_{p}{uid[0]}"
def exec_set(lo, hi): A(f"s_mov_b32 exec_lo, {lo:#x}\ns_mov_b32 exec_hi, {hi:#x}")
def exec_all(): A("s_mov_b64 exec, -1")
def sreg(i): return sSTAMP + 2*i if i < 8 else {8: 0, 9: 6}[i]
def stamp(i):
    if PROF: A(f"s_memrealtime s[{sreg(i)}:{sreg(i)+1}]")
def flush_stamps(base, n):
    if not PROF: return
    A("s_waitcnt lgkmcnt(0)")
    for i in range(n): A(f"v_writelane_b32 v{vPROF}, s{sreg(i)}, {base+i}")
def retry(loop):
    A(f"s_sub_u32 s{sBUD}, s{sBUD}, 1\ns_cbranch_scc0 {loop}\ns_mov_b32 s{sBUD}, 0")
def pub_store(ins):
    a, b = lab("ps"), lab("pe")
    A(f"s_cmp_eq_u32 s{sFAST}, 0\ns_cbranch_scc1 {a}")
    A(ins, cond=True)
    A(f"s_branch {b}\n{a}:")
    A(ins + " sc1", cond=True)
    A(f"{b}:")
class only:
    def __init__(self, cc, reg, val):
        self.neg = {"eq": "lg", "lg": "eq", "lt": "ge", "ge": "lt"}[cc]; self.reg = reg; self.val = val
    def __enter__(self):
        self.l = lab("sk")
        A(f"s_cmp_{self.neg}_u32 s{self.reg}, {self.val}\ns_cbranch_scc1 {self.l}")
    def __exit__(self, *a): A(f"{self.l}:")
OOL = []
class ool:
    def __init__(self, cc, reg, val): self.cc = cc; self.reg = reg; self.val = val
    def __enter__(self):
        self.l = lab("oo"); self.b = lab("ob")
        A(f"s_cmp_{self.cc}_u32 s{self.reg}, {self.val}\ns_cbranch_scc1 {self.l}")
        self.save = A.L; A.L = []
        A(f"{self.l}:\ns_nop 7")
    def __exit__(self, *a):
        A(f"s_nop 4\ns_branch {self.b}")
        OOL.extend(A.L); A.L = self.save
        A(f"{self.b}:")
def mksrd(r, p, nbytes):
    A(f"s_mov_b32 s{r}, s{p}\ns_and_b32 s{r+1}, s{p+1}, 0xffff\ns_mov_b32 s{r+2}, {nbytes:#x}\ns_mov_b32 s{r+3}, 0x20000")
def dma(vo, r, sbase, m0reg, m0add, soffadd, tag, pol, cond=False):
    A(f"s_add_u32 m0, s{m0reg}, {m0add}\ns_add_u32 s3, s{sbase}, {soffadd}")
    A(f"buffer_load_dwordx4 v{vo}, {srd(r)}, s3 offen{pol} lds", tag=tag, cond=cond)
def tr_reads(adst, vbase, steps, tiles, sstep, tstep, second, base=0):
    for t in range(tiles):
        for s in range(steps):
            d = adst + (t*steps + s)*4
            A(f"ds_read_b64_tr_b16 a[{d}:{d+1}], v{vbase} offset:{base + s*sstep + t*tstep}")
            A(f"ds_read_b64_tr_b16 a[{d+2}:{d+3}], v{vbase} offset:{base + s*sstep + t*tstep + second}")
def pack_pairs(v, t):
    A(f"v_mov_b32_dpp v{t}, v{v} quad_perm:[1,0,3,2] row_mask:0xf bank_mask:0xf\nv_cvt_pk_bf16_f32 v{v}, v{v}, v{t}")
DPPF = "row_mask:0xf bank_mask:0xf"

hdr = open(f"cdna_kernels/{NAME}.s.ref").read().split("\n")
H = [l for l in hdr if l.startswith(";") and "@launch" not in l and not l.startswith("; Override") and not l.startswith("; grid=ceil")]
H.append(f"; @launch grid=(256,1,1) block=(256,1,1) lds={LDS_BYTES}")
A.raw('.amdgcn_target "amdgcn-amd-amdhsa--gfx950"')
A.raw(".text"); A.raw(f".globl {NAME}_kernel"); A.raw(".p2align 8"); A.raw(f".type {NAME}_kernel,@function")
A.raw(f"{NAME}_kernel:")

tn, tq = 31, 32
vKo = vR; vKr = vR + 4; vWa = vR + 8; vTa = vR + 9
vEP = vR + 10; vXr = vR + 12; vX0 = vR + 16; vX1 = vR + 20; vXA0 = vACC
stamp(0)
A(f"""
s_cmp_ge_u32 s2, 256
s_cbranch_scc1 L_end
s_load_dwordx16 s[4:19], s[0:1], 0
s_load_dwordx2 s[20:21], s[0:1], 64
s_load_dwordx2 s[24:25], s[0:1], 80
v_lshrrev_b32 v30, 6, v0
v_and_b32 v{vL}, 63, v0
s_and_b32 s{sg}, s2, 7
v_readfirstlane_b32 s{sw}, v30
s_lshr_b32 s{sU}, s2, 3               ; jj
s_lshr_b32 s{sb}, s{sU}, 4
s_and_b32 s{sj}, s{sU}, 15
s_and_b32 s3, s{sj}, 6
s_cmp_eq_u32 s3, 6
s_cselect_b32 s3, 8, 0
s_xor_b32 s{sjf}, s{sj}, s3
v_and_b32 v{tn}, 15, v{vL}
v_lshrrev_b32 v{tq}, 4, v{vL}
s_lshl_b32 s{sT0}, s2, 2
s_add_u32 s{sT0}, s{sT0}, s{sw}
s_mul_i32 s{sT0}, s{sT0}, {SWZ}
s_and_b32 s{sT0}, s{sT0}, 31      ; r
s_lshl_b32 s{sT1}, s{sb}, 3
s_add_u32 s{sT1}, s{sT1}, s{sg}   ; bg
s_lshl_b32 s{sVb}, s{sT1}, 21
s_lshl_b32 s3, s{sj}, 17
s_add_u32 s{sVb}, s{sVb}, s3
s_lshl_b32 s3, s{sw}, 15
s_add_u32 s{sVb}, s{sVb}, s3
s_add_u32 s{sKm}, s3, {KST}
s_lshl_b32 s3, s{sT0}, 10
s_add_u32 s{sVb}, s{sVb}, s3
v_lshlrev_b32 v{vVo}, 4, v{vL}
v_mov_b32 v{vKo}, v{vVo}
v_xor_b32 v{vKo+1}, 64, v{vVo}
v_xor_b32 v{vKo+2}, 128, v{vVo}
v_xor_b32 v{vKo+3}, 192, v{vVo}
v_lshrrev_b32 v35, 3, v{vL}
v_and_b32 v36, 7, v{vL}
v_lshlrev_b32 v36, 4, v36
v_lshl_add_u32 v{vWa}, v35, 13, v36
s_and_b32 s{sT1}, s{sU}, 3            ; kq
s_lshl_b32 s{sBUD}, s{sT1}, 20
s_lshl_b32 s3, s{sw}, 18
s_add_u32 s{sBUD}, s{sBUD}, s3
s_lshl_b32 s3, s{sg}, 10
s_add_u32 s{sBUD}, s{sBUD}, s3
s_lshr_b32 s{sT0}, s{sU}, 2           ; cb
s_lshl_b32 s3, s{sT0}, 7
s_add_u32 s{sBUD}, s{sBUD}, s3
s_lshl_b32 s{sLAYER}, s{sw}, 12
s_mov_b32 s{skq}, s{sT1}
s_lshl_b32 s{sQpub}, s{sg}, 13
s_lshl_b32 s3, s{sT0}, 8
s_add_u32 s{sQpub}, s{sQpub}, s3
s_lshl_b32 s3, s{sT1}, 11
s_add_u32 s{sQpub}, s{sQpub}, s3
; x addresses
v_and_b32 v33, 1, v{tq}
v_lshlrev_b32 v33, 3, v33
v_lshl_add_u32 v33, v{tn}, 4, v33      ; 16n+8(q&1)
s_lshl_b32 s3, s{sb}, 10
s_lshl_b32 s{sT0}, s{sw}, 8
s_add_u32 s3, s3, s{sT0}
v_add_u32 v34, s3, v33
v_lshrrev_b32 v35, 5, v{vL}
v_lshlrev_b32 v35, 10, v35
v_xor_b32 v34, v34, v35
v_mov_b32 v37, {EPO}
s_lshl_b32 s{sU}, s{sU}, 2
s_add_u32 s{sU}, s{sU}, s{sw}          ; u = jj*4+w
s_waitcnt lgkmcnt(0)
""")
def scalars():
    A(f"""
s_mov_b32 s{sSELLO}, 0x05040100
s_mov_b32 s{sSELHI}, 0x07060302
s_lshl_b32 s{sT1}, s{sg}, 1
s_add_u32 s{sT1}, s{sT1}, s{sb}          ; gb
s_lshl_b32 s{sQget}, s{sb}, 3
s_add_u32 s{sQget}, s{sQget}, s{sg}
s_lshl_b32 s{sQget}, s{sQget}, 13
s_lshl_b32 s3, s{sw}, 9
s_add_u32 s{sQget}, s{sQget}, s3
s_add_u32 s{sQget}, s{sQget}, {QP}
s_lshl_b32 s{sMLget}, s{sT1}, 9
s_add_u32 s{sHget}, s{sMLget}, {HS}
s_add_u32 s{sMLget}, s{sMLget}, {ML}
s_lshl_b32 s3, s{sj}, 5
s_add_u32 s{sT2}, s{sMLget}, s3
s_lshl_b32 s3, s{sjf}, 5
s_add_u32 s{sHpub}, s{sHget}, s3
s_lshl_b32 s3, s{sj}, 3
s_add_u32 s{sMLpub}, s{sMLget}, s3
s_lshl_b32 s3, s{sw}, 7
s_add_u32 s{sMLget}, s{sMLget}, s3
s_lshl_b32 s{sOget}, s{sT1}, 14
s_add_u32 s{sOget}, s{sOget}, {OS}
s_lshl_b32 s3, s{sj}, 10
s_add_u32 s{sOclr}, s{sOget}, s3
s_lshl_b32 s3, s{sj}, 4
s_add_u32 s{sOpub}, s{sOget}, s3
s_lshl_b32 s3, s{sw}, 10
s_add_u32 s{sOpub}, s{sOpub}, s3
s_lshl_b32 s3, s{sw}, 12
s_add_u32 s{sOget}, s{sOget}, s3
s_lshl_b32 s{sYget}, s{sb}, 13
s_add_u32 s{sYget}, s{sYget}, {YS}
s_add_u32 s{sYget1}, s{sYget}, 4096
s_add_u32 s{sZget}, s{sYget}, {ZS-YS}
s_add_u32 s{sZget1}, s{sZget}, 4096
s_lshl_b32 s3, s{sg}, 10
s_add_u32 s{sYpub}, s{sYget}, s3
s_lshl_b32 s3, s{sj}, 6
s_add_u32 s{sYpub}, s{sYpub}, s3
s_add_u32 s{sZpub}, s{sYpub}, {ZS-YS}
""")
def clears():
    A(f"""
v_mul_u32_u24 v47, {LS}, v{tq}
v_mov_b32 v45, s{sYpub}
v_mov_b32 v46, s{sT2}
v_subrev_u32 v46, 64, v46
v_cmp_le_u32 vcc, 4, v{tn}
v_cndmask_b32 v45, v45, v46, vcc
v_mov_b32 v46, s{sHpub}
v_subrev_u32 v46, 96, v46
v_cmp_le_u32 vcc, 6, v{tn}
v_cndmask_b32 v45, v45, v46, vcc
v_mov_b32 v46, s{sYpub}
v_subrev_u32 v46, 128, v46
v_cmp_le_u32 vcc, 8, v{tn}
v_cndmask_b32 v45, v45, v46, vcc
v_mov_b32 v46, s{sZpub}
v_subrev_u32 v46, 192, v46
v_cmp_le_u32 vcc, 12, v{tn}
v_cndmask_b32 v45, v45, v46, vcc
v_lshl_add_u32 v45, v{tn}, 4, v45
v_add_u32 v45, v45, v47
s_add_u32 s3, s{sQpub}, {CS}
v_lshlrev_b32 v46, 4, v{tn}
v_add_u32 v47, s3, v46
v_cmp_le_u32 vcc, 32, v{vL}
v_cndmask_b32 v45, v45, v47, vcc
v_and_b32 v47, 1, v{tq}
v_lshl_add_u32 v46, v47, 16, v46
v_lshrrev_b32 v47, 1, v{tq}
v_mul_u32_u24 v47, {LS}, v47
v_add_u32 v46, v46, v47
s_add_u32 s{sT2}, s{sQpub}, {QP}
v_mov_b32 v48, -1
v_mov_b32 v49, -1
v_mov_b32 v50, -1
v_mov_b32 v51, -1
s_add_u32 s3, s{sOclr}, {LS}
""")
    exec_set(0xffffffff, 0xffff)
    A(f"buffer_store_dwordx4 v[48:51], v45, {srd(rWS)}, 0 offen{CLRP}", cond=True)
    exec_all()
    A(f"buffer_store_dwordx4 v[48:51], v46, {srd(rWS)}, s{sT2} offen{CLRP}", cond=True)
    A(f"buffer_store_dwordx4 v[48:51], v{vVo}, {srd(rWS)}, s{sOclr} offen{CLRP}", cond=True)
    A(f"buffer_store_dwordx4 v[48:51], v{vVo}, {srd(rWS)}, s3 offen{CLRP}", tag="clr", cond=True)
def tags():
    A(f"""
v_readfirstlane_b32 s{sTAG0}, v{vEP}
v_readfirstlane_b32 s{sTAG1}, v{vEP+1}
s_add_u32 s{sTAG0}, s{sTAG0}, 1
s_andn2_b32 s{sTAG1}, s{sTAG1}, 15""")
def flag():
    with (ool if opt("ool", 0) else only)("eq", sw, CW):
        A.vwait("clr")
        tags()
        A(f"""
s_getreg_b32 s3, hwreg(HW_REG_XCC_ID, 0, 4)
s_or_b32 s3, s3, s{sTAG1}
v_mov_b32 v46, s{sTAG0}
v_mov_b32 v47, s3
s_lshl_b32 s3, s{sb}, 3
s_add_u32 s3, s3, s{sg}
s_lshl_b32 s3, s3, 4
s_add_u32 s3, s3, s{sj}
s_lshl_b32 s3, s3, 3
s_add_u32 s3, s3, {FLG}
v_mov_b32 v45, 0""")
        exec_set(1, 0)
        A(f"buffer_store_dwordx2 v[46:47], v45, {srd(rWS)}, s3 offen sc1", cond=True)
        exec_all()
def kdma(n):
    A(f"s_add_u32 m0, s{sKm}, {n*1024}\ns_xor_b32 s{sT0}, s{sVb}, {n*1024}")
    A(f"buffer_load_dwordx4 v{vKo+(n&3)}, {srd(rK)}, s{sT0} offen nt lds", tag=f"K{n}")
def kread(k):
    A.vwait(f"K{4*k+3}")
    for s in range(4): A(f"ds_read_b128 {aq(aK+16*k+4*s)}, v{vKr+s} offset:{k*4096}")
def vload(n):
    A(f"s_xor_b32 s{sT1}, s{sVb}, {n*1024}")
    A(f"buffer_load_dwordx4 {vq(vR+32+4*n)}, v{vVo}, {srd(rV)}, s{sT1} offen nt", tag=f"V{n}")
base = [("K", n) for n in range(32)] + [("V", n) for n in range(32)]
wl = []
if IN12: wl += [("W1", i) for i in range(4)] + [("W2", i) for i in range(4)]
if INO: wl = [("WO", i) for i in range(8)] + wl if opt("worder", 0) == 0 else wl + [("WO", i) for i in range(8)]
pend = []
for kind, n in base:
    pend.append((kind, n))
    pos = n if kind == "K" else 32 + n
    if wl and pos >= WPOS0 and (pos - WPOS0) % WSTEP == 0:
        pend.append(wl.pop(0)); assert pos < 32 + 8*MBG + 7
assert not wl
kr = [0]; allow_kread = [False]; wfirst = [True]
sWOb, sW1b, sW2b = 8, 9, 10
def wdma(kind, n):
    if "w" in DROP:
        if opt("fakew", 0):
            A(f"s_lshl_b32 s3, s{sU}, 12\ns_lshl_b32 s{sWOb}, s{sg}, 19\ns_add_u32 s{sWOb}, s{sWOb}, s3")
            fk = [("WO", i) for i in range(4)] + [("W1", 0), ("W1", 1), ("W2", 0), ("W2", 1)]
            if kind == "WO" and n < 4: A(f"buffer_load_dwordx4 {DUMMY}, v{vVo}, {srd(rWO)}, s{sWOb} offen offset:{1024*n} nt")
            if kind == "W1":
                A(f"s_lshl_b32 s3, s2, 2\ns_add_u32 s3, s3, s{sw}\ns_mul_i32 s3, s3, 1792")
                if n < 2: A(f"buffer_load_dwordx4 {DUMMY}, v{vVo}, {srd(rW1)}, s3 offen offset:{768*n} nt")
                else: A(f"buffer_load_dwordx4 {DUMMY}, v{vVo}, {srd(rW2)}, s3 offen offset:{768*(n-2)} nt")
        return
    if wfirst[0]:
        wfirst[0] = False
        assert kr[0] >= 4
        A(f"""s_waitcnt lgkmcnt(0)
v_lshrrev_b32 v111, 2, v{vL}
v_and_b32 v112, 3, v{vL}
v_lshlrev_b32 v112, 4, v112
v_lshl_add_u32 v111, v111, 10, v112
v_lshrrev_b32 v112, 1, v{vL}
v_mul_u32_u24 v112, 3584, v112
v_and_b32 v113, 1, v{vL}
v_lshl_add_u32 v112, v113, 4, v112
s_lshl_b32 s{sWOb}, s{sg}, 19
s_lshl_b32 s3, s{sw}, 17
s_add_u32 s{sWOb}, s{sWOb}, s3
s_lshl_b32 s3, s{sj}, 6
s_add_u32 s{sWOb}, s{sWOb}, s3
s_mul_i32 s{sW2b}, s{sg}, {224*1024}
s_add_u32 s{sW2b}, s{sW2b}, s3
s_lshl_b32 s3, s{sw}, 14
s_add_u32 s{sW2b}, s{sW2b}, s3
s_mul_i32 s{sW1b}, s{sw}, {128*3584}
s_mul_i32 s3, s{sg}, 448
s_add_u32 s{sW1b}, s{sW1b}, s3
s_lshl_b32 s3, s{sjf}, 5
s_add_u32 s{sW1b}, s{sW1b}, s3""")
    if kind == "WO": dma(111, rWO, sWOb, sKm, 1024*n, n << 14, f"WO{n}", " nt")
    elif kind == "W1":
        with only("lt", sjf, 14): dma(112, rW1, sW1b, sKm, 8192 + 1024*n, n*32*3584, "W1", " nt", cond=True)
    elif n < 3: dma(111, rW2, sW2b, sKm, 12288 + 1024*n, n*64*1024, "W2", " nt")
    else:
        with only("lt", sw, 2): dma(111, rW2, sW2b, sKm, 12288 + 1024*n, n*64*1024, "W2", " nt", cond=True)
def stream(k=1, upto=None):
    if upto is not None:
        nxt = [n if kd == "K" else 32 + n for kd, n in pend if kd in "KV"][0]
        if nxt > upto: return
    while pend and (k > 0 or upto is not None):
        kind, n = pend.pop(0)
        if kind[0] == "W":
            wdma(kind, n); continue
        kdma(n) if kind == "K" else vload(n)
        pos = n if kind == "K" else 32 + n
        if PFOPOS > 0 and pos == PFOPOS: pf_wo()
        if allow_kread[0]:
            while kr[0] < 8 and 4*kr[0] + 3 + opt("klag", 16) <= pos:
                kread(kr[0]); kr[0] += 1
        k -= 1
        if upto is not None and pos == upto: break
        if upto is None and k <= 0: break

def pf_wo():
    A(f"s_lshl_b32 s3, s{sU}, 12\ns_lshl_b32 s{sT2}, s{sg}, 19\ns_add_u32 s{sT2}, s{sT2}, s3")
    for i in range(4): A(f"buffer_load_dwordx4 {DUMMY}, v{vVo}, {srd(rWO)}, s{sT2} offen offset:{1024*i}{PFO}")
    for x in range(1, opt("redo", 1)):
        A(f"s_xor_b32 s3, s{sT2}, {[0, 64, 32, 96][x] << 12}")
        for i in range(4): A(f"buffer_load_dwordx4 {DUMMY}, v{vVo}, {srd(rWO)}, s3 offen offset:{1024*i}{PFO}")
PFOPOS = opt('pfopos', -1)
mksrd(rWQ, sWQ, 512*4096*2); mksrd(rK, sK, 1 << 25); mksrd(rWS, sWS, WS_BYTES)
if PFOPOS >= 0: mksrd(rWO, sWO, 4096*512*2)
A(f"global_load_dwordx2 {vq(vEP,2)}, v37, {sp(sWS)} sc1", tag="ep")
with (ool if opt("ool", 0) else only)("eq", sw, CW):
    scalars()
    if "clr" not in DROP: clears()
    else: A.vq.append(("clr", True))
if "wa" not in DROP:
    for i in range(4): dma(vWa, rWQ, sBUD, sLAYER, LWQ + 1024*i, i << 16, f"WA{i}", " nt")
A(f"global_load_dwordx2 {vq(vXr,2)}, v34, {sp(sX)}", tag="x")
if PFOPOS == 0: pf_wo()
stream(opt("k0", 6))
stamp(1)
mksrd(rV, sV, 1 << 25); mksrd(rWO, sWO, 4096*512*2); mksrd(rW1, sW1, 512*1792*2); mksrd(rW2, sW2, 1792*512*2)
if opt("ool", 0): scalars()
else:
    with only("lg", sw, CW): scalars()
A(f"s_mov_b32 s{sLAYER}, 0\ns_mov_b32 s{sBUD}, 400000")
A(f"""
s_lshl_b32 s3, s{sw}, 9
s_add_u32 s3, s3, {XB}
v_add_u32 v{vXBw}, s3, v33
v_lshrrev_b32 v44, 3, v{tn}
v_lshlrev_b32 v44, 8, v44
v_lshl_add_u32 v44, v{tq}, 4, v44
v_add_u32 v{vXBr}, s3, v44
v_lshlrev_b32 v47, 2, v{vL}                ; 4l
v_add_u32 v44, s3, v47
v_mov_b32 v41, 0x3f803f80
ds_write_b32 v44, v41 offset:256
s_lshl_b32 s3, s{sw}, 2
s_add_u32 s{sT1}, s3, {RED1}
v_add_u32 v{vRED}, s{sT1}, v{vVo}
v_lshrrev_b32 v46, 5, v{vL}
v_lshl_add_u32 v46, v46, 4, v{tn}
v_lshlrev_b32 v46, 4, v46
s_add_u32 s{sT1}, s3, {REDA}
v_add_u32 v{vREDA}, s{sT1}, v46
s_add_u32 s{sT1}, s3, {ST0}
v_mov_b32 v{vST}, s{sT1}
v_and_b32 v42, 3, v{vL}                    ; l&3
v_lshlrev_b32 v43, 4, v42
v_add_u32 v{vMBw}, {MB}, v43
v_add_u32 v{vMBw}, s3, v{vMBw}
s_lshl_b32 s3, s{sw}, 8
v_lshlrev_b32 v43, 4, v{tq}                ; 16q
v_add_u32 v{vMBr}, {MB}, v43
v_and_b32 v44, 1, v{tq}
v_lshlrev_b32 v44, 16, v44
v_lshl_add_u32 v{vQP}, v{tn}, 2, v44       ; batch*65536 + 4n
v_lshrrev_b32 v44, 5, v{vL}
v_xor_b32 v44, s{sb}, v44
v_lshlrev_b32 v44, 8, v44
v_add_u32 v44, {XQ}, v44
v_add_u32 v{vXQw}, v44, v33
v_bfe_u32 v44, v{vL}, 2, 1
v_lshlrev_b32 v44, 8, v44
v_add3_u32 v44, v44, v43, 0
v_add_u32 v44, {XQ}, v44
v_accvgpr_write_b32 a{aXQr}, v44
v_lshrrev_b32 v44, 2, v{vL}
v_lshlrev_b32 v44, 6, v44
v_lshl_add_u32 v44, v42, 2, v44
s_lshl_b32 s{sT1}, s{sw}, 4
s_add_u32 s{sT1}, s{sT1}, {QB}
v_add_u32 v44, s{sT1}, v44
v_accvgpr_write_b32 a{aQBw}, v44
v_lshlrev_b32 v44, 4, v{tn}
v_lshl_add_u32 v44, v{tq}, 10, v44
v_add_u32 v{vGad}, s3, v44
v_mov_b32 v{vHad}, v43
v_lshlrev_b32 v44, 4, v42
v_lshl_add_u32 v{vQad}, v{tq}, 6, v44
v_add_u32 v{vQad}, {QB}, v{vQad}
v_lshl_add_u32 v44, v{tq}, 2, v42
v_lshlrev_b32 v{vMLad}, 3, v44
v_lshrrev_b32 v44, 1, v{vL}
v_lshlrev_b32 v{vPAIR}, 2, v44
s_lshl_b32 s3, s{sw}, 11
s_add_u32 s3, s3, {OB}
v_lshlrev_b32 v44, 4, v{tn}
v_add_u32 v{vOBw}, s3, v44
s_lshl_b32 s3, s{sw}, 9
s_add_u32 s3, s3, {OB}
v_lshl_add_u32 v44, v{tq}, 2, v44
v_add_u32 v{vOBr}, s3, v44
v_lshrrev_b32 v45, 2, v{tn}                ; n>>2
v_lshlrev_b32 v44, 8, v45
v_lshl_add_u32 v44, v42, 2, v44
v_lshl_add_u32 v{vOpub}, v{tq}, 12, v44
s_and_b32 s3, s{sw}, 1
s_lshl_b32 s3, s3, 5
v_lshlrev_b32 v44, 3, v{tq}
v_add_u32 v{vZpub}, s3, v44
v_mul_u32_u24 v44, 1088, v42
v_lshl_add_u32 v44, v45, 8, v44
v_add_u32 v44, v44, v43
""")
for s in range(4): A(f"v_xor_b32 v46, {64*s}, v44\nv_add_u32 v{vKr+s}, s{sKm}, v46")
A(f"""
v_and_b32 v44, 1, v{tn}
v_lshlrev_b32 v44, 4, v44
v_mov_b32 v46, 0x3f80
v_lshlrev_b32 v46, v44, v46
v_lshrrev_b32 v44, 1, v{tn}
""")
for i in range(4): A(f"v_cmp_eq_u32 vcc, {i}, v44\nv_cndmask_b32 v{vSEL+i}, 0, v46, vcc")
A(f"""
v_lshl_add_u32 v46, v{tq}, 3, v45          ; 8q+r
v_lshlrev_b32 v46, 7, v46
v_lshl_add_u32 v46, v42, 3, v46
s_lshl_b32 s3, s{sw}, 5
v_add_u32 v{vTa}, s3, v46
""")
stream(opt("k1", 2))
if opt("fpos", 12) < 0: flag()

vXP = 28; vXA = 32; vG0 = 48
vS, vSQ, vTm = 30, 31, 56
vMean, vRs = 62, 63
def unpack_x():
    A(f"""
v_lshlrev_b32 v{vX}, 16, v{vXP}
v_and_b32 v{vX+1}, 0xffff0000, v{vXP}
v_lshlrev_b32 v{vX+2}, 16, v{vXP+1}
v_and_b32 v{vX+3}, 0xffff0000, v{vXP+1}""")
def stat_ops():
    o = [f"v_add_f32 v{vS}, v{vX}, v{vX+1}", f"v_mul_f32 v{vSQ}, v{vX}, v{vX}", f"v_add_f32 v{vTm}, v{vX+2}, v{vX+3}",
         f"v_fmac_f32 v{vSQ}, v{vX+1}, v{vX+1}", f"v_add_f32 v{vS}, v{vS}, v{vTm}",
         f"v_fmac_f32 v{vSQ}, v{vX+2}, v{vX+2}", f"v_fmac_f32 v{vSQ}, v{vX+3}, v{vX+3}"]
    for c in ("row_ror:8 " + DPPF, "row_ror:4 " + DPPF, "row_ror:2 " + DPPF, "row_ror:1 " + DPPF, "row_bcast:15 row_mask:0xa bank_mask:0xf"):
        o += [f"v_add_f32_dpp v{vS}, v{vS}, v{vS} {c}", f"v_add_f32_dpp v{vSQ}, v{vSQ}, v{vSQ} {c}"]
    return o
def stat_write(st_off):
    exec_set(0x10000, 0)
    A(f"ds_write2_b32 v{vST}, v{vS}, v{vSQ} offset0:{st_off//4} offset1:{st_off//4+4}")
    exec_all()
def qproj(first):
    with only("eq", sw, f"s{skq}"): A(f"ds_write_b64 v{vXQw}, v[{vXP}:{vXP+1}]")
    A(f"v_accvgpr_read_b32 v57, a{aXQr}")
    unpack_x()
    for i in stat_ops(): A(i)
    stat_write(0)
    A("s_waitcnt lgkmcnt(0)\ns_barrier")
    if first:
        tr_reads(aWQ, vTa, 4, 1, 4096, 0, 512, base=LWQ)
        stream(2)
    for s_ in range(4): A(f"ds_read_b128 {vq(vXA+4*s_)}, v57 offset:{64*s_}")
    A(f"v_mov_b32 v58, {ST0}")
    A(f"ds_read_b128 v[52:55], v58\nds_read_b128 v[56:59], v58 offset:16")
    A(f"s_lshl_b32 s3, s{sw}, 6\ns_add_u32 s3, s3, s{sQpub}\ns_add_u32 s{sT2}, s3, {CS}\ns_add_u32 s3, s3, {QP}")
    for s_ in range(4):
        A(f"s_waitcnt lgkmcnt({0 if (PROF or first) else 5-s_})")
        A(f"v_mfma_f32_16x16x32_bf16 {vq(vG0)}, {vq(vXA+4*s_)}, {aq(aWQ+4*s_)}, {'0' if s_ == 0 else vq(vG0)}")
    A(f"""s_waitcnt lgkmcnt(0)
v_add_f32 v52, v52, v53
v_add_f32 v54, v54, v55
v_add_f32 v56, v56, v57
v_add_f32 v58, v58, v59
v_add_f32 v52, v52, v54
v_add_f32 v56, v56, v58""")
    if not first:
        exec_set(0xffffffff, 0)
        pub_store(f"buffer_store_dword v{vG0}, v{vQP}, {srd(rWS)}, s3 offen")
        exec_all()
    else: stream(2)
    A(f"""
v_mul_f32 v{vMean}, {f2u(1.0/512):#x}, v52
v_mul_f32 v56, {f2u(1.0/512):#x}, v56
v_fma_f32 v56, -v{vMean}, v{vMean}, v56
v_max_f32 v56, 0, v56
v_add_f32 v56, {f2u(1e-5):#x}, v56
v_rsq_f32 v56, v56
v_mul_f32 v{vRs}, {f2u(QSCALE):#x}, v56""")
    if first:
        for i in range(4): A(f"v_mov_b32 v{vXA+i}, 0x3f803f80")
        for s_ in range(4):
            A(f"v_mfma_f32_16x16x32_bf16 v[52:55], {vq(vXA)}, {aq(aWQ+4*s_)}, {'0' if s_ == 0 else 'v[52:55]'}")
        if opt("fpos", 12) >= 0:
            stream(upto=opt("fpos", 12))
            flag()
            stream(upto=opt("b2pos", 16))
            A("s_barrier")
        A(f"s_lshl_b32 s3, s{sw}, 6\ns_add_u32 s3, s3, s{sQpub}\ns_add_u32 s{sT2}, s3, {CS}\ns_add_u32 s3, s3, {QP}")
        exec_set(0xffffffff, 0)
        A(f"buffer_store_dword v{vG0}, v{vQP}, {srd(rWS)}, s3 offen sc1")
        exec_set(0xffff, 0)
        A(f"buffer_store_dword v52, v{vQP}, {srd(rWS)}, s{sT2} offen sc1")
        exec_all()
def q_loads(dst, soff, tag=None, cond=False):
    for k in range(4): A(f"buffer_load_dwordx2 v[{dst+2*k}:{dst+2*k+1}], v60, {srd(rWS)}, s{soff} offen offset:{2048*k if k < 2 else 2048*(k-2)} sc1" if k < 2 else
                         f"buffer_load_dwordx2 v[{dst+2*k}:{dst+2*k+1}], v61, {srd(rWS)}, s{soff} offen offset:{2048*(k-2)} sc1", tag=tag, cond=cond)
def q_addr(): A(f"v_lshlrev_b32 v60, 3, v{vL}\nv_add_u32 v61, 4096, v60")
def sum4(d):
    A(f"v_add_f32 v{d}, v{d}, v{d+2}\nv_add_f32 v{d+1}, v{d+1}, v{d+3}\nv_add_f32 v{d+4}, v{d+4}, v{d+6}\nv_add_f32 v{d+5}, v{d+5}, v{d+7}\nv_add_f32 v{d}, v{d}, v{d+4}\nv_add_f32 v{d+1}, v{d+1}, v{d+5}")
def q_finish(cs):
    A(f"""
v_fma_f32 v44, -v{vMean}, v{cs}, v44
v_fma_f32 v45, -v{vMean}, v{cs+1}, v45
v_mul_f32 v44, v44, v{vRs}
v_mul_f32 v45, v45, v{vRs}
v_cvt_pk_bf16_f32 v44, v44, v45
ds_write_b32 v59, v44
s_waitcnt lgkmcnt(0)
s_barrier""")
    for s_ in range(4): A(f"ds_read_b128 {vq(vQ+4*s_)}, v{vQad} offset:{256*s_}")
A.vwait("x")
stamp(2)
tags()
A(f"""
s_cmp_eq_u32 s{sw}, s{skq}
s_cselect_b32 s3, 64, 32
v_cmp_gt_u32 vcc, s3, v{vL}
v_cndmask_b32 v{vXP}, 0, v{vXr}, vcc
v_cndmask_b32 v{vXP+1}, 0, v{vXr+1}, vcc
s_xor_b32 s{sYo}, s{sYget}, 8192
s_xor_b32 s{sZo}, s{sZget}, 8192""")
qproj(True)
stamp(3)
allow_kread[0] = True
stream(upto=opt("cenpos", 30))
def cen_loads(cond):
    A(f"s_mov_b32 s3, {FLG}")
    A(f"buffer_load_dwordx4 v[32:35], v{vVo}, {srd(rWS)}, s3 offen sc1", cond=cond)
    A(f"buffer_load_dwordx4 v[36:39], v{vVo}, {srd(rWS)}, s3 offen offset:1024 sc1", tag="cen", cond=cond)
if "cen" not in DROP: cen_loads(False)
else: A.vq.append(("cen", True))
stream(opt("cenlag", 10))
A.vwait("cen")
lcen, lcok = lab("cen"), lab("cok")
A(f"{lcen}:")
if "cen" in DROP or "clr" in DROP: A(f"s_branch {lcok}")
for i in range(4):
    A(f"v_xor_b32 v{32+2*i}, s{sTAG0}, v{32+2*i}\nv_xor_b32 v{33+2*i}, s{sTAG1}, v{33+2*i}")
CSPLIT = opt("csplit", 1)
A(f"""
v_or3_b32 v40, v33, v35, v37
v_or3_b32 v42, v32, v34, v36
v_or_b32 v40, v40, v39
v_and_b32 v40, -16, v40
v_or3_b32 v40, v40, v42, v38
v_cmp_ne_u32 vcc, 0, v40""")
if CSPLIT: A(f"""s_or_b32 s{sCEN}, vcc_lo, vcc_hi
s_lshl_b32 s3, s{sg}, 3
s_lshr_b64 s[{sT2}:{sT2+1}], vcc, s3
s_and_b32 s{sT2}, s{sT2}, 0xff
s_cbranch_scc0 {lcok}
s_sleep 4""")
else: A(f"s_cbranch_vccz {lcok}\ns_sleep 4")
cen_loads(True)
A("s_waitcnt vmcnt(0)")
retry(lcen)
A(f"{lcok}:")
stamp(4)
if PROF: A(f"s_mov_b32 s12, s{sBUD}")
A(f"""
s_getreg_b32 s3, hwreg(HW_REG_XCC_ID, 0, 4)
v_xor_b32 v33, s3, v33
v_xor_b32 v35, s3, v35
v_xor_b32 v37, s3, v37
v_xor_b32 v39, s3, v39
v_or_b32 v33, v33, v35
v_or3_b32 v33, v33, v37, v39
v_cmp_eq_u32 vcc, 0, v33
s_lshl_b32 s3, s{sg}, 3
s_lshr_b64 s[{sT2}:{sT2+1}], vcc, s3
s_and_b32 s{sT2}, s{sT2}, 0xff
s_cmp_eq_u32 s{sT2}, 0xff
s_cselect_b32 s{sFAST}, {0 if FORCE_SLOW else 1}, 0
s_lshl_b32 s{sT3}, s{sg}, 13
s_lshl_b32 s3, s{sw}, 9
s_add_u32 s{sT3}, s{sT3}, s3
s_add_u32 s{sT3}, s{sT3}, {CS}""")
q_addr()
stream(upto=opt("qpos", 42))
if "q" not in DROP: q_loads(44, sQget); q_loads(32, sT3, tag="Q")
else: A.vq.append(("Q", True))
stream(opt("qlag", 8))
A.vwait("Q")
lq1, lq1ok = lab("ql"), lab("qlok")
A(f"{lq1}:")
if DROP != [""] and DROP != ["w"]: A(f"s_branch {lq1ok}")
sum4(44); sum4(32)
A(f"""v_add_f32 v40, v44, v45
v_add_f32 v41, v32, v33
v_cmp_u_f32 vcc, v40, v41
s_cbranch_vccz {lq1ok}""")
q_loads(44, sQget, cond=True); q_loads(32, sT3, cond=True)
A("s_waitcnt vmcnt(0)")
retry(lq1)
A(f"""{lq1ok}:
v_accvgpr_write_b32 a{aCS}, v32
v_accvgpr_write_b32 a{aCS+1}, v33
v_accvgpr_read_b32 v59, a{aQBw}
v_mov_b32 v56, v32
v_mov_b32 v57, v33""")
assert kr[0] == 8
if PROF: A(f"s_mov_b32 s13, s{sBUD}")
q_finish(56)
stream(1)
A(f"s_waitcnt lgkmcnt(0)")
stamp(5)

def qk(filler=None):
    tiles = [(t, u) for t in range(4) for u in range(2)]
    def dreg(k):
        t, u = tiles[k]
        return (vD0 if u == 0 else vD1) if t == 0 else vROT + 4*(k % 3)
    def sel(k):
        t, u = tiles[k]
        if t == 0: return []
        return [f"v_mov_b32_dpp v{(vD0 if u == 0 else vD1)+r}, v{dreg(k)+r} quad_perm:[0,1,2,3] row_mask:0xf bank_mask:{1 << t:#x}" for r in range(4)]
    for k in range(8):
        ex = sel(k-2) if k >= 2 else []
        for s in range(4):
            c = "0" if s == 0 else vq(dreg(k))
            A(f"v_mfma_f32_16x16x32_bf16 {vq(dreg(k))}, {aq(aK+16*k+4*s)}, {vq(vQ+4*s)}, {c}")
            if ex: A(ex.pop(0))
        if filler: filler(k)
    for k in (6, 7):
        for i in sel(k): A(i)
vM, vTt, vLs, vP = 32, 33, 34, 28
vF = 36; vMM = 40
def softmax():
    A(f"""
v_max3_f32 v{vM}, v{vD0}, v{vD0+1}, v{vD0+2}
v_max3_f32 v{vTt}, v{vD0+3}, v{vD1}, v{vD1+1}
v_max3_f32 v{vM}, v{vM}, v{vD1+2}, v{vD1+3}
v_max_f32 v{vM}, v{vM}, v{vTt}
v_max_f32_dpp v{vM}, v{vM}, v{vM} row_ror:4 {DPPF}
v_max_f32_dpp v{vM}, v{vM}, v{vM} row_ror:8 {DPPF}
v_mov_b32 v{vTt}, v{vM}
v_permlane16_swap_b32 v{vM}, v{vTt}
v_max_f32 v{vM}, v{vM}, v{vTt}
v_mov_b32 v{vTt}, v{vM}
v_permlane32_swap_b32 v{vM}, v{vTt}
v_max_f32 v{vM}, v{vM}, v{vTt}""")
    for r in range(8): A(f"v_sub_f32 v{vD0+r}, v{vD0+r}, v{vM}")
    A(f"ds_write_b32 v{vMBw}, v{vM}")
    for r in range(8): A(f"v_exp_f32 v{vD0+r}, v{vD0+r}")
    for p in range(4): A(f"v_cvt_pk_bf16_f32 v{vP+p}, v{vD0+2*p}, v{vD0+2*p+1}")
def aop(t): return vP if t == 0 else vROT + 4*(t-1)
def shifts(t): return [f"v_mov_b32_dpp v{aop(t)+p}, v{vP+p} row_ror:{16-4*t} {DPPF}" for p in range(4)]
def lsum_ops():
    return [f"v_add_f32 v{vLs}, v{vD0}, v{vD0+1}", f"v_add_f32 v{vTt}, v{vD0+2}, v{vD0+3}",
            f"v_add_f32 v{vLs}, v{vLs}, v{vD1}", f"v_add_f32 v{vTt}, v{vTt}, v{vD1+1}",
            f"v_add_f32 v{vLs}, v{vLs}, v{vD1+2}", f"v_add_f32 v{vTt}, v{vTt}, v{vD1+3}",
            f"v_add_f32 v{vLs}, v{vLs}, v{vTt}",
            f"v_add_f32_dpp v{vLs}, v{vLs}, v{vLs} row_ror:4 {DPPF}",
            f"v_add_f32_dpp v{vLs}, v{vLs}, v{vLs} row_ror:8 {DPPF}",
            f"v_mov_b32 v{vTt}, v{vLs}", f"v_permlane16_swap_b32 v{vLs}, v{vTt}", f"v_add_f32 v{vLs}, v{vLs}, v{vTt}",
            f"v_mov_b32 v{vTt}, v{vLs}", f"v_permlane32_swap_b32 v{vLs}, v{vTt}", f"v_add_f32 v{vLs}, v{vLs}, v{vTt}",
            f"ds_write_b32 v{vMBw}, v{vLs} offset:64"]
def fw_ops():
    return [f"ds_read_b128 {vq(vF)}, v{vMBr}", "s_waitcnt lgkmcnt(0)",
            f"v_max3_f32 v{vMM}, v{vF}, v{vF+1}, v{vF+2}", f"v_max_f32 v{vMM}, v{vMM}, v{vF+3}"] + \
           [f"v_sub_f32 v{vF+i}, v{vF+i}, v{vMM}" for i in range(4)] + [f"v_exp_f32 v{vF+i}, v{vF+i}" for i in range(4)]
def pv_mfma(t, jd):
    c = "0" if t == 0 else vq(vACC+4*jd)
    A(f"v_mfma_f32_16x16x32_bf16 {vq(vACC+4*jd)}, {vq(aop(t))}, {vq(vR+32*t+4*jd)}, {c}")

def pf_w12(t0, t1):
    pf_w12_(t0, t1)
    if opt("red12", 1) > 1:
        A(f"s_xor_b32 s{sU}, s{sU}, 64"); pf_w12_(t0, t1)
def pf_w12_(t0, t1):
    A(f"""
s_mul_i32 s{sT2}, s{sU}, {4*3584}
s_mul_i32 s3, s{sg}, 448
s_add_u32 s{sT2}, s{sT2}, s3
v_lshrrev_b32 v{t0}, 5, v{vL}
v_mul_u32_u24 v{t0}, 3584, v{t0}
v_and_b32 v{t1}, 31, v{vL}
v_lshl_add_u32 v{t0}, v{t1}, 4, v{t0}
s_add_u32 s3, s{sT2}, {2*3584}""")
    exec_set(0x0fffffff, 0x0fffffff)
    A(f"buffer_load_dwordx4 {DUMMY}, v{t0}, {srd(rW1)}, s{sT2} offen{PF12}")
    A(f"buffer_load_dwordx4 {DUMMY}, v{t0}, {srd(rW1)}, s3 offen{PF12}")
    A(f"""
s_mul_i32 s{sT2}, s{sU}, {14*128}
s_mul_i32 s3, s{sg}, {224*1024}
s_add_u32 s{sT2}, s{sT2}, s3""")
    exec_set(0xffffffff, 0x00ffffff)
    A(f"buffer_load_dwordx4 {DUMMY}, v{vVo}, {srd(rW2)}, s{sT2} offen{PF12}")
    A(f"buffer_load_dwordx4 {DUMMY}, v{vVo}, {srd(rW2)}, s{sT2} offen offset:896{PF12}")
    exec_all()
def tail_pf():
    if "tail" in DROP: return
    if not INO and PFOPOS == -1: pf_wo()
    if W12PF == 0 and not IN12: pf_w12(41, 42)
    lw = lab("wu"); lw2 = lab("wu")
    A(f"""
v_lshlrev_b32 v35, 7, v{vL}
s_and_b32 s3, s{sw}, 1
s_mul_i32 s3, s3, {LS}
s_cmp_ge_u32 s{sw}, 2
s_cbranch_scc1 {lw}
s_add_u32 s3, s3, s{sOclr}
v_and_b32 v41, 0x380, v35
s_branch {lw2}
{lw}:
v_and_b32 v41, 1, v{vL}
v_lshlrev_b32 v41, 7, v41
v_bfe_u32 v42, v{vL}, 1, 1
v_lshl_add_u32 v41, v42, 16, v41
s_add_u32 s{sT2}, s{sQpub}, {QP}
v_add_u32 v41, s{sT2}, v41
s_sub_u32 s{sT2}, s{sMLpub}, 512
v_add_u32 v42, s{sT2}, v35
v_cmp_le_u32 vcc, 4, v{vL}
v_cndmask_b32 v41, v41, v42, vcc
v_mov_b32 v42, s{sHpub}
v_cmp_le_u32 vcc, 8, v{vL}
v_cndmask_b32 v41, v41, v42, vcc
{lw2}:""")
    exec_set(0x1ff, 0)
    if not opt("nowu", 0): A(f"buffer_load_dword a253, v41, {srd(rWS)}, s3 offen sc1")
    A(f"""
s_getpc_b64 s[{sT2}:{sT2+1}]
L_pc:
s_add_u32 s{sT2}, s{sT2}, L_comb-L_pc
s_addc_u32 s{sT2+1}, s{sT2+1}, 0""")
    exec_all()
    A(f"v_min_u32 v42, L_end-L_comb, v35")
    A(f"s_nop 0")
    if not opt("nocode", 0): A(f"global_load_dword a254, v42, s[{sT2}:{sT2+1}]{POL[opt('cpol','none')]}")

qk(filler=lambda k: stream(2))
stream(40)
softmax()
for t in (1, 2, 3):
    for i in shifts(t): A(i)
for i in lsum_ops(): A(i)
stamp(6)
for t in range(4):
    A.vwait(f"V{8*t+7}")
    raw = vR + 32*(t+1); dst = vR + 32*t
    for jd in range(8):
        for p in range(4):
            A(f"v_perm_b32 v{dst+4*jd+p}, v{raw+4*(2*p+1)+(jd>>1)}, v{raw+4*(2*p)+(jd>>1)}, s{sSELHI if jd & 1 else sSELLO}")
        if jd: pv_mfma(t, jd-1)
    pv_mfma(t, 7)
    if t == MBG:
        A("s_waitcnt lgkmcnt(0)\ns_barrier")
        for i in fw_ops(): A(i)
        if INO or IN12:
            A(f"""
v_lshrrev_b32 v44, 2, v{vL}
v_and_b32 v44, 3, v44                     ; r
v_and_b32 v45, 3, v{vL}
v_lshlrev_b32 v45, 3, v45                 ; 8c
v_lshrrev_b32 v46, 4, v{vL}               ; q
v_lshl_add_u32 v47, v46, 3, v44           ; 8q+r
v_lshl_add_u32 v47, v47, 5, v45
v_add_u32 v47, s{sKm}, v47                ; w1
v_and_b32 v48, 1, v44
v_lshrrev_b32 v49, 1, v44
v_lshl_add_u32 v48, v49, 3, v48
v_lshl_add_u32 v48, v46, 5, v48
v_lshl_add_u32 v48, v48, 6, v45
v_add_u32 v48, s{sKm}, v48                ; wo
v_and_b32 v49, 1, v46
v_lshl_add_u32 v44, v49, 3, v44
v_lshl_add_u32 v44, v44, 6, v45
v_lshrrev_b32 v46, 1, v46
v_lshl_add_u32 v44, v46, 15, v44
s_and_b32 s3, s{sw}, 1
s_lshl_b32 s3, s3, 5
s_add_u32 s3, s3, {KST + 12288}
v_add_u32 v44, s3, v44                    ; w2
v_add_u32 v45, 65536, v44""")
            if "w" in DROP:
                for i in range(aWO, 236): A(f"v_accvgpr_write_b32 a{i}, 0")
            if INO and "w" not in DROP: tr_reads(aWO, 48, 4, 2, 128, 32, 1024)
            if IN12 and "w" not in DROP:
                tr_reads(aW1, 47, 4, 1, 1024, 0, 128, base=8192)
                for st in range(7):
                    o_ = (st >> 1)*1024; r_ = 45 if st & 1 else 44
                    A(f"ds_read_b64_tr_b16 a[{aW2+4*st}:{aW2+4*st+1}], v{r_} offset:{o_}")
                    A(f"ds_read_b64_tr_b16 a[{aW2+4*st+2}:{aW2+4*st+3}], v{r_} offset:{o_+256}")
    if t == opt("pfg", 3): tail_pf()
WOEARLY = opt("woearly", 0)
def wo_burst(t0, t1, vo):
    A(f"""
v_lshrrev_b32 v{t0}, 2, v{vL}
v_and_b32 v{t1}, 3, v{vL}
v_lshlrev_b32 v{t1}, 4, v{t1}
v_lshl_add_u32 v{vo}, v{t0}, 10, v{t1}
s_lshl_b32 s{sT2}, s{sg}, 19
s_lshl_b32 s3, s{sw}, 17
s_add_u32 s{sT2}, s{sT2}, s3
s_lshl_b32 s3, s{sj}, 6
s_add_u32 s{sT2}, s{sT2}, s3""")
    for n in range(8): dma(vo, rWO, sT2, sKm, 1024*n, n << 14, f"WO{n}", WPOL)
if WOEARLY: wo_burst(41, 42, 43)
stamp(7)
flush_stamps(0, 8)
if PROF: A(f"v_writelane_b32 v{vPROF}, s12, 8\nv_writelane_b32 v{vPROF}, s13, 9")
if EXP == "stream": A("s_branch L_done")

def xproc(aW, tiles, red_off, st_off, skip_label=None, pre=None):
    exec_set(0xffffffff, 0)
    A(f"ds_write_b64 v{vXBw}, v[{vXP}:{vXP+1}]")
    exec_all()
    for s in range(4): A(f"ds_read_b128 {vq(vXA+4*s)}, v{vXBr} offset:{64*s}")
    unpack_x()
    if skip_label: A(f"s_cbranch_scc1 {skip_label}")
    dp = stat_ops()
    for _ in range(11): A(dp.pop(0))
    if pre: pre()
    A("s_waitcnt lgkmcnt(0)")
    for s in range(4):
        A(f"v_mfma_f32_16x16x32_bf16 {vq(vG0)}, {vq(vXA+4*s)}, {aq(aW+4*s)}, {'0' if s == 0 else vq(vG0)}")
        for _ in range(2):
            if dp: A(dp.pop(0))
    stat_write(st_off)
    A(f"ds_write_b32 v{vRED}, v{vG0} offset:{red_off}")
def ln_final(red_off, st_off):
    A(f"""
ds_read_b128 v[36:39], v{vST} offset:{st_off}
ds_read_b128 v[40:43], v{vST} offset:{st_off+16}
ds_read_b128 v[28:31], v{vRED} offset:{red_off}
ds_read_b128 v[32:35], v{vRED} offset:{red_off+512}
s_mov_b32 s3, {f2u(1.0/512):#x}
v_mov_b32 v44, {f2u(1e-5):#x}
s_waitcnt lgkmcnt({0 if PROF else 2})
v_add_f32 v36, v36, v37
v_add_f32 v38, v38, v39
v_add_f32 v40, v40, v41
v_add_f32 v42, v42, v43
v_add_f32 v36, v36, v38
v_add_f32 v40, v40, v42
v_mul_f32 v36, s3, v36                ; mean
v_fma_f32 v41, s3, v40, v44           ; E[x^2] + eps
s_waitcnt lgkmcnt(0)
v_add_f32 v28, v28, v29
v_fma_f32 v41, -v36, v36, v41
v_add_f32 v30, v30, v31
v_max_f32 v41, v44, v41
v_add_f32 v32, v32, v33
v_rsq_f32 v41, v41
v_add_f32 v34, v34, v35
v_add_f32 v28, v28, v30
v_add_f32 v32, v32, v34
v_fma_f32 v28, -v36, v32, v28
v_mul_f32 v28, v28, v41
""")

A("L_comb:")
exec_set(0xffff, 0)
for jd in range(8): A(f"ds_write_b128 v{vOBw}, {vq(vACC+4*jd)} offset:{256*jd}")
exec_all()
A("s_waitcnt lgkmcnt(0)\ns_barrier")
for w in range(4): A(f"ds_read2st64_b32 v[{44+2*w}:{45+2*w}], v{vOBr} offset0:{8*w} offset1:{8*w+1}")
A(f"ds_read_b128 v[52:55], v{vMBr} offset:64")
A("s_waitcnt lgkmcnt(1)" if not PROF else "s_waitcnt lgkmcnt(0)")
A(f"v_mul_f32 v44, v{vF}, v44\nv_mul_f32 v45, v{vF}, v45")
for w in range(1, 4): A(f"v_fmac_f32 v44, v{vF+w}, v{44+2*w}\nv_fmac_f32 v45, v{vF+w}, v{45+2*w}")
A("v_cvt_pk_bf16_f32 v44, v44, v45")
pub_store(f"buffer_store_dword v44, v{vOpub}, {srd(rWS)}, s{sOpub} offen")
with only("eq", sw, 0):
    A(f"""
s_waitcnt lgkmcnt(0)
v_mul_f32 v{vMM+1}, v{vF}, v52
v_fmac_f32 v{vMM+1}, v{vF+1}, v53
v_fmac_f32 v{vMM+1}, v{vF+2}, v54
v_fmac_f32 v{vMM+1}, v{vF+3}, v55
v_lshlrev_b32 v46, 3, v{vL}""")
    exec_set(0x00010001, 0x00010001)
    pub_store(f"buffer_store_dwordx2 v[{vMM}:{vMM+1}], v46, {srd(rWS)}, s{sMLpub} offen")
    exec_all()
stamp(0)
vO = 28; vml = 44; vDy = 48
la, laok, la0 = lab("pa"), lab("paok"), lab("pa0")
def a_loads():
    for s in range(4): A(f"buffer_load_dwordx4 {vq(vO+4*s)}, v{vVo}, {srd(rWS)}, s{sOget} offen offset:{1024*s} sc1")
    A(f"buffer_load_dwordx2 v[{vml}:{vml+1}], v{vMLad}, {srd(rWS)}, s{sMLget} offen sc1")
A(f"s_cmp_lg_u32 s{sLAYER}, 0\ns_cbranch_scc1 {la}")
A(f"""
v_lshrrev_b32 v56, 2, v{vL}
v_and_b32 v57, 3, v{vL}
v_lshlrev_b32 v58, 4, v57
v_lshl_add_u32 v{vW2o}, v56, 10, v58
s_lshl_b32 s{sT2}, s{sg}, 19
s_lshl_b32 s3, s{sw}, 17
s_add_u32 s{sT2}, s{sT2}, s3
s_lshl_b32 s3, s{sj}, 6
s_add_u32 s{sT2}, s{sT2}, s3""")
if not INO and not WOEARLY:
    for n in range(8): dma(vW2o, rWO, sT2, sKm, 1024*n, n << 14, f"WO{n}", WPOL)
a_loads()
NX = 0
if W12PF == 2 and not IN12: pf_w12(62, 63); NX += 4 * opt('red12', 1)
A(f"""
v_lshrrev_b32 v58, 1, v{vL}
v_mul_u32_u24 v{vW1o}, 3584, v58
v_and_b32 v58, 1, v{vL}
v_lshl_add_u32 v{vW1o}, v58, 4, v{vW1o}
v_and_b32 v56, 3, v56                     ; r
v_lshrrev_b32 v58, 4, v{vL}               ; q
v_lshlrev_b32 v57, 3, v57                 ; 8c
v_and_b32 v59, 1, v56
v_lshrrev_b32 v60, 1, v56
v_lshl_add_u32 v59, v60, 3, v59
v_lshl_add_u32 v59, v58, 5, v59
v_lshl_add_u32 v59, v59, 6, v57
v_add_u32 v{vTrO}, s{sKm}, v59
v_lshl_add_u32 v56, v58, 3, v56           ; 8q+r
v_lshl_add_u32 v58, v56, 5, v57
v_add_u32 v{vT1}, s{sKm}, v58
v_lshl_add_u32 v58, v56, 6, v57
s_and_b32 s3, s{sw}, 1
s_lshl_b32 s3, s3, 5
s_add_u32 s3, s3, {LW2}
v_add_u32 v{vT2}, s3, v58
v_mov_b32_dpp v{vSEL2}, v{vSEL} row_ror:8 {DPPF}
v_mov_b32_dpp v{vSEL2+1}, v{vSEL+1} row_ror:8 {DPPF}
v_mov_b32_dpp v{vSEL2+2}, v{vSEL+2} row_ror:8 {DPPF}
v_mov_b32_dpp v{vSEL2+3}, v{vSEL+3} row_ror:8 {DPPF}
s_waitcnt vmcnt({5+NX})""")
if PROF == 2: stamp(4)
if not INO: tr_reads(aWO, vTrO, 4, 2, 128, 32, 1024)
A(f"s_waitcnt vmcnt({NX}) lgkmcnt(0)\ns_branch {la0}")
A(f"{la}:")
a_loads()
A("s_waitcnt vmcnt(0)")
A(f"{la0}:")
chk = [f"v_max3_u32 v56, v{vml}, v{vml+1}, v{vO}"] + [f"v_max3_u32 v56, v56, v{vO+1+2*i}, v{vO+2+2*i}" for i in range(7)] + [f"v_max_u32 v56, v56, v{vO+15}"]
for s in range(4):
    for t in range(2):
        c = "0" if s == 0 else vq(vDy+4*t)
        A(f"v_mfma_f32_16x16x32_bf16 {vq(vDy+4*t)}, {vq(vO+4*s)}, {aq(aWO+(t*4+s)*4)}, {c}")
        for _ in range(2):
            if chk: A(chk.pop(0))
A(f"v_cmp_eq_u32 vcc, -1, v56\ns_cbranch_vccz {laok}")
if opt("alight", 0):
    lal = lab("al")
    A(f"{lal}:\ns_sub_u32 s{sBUD}, s{sBUD}, 1\ns_cbranch_scc1 L_agive")
    if opt("asleep", 1): A(f"s_sleep {opt('asleep', 1)}")
    A(f"buffer_load_dwordx2 v[{vml}:{vml+1}], v{vMLad}, {srd(rWS)}, s{sMLget} offen sc1")
    A(f"""s_waitcnt vmcnt(0)
v_max_u32 v56, v{vml}, v{vml+1}
v_cmp_eq_u32 vcc, -1, v56
s_cbranch_vccnz {lal}
s_branch {la}
L_agive:
s_mov_b32 s{sBUD}, 0""")
else: retry(la)
A(f"{laok}:")
stamp(1)
if W12PF == 1 and not IN12:
    with only("eq", sLAYER, 0): pf_w12(62, 63)
A(f"""
v_max_f32_dpp v57, v{vml}, v{vml} quad_perm:[1,0,3,2] {DPPF}
v_max_f32_dpp v57, v57, v57 quad_perm:[2,3,0,1] {DPPF}
v_mov_b32 v58, v57
v_permlane16_swap_b32 v57, v58
v_max_f32 v57, v57, v58
v_mov_b32 v58, v57
v_permlane32_swap_b32 v57, v58
v_max_f32 v57, v57, v58
v_sub_f32 v57, v{vml}, v57
v_exp_f32 v57, v57
v_mul_f32 v58, v57, v{vml+1}
v_mul_f32_dpp v60, v57, v{vDy} quad_perm:[0,0,0,0] {DPPF}
v_mul_f32_dpp v61, v57, v{vDy+4} quad_perm:[0,0,0,0] {DPPF}
v_add_f32_dpp v58, v58, v58 quad_perm:[1,0,3,2] {DPPF}
v_fmac_f32_dpp v60, v57, v{vDy+1} quad_perm:[1,1,1,1] {DPPF}
v_fmac_f32_dpp v61, v57, v{vDy+5} quad_perm:[1,1,1,1] {DPPF}
v_add_f32_dpp v58, v58, v58 quad_perm:[2,3,0,1] {DPPF}
v_fmac_f32_dpp v60, v57, v{vDy+2} quad_perm:[2,2,2,2] {DPPF}
v_fmac_f32_dpp v61, v57, v{vDy+6} quad_perm:[2,2,2,2] {DPPF}
v_mov_b32 v59, v58
v_fmac_f32_dpp v60, v57, v{vDy+3} quad_perm:[3,3,3,3] {DPPF}
v_fmac_f32_dpp v61, v57, v{vDy+7} quad_perm:[3,3,3,3] {DPPF}
v_permlane16_swap_b32 v58, v59
v_add_f32 v58, v58, v59
v_permlane32_swap_b32 v60, v61
v_mov_b32 v59, v58
v_add_f32 v60, v60, v61
v_permlane32_swap_b32 v58, v59
v_mov_b32 v61, v60
v_add_f32 v58, v58, v59
v_permlane16_swap_b32 v60, v61
v_rcp_f32 v58, v58
v_add_f32 v60, v60, v61
v_mul_f32 v60, v60, v58
ds_write_b32 v{vREDA}, v60
s_waitcnt lgkmcnt(0)
s_barrier""")
ly, ly2 = lab("y"), lab("y2")
A(f"s_cmp_lg_u32 s{sw}, 0\ns_cbranch_scc1 {ly}")
A(f"""
ds_read_b128 v[28:31], v{vRED} offset:{REDA-RED1}
s_waitcnt lgkmcnt(0)
v_add_f32 v28, v28, v29
v_add_f32 v30, v30, v31
v_add_f32 v28, v28, v30""")
pack_pairs(28, 29)
exec_set(0x55555555, 0)
A(f"buffer_store_dword v28, v{vPAIR}, {srd(rWS)}, s{sYpub} offen sc1")
exec_all()
A(f"s_branch {ly2}\n{ly}:\ns_sleep 2\n{ly2}:")
stamp(2)
def gather(s0, s1, lp, so=None):
    lg, lok, lchk, lo = lab(lp), lab(lp + "ok"), lab(lp + "ck"), lab(lp + "o")
    A(f"{lg}:")
    A(f"buffer_load_dwordx4 v[32:35], v{vGad}, {srd(rWS)}, s{s0} offen sc1")
    A(f"buffer_load_dwordx4 v[36:39], v{vGad}, {srd(rWS)}, s{s1} offen sc1")
    if so is not None:
        A(f"s_cmp_eq_u32 s{sw}, s{skq}\ns_cbranch_scc1 {lo}")
    A(f"""s_waitcnt vmcnt(1)
v_mfma_f32_16x16x32_bf16 v[40:43], {vq(vSEL)}, v[32:35], {vq(vX)}
s_waitcnt vmcnt(0)
v_mfma_f32_16x16x32_bf16 v[40:43], {vq(vSEL)}, v[36:39], v[40:43]""")
    if so is not None:
        A(f"s_nop 6\ns_branch {lchk}\n{lo}:\ns_add_u32 s3, s{so}, 4096")
        A(f"buffer_load_dwordx4 v[44:47], v{vGad}, {srd(rWS)}, s{so} offen sc1")
        A(f"buffer_load_dwordx4 v[48:51], v{vGad}, {srd(rWS)}, s3 offen sc1")
        A(f"""s_waitcnt vmcnt(3)
v_mfma_f32_16x16x32_bf16 v[40:43], {vq(vSEL)}, v[32:35], {vq(vX)}
s_waitcnt vmcnt(2)
v_mfma_f32_16x16x32_bf16 v[40:43], {vq(vSEL)}, v[36:39], v[40:43]
s_waitcnt vmcnt(1)
v_mfma_f32_16x16x32_bf16 v[40:43], {vq(vSEL2)}, v[44:47], v[40:43]
s_waitcnt vmcnt(0)
v_mfma_f32_16x16x32_bf16 v[40:43], {vq(vSEL2)}, v[48:51], v[40:43]""")
    A(f"{lchk}:")
    A(f"v_cmp_u_f32 vcc, v40, v40\ns_cbranch_vccz {lok}")
    if opt("gsleep", 0): A(f"s_sleep {opt('gsleep', 0)}")
    retry(lg)
    A(f"{lok}:")
    A(f"v_cvt_pk_bf16_f32 v{vXP}, v40, v41\nv_cvt_pk_bf16_f32 v{vXP+1}, v42, v43")
def w12_burst():
    A(f"""
s_mul_i32 s{sT2}, s{sw}, {128*3584}
s_mul_i32 s3, s{sg}, 448
s_add_u32 s{sT2}, s{sT2}, s3
s_lshl_b32 s3, s{sjf}, 5
s_add_u32 s{sT2}, s{sT2}, s3""")
    for i in range(4): dma(vW1o, rW1, sT2, sKm, 8192 + 1024*i, i*32*3584, "W1", WPOL)
    A(f"""
s_mul_i32 s{sT2}, s{sg}, {224*1024}
s_lshl_b32 s3, s{sj}, 6
s_add_u32 s{sT2}, s{sT2}, s3
s_lshl_b32 s3, s{sw}, 14
s_add_u32 s{sT2}, s{sT2}, s3
s_lshl_b32 s{sT3}, s{sw}, 10""")
    for i in range(4): dma(vW2o, rW2, sT2, sT3, LW2 + 4096*i, i*64*1024, "W2", WPOL)
    return 8
l1, l2 = lab("b"), lab("b")
if CSPLIT:
    A(f"s_cmp_lg_u32 s{sCEN}, 0\ns_cbranch_scc1 L_cen2\nL_cen2_back:")
if IN12: A(f"s_sleep {SLEEP_B}")
else:
    A(f"s_cmp_lg_u32 s{sLAYER}, 0\ns_cbranch_scc1 {l1}")
    w12_burst()
    A(f"s_sleep {opt('sb0', 6)}\ns_branch {l2}\n{l1}:\ns_sleep {SLEEP_B}\n{l2}:")
gather(sYget, sYget1, "gb", so=sYo)
stamp(3)
NB = 0
def w1_land():
    with only("eq", sLAYER, 0):
        A(f"s_waitcnt vmcnt({4+NB})")
        tr_reads(aW1, vT1, 4, 1, 1024, 0, 128, base=8192)
lb = lab("nof")
A(f"s_cmp_ge_u32 s{sjf}, 14")
xproc(aW1, 1, 0, 32, skip_label=lb, pre=None if IN12 else w1_land)
A(f"{lb}:\ns_waitcnt vmcnt({NB}) lgkmcnt(0)\ns_barrier")
lh = lab("h")
A(f"s_cmp_lg_u32 s{sw}, 0\ns_cbranch_scc1 {lh}\ns_cmp_ge_u32 s{sjf}, 14\ns_cbranch_scc1 {lh}")
ln_final(0, 32)
A(f"""
v_mul_f32 v29, {f2u(-LOG2E):#x}, v28
v_exp_f32 v29, v29
v_add_f32 v29, 1.0, v29
v_rcp_f32 v29, v29
v_mul_f32 v28, v28, v29""")
pack_pairs(28, 29)
exec_set(0x5555, 0)
pub_store(f"buffer_store_dword v28, v{vPAIR}, {srd(rWS)}, s{sHpub} offen")
exec_all()
A(f"{lh}:")
if PROF != 2: stamp(4)
ld, ldok, ldsk = lab("pd"), lab("pdok"), lab("pdsk")
A(f"s_cmp_lt_u32 s{sw}, 2\ns_cbranch_scc1 {ldsk}")
if not IN12:
    A(f"s_cmp_lg_u32 s{sLAYER}, 0\ns_cbranch_scc1 {ld}")
    tr_reads(aW2, vT2, 7, 1, 2048, 0, 256)
    A("s_waitcnt lgkmcnt(0)")
A(f"{ld}:")
for s in range(7): A(f"buffer_load_dwordx4 {vq(28+4*s)}, v{vHad}, {srd(rWS)}, s{sHget} offen offset:{64*s} sc1")
for s in range(7):
    A(f"s_waitcnt vmcnt({6-s})")
    A(f"v_mfma_f32_16x16x32_bf16 v[56:59], {aq(aW2+4*s)}, {vq(28+4*s)}, {'0' if s == 0 else 'v[56:59]'}")
A(f"v_cmp_u_f32 vcc, v56, v56\ns_cbranch_vccz {ldok}")
retry(ld)
A(f"{ldok}:")
A("v_cvt_pk_bf16_f32 v56, v56, v57\nv_cvt_pk_bf16_f32 v57, v58, v59")
exec_set(0x00010001, 0x00010001)
A(f"buffer_store_dwordx2 v[56:57], v{vZpub}, {srd(rWS)}, s{sZpub} offen sc1")
exec_all()
A(f"{ldsk}:")
stamp(5)
A(f"s_cmp_lg_u32 s{sLAYER}, 0\ns_cbranch_scc1 L_final")
A("s_barrier")
A(f"s_sleep {SLEEP_E}")
gather(sZget, sZget1, "ge", so=sZo)
stamp(6)
A(f"s_add_u32 s{rWS}, s{rWS}, {LS}\ns_addc_u32 s{rWS+1}, s{rWS+1}, 0\ns_mov_b32 s{rWS+2}, {WS_BYTES-LS:#x}\ns_mov_b32 s{sLAYER}, 1")
qproj(False)
A(f"s_mov_b32 s{skq}, 99")
stamp(7)
q_addr()
A(f"v_accvgpr_read_b32 v56, a{aCS}\nv_accvgpr_read_b32 v57, a{aCS+1}\nv_accvgpr_read_b32 v59, a{aQBw}")
lg, lgok = lab("pg"), lab("pgok")
A(f"{lg}:")
q_loads(44, sQget)
A("s_waitcnt vmcnt(0)")
sum4(44)
A(f"v_cmp_u_f32 vcc, v44, v45\ns_cbranch_vccz {lgok}")
retry(lg)
A(f"{lgok}:")
stamp(8)
q_finish(56)
A("s_waitcnt lgkmcnt(0)")
qk()
softmax()
ex = shifts(1) + shifts(2) + shifts(3) + lsum_ops()
for t in range(4):
    if t == 2:
        while ex: A(ex.pop(0))
        A("s_waitcnt lgkmcnt(0)\ns_barrier")
        ex = fw_ops()
    for jd in range(8):
        pv_mfma(t, jd)
        for _ in range(2):
            if ex: A(ex.pop(0))
while ex: A(ex.pop(0))
stamp(9)
flush_stamps(16, 10)
A("s_branch L_comb")
A("L_final:")
A(f"s_or_b32 s3, s{sg}, s{sj}\ns_cmp_lg_u32 s3, 0\ns_cbranch_scc1 L_done")
A(f"s_sleep {SLEEP_F}")
gather(sZget, sZget1, "gf")
A(f"""
s_lshl_b32 s3, s{sb}, 10
s_lshl_b32 s{sT0}, s{sw}, 8
s_add_u32 s3, s3, s{sT0}
s_lshl_b32 s{sT0}, s{sw}, 9
s_add_u32 s{sT0}, s{sT0}, {XB}
s_sub_u32 s3, s3, s{sT0}
v_add_u32 v30, s3, v{vXBw}""")
exec_set(0xffffffff, 0)
A(f"global_store_dwordx2 v30, v[{vXP}:{vXP+1}], {sp(sOUT)}")
with only("eq", sb, 0):
    A(f"v_mov_b32 v30, {EPO}\nv_mov_b32 v31, s{sTAG0}")
    exec_set(1, 0)
    A(f"global_store_dword v30, v31, {sp(sWS)} sc1")
exec_all()
if CSPLIT:
    A("s_branch L_done\nL_cen2:")
    cen_loads(True)
    A("s_waitcnt vmcnt(0)")
    for i in range(4):
        A(f"v_xor_b32 v{32+2*i}, s{sTAG0}, v{32+2*i}\nv_xor_b32 v{33+2*i}, s{sTAG1}, v{33+2*i}")
    A(f"""
v_or3_b32 v40, v33, v35, v37
v_or3_b32 v42, v32, v34, v36
v_or_b32 v40, v40, v39
v_and_b32 v40, -16, v40
v_or3_b32 v40, v40, v42, v38
v_cmp_ne_u32 vcc, 0, v40
s_cbranch_vccz L_cen2_ok""")
    retry("L_cen2")
    A(f"L_cen2_ok:\ns_mov_b32 s{sCEN}, 0\ns_branch L_cen2_back")
A("L_done:")
if PROF:
    stamp(6)
    flush_stamps(32, 7)
    A(f"""
s_lshl_b32 s3, s2, 2
s_add_u32 s3, s3, s{sw}
s_lshl_b32 s3, s3, 8
s_add_u32 s3, s3, {PROF_OFF}
v_lshlrev_b32 v30, 2, v{vL}
v_add_u32 v30, s3, v30
global_store_dword v30, v{vPROF}, {sp(sWS)}""")
A("L_end:\ns_endpgm")
A.L.extend(OOL)
A.raw('.section .rodata,"a"'); A.raw(".p2align 6"); A.raw(f".amdhsa_kernel {NAME}_kernel")
for l in ["next_free_vgpr 512", "next_free_sgpr 102", "accum_offset 256", "group_segment_fixed_size 0", "kernarg_size 88",
          "user_sgpr_count 2", "user_sgpr_kernarg_segment_ptr 1", "system_sgpr_workgroup_id_x 1"]:
    A.raw("  .amdhsa_" + l)
A.raw(".end_amdhsa_kernel")
open(out, "w").write("\n".join(H) + "\n" + A.text())
print("instrs", len(A.L), "nops inserted", A.nopcount, file=sys.stderr)
```

```python
import sys, math, struct
sys.path.insert(0, "gen")
from asmlib import Asm

NAME = "interleave_layers__gqa_block_cached__dense_activation_silu__decode"
out = sys.argv[1]
O = dict(kv.split("=") for kv in sys.argv[2:])
def opt(k, d): return type(d)(O.get(k, d))
PROF = opt("prof", 0); SWZ = opt("swz", 13)
SLEEP_B = opt("sb", 14); SLEEP_E = opt("se", 14); SLEEP_F = opt("sf", 8)
FORCE_SLOW = opt("slow", 0); EXP = opt("exp", "")
POL = {"nt": " nt", "none": "", "sc1": " sc1"}
PFO = POL[opt("pfo", "none")]; PF12 = POL[opt("pf12", "none")]; PFQ = POL[opt("pfq", "none")]; WPOL = POL[opt("wpol", "none")]
CW = opt("cw", 3); DROP = opt("drop", "").split(","); CLRP = " sc1" + POL[opt("clrpol", "none")]
W12PF = opt("w12pf", 1)
INO = opt("ino", 0); IN12 = opt("in12", 0)
WPOS0 = opt("wpos0", 20); WSTEP = opt("wstep", 2); MBG = opt("mbg", 1)
def f2u(x): return struct.unpack("<I", struct.pack("<f", x))[0]
LOG2E = 1.4426950408889634
QSCALE = LOG2E / math.sqrt(128.0)

ML, HS, YS, ZS, OS = 16384, 24576, 32768, 49152, 65536
QP = 65536 + 262144
LS = QP + 131072
EPO = 2 * LS; FLG = EPO + 1024; CS = FLG + 3072
WS_BYTES = CS + 65536
PROF_OFF = 16 << 20
LWQ = 0; KST = 16384; LW2 = LWQ
XB = KST + 4 * 32768; RED0 = XB + 2048; RED1 = RED0 + 1024; REDA = RED0 + 2048; ST0 = RED0 + 2560; MB = RED0 + 2688; OB = RED0 + 3072
QB = OB; XQ = RED0
LDS_BYTES = OB + 8192
assert LDS_BYTES <= 163840
sX, sK, sV, sWQ, sWO, sW1, sW2, sOUT, sWS = 4, 6, 8, 10, 12, 16, 18, 20, 24
rK, rV, rWQ, rWO, rW1, rW2, rWS = 28, 32, 36, 40, 44, 48, 52
sg, sb, sj, sw, sFAST, sLAYER, sBUD = 56, 57, 58, 59, 60, 61, 62
sSELLO, sSELHI = 63, 64
sQpub, sQget, sMLpub, sMLget, sHpub, sHget, sYpub, sYget, sZpub, sZget, sOpub, sOget = range(65, 77)
sYget1, sZget1 = 77, 78
sT0, sT1, sT2, sT3 = 26, 27, 14, 15
sVb, sKm, sOclr = 79, 80, 81
sTAG0, sTAG1 = 22, 23
sjf, sU, skq = 98, 99, 21 + 80
sCEN = 11
sYo, sZo = 4, 5
sSTAMP = 82
def srd(r): return f"s[{r}:{r+3}]"
def sp(r): return f"s[{r}:{r+1}]"
vL, vXBw, vXBr, vRED, vREDA, vQP, vMLad, vGad, vHad, vQad, vPAIR, vOBw = range(0, 12)
vSEL = 12; vX = 16
vOBr, vOpub, vMBw, vMBr, vST, vZpub = 20, 21, 22, 23, 24, 25
vVo = 26; vXQw = 27
aCS = 236; aXQr = 238; aQBw = 239
vQ = 28; vD0, vD1 = 44, 48; vROT = 52; vACC = 64; vR = 96
vPROF = 255
vW1o, vW2o, vT1, vT2, vTrO = 224, 225, 226, 227, 228
vSEL2 = 232
def vq(r, n=4): return f"v[{r}:{r+n-1}]"
def aq(r, n=4): return f"a[{r}:{r+n-1}]"
aK, aWQ, aWO, aW1, aW2 = 0, 128, 160, 192, 208
DUMMY = "a[252:255]"
Z1W = opt("z1w", 0)
aW2b = [144, 148, 152, 156, 240, 244, 248]

A = Asm()
uid = [0]
def lab(p):
    uid[0] += 1
    return f"L_{p}{uid[0]}"
def exec_set(lo, hi): A(f"s_mov_b32 exec_lo, {lo:#x}\ns_mov_b32 exec_hi, {hi:#x}")
def exec_all(): A("s_mov_b64 exec, -1")
def sreg(i): return sSTAMP + 2*i if i < 8 else {8: 0, 9: 6}[i]
def stamp(i):
    if PROF: A(f"s_mem{'time' if PROF >= 4 else 'realtime'} s[{sreg(i)}:{sreg(i)+1}]")
def flush_stamps(base, n):
    if not PROF: return
    A("s_waitcnt lgkmcnt(0)")
    for i in range(n): A(f"v_writelane_b32 v{vPROF}, s{sreg(i)}, {base+i}")
def retry(loop):
    A(f"s_sub_u32 s{sBUD}, s{sBUD}, 1\ns_cbranch_scc0 {loop}\ns_mov_b32 s{sBUD}, 0")
def pub_store(ins):
    a, b = lab("ps"), lab("pe")
    A(f"s_cmp_eq_u32 s{sFAST}, 0\ns_cbranch_scc1 {a}")
    A(ins, cond=True)
    A(f"s_branch {b}\n{a}:")
    A(ins + " sc1", cond=True)
    A(f"{b}:")
class only:
    def __init__(self, cc, reg, val):
        self.neg = {"eq": "lg", "lg": "eq", "lt": "ge", "ge": "lt"}[cc]; self.reg = reg; self.val = val
    def __enter__(self):
        self.l = lab("sk")
        A(f"s_cmp_{self.neg}_u32 s{self.reg}, {self.val}\ns_cbranch_scc1 {self.l}")
    def __exit__(self, *a): A(f"{self.l}:")
OOL = []
class ool:
    def __init__(self, cc, reg, val): self.cc = cc; self.reg = reg; self.val = val
    def __enter__(self):
        self.l = lab("oo"); self.b = lab("ob")
        A(f"s_cmp_{self.cc}_u32 s{self.reg}, {self.val}\ns_cbranch_scc1 {self.l}")
        self.save = A.L; A.L = []
        A(f"{self.l}:\ns_nop 7")
    def __exit__(self, *a):
        A(f"s_nop 4\ns_branch {self.b}")
        OOL.extend(A.L); A.L = self.save
        A(f"{self.b}:")
def mksrd(r, p, nbytes):
    A(f"s_mov_b32 s{r}, s{p}\ns_and_b32 s{r+1}, s{p+1}, 0xffff\ns_mov_b32 s{r+2}, {nbytes:#x}\ns_mov_b32 s{r+3}, 0x20000")
def dma(vo, r, sbase, m0reg, m0add, soffadd, tag, pol, cond=False):
    A(f"s_add_u32 m0, s{m0reg}, {m0add}\ns_add_u32 s3, s{sbase}, {soffadd}")
    A(f"buffer_load_dwordx4 v{vo}, {srd(r)}, s3 offen{pol} lds", tag=tag, cond=cond)
def tr_reads(adst, vbase, steps, tiles, sstep, tstep, second, base=0):
    for t in range(tiles):
        for s in range(steps):
            d = adst + (t*steps + s)*4
            A(f"ds_read_b64_tr_b16 a[{d}:{d+1}], v{vbase} offset:{base + s*sstep + t*tstep}")
            A(f"ds_read_b64_tr_b16 a[{d+2}:{d+3}], v{vbase} offset:{base + s*sstep + t*tstep + second}")
def pack_pairs(v, t):
    A(f"v_mov_b32_dpp v{t}, v{v} quad_perm:[1,0,3,2] row_mask:0xf bank_mask:0xf\nv_cvt_pk_bf16_f32 v{v}, v{v}, v{t}")
DPPF = "row_mask:0xf bank_mask:0xf"

hdr = open(f"cdna_kernels/{NAME}.s.ref").read().split("\n")
H = [l for l in hdr if l.startswith(";") and "@launch" not in l and not l.startswith("; Override") and not l.startswith("; grid=ceil")]
H.append(f"; @launch grid=(256,1,1) block=(256,1,1) lds={LDS_BYTES}")
A.raw('.amdgcn_target "amdgcn-amd-amdhsa--gfx950"')
A.raw(".text"); A.raw(f".globl {NAME}_kernel"); A.raw(".p2align 8"); A.raw(f".type {NAME}_kernel,@function")
A.raw(f"{NAME}_kernel:")

tn, tq = 31, 32
vKo = vR; vKr = vR + 4; vWa = vR + 8; vTa = vR + 9
vEP = vR + 10; vXr = vR + 12; vX0 = vR + 16; vX1 = vR + 20; vXA0 = vACC
stamp(0)
A(f"""
s_cmp_ge_u32 s2, 256
s_cbranch_scc1 L_end
s_load_dwordx16 s[4:19], s[0:1], 0
s_load_dwordx2 s[20:21], s[0:1], 64
s_load_dwordx2 s[24:25], s[0:1], 80
v_lshrrev_b32 v30, 6, v0
v_and_b32 v{vL}, 63, v0
s_and_b32 s{sg}, s2, 7
v_readfirstlane_b32 s{sw}, v30
s_lshr_b32 s{sU}, s2, 3               ; jj
s_lshr_b32 s{sb}, s{sU}, 4
s_and_b32 s{sj}, s{sU}, 15
s_and_b32 s3, s{sj}, 6
s_cmp_eq_u32 s3, 6
s_cselect_b32 s3, 8, 0
s_xor_b32 s{sjf}, s{sj}, s3
v_and_b32 v{tn}, 15, v{vL}
v_lshrrev_b32 v{tq}, 4, v{vL}
s_lshl_b32 s{sT0}, s2, 2
s_add_u32 s{sT0}, s{sT0}, s{sw}
s_mul_i32 s{sT0}, s{sT0}, {SWZ}
s_and_b32 s{sT0}, s{sT0}, 31      ; r
s_lshl_b32 s{sT1}, s{sb}, 3
s_add_u32 s{sT1}, s{sT1}, s{sg}   ; bg
s_lshl_b32 s{sVb}, s{sT1}, 21
s_lshl_b32 s3, s{sj}, 17
s_add_u32 s{sVb}, s{sVb}, s3
s_lshl_b32 s3, s{sw}, 15
s_add_u32 s{sVb}, s{sVb}, s3
s_add_u32 s{sKm}, s3, {KST}
s_lshl_b32 s3, s{sT0}, 10
s_add_u32 s{sVb}, s{sVb}, s3
v_lshlrev_b32 v{vVo}, 4, v{vL}
v_mov_b32 v{vKo}, v{vVo}
v_xor_b32 v{vKo+1}, 64, v{vVo}
v_xor_b32 v{vKo+2}, 128, v{vVo}
v_xor_b32 v{vKo+3}, 192, v{vVo}
v_lshrrev_b32 v35, 3, v{vL}
v_and_b32 v36, 7, v{vL}
v_lshlrev_b32 v36, 4, v36
v_lshl_add_u32 v{vWa}, v35, 13, v36
s_and_b32 s{sT1}, s{sU}, 3            ; kq
s_lshl_b32 s{sBUD}, s{sT1}, 20
s_lshl_b32 s3, s{sw}, 18
s_add_u32 s{sBUD}, s{sBUD}, s3
s_lshl_b32 s3, s{sg}, 10
s_add_u32 s{sBUD}, s{sBUD}, s3
s_lshr_b32 s{sT0}, s{sU}, 2           ; cb
s_lshl_b32 s3, s{sT0}, 7
s_add_u32 s{sBUD}, s{sBUD}, s3
s_lshl_b32 s{sLAYER}, s{sw}, 12
s_mov_b32 s{skq}, s{sT1}
s_lshl_b32 s{sQpub}, s{sg}, 13
s_lshl_b32 s3, s{sT0}, 8
s_add_u32 s{sQpub}, s{sQpub}, s3
s_lshl_b32 s3, s{sT1}, 11
s_add_u32 s{sQpub}, s{sQpub}, s3
; x addresses
v_and_b32 v33, 1, v{tq}
v_lshlrev_b32 v33, 3, v33
v_lshl_add_u32 v33, v{tn}, 4, v33      ; 16n+8(q&1)
s_lshl_b32 s3, s{sb}, 10
s_lshl_b32 s{sT0}, s{sw}, 8
s_add_u32 s3, s3, s{sT0}
v_add_u32 v34, s3, v33
v_lshrrev_b32 v35, 5, v{vL}
v_lshlrev_b32 v35, 10, v35
v_xor_b32 v34, v34, v35
v_mov_b32 v37, {EPO}
s_lshl_b32 s{sU}, s{sU}, 2
s_add_u32 s{sU}, s{sU}, s{sw}          ; u = jj*4+w
s_waitcnt lgkmcnt(0)
""")
def scalars():
    A(f"""
s_mov_b32 s{sSELLO}, 0x05040100
s_mov_b32 s{sSELHI}, 0x07060302
s_lshl_b32 s{sT1}, s{sg}, 1
s_add_u32 s{sT1}, s{sT1}, s{sb}          ; gb
s_lshl_b32 s{sQget}, s{sb}, 3
s_add_u32 s{sQget}, s{sQget}, s{sg}
s_lshl_b32 s{sQget}, s{sQget}, 13
s_lshl_b32 s3, s{sw}, 9
s_add_u32 s{sQget}, s{sQget}, s3
s_add_u32 s{sQget}, s{sQget}, {QP}
s_lshl_b32 s{sMLget}, s{sT1}, 9
s_add_u32 s{sHget}, s{sMLget}, {HS}
s_add_u32 s{sMLget}, s{sMLget}, {ML}
s_lshl_b32 s3, s{sj}, 5
s_add_u32 s{sT2}, s{sMLget}, s3
s_lshl_b32 s3, s{sjf}, 5
s_add_u32 s{sHpub}, s{sHget}, s3
s_lshl_b32 s3, s{sj}, 3
s_add_u32 s{sMLpub}, s{sMLget}, s3
s_lshl_b32 s3, s{sw}, 7
s_add_u32 s{sMLget}, s{sMLget}, s3
s_lshl_b32 s{sOget}, s{sT1}, 14
s_add_u32 s{sOget}, s{sOget}, {OS}
s_lshl_b32 s3, s{sj}, 10
s_add_u32 s{sOclr}, s{sOget}, s3
s_lshl_b32 s3, s{sj}, 4
s_add_u32 s{sOpub}, s{sOget}, s3
s_lshl_b32 s3, s{sw}, 10
s_add_u32 s{sOpub}, s{sOpub}, s3
s_lshl_b32 s3, s{sw}, 12
s_add_u32 s{sOget}, s{sOget}, s3
s_lshl_b32 s{sYget}, s{sb}, 13
s_add_u32 s{sYget}, s{sYget}, {YS}
s_add_u32 s{sYget1}, s{sYget}, 4096
s_add_u32 s{sZget}, s{sYget}, {ZS-YS}
s_add_u32 s{sZget1}, s{sZget}, 4096
s_lshl_b32 s3, s{sg}, 10
s_add_u32 s{sYpub}, s{sYget}, s3
s_lshl_b32 s3, s{sj}, 6
s_add_u32 s{sYpub}, s{sYpub}, s3
s_add_u32 s{sZpub}, s{sYpub}, {ZS-YS}
""")
def clears():
    A(f"""
v_mul_u32_u24 v47, {LS}, v{tq}
v_mov_b32 v45, s{sYpub}
v_mov_b32 v46, s{sT2}
v_subrev_u32 v46, 64, v46
v_cmp_le_u32 vcc, 4, v{tn}
v_cndmask_b32 v45, v45, v46, vcc
v_mov_b32 v46, s{sHpub}
v_subrev_u32 v46, 96, v46
v_cmp_le_u32 vcc, 6, v{tn}
v_cndmask_b32 v45, v45, v46, vcc
v_mov_b32 v46, s{sYpub}
v_subrev_u32 v46, 128, v46
v_cmp_le_u32 vcc, 8, v{tn}
v_cndmask_b32 v45, v45, v46, vcc
v_mov_b32 v46, s{sZpub}
v_subrev_u32 v46, 192, v46
v_cmp_le_u32 vcc, 12, v{tn}
v_cndmask_b32 v45, v45, v46, vcc
v_lshl_add_u32 v45, v{tn}, 4, v45
v_add_u32 v45, v45, v47
s_add_u32 s3, s{sQpub}, {CS}
v_lshlrev_b32 v46, 4, v{tn}
v_add_u32 v47, s3, v46
v_cmp_le_u32 vcc, 32, v{vL}
v_cndmask_b32 v45, v45, v47, vcc
v_and_b32 v47, 1, v{tq}
v_lshl_add_u32 v46, v47, 16, v46
v_lshrrev_b32 v47, 1, v{tq}
v_mul_u32_u24 v47, {LS}, v47
v_add_u32 v46, v46, v47
s_add_u32 s{sT2}, s{sQpub}, {QP}
v_mov_b32 v48, -1
v_mov_b32 v49, -1
v_mov_b32 v50, -1
v_mov_b32 v51, -1
s_add_u32 s3, s{sOclr}, {LS}
""")
    exec_set(0xffffffff, 0xffff)
    A(f"buffer_store_dwordx4 v[48:51], v45, {srd(rWS)}, 0 offen{CLRP}", cond=True)
    exec_all()
    A(f"buffer_store_dwordx4 v[48:51], v46, {srd(rWS)}, s{sT2} offen{CLRP}", cond=True)
    A(f"buffer_store_dwordx4 v[48:51], v{vVo}, {srd(rWS)}, s{sOclr} offen{CLRP}", cond=True)
    A(f"buffer_store_dwordx4 v[48:51], v{vVo}, {srd(rWS)}, s3 offen{CLRP}", tag="clr", cond=True)
def tags():
    A(f"""
v_readfirstlane_b32 s{sTAG0}, v{vEP}
v_readfirstlane_b32 s{sTAG1}, v{vEP+1}
s_add_u32 s{sTAG0}, s{sTAG0}, 1
s_andn2_b32 s{sTAG1}, s{sTAG1}, 15""")
def flag():
    with (ool if opt("ool", 0) else only)("eq", sw, CW):
        A.vwait("clr")
        tags()
        A(f"""
s_getreg_b32 s3, hwreg(HW_REG_XCC_ID, 0, 4)
s_or_b32 s3, s3, s{sTAG1}
v_mov_b32 v46, s{sTAG0}
v_mov_b32 v47, s3
s_lshl_b32 s3, s{sb}, 3
s_add_u32 s3, s3, s{sg}
s_lshl_b32 s3, s3, 4
s_add_u32 s3, s3, s{sj}
s_lshl_b32 s3, s3, 3
s_add_u32 s3, s3, {FLG}
v_mov_b32 v45, 0""")
        exec_set(1, 0)
        A(f"buffer_store_dwordx2 v[46:47], v45, {srd(rWS)}, s3 offen sc1", cond=True)
        exec_all()
def kdma(n):
    A(f"s_add_u32 m0, s{sKm}, {n*1024}\ns_xor_b32 s{sT0}, s{sVb}, {n*1024}")
    A(f"buffer_load_dwordx4 v{vKo+(n&3)}, {srd(rK)}, s{sT0} offen{POL[opt('kvpol','nt')]} lds", tag=f"K{n}")
def kread(k):
    A.vwait(f"K{4*k+3}")
    for s in range(4): A(f"ds_read_b128 {aq(aK+16*k+4*s)}, v{vKr+s} offset:{k*4096}")
def vload(n):
    A(f"s_xor_b32 s{sT1}, s{sVb}, {n*1024}")
    A(f"buffer_load_dwordx4 {vq(vR+32+4*n)}, v{vVo}, {srd(rV)}, s{sT1} offen{POL[opt('kvpol','nt')]}", tag=f"V{n}")
base = [("K", n) for n in range(32)] + [("V", n) for n in range(32)]
wl = []
if IN12: wl += [("W1", i) for i in range(4)] + [("W2", i) for i in range(4)]
if INO: wl = [("WO", i) for i in range(8)] + wl if opt("worder", 0) == 0 else wl + [("WO", i) for i in range(8)]
pend = []
for kind, n in base:
    pend.append((kind, n))
    pos = n if kind == "K" else 32 + n
    if wl and pos >= WPOS0 and (pos - WPOS0) % WSTEP == 0:
        pend.append(wl.pop(0)); assert pos < 32 + 8*MBG + 7
assert not wl
kr = [0]; allow_kread = [False]; wfirst = [True]
sWOb, sW1b, sW2b = 8, 9, 10
def wdma(kind, n):
    if "w" in DROP:
        if opt("fakew", 0):
            A(f"s_lshl_b32 s3, s{sU}, 12\ns_lshl_b32 s{sWOb}, s{sg}, 19\ns_add_u32 s{sWOb}, s{sWOb}, s3")
            fk = [("WO", i) for i in range(4)] + [("W1", 0), ("W1", 1), ("W2", 0), ("W2", 1)]
            if kind == "WO" and n < 4: A(f"buffer_load_dwordx4 {DUMMY}, v{vVo}, {srd(rWO)}, s{sWOb} offen offset:{1024*n} nt")
            if kind == "W1":
                A(f"s_lshl_b32 s3, s2, 2\ns_add_u32 s3, s3, s{sw}\ns_mul_i32 s3, s3, 1792")
                if n < 2: A(f"buffer_load_dwordx4 {DUMMY}, v{vVo}, {srd(rW1)}, s3 offen offset:{768*n} nt")
                else: A(f"buffer_load_dwordx4 {DUMMY}, v{vVo}, {srd(rW2)}, s3 offen offset:{768*(n-2)} nt")
        return
    if wfirst[0]:
        wfirst[0] = False
        assert kr[0] >= 4
        A(f"""s_waitcnt lgkmcnt(0)
v_lshrrev_b32 v111, 2, v{vL}
v_and_b32 v112, 3, v{vL}
v_lshlrev_b32 v112, 4, v112
v_lshl_add_u32 v111, v111, 10, v112
v_lshrrev_b32 v112, 1, v{vL}
v_mul_u32_u24 v112, 3584, v112
v_and_b32 v113, 1, v{vL}
v_lshl_add_u32 v112, v113, 4, v112
s_lshl_b32 s{sWOb}, s{sg}, 19
s_lshl_b32 s3, s{sw}, 17
s_add_u32 s{sWOb}, s{sWOb}, s3
s_lshl_b32 s3, s{sj}, 6
s_add_u32 s{sWOb}, s{sWOb}, s3
s_mul_i32 s{sW2b}, s{sg}, {224*1024}
s_add_u32 s{sW2b}, s{sW2b}, s3
s_lshl_b32 s3, s{sw}, 14
s_add_u32 s{sW2b}, s{sW2b}, s3
s_mul_i32 s{sW1b}, s{sw}, {128*3584}
s_mul_i32 s3, s{sg}, 448
s_add_u32 s{sW1b}, s{sW1b}, s3
s_lshl_b32 s3, s{sjf}, 5
s_add_u32 s{sW1b}, s{sW1b}, s3""")
    if kind == "WO": dma(111, rWO, sWOb, sKm, 1024*n, n << 14, f"WO{n}", " nt")
    elif kind == "W1":
        with only("lt", sjf, 14): dma(112, rW1, sW1b, sKm, 8192 + 1024*n, n*32*3584, "W1", " nt", cond=True)
    elif n < 3: dma(111, rW2, sW2b, sKm, 12288 + 1024*n, n*64*1024, "W2", " nt")
    else:
        with only("lt", sw, 2): dma(111, rW2, sW2b, sKm, 12288 + 1024*n, n*64*1024, "W2", " nt", cond=True)
def stream(k=1, upto=None):
    if upto is not None:
        nxt = [n if kd == "K" else 32 + n for kd, n in pend if kd in "KV"][0]
        if nxt > upto: return
    while pend and (k > 0 or upto is not None):
        kind, n = pend.pop(0)
        if kind[0] == "W":
            wdma(kind, n); continue
        kdma(n) if kind == "K" else vload(n)
        pos = n if kind == "K" else 32 + n
        if PFOPOS > 0 and pos == PFOPOS: pf_wo()
        if allow_kread[0]:
            while kr[0] < 8 and 4*kr[0] + 3 + opt("klag", 16) <= pos:
                kread(kr[0]); kr[0] += 1
        k -= 1
        if upto is not None and pos == upto: break
        if upto is None and k <= 0: break

def pf_wo():
    A(f"s_lshl_b32 s3, s{sU}, 12\ns_lshl_b32 s{sT2}, s{sg}, 19\ns_add_u32 s{sT2}, s{sT2}, s3")
    for i in range(4): A(f"buffer_load_dwordx4 {DUMMY}, v{vVo}, {srd(rWO)}, s{sT2} offen offset:{1024*i}{PFO}")
    for x in range(1, opt("redo", 1)):
        A(f"s_xor_b32 s3, s{sT2}, {[0, 64, 32, 96][x] << 12}")
        for i in range(4): A(f"buffer_load_dwordx4 {DUMMY}, v{vVo}, {srd(rWO)}, s3 offen offset:{1024*i}{PFO}")
PFOPOS = opt('pfopos', -1)
mksrd(rWQ, sWQ, 512*4096*2); mksrd(rK, sK, 1 << 25); mksrd(rWS, sWS, WS_BYTES)
if PFOPOS >= 0: mksrd(rWO, sWO, 4096*512*2)
A(f"global_load_dwordx2 {vq(vEP,2)}, v37, {sp(sWS)} sc1", tag="ep")
with (ool if opt("ool", 0) else only)("eq", sw, CW):
    scalars()
    if "clr" not in DROP: clears()
    else: A.vq.append(("clr", True))
if "wa" not in DROP:
    for i in range(4): dma(vWa, rWQ, sBUD, sLAYER, LWQ + 1024*i, i << 16, f"WA{i}", " nt")
A(f"global_load_dwordx2 {vq(vXr,2)}, v34, {sp(sX)}", tag="x")
if PFOPOS == 0: pf_wo()
stream(opt("k0", 6))
stamp(1)
mksrd(rV, sV, 1 << 25); mksrd(rWO, sWO, 4096*512*2); mksrd(rW1, sW1, 512*1792*2); mksrd(rW2, sW2, 1792*512*2)
if opt("ool", 0): scalars()
else:
    with only("lg", sw, CW): scalars()
A(f"s_mov_b32 s{sLAYER}, 0\ns_mov_b32 s{sBUD}, 400000")
A(f"""
s_lshl_b32 s3, s{sw}, 9
s_add_u32 s3, s3, {XB}
v_add_u32 v{vXBw}, s3, v33
v_lshrrev_b32 v44, 3, v{tn}
v_lshlrev_b32 v44, 8, v44
v_lshl_add_u32 v44, v{tq}, 4, v44
v_add_u32 v{vXBr}, s3, v44
v_lshlrev_b32 v47, 2, v{vL}                ; 4l
v_add_u32 v44, s3, v47
v_mov_b32 v41, 0x3f803f80
ds_write_b32 v44, v41 offset:256
s_lshl_b32 s3, s{sw}, 2
s_add_u32 s{sT1}, s3, {RED1}
v_add_u32 v{vRED}, s{sT1}, v{vVo}
v_lshrrev_b32 v46, 5, v{vL}
v_lshl_add_u32 v46, v46, 4, v{tn}
v_lshlrev_b32 v46, 4, v46
s_add_u32 s{sT1}, s3, {REDA}
v_add_u32 v{vREDA}, s{sT1}, v46
s_add_u32 s{sT1}, s3, {ST0}
v_mov_b32 v{vST}, s{sT1}
v_and_b32 v42, 3, v{vL}                    ; l&3
v_lshlrev_b32 v43, 4, v42
v_add_u32 v{vMBw}, {MB}, v43
v_add_u32 v{vMBw}, s3, v{vMBw}
s_lshl_b32 s3, s{sw}, 8
v_lshlrev_b32 v43, 4, v{tq}                ; 16q
v_add_u32 v{vMBr}, {MB}, v43
v_and_b32 v44, 1, v{tq}
v_lshlrev_b32 v44, 16, v44
v_lshl_add_u32 v{vQP}, v{tn}, 2, v44       ; batch*65536 + 4n
v_lshrrev_b32 v44, 5, v{vL}
v_xor_b32 v44, s{sb}, v44
v_lshlrev_b32 v44, 8, v44
v_add_u32 v44, {XQ}, v44
v_add_u32 v{vXQw}, v44, v33
v_bfe_u32 v44, v{vL}, 2, 1
v_lshlrev_b32 v44, 8, v44
v_add3_u32 v44, v44, v43, 0
v_add_u32 v44, {XQ}, v44
v_accvgpr_write_b32 a{aXQr}, v44
v_lshrrev_b32 v44, 2, v{vL}
v_lshlrev_b32 v44, 6, v44
v_lshl_add_u32 v44, v42, 2, v44
s_lshl_b32 s{sT1}, s{sw}, 4
s_add_u32 s{sT1}, s{sT1}, {QB}
v_add_u32 v44, s{sT1}, v44
v_accvgpr_write_b32 a{aQBw}, v44
v_lshlrev_b32 v44, 4, v{tn}
v_lshl_add_u32 v44, v{tq}, 10, v44
v_add_u32 v{vGad}, s3, v44
v_mov_b32 v{vHad}, v43
v_lshlrev_b32 v44, 4, v42
v_lshl_add_u32 v{vQad}, v{tq}, 6, v44
v_add_u32 v{vQad}, {QB}, v{vQad}
v_lshl_add_u32 v44, v{tq}, 2, v42
v_lshlrev_b32 v{vMLad}, 3, v44
v_lshrrev_b32 v44, 1, v{vL}
v_lshlrev_b32 v{vPAIR}, 2, v44
s_lshl_b32 s3, s{sw}, 11
s_add_u32 s3, s3, {OB}
v_lshlrev_b32 v44, 4, v{tn}
v_add_u32 v{vOBw}, s3, v{vVo}
s_lshl_b32 s3, s{sw}, 9
s_add_u32 s3, s3, {OB}
v_lshl_add_u32 v44, v{tq}, 2, v44
v_add_u32 v{vOBr}, s3, v44
v_lshrrev_b32 v45, 2, v{tn}                ; n>>2
v_lshlrev_b32 v44, 8, v45
v_lshl_add_u32 v44, v42, 2, v44
v_lshl_add_u32 v{vOpub}, v{tq}, 12, v44
s_and_b32 s3, s{sw}, 1
s_lshl_b32 s3, s3, 5
v_lshlrev_b32 v44, 3, v{tq}
v_add_u32 v{vZpub}, s3, v44
{"v_and_b32 v46, 4, v%d" % tn if Z1W else ""}
{"v_lshl_add_u32 v%d, v46, 3, v44" % vZpub if Z1W else ""}
v_mul_u32_u24 v44, 1088, v42
v_lshl_add_u32 v44, v45, 8, v44
v_add_u32 v44, v44, v43
""")
for s in range(4): A(f"v_xor_b32 v46, {64*s}, v44\nv_add_u32 v{vKr+s}, s{sKm}, v46")
A(f"""
v_and_b32 v44, 1, v{tn}
v_lshlrev_b32 v44, 4, v44
v_mov_b32 v46, 0x3f80
v_lshlrev_b32 v46, v44, v46
v_lshrrev_b32 v44, 1, v{tn}
""")
for i in range(4): A(f"v_cmp_eq_u32 vcc, {i}, v44\nv_cndmask_b32 v{vSEL+i}, 0, v46, vcc")
A(f"""
v_lshl_add_u32 v46, v{tq}, 3, v45          ; 8q+r
v_lshlrev_b32 v46, 7, v46
v_lshl_add_u32 v46, v42, 3, v46
s_lshl_b32 s3, s{sw}, 5
v_add_u32 v{vTa}, s3, v46
""")
stream(opt("k1", 2))
if opt("fpos", 12) < 0: flag()

vXP = 28; vXA = 32; vG0 = 48
vS, vSQ, vTm = 30, 31, 56
vMean, vRs = 62, 63
def unpack_x():
    A(f"""
v_lshlrev_b32 v{vX}, 16, v{vXP}
v_and_b32 v{vX+1}, 0xffff0000, v{vXP}
v_lshlrev_b32 v{vX+2}, 16, v{vXP+1}
v_and_b32 v{vX+3}, 0xffff0000, v{vXP+1}""")
def stat_ops():
    o = [f"v_add_f32 v{vS}, v{vX}, v{vX+1}", f"v_mul_f32 v{vSQ}, v{vX}, v{vX}", f"v_add_f32 v{vTm}, v{vX+2}, v{vX+3}",
         f"v_fmac_f32 v{vSQ}, v{vX+1}, v{vX+1}", f"v_add_f32 v{vS}, v{vS}, v{vTm}",
         f"v_fmac_f32 v{vSQ}, v{vX+2}, v{vX+2}", f"v_fmac_f32 v{vSQ}, v{vX+3}, v{vX+3}"]
    for c in ("row_ror:8 " + DPPF, "row_ror:4 " + DPPF, "row_ror:2 " + DPPF, "row_ror:1 " + DPPF, "row_bcast:15 row_mask:0xa bank_mask:0xf"):
        o += [f"v_add_f32_dpp v{vS}, v{vS}, v{vS} {c}", f"v_add_f32_dpp v{vSQ}, v{vSQ}, v{vSQ} {c}"]
    return o
def stat_write(st_off):
    exec_set(0x10000, 0)
    A(f"ds_write2_b32 v{vST}, v{vS}, v{vSQ} offset0:{st_off//4} offset1:{st_off//4+4}")
    exec_all()
def qproj(first):
    with only("eq", sw, f"s{skq}"): A(f"ds_write_b64 v{vXQw}, v[{vXP}:{vXP+1}]")
    A(f"v_accvgpr_read_b32 v57, a{aXQr}")
    unpack_x()
    for i in stat_ops(): A(i)
    stat_write(0)
    A("s_waitcnt lgkmcnt(0)\ns_barrier")
    if first:
        tr_reads(aWQ, vTa, 4, 1, 4096, 0, 512, base=LWQ)
        stream(2)
    for s_ in range(4): A(f"ds_read_b128 {vq(vXA+4*s_)}, v57 offset:{64*s_}")
    A(f"v_mov_b32 v58, {ST0}")
    A(f"ds_read_b128 v[52:55], v58\nds_read_b128 v[56:59], v58 offset:16")
    A(f"s_lshl_b32 s3, s{sw}, 6\ns_add_u32 s3, s3, s{sQpub}\ns_add_u32 s{sT2}, s3, {CS}\ns_add_u32 s3, s3, {QP}")
    for s_ in range(4):
        A(f"s_waitcnt lgkmcnt({0 if (PROF or first) else 5-s_})")
        A(f"v_mfma_f32_16x16x32_bf16 {vq(vG0)}, {vq(vXA+4*s_)}, {aq(aWQ+4*s_)}, {'0' if s_ == 0 else vq(vG0)}")
    A(f"""s_waitcnt lgkmcnt(0)
v_add_f32 v52, v52, v53
v_add_f32 v54, v54, v55
v_add_f32 v56, v56, v57
v_add_f32 v58, v58, v59
v_add_f32 v52, v52, v54
v_add_f32 v56, v56, v58""")
    if not first:
        exec_set(0xffffffff, 0)
        pub_store(f"buffer_store_dword v{vG0}, v{vQP}, {srd(rWS)}, s3 offen")
        exec_all()
    else: stream(2)
    A(f"""
v_mul_f32 v{vMean}, {f2u(1.0/512):#x}, v52
v_mul_f32 v56, {f2u(1.0/512):#x}, v56
v_fma_f32 v56, -v{vMean}, v{vMean}, v56
v_max_f32 v56, 0, v56
v_add_f32 v56, {f2u(1e-5):#x}, v56
v_rsq_f32 v56, v56
v_mul_f32 v{vRs}, {f2u(QSCALE):#x}, v56""")
    if first:
        for i in range(4): A(f"v_mov_b32 v{vXA+i}, 0x3f803f80")
        for s_ in range(4):
            A(f"v_mfma_f32_16x16x32_bf16 v[52:55], {vq(vXA)}, {aq(aWQ+4*s_)}, {'0' if s_ == 0 else 'v[52:55]'}")
        if opt("fpos", 12) >= 0:
            stream(upto=opt("fpos", 12))
            flag()
            stream(upto=opt("b2pos", 16))
            A("s_barrier")
        A(f"s_lshl_b32 s3, s{sw}, 6\ns_add_u32 s3, s3, s{sQpub}\ns_add_u32 s{sT2}, s3, {CS}\ns_add_u32 s3, s3, {QP}")
        exec_set(0xffffffff, 0)
        A(f"buffer_store_dword v{vG0}, v{vQP}, {srd(rWS)}, s3 offen sc1")
        exec_set(0xffff, 0)
        A(f"buffer_store_dword v52, v{vQP}, {srd(rWS)}, s{sT2} offen sc1")
        exec_all()
def q_loads(dst, soff, tag=None, cond=False):
    for k in range(4): A(f"buffer_load_dwordx2 v[{dst+2*k}:{dst+2*k+1}], v60, {srd(rWS)}, s{soff} offen offset:{2048*k if k < 2 else 2048*(k-2)} sc1" if k < 2 else
                         f"buffer_load_dwordx2 v[{dst+2*k}:{dst+2*k+1}], v61, {srd(rWS)}, s{soff} offen offset:{2048*(k-2)} sc1", tag=tag, cond=cond)
def q_addr(): A(f"v_lshlrev_b32 v60, 3, v{vL}\nv_add_u32 v61, 4096, v60")
def sum4(d):
    A(f"v_add_f32 v{d}, v{d}, v{d+2}\nv_add_f32 v{d+1}, v{d+1}, v{d+3}\nv_add_f32 v{d+4}, v{d+4}, v{d+6}\nv_add_f32 v{d+5}, v{d+5}, v{d+7}\nv_add_f32 v{d}, v{d}, v{d+4}\nv_add_f32 v{d+1}, v{d+1}, v{d+5}")
def q_finish(cs):
    A(f"""
v_fma_f32 v44, -v{vMean}, v{cs}, v44
v_fma_f32 v45, -v{vMean}, v{cs+1}, v45
v_mul_f32 v44, v44, v{vRs}
v_mul_f32 v45, v45, v{vRs}
v_cvt_pk_bf16_f32 v44, v44, v45
ds_write_b32 v59, v44
s_waitcnt lgkmcnt(0)
s_barrier""")
    for s_ in range(4): A(f"ds_read_b128 {vq(vQ+4*s_)}, v{vQad} offset:{256*s_}")
A.vwait("x")
stamp(2)
tags()
A(f"""
s_cmp_eq_u32 s{sw}, s{skq}
s_cselect_b32 s3, 64, 32
v_cmp_gt_u32 vcc, s3, v{vL}
v_cndmask_b32 v{vXP}, 0, v{vXr}, vcc
v_cndmask_b32 v{vXP+1}, 0, v{vXr+1}, vcc
s_xor_b32 s{sYo}, s{sYget}, 8192
s_xor_b32 s{sZo}, s{sZget}, 8192""")
qproj(True)
stamp(3)
allow_kread[0] = True
stream(upto=opt("cenpos", 30))
def cen_loads(cond):
    A(f"s_mov_b32 s3, {FLG}")
    A(f"buffer_load_dwordx4 v[32:35], v{vVo}, {srd(rWS)}, s3 offen sc1", cond=cond)
    A(f"buffer_load_dwordx4 v[36:39], v{vVo}, {srd(rWS)}, s3 offen offset:1024 sc1", tag="cen", cond=cond)
if "cen" not in DROP: cen_loads(False)
else: A.vq.append(("cen", True))
stream(opt("cenlag", 10))
A.vwait("cen")
lcen, lcok = lab("cen"), lab("cok")
A(f"{lcen}:")
if "cen" in DROP or "clr" in DROP: A(f"s_branch {lcok}")
for i in range(4):
    A(f"v_xor_b32 v{32+2*i}, s{sTAG0}, v{32+2*i}\nv_xor_b32 v{33+2*i}, s{sTAG1}, v{33+2*i}")
CSPLIT = opt("csplit", 1)
A(f"""
v_or3_b32 v40, v33, v35, v37
v_or3_b32 v42, v32, v34, v36
v_or_b32 v40, v40, v39
v_and_b32 v40, -16, v40
v_or3_b32 v40, v40, v42, v38
v_cmp_ne_u32 vcc, 0, v40""")
if CSPLIT: A(f"""s_or_b32 s{sCEN}, vcc_lo, vcc_hi
s_lshl_b32 s3, s{sg}, 3
s_lshr_b64 s[{sT2}:{sT2+1}], vcc, s3
s_and_b32 s{sT2}, s{sT2}, 0xff
s_cbranch_scc0 {lcok}
s_sleep 4""")
else: A(f"s_cbranch_vccz {lcok}\ns_sleep 4")
cen_loads(True)
A("s_waitcnt vmcnt(0)")
retry(lcen)
A(f"{lcok}:")
stamp(4)
if PROF: A(f"s_mov_b32 s12, s{sBUD}")
A(f"""
s_getreg_b32 s3, hwreg(HW_REG_XCC_ID, 0, 4)
v_xor_b32 v33, s3, v33
v_xor_b32 v35, s3, v35
v_xor_b32 v37, s3, v37
v_xor_b32 v39, s3, v39
v_or_b32 v33, v33, v35
v_or3_b32 v33, v33, v37, v39
v_cmp_eq_u32 vcc, 0, v33
s_lshl_b32 s3, s{sg}, 3
s_lshr_b64 s[{sT2}:{sT2+1}], vcc, s3
s_and_b32 s{sT2}, s{sT2}, 0xff
s_cmp_eq_u32 s{sT2}, 0xff
s_cselect_b32 s{sFAST}, {0 if FORCE_SLOW else 1}, 0
s_lshl_b32 s{sT3}, s{sg}, 13
s_lshl_b32 s3, s{sw}, 9
s_add_u32 s{sT3}, s{sT3}, s3
s_add_u32 s{sT3}, s{sT3}, {CS}""")
q_addr()
stream(upto=opt("qpos", 42))
if "q" not in DROP: q_loads(44, sQget); q_loads(32, sT3, tag="Q")
else: A.vq.append(("Q", True))
stream(opt("qlag", 8))
A.vwait("Q")
lq1, lq1ok = lab("ql"), lab("qlok")
A(f"{lq1}:")
if DROP != [""] and DROP != ["w"]: A(f"s_branch {lq1ok}")
sum4(44); sum4(32)
A(f"""v_add_f32 v40, v44, v45
v_add_f32 v41, v32, v33
v_cmp_u_f32 vcc, v40, v41
s_cbranch_vccz {lq1ok}""")
q_loads(44, sQget, cond=True); q_loads(32, sT3, cond=True)
A("s_waitcnt vmcnt(0)")
retry(lq1)
A(f"""{lq1ok}:
v_accvgpr_write_b32 a{aCS}, v32
v_accvgpr_write_b32 a{aCS+1}, v33
v_accvgpr_read_b32 v59, a{aQBw}
v_mov_b32 v56, v32
v_mov_b32 v57, v33""")
assert kr[0] == 8
if PROF: A(f"s_mov_b32 s13, s{sBUD}")
q_finish(56)
stream(1)
A(f"s_waitcnt lgkmcnt(0)")
stamp(5)

def qk(filler=None):
    tiles = [(t, u) for t in range(4) for u in range(2)]
    def dreg(k):
        t, u = tiles[k]
        return (vD0 if u == 0 else vD1) if t == 0 else vROT + 4*(k % 3)
    def sel(k):
        t, u = tiles[k]
        if t == 0: return []
        return [f"v_mov_b32_dpp v{(vD0 if u == 0 else vD1)+r}, v{dreg(k)+r} quad_perm:[0,1,2,3] row_mask:0xf bank_mask:{1 << t:#x}" for r in range(4)]
    for k in range(8):
        ex = sel(k-2) if k >= 2 else []
        for s in range(4):
            c = "0" if s == 0 else vq(dreg(k))
            A(f"v_mfma_f32_16x16x32_bf16 {vq(dreg(k))}, {aq(aK+16*k+4*s)}, {vq(vQ+4*s)}, {c}")
            if ex: A(ex.pop(0))
        if filler: filler(k)
    for k in (6, 7):
        for i in sel(k): A(i)
vM, vTt, vLs, vP = 32, 33, 34, 28
vF = 36; vMM = 40
def softmax():
    A(f"""
v_max3_f32 v{vM}, v{vD0}, v{vD0+1}, v{vD0+2}
v_max3_f32 v{vTt}, v{vD0+3}, v{vD1}, v{vD1+1}
v_max3_f32 v{vM}, v{vM}, v{vD1+2}, v{vD1+3}
v_max_f32 v{vM}, v{vM}, v{vTt}
v_max_f32_dpp v{vM}, v{vM}, v{vM} row_ror:4 {DPPF}
v_max_f32_dpp v{vM}, v{vM}, v{vM} row_ror:8 {DPPF}
v_mov_b32 v{vTt}, v{vM}
v_permlane16_swap_b32 v{vM}, v{vTt}
v_max_f32 v{vM}, v{vM}, v{vTt}
v_mov_b32 v{vTt}, v{vM}
v_permlane32_swap_b32 v{vM}, v{vTt}
v_max_f32 v{vM}, v{vM}, v{vTt}""")
    for r in range(8): A(f"v_sub_f32 v{vD0+r}, v{vD0+r}, v{vM}")
    A(f"ds_write_b32 v{vMBw}, v{vM}")
    for r in range(8): A(f"v_exp_f32 v{vD0+r}, v{vD0+r}")
    for p in range(4): A(f"v_cvt_pk_bf16_f32 v{vP+p}, v{vD0+2*p}, v{vD0+2*p+1}")
def aop(t): return vP if t == 0 else vROT + 4*(t-1)
def shifts(t): return [f"v_mov_b32_dpp v{aop(t)+p}, v{vP+p} row_ror:{16-4*t} {DPPF}" for p in range(4)]
def lsum_ops():
    return [f"v_add_f32 v{vLs}, v{vD0}, v{vD0+1}", f"v_add_f32 v{vTt}, v{vD0+2}, v{vD0+3}",
            f"v_add_f32 v{vLs}, v{vLs}, v{vD1}", f"v_add_f32 v{vTt}, v{vTt}, v{vD1+1}",
            f"v_add_f32 v{vLs}, v{vLs}, v{vD1+2}", f"v_add_f32 v{vTt}, v{vTt}, v{vD1+3}",
            f"v_add_f32 v{vLs}, v{vLs}, v{vTt}",
            f"v_add_f32_dpp v{vLs}, v{vLs}, v{vLs} row_ror:4 {DPPF}",
            f"v_add_f32_dpp v{vLs}, v{vLs}, v{vLs} row_ror:8 {DPPF}",
            f"v_mov_b32 v{vTt}, v{vLs}", f"v_permlane16_swap_b32 v{vLs}, v{vTt}", f"v_add_f32 v{vLs}, v{vLs}, v{vTt}",
            f"v_mov_b32 v{vTt}, v{vLs}", f"v_permlane32_swap_b32 v{vLs}, v{vTt}", f"v_add_f32 v{vLs}, v{vLs}, v{vTt}",
            f"ds_write_b32 v{vMBw}, v{vLs} offset:64"]
def fw_ops():
    return [f"ds_read_b128 {vq(vF)}, v{vMBr}", "s_waitcnt lgkmcnt(0)",
            f"v_max3_f32 v{vMM}, v{vF}, v{vF+1}, v{vF+2}", f"v_max_f32 v{vMM}, v{vMM}, v{vF+3}"] + \
           [f"v_sub_f32 v{vF+i}, v{vF+i}, v{vMM}" for i in range(4)] + [f"v_exp_f32 v{vF+i}, v{vF+i}" for i in range(4)]
def owrite(half): return f"ds_write_b128 v{vOBw}, {vq(vACC+16*half)} offset:{1024*half}"
sROW = {1: 28, 2: 30, 3: 36}
def row_masks():
    A(f"s_mov_b32 s28, 0xffff0000\ns_mov_b32 s29, 0\ns_mov_b32 s30, 0\ns_mov_b32 s31, 0xffff\ns_mov_b32 s36, 0\ns_mov_b32 s37, 0xffff0000")
def merge(jd):
    d = vACC + 16*(jd >> 2)
    return [f"v_cndmask_b32 v{d+h}, v{d+h}, v{vACC+4*jd+h}, {sp(sROW[jd & 3])}" for h in range(4)]
def pv_mfma(t, jd, first):
    c = "0" if first else vq(vACC+4*jd)
    A(f"v_mfma_f32_16x16x32_bf16 {vq(vACC+4*jd)}, {vq(aop((t - jd) & 3))}, {vq(vR+32*t+4*jd)}, {c}")

def pf_w12(t0, t1):
    pf_w12_(t0, t1)
    if opt("red12", 1) > 1:
        A(f"s_xor_b32 s{sU}, s{sU}, 64"); pf_w12_(t0, t1)
def pf_w12_(t0, t1):
    A(f"""
s_mul_i32 s{sT2}, s{sU}, {4*3584}
s_mul_i32 s3, s{sg}, 448
s_add_u32 s{sT2}, s{sT2}, s3
v_lshrrev_b32 v{t0}, 5, v{vL}
v_mul_u32_u24 v{t0}, 3584, v{t0}
v_and_b32 v{t1}, 31, v{vL}
v_lshl_add_u32 v{t0}, v{t1}, 4, v{t0}
s_add_u32 s3, s{sT2}, {2*3584}""")
    exec_set(0x0fffffff, 0x0fffffff)
    A(f"buffer_load_dwordx4 {DUMMY}, v{t0}, {srd(rW1)}, s{sT2} offen{PF12}")
    A(f"buffer_load_dwordx4 {DUMMY}, v{t0}, {srd(rW1)}, s3 offen{PF12}")
    A(f"""
s_mul_i32 s{sT2}, s{sU}, {14*128}
s_mul_i32 s3, s{sg}, {224*1024}
s_add_u32 s{sT2}, s{sT2}, s3""")
    exec_set(0xffffffff, 0x00ffffff)
    A(f"buffer_load_dwordx4 {DUMMY}, v{vVo}, {srd(rW2)}, s{sT2} offen{PF12}")
    A(f"buffer_load_dwordx4 {DUMMY}, v{vVo}, {srd(rW2)}, s{sT2} offen offset:896{PF12}")
    exec_all()
def tail_pf():
    if "tail" in DROP: return
    if not INO and PFOPOS == -1: pf_wo()
    if W12PF == 0 and not IN12: pf_w12(41, 42)
    lw = lab("wu"); lw2 = lab("wu")
    A(f"""
v_lshlrev_b32 v35, 7, v{vL}
s_and_b32 s3, s{sw}, 1
s_mul_i32 s3, s3, {LS}
s_cmp_ge_u32 s{sw}, 2
s_cbranch_scc1 {lw}
s_add_u32 s3, s3, s{sOclr}
v_and_b32 v41, 0x380, v35
s_branch {lw2}
{lw}:
v_and_b32 v41, 1, v{vL}
v_lshlrev_b32 v41, 7, v41
v_bfe_u32 v42, v{vL}, 1, 1
v_lshl_add_u32 v41, v42, 16, v41
s_add_u32 s{sT2}, s{sQpub}, {QP}
v_add_u32 v41, s{sT2}, v41
s_sub_u32 s{sT2}, s{sMLpub}, 512
v_add_u32 v42, s{sT2}, v35
v_cmp_le_u32 vcc, 4, v{vL}
v_cndmask_b32 v41, v41, v42, vcc
v_mov_b32 v42, s{sHpub}
v_cmp_le_u32 vcc, 8, v{vL}
v_cndmask_b32 v41, v41, v42, vcc
{lw2}:""")
    exec_set(0x1ff, 0)
    if not opt("nowu", 0): A(f"buffer_load_dword a253, v41, {srd(rWS)}, s3 offen sc1")
    A(f"""
s_getpc_b64 s[{sT2}:{sT2+1}]
L_pc:
s_add_u32 s{sT2}, s{sT2}, L_comb-L_pc
s_addc_u32 s{sT2+1}, s{sT2+1}, 0""")
    exec_all()
    A(f"v_min_u32 v42, L_end-L_comb, v35")
    A(f"s_nop 0")
    if not opt("nocode", 0): A(f"global_load_dword a254, v42, s[{sT2}:{sT2+1}]{POL[opt('cpol','none')]}")

qk(filler=lambda k: stream(2))
stream(40)
softmax()
for t in (1, 2, 3):
    for i in shifts(t): A(i)
for i in lsum_ops(): A(i)
row_masks()
stamp(6)
for t in range(4):
    A.vwait(f"V{8*t+7}")
    raw = vR + 32*(t+1); dst = vR + 32*t
    for jd in range(8):
        for p in range(4):
            A(f"v_perm_b32 v{dst+4*jd+p}, v{raw+4*(2*p+1)+(jd>>1)}, v{raw+4*(2*p)+(jd>>1)}, s{sSELHI if jd & 1 else sSELLO}")
        if jd: pv_mfma(t, jd-1, t == 0)
        if t == 3:
            for i in {4: merge(1), 5: merge(2), 6: merge(3) + [owrite(0)]}.get(jd, []): A(i)
    pv_mfma(t, 7, t == 0)
    if t == 3:
        for i in merge(5) + merge(6): A(i)
    if t == MBG:
        A("s_waitcnt lgkmcnt(0)\ns_barrier")
        for i in fw_ops(): A(i)
        if INO or IN12:
            A(f"""
v_lshrrev_b32 v44, 2, v{vL}
v_and_b32 v44, 3, v44                     ; r
v_and_b32 v45, 3, v{vL}
v_lshlrev_b32 v45, 3, v45                 ; 8c
v_lshrrev_b32 v46, 4, v{vL}               ; q
v_lshl_add_u32 v47, v46, 3, v44           ; 8q+r
v_lshl_add_u32 v47, v47, 5, v45
v_add_u32 v47, s{sKm}, v47                ; w1
v_and_b32 v48, 1, v44
v_lshrrev_b32 v49, 1, v44
v_lshl_add_u32 v48, v49, 3, v48
v_lshl_add_u32 v48, v46, 5, v48
v_lshl_add_u32 v48, v48, 6, v45
v_add_u32 v48, s{sKm}, v48                ; wo
v_and_b32 v49, 1, v46
v_lshl_add_u32 v44, v49, 3, v44
v_lshl_add_u32 v44, v44, 6, v45
v_lshrrev_b32 v46, 1, v46
v_lshl_add_u32 v44, v46, 15, v44
s_and_b32 s3, s{sw}, 1
s_lshl_b32 s3, s3, 5
s_add_u32 s3, s3, {KST + 12288}
v_add_u32 v44, s3, v44                    ; w2
v_add_u32 v45, 65536, v44""")
            if "w" in DROP:
                for i in range(aWO, 236): A(f"v_accvgpr_write_b32 a{i}, 0")
            if INO and "w" not in DROP: tr_reads(aWO, 48, 4, 2, 128, 32, 1024)
            if IN12 and "w" not in DROP:
                tr_reads(aW1, 47, 4, 1, 1024, 0, 128, base=8192)
                for st in range(7):
                    o_ = (st >> 1)*1024; r_ = 45 if st & 1 else 44
                    A(f"ds_read_b64_tr_b16 a[{aW2+4*st}:{aW2+4*st+1}], v{r_} offset:{o_}")
                    A(f"ds_read_b64_tr_b16 a[{aW2+4*st+2}:{aW2+4*st+3}], v{r_} offset:{o_+256}")
    if t == opt("pfg", 3): tail_pf()
WOEARLY = opt("woearly", 0)
def wo_burst(t0, t1, vo):
    A(f"""
v_lshrrev_b32 v{t0}, 2, v{vL}
v_and_b32 v{t1}, 3, v{vL}
v_lshlrev_b32 v{t1}, 4, v{t1}
v_lshl_add_u32 v{vo}, v{t0}, 10, v{t1}
s_lshl_b32 s{sT2}, s{sg}, 19
s_lshl_b32 s3, s{sw}, 17
s_add_u32 s{sT2}, s{sT2}, s3
s_lshl_b32 s3, s{sj}, 6
s_add_u32 s{sT2}, s{sT2}, s3""")
    for n in range(8): dma(vo, rWO, sT2, sKm, 1024*n, n << 14, f"WO{n}", WPOL)
if WOEARLY: wo_burst(41, 42, 43)
for i in merge(7) + [owrite(1)]: A(i)
stamp(7)
flush_stamps(0, 8)
if PROF: A(f"v_writelane_b32 v{vPROF}, s12, 8\nv_writelane_b32 v{vPROF}, s13, 9")
if EXP == "stream": A("s_branch L_done")

def xproc(aW, tiles, red_off, st_off, skip_label=None, pre=None):
    exec_set(0xffffffff, 0)
    A(f"ds_write_b64 v{vXBw}, v[{vXP}:{vXP+1}]")
    exec_all()
    for s in range(4): A(f"ds_read_b128 {vq(vXA+4*s)}, v{vXBr} offset:{64*s}")
    unpack_x()
    if skip_label: A(f"s_cbranch_scc1 {skip_label}")
    dp = stat_ops()
    for _ in range(11): A(dp.pop(0))
    if pre: pre()
    A("s_waitcnt lgkmcnt(0)")
    for s in range(4):
        A(f"v_mfma_f32_16x16x32_bf16 {vq(vG0)}, {vq(vXA+4*s)}, {aq(aW+4*s)}, {'0' if s == 0 else vq(vG0)}")
        for _ in range(2):
            if dp: A(dp.pop(0))
    stat_write(st_off)
    A(f"ds_write_b32 v{vRED}, v{vG0} offset:{red_off}")
def ln_final(red_off, st_off):
    A(f"""
ds_read_b128 v[36:39], v{vST} offset:{st_off}
ds_read_b128 v[40:43], v{vST} offset:{st_off+16}
ds_read_b128 v[28:31], v{vRED} offset:{red_off}
ds_read_b128 v[32:35], v{vRED} offset:{red_off+512}
s_mov_b32 s3, {f2u(1.0/512):#x}
v_mov_b32 v44, {f2u(1e-5):#x}
s_waitcnt lgkmcnt({0 if PROF else 2})
v_add_f32 v36, v36, v37
v_add_f32 v38, v38, v39
v_add_f32 v40, v40, v41
v_add_f32 v42, v42, v43
v_add_f32 v36, v36, v38
v_add_f32 v40, v40, v42
v_mul_f32 v36, s3, v36                ; mean
v_fma_f32 v41, s3, v40, v44           ; E[x^2] + eps
s_waitcnt lgkmcnt(0)
v_add_f32 v28, v28, v29
v_fma_f32 v41, -v36, v36, v41
v_add_f32 v30, v30, v31
v_max_f32 v41, v44, v41
v_add_f32 v32, v32, v33
v_rsq_f32 v41, v41
v_add_f32 v34, v34, v35
v_add_f32 v28, v28, v30
v_add_f32 v32, v32, v34
v_fma_f32 v28, -v36, v32, v28
v_mul_f32 v28, v28, v41
""")

A("L_comb:")
A("s_waitcnt lgkmcnt(0)\ns_barrier")
for w in range(4): A(f"ds_read2st64_b32 v[{44+2*w}:{45+2*w}], v{vOBr} offset0:{8*w} offset1:{8*w+1}")
A(f"ds_read_b128 v[52:55], v{vMBr} offset:64")
A("s_waitcnt lgkmcnt(1)" if not PROF else "s_waitcnt lgkmcnt(0)")
A(f"v_mul_f32 v44, v{vF}, v44\nv_mul_f32 v45, v{vF}, v45")
for w in range(1, 4): A(f"v_fmac_f32 v44, v{vF+w}, v{44+2*w}\nv_fmac_f32 v45, v{vF+w}, v{45+2*w}")
A("v_cvt_pk_bf16_f32 v44, v44, v45")
pub_store(f"buffer_store_dword v44, v{vOpub}, {srd(rWS)}, s{sOpub} offen")
with only("eq", sw, 0):
    A(f"""
s_waitcnt lgkmcnt(0)
v_mul_f32 v{vMM+1}, v{vF}, v52
v_fmac_f32 v{vMM+1}, v{vF+1}, v53
v_fmac_f32 v{vMM+1}, v{vF+2}, v54
v_fmac_f32 v{vMM+1}, v{vF+3}, v55
v_lshlrev_b32 v46, 3, v{vL}""")
    exec_set(0x00010001, 0x00010001)
    pub_store(f"buffer_store_dwordx2 v[{vMM}:{vMM+1}], v46, {srd(rWS)}, s{sMLpub} offen")
    exec_all()
stamp(0)
vO = 28; vml = 44; vDy = 48
la, laok, la0 = lab("pa"), lab("paok"), lab("pa0")
def a_loads():
    A(f"buffer_load_dwordx2 v[{vml}:{vml+1}], v{vMLad}, {srd(rWS)}, s{sMLget} offen sc1")
    for s in range(4): A(f"buffer_load_dwordx4 {vq(vO+4*s)}, v{vVo}, {srd(rWS)}, s{sOget} offen offset:{1024*s} sc1")
las = lab("as")
A(f"s_cmp_lg_u32 s{sLAYER}, 0\ns_cbranch_scc1 {las}")
A(f"""
v_lshrrev_b32 v56, 2, v{vL}
v_and_b32 v57, 3, v{vL}
v_lshlrev_b32 v58, 4, v57
v_lshl_add_u32 v{vW2o}, v56, 10, v58
s_lshl_b32 s{sT2}, s{sg}, 19
s_lshl_b32 s3, s{sw}, 17
s_add_u32 s{sT2}, s{sT2}, s3
s_lshl_b32 s3, s{sj}, 6
s_add_u32 s{sT2}, s{sT2}, s3""")
if not INO and not WOEARLY:
    for n in range(8): dma(vW2o, rWO, sT2, sKm, 1024*n, n << 14, f"WO{n}", WPOL)
a_loads()
NX = 0
A(f"""
v_lshrrev_b32 v58, 1, v{vL}
v_mul_u32_u24 v{vW1o}, 3584, v58
v_and_b32 v58, 1, v{vL}
v_lshl_add_u32 v{vW1o}, v58, 4, v{vW1o}
v_and_b32 v56, 3, v56                     ; r
v_lshrrev_b32 v58, 4, v{vL}               ; q
v_lshlrev_b32 v57, 3, v57                 ; 8c
v_and_b32 v59, 1, v56
v_lshrrev_b32 v60, 1, v56
v_lshl_add_u32 v59, v60, 3, v59
v_lshl_add_u32 v59, v58, 5, v59
v_lshl_add_u32 v59, v59, 6, v57
v_add_u32 v{vTrO}, s{sKm}, v59
v_lshl_add_u32 v56, v58, 3, v56           ; 8q+r
v_lshl_add_u32 v58, v56, 5, v57
v_add_u32 v{vT1}, s{sKm}, v58
v_lshl_add_u32 v58, v56, 6, v57
s_and_b32 s3, s{sw}, 1
s_lshl_b32 s3, s3, 5
s_add_u32 s3, s3, {LW2}
v_add_u32 v{vT2}, s3, v58
v_mov_b32_dpp v{vSEL2}, v{vSEL} row_ror:8 {DPPF}
v_mov_b32_dpp v{vSEL2+1}, v{vSEL+1} row_ror:8 {DPPF}
v_mov_b32_dpp v{vSEL2+2}, v{vSEL+2} row_ror:8 {DPPF}
v_mov_b32_dpp v{vSEL2+3}, v{vSEL+3} row_ror:8 {DPPF}
s_waitcnt vmcnt({5+NX})""")
if PROF == 2: stamp(4)
if not INO: tr_reads(aWO, vTrO, 4, 2, 128, 32, 1024)
A(f"s_waitcnt lgkmcnt(0)\ns_branch {la0}")
A(f"{las}:")
if opt("sa", 4): A(f"s_sleep {opt('sa', 4)}")
A(f"{la}:")
a_loads()
A(f"{la0}:")
wc = [f"v_max_f32_dpp v57, v{vml}, v{vml} quad_perm:[1,0,3,2] {DPPF}",
      f"v_max_f32_dpp v57, v57, v57 quad_perm:[2,3,0,1] {DPPF}",
      "v_mov_b32 v58, v57", "v_permlane16_swap_b32 v57, v58", "v_max_f32 v57, v57, v58",
      "v_mov_b32 v58, v57", "v_permlane32_swap_b32 v57, v58", "v_max_f32 v57, v57, v58",
      f"v_sub_f32 v57, v{vml}, v57", "v_exp_f32 v57, v57", f"v_mul_f32 v58, v57, v{vml+1}",
      f"v_add_f32_dpp v58, v58, v58 quad_perm:[1,0,3,2] {DPPF}", f"v_add_f32_dpp v58, v58, v58 quad_perm:[2,3,0,1] {DPPF}",
      "v_mov_b32 v59, v58"]
A(f"s_waitcnt vmcnt(4)\nv_cmp_u_f32 vcc, v{vml}, v{vml+1}")
A(wc.pop(0))
A(f"s_cbranch_vccnz L_aretry")
A(wc.pop(0)); A(wc.pop(0))
for s in range(4):
    A(f"s_waitcnt vmcnt({3-s})")
    for t in range(2):
        c = "0" if s == 0 else vq(vDy+4*t)
        A(f"v_mfma_f32_16x16x32_bf16 {vq(vDy+4*t)}, {vq(vO+4*s)}, {aq(aWO+(t*4+s)*4)}, {c}")
        for _ in range(1 if s < 3 else 2):
            if wc: A(wc.pop(0))
while wc: A(wc.pop(0))
A(f"""
v_mul_f32_dpp v60, v57, v{vDy} quad_perm:[0,0,0,0] {DPPF}
s_nop 0
v_permlane16_swap_b32 v58, v59
v_mul_f32_dpp v61, v57, v{vDy+4} quad_perm:[0,0,0,0] {DPPF}
v_fmac_f32_dpp v60, v57, v{vDy+1} quad_perm:[1,1,1,1] {DPPF}
v_add_f32 v58, v58, v59
v_fmac_f32_dpp v61, v57, v{vDy+5} quad_perm:[1,1,1,1] {DPPF}
v_fmac_f32_dpp v60, v57, v{vDy+2} quad_perm:[2,2,2,2] {DPPF}
v_mov_b32 v59, v58
v_fmac_f32_dpp v61, v57, v{vDy+6} quad_perm:[2,2,2,2] {DPPF}
v_fmac_f32_dpp v60, v57, v{vDy+3} quad_perm:[3,3,3,3] {DPPF}
v_permlane32_swap_b32 v58, v59
v_fmac_f32_dpp v61, v57, v{vDy+7} quad_perm:[3,3,3,3] {DPPF}
v_add_f32 v58, v58, v59
v_rcp_f32 v58, v58
v_permlane32_swap_b32 v60, v61
v_add_f32 v60, v60, v61
v_mov_b32 v61, v60
v_permlane16_swap_b32 v60, v61
v_add_f32 v60, v60, v61
v_mul_f32 v60, v60, v58
v_cmp_u_f32 vcc, v60, v60
ds_write_b32 v{vREDA}, v60
s_cbranch_vccz {laok}
L_aretry:""")
if opt("adrain", 1): A("s_waitcnt vmcnt(0)")
retry(la)
A(f"{laok}:")
stamp(1)
if W12PF == 1 and not IN12:
    with only("eq", sLAYER, 0): pf_w12(62, 63)
A("s_waitcnt lgkmcnt(0)\ns_barrier")
ly, ly2 = lab("y"), lab("y2")
A(f"s_cmp_lg_u32 s{sw}, 0\ns_cbranch_scc1 {ly}")
A(f"""
ds_read_b128 v[28:31], v{vRED} offset:{REDA-RED1}
s_waitcnt lgkmcnt(0)
v_add_f32 v28, v28, v29
v_add_f32 v30, v30, v31
v_add_f32 v28, v28, v30""")
pack_pairs(28, 29)
exec_set(0x55555555, 0)
A(f"buffer_store_dword v28, v{vPAIR}, {srd(rWS)}, s{sYpub} offen sc1")
exec_all()
A(f"s_branch {ly2}\n{ly}:")
if opt("wb", 0) == 2:
    with only("eq", sw, 3):
        with only("eq", sLAYER, 1): A("buffer_wbl2 sc1")
A(f"s_sleep 2\n{ly2}:")
stamp(2)
def gather(s0, s1, lp, so=None):
    lg, lok, lchk, lo = lab(lp), lab(lp + "ok"), lab(lp + "ck"), lab(lp + "o")
    A(f"{lg}:")
    A(f"buffer_load_dwordx4 v[32:35], v{vGad}, {srd(rWS)}, s{s0} offen sc1")
    A(f"buffer_load_dwordx4 v[36:39], v{vGad}, {srd(rWS)}, s{s1} offen sc1")
    if so is not None:
        A(f"s_cmp_eq_u32 s{sw}, s{skq}\ns_cbranch_scc1 {lo}")
    A(f"""s_waitcnt vmcnt(1)
v_mfma_f32_16x16x32_bf16 v[40:43], {vq(vSEL)}, v[32:35], {vq(vX)}
s_waitcnt vmcnt(0)
v_mfma_f32_16x16x32_bf16 v[40:43], {vq(vSEL)}, v[36:39], v[40:43]""")
    if so is not None:
        A(f"s_nop 6\ns_branch {lchk}\n{lo}:\ns_add_u32 s3, s{so}, 4096")
        A(f"buffer_load_dwordx4 v[44:47], v{vGad}, {srd(rWS)}, s{so} offen sc1")
        A(f"buffer_load_dwordx4 v[48:51], v{vGad}, {srd(rWS)}, s3 offen sc1")
        A(f"""s_waitcnt vmcnt(3)
v_mfma_f32_16x16x32_bf16 v[40:43], {vq(vSEL)}, v[32:35], {vq(vX)}
s_waitcnt vmcnt(2)
v_mfma_f32_16x16x32_bf16 v[40:43], {vq(vSEL)}, v[36:39], v[40:43]
s_waitcnt vmcnt(1)
v_mfma_f32_16x16x32_bf16 v[40:43], {vq(vSEL2)}, v[44:47], v[40:43]
s_waitcnt vmcnt(0)
v_mfma_f32_16x16x32_bf16 v[40:43], {vq(vSEL2)}, v[48:51], v[40:43]""")
    A(f"{lchk}:")
    A(f"v_cmp_u_f32 vcc, v40, v40\ns_cbranch_vccz {lok}")
    if opt("gsleep", 0): A(f"s_sleep {opt('gsleep', 0)}")
    retry(lg)
    A(f"{lok}:")
    A(f"v_cvt_pk_bf16_f32 v{vXP}, v40, v41\nv_cvt_pk_bf16_f32 v{vXP+1}, v42, v43")
def w12_burst():
    A(f"""
s_mul_i32 s{sT2}, s{sw}, {128*3584}
s_mul_i32 s3, s{sg}, 448
s_add_u32 s{sT2}, s{sT2}, s3
s_lshl_b32 s3, s{sjf}, 5
s_add_u32 s{sT2}, s{sT2}, s3""")
    for i in range(4): dma(vW1o, rW1, sT2, sKm, 8192 + 1024*i, i*32*3584, "W1", WPOL)
    A(f"""
s_mul_i32 s{sT2}, s{sg}, {224*1024}
s_lshl_b32 s3, s{sj}, 6
s_add_u32 s{sT2}, s{sT2}, s3
s_lshl_b32 s3, s{sw}, 14
s_add_u32 s{sT2}, s{sT2}, s3
s_lshl_b32 s{sT3}, s{sw}, 10""")
    if not opt("w2late", 2):
        for i in range(4): dma(vW2o, rW2, sT2, sT3, LW2 + 4096*i, i*64*1024, "W2", WPOL)
    return 8
l1, l2 = lab("b"), lab("b")
if CSPLIT:
    A(f"s_cmp_lg_u32 s{sCEN}, 0\ns_cbranch_scc1 L_cen2\nL_cen2_back:")
if IN12: A(f"s_sleep {SLEEP_B}")
else:
    A(f"s_cmp_lg_u32 s{sLAYER}, 0\ns_cbranch_scc1 {l1}")
    w12_burst()
    A(f"s_sleep {opt('sb0', 10)}\ns_branch {l2}\n{l1}:\ns_sleep {SLEEP_B}\n{l2}:")
gather(sYget, sYget1, "gb", so=sYo)
stamp(3)
NB = 0
W2L = opt("w2late", 2)
if W2L == 1:
    with only("eq", sLAYER, 0):
        for i in range(4): dma(vW2o, rW2, sT2, sT3, LW2 + 4096*i, i*64*1024, "W2", WPOL)
if W2L == 2:
    NB = 63
    with only("eq", sLAYER, 0):
        with only("ge", sw, 2):
            A(f"""
s_mul_i32 s{sT2}, s{sg}, {224*1024}
s_lshl_b32 s3, s{sj}, 6
s_add_u32 s{sT2}, s{sT2}, s3
s_and_b32 s3, s{sw}, 1
s_lshl_b32 s3, s3, 5
s_add_u32 s{sT2}, s{sT2}, s3
v_lshrrev_b32 v56, 1, v{vL}
v_and_b32 v57, 1, v{vL}
v_lshlrev_b32 v57, 4, v57
v_lshl_add_u32 v56, v56, 10, v57""")
            for i in range(7): dma(56, rW2, sT2, sKm, 16384 + 1024*i, i*32*1024, "W2", WPOL)
def w1_land():
    with only("eq", sLAYER, 0):
        A(f"s_waitcnt vmcnt({min(63, 4+NB)})")
        tr_reads(aW1, vT1, 4, 1, 1024, 0, 128, base=8192)
lb = lab("nof")
A(f"s_cmp_ge_u32 s{sjf}, 14")
xproc(aW1, 1, 0, 32, skip_label=lb, pre=None if IN12 else w1_land)
A(f"{lb}:\ns_waitcnt vmcnt({NB}) lgkmcnt(0)\ns_barrier")
lh = lab("h")
A(f"s_cmp_lg_u32 s{sw}, 0\ns_cbranch_scc1 {lh}\ns_cmp_ge_u32 s{sjf}, 14\ns_cbranch_scc1 {lh}")
ln_final(0, 32)
A(f"""
v_mul_f32 v29, {f2u(-LOG2E):#x}, v28
v_exp_f32 v29, v29
v_add_f32 v29, 1.0, v29
v_rcp_f32 v29, v29
v_mul_f32 v28, v28, v29""")
pack_pairs(28, 29)
exec_set(0x5555, 0)
pub_store(f"buffer_store_dword v28, v{vPAIR}, {srd(rWS)}, s{sHpub} offen")
exec_all()
A(f"{lh}:")
if PROF != 2: stamp(4)
ld, ldok, ldsk = lab("pd"), lab("pdok"), lab("pdsk")
if Z1W:
    A(f"s_cmp_lg_u32 s{sw}, 2\ns_cbranch_scc1 {ldsk}")
    A(f"s_cmp_lg_u32 s{sLAYER}, 0\ns_cbranch_scc1 {ld}")
    tr_reads(aW2, vT2, 7, 1, 2048, 0, 256)
    for s in range(7): tr_reads(aW2b[s], vT2, 1, 1, 0, 0, 256, base=2048*s + 32)
    A("s_waitcnt lgkmcnt(0)")
    A(f"{ld}:")
    for s in range(7): A(f"buffer_load_dwordx4 {vq(28+4*s)}, v{vHad}, {srd(rWS)}, s{sHget} offen offset:{64*s} sc1")
    for s in range(7):
        A(f"s_waitcnt vmcnt({6-s})")
        A(f"v_mfma_f32_16x16x32_bf16 v[56:59], {aq(aW2+4*s)}, {vq(28+4*s)}, {'0' if s == 0 else 'v[56:59]'}")
        A(f"v_mfma_f32_16x16x32_bf16 v[60:63], {aq(aW2b[s])}, {vq(28+4*s)}, {'0' if s == 0 else 'v[60:63]'}")
    A(f"v_cmp_u_f32 vcc, v56, v56\nv_cvt_pk_bf16_f32 v56, v56, v57\nv_cvt_pk_bf16_f32 v57, v58, v59\ns_cbranch_vccz {ldok}")
    retry(ld)
    A(f"{ldok}:")
    exec_set(0x00f000f0, 0x00f000f0)
    A("v_cvt_pk_bf16_f32 v56, v60, v61\nv_cvt_pk_bf16_f32 v57, v62, v63")
    exec_set(0x00110011, 0x00110011)
    A(f"buffer_store_dwordx2 v[56:57], v{vZpub}, {srd(rWS)}, s{sZpub} offen sc1")
    exec_all()
else:
    A(f"s_cmp_lt_u32 s{sw}, 2\ns_cbranch_scc1 {ldsk}")
    if not IN12:
        lds_ = lab("ds")
        A(f"s_cmp_lg_u32 s{sLAYER}, 0\ns_cbranch_scc1 {lds_}")
        if W2L == 2:
            A("s_waitcnt vmcnt(0)")
            tr_reads(aW2, vT1, 7, 1, 1024, 0, 128, base=16384)
        else: tr_reads(aW2, vT2, 7, 1, 2048, 0, 256)
        A(f"s_waitcnt lgkmcnt(0)\ns_branch {ld}\n{lds_}:")
        if opt("sd", 6): A(f"s_sleep {opt('sd', 6)}")
    A(f"{ld}:")
    for s in range(7): A(f"buffer_load_dwordx4 {vq(28+4*s)}, v{vHad}, {srd(rWS)}, s{sHget} offen offset:{64*s} sc1")
    for s in range(7):
        A(f"s_waitcnt vmcnt({6-s})")
        A(f"v_mfma_f32_16x16x32_bf16 v[56:59], {aq(aW2+4*s)}, {vq(28+4*s)}, {'0' if s == 0 else 'v[56:59]'}")
    A(f"v_cmp_u_f32 vcc, v56, v56\nv_cvt_pk_bf16_f32 v56, v56, v57\nv_cvt_pk_bf16_f32 v57, v58, v59\ns_cbranch_vccz {ldok}")
    retry(ld)
    A(f"{ldok}:")
    exec_set(0x00010001, 0x00010001)
    A(f"buffer_store_dwordx2 v[56:57], v{vZpub}, {srd(rWS)}, s{sZpub} offen sc1")
    exec_all()
A(f"{ldsk}:")
stamp(5)
A(f"s_cmp_lg_u32 s{sLAYER}, 0\ns_cbranch_scc1 L_final")
A("s_barrier")
A(f"s_sleep {SLEEP_E}")
gather(sZget, sZget1, "ge", so=sZo)
stamp(6)
A(f"s_add_u32 s{rWS}, s{rWS}, {LS}\ns_addc_u32 s{rWS+1}, s{rWS+1}, 0\ns_mov_b32 s{rWS+2}, {WS_BYTES-LS:#x}\ns_mov_b32 s{sLAYER}, 1")
qproj(False)
A(f"s_mov_b32 s{skq}, 99")
stamp(7)
q_addr()
A(f"v_accvgpr_read_b32 v56, a{aCS}\nv_accvgpr_read_b32 v57, a{aCS+1}\nv_accvgpr_read_b32 v59, a{aQBw}")
lg, lgok = lab("pg"), lab("pgok")
if opt("sg", 2): A(f"s_sleep {opt('sg', 2)}")
A(f"{lg}:")
q_loads(44, sQget)
A("s_waitcnt vmcnt(0)")
sum4(44)
A(f"v_cmp_u_f32 vcc, v44, v45\ns_cbranch_vccz {lgok}")
retry(lg)
A(f"{lgok}:")
stamp(8)
q_finish(56)
if opt("wb", 0):
    with only("eq", sw, 3): A("buffer_wbl2 sc1")
A("s_waitcnt lgkmcnt(0)")
if PROF in (3, 4): stamp(1)
qk()
if PROF in (3, 4): stamp(2)
softmax()
if PROF in (3, 4): stamp(3)
order = [((jd + k) & 3, jd) for k in range(4) for jd in range(4)] + [((jd + k) & 3, jd) for jd in range(4, 8) for k in range(4)]
ls = lsum_ops(); fw = fw_ops()
sh = shifts(1) + shifts(2) + shifts(3)
slow = lambda x: "_dpp" in x or "permlane" in x or "v_exp" in x
ex = ls[:7] + ["s_waitcnt lgkmcnt(0)", "s_barrier", fw[0]] + ls[7:] + ["s_waitcnt lgkmcnt(2)" if not PROF else "s_waitcnt lgkmcnt(0)"] + fw[2:4]
post = {1: merge(1), 2: merge(2), 3: merge(3) + [owrite(0)], 5: merge(5), 6: merge(6), 7: merge(7) + [owrite(1)]}
seen = set(); cnt = {}; done = {}; ready = []
for i, (t, jd) in enumerate(order):
    pv_mfma(t, jd, jd not in seen); seen.add(jd)
    cnt[jd] = cnt.get(jd, 0) + 1
    if cnt[jd] == 4 and jd in post: done[jd] = len(A.L)
    for j2, p2 in list(done.items()):
        if sum(x.states() for x in A.L[p2:]) >= 8:
            ready += post[j2]; del done[j2]
    if sh:
        A(sh.pop(0))
        if i % 4 == 3:
            A(ex.pop(0)); A(ex.pop(0))
        continue
    budget = 2
    while budget > 0 and (ex or ready):
        q_ = ex if (ex and (i < 20 or not ready)) else ready
        x = q_.pop(0); A(x); budget -= 2 if slow(x) else 1
while ex: A(ex.pop(0))
for i in ready: A(i)
for j2 in done:
    for i in post[j2]: A(i)
for i in fw[4:]: A(i)
stamp(9)
flush_stamps(16, 10)
A("s_branch L_comb")
A("L_final:")
if opt("wb", 0) == 1:
    with only("eq", sw, 0): A("buffer_wbl2 sc1")
A(f"s_or_b32 s3, s{sg}, s{sj}\ns_cmp_lg_u32 s3, 0\ns_cbranch_scc1 L_done")
if opt("fbar", 1): A("s_barrier")
A(f"s_sleep {SLEEP_F}")
gather(sZget, sZget1, "gf")
A(f"""
s_lshl_b32 s3, s{sb}, 10
s_lshl_b32 s{sT0}, s{sw}, 8
s_add_u32 s3, s3, s{sT0}
s_lshl_b32 s{sT0}, s{sw}, 9
s_add_u32 s{sT0}, s{sT0}, {XB}
s_sub_u32 s3, s3, s{sT0}
v_add_u32 v30, s3, v{vXBw}""")
exec_set(0xffffffff, 0)
A(f"global_store_dwordx2 v30, v[{vXP}:{vXP+1}], {sp(sOUT)}")
with only("eq", sb, 0):
    A(f"v_mov_b32 v30, {EPO}\nv_mov_b32 v31, s{sTAG0}")
    exec_set(1, 0)
    A(f"global_store_dword v30, v31, {sp(sWS)} sc1")
exec_all()
if CSPLIT:
    A("s_branch L_done\nL_cen2:")
    cen_loads(True)
    A("s_waitcnt vmcnt(0)")
    for i in range(4):
        A(f"v_xor_b32 v{32+2*i}, s{sTAG0}, v{32+2*i}\nv_xor_b32 v{33+2*i}, s{sTAG1}, v{33+2*i}")
    A(f"""
v_or3_b32 v40, v33, v35, v37
v_or3_b32 v42, v32, v34, v36
v_or_b32 v40, v40, v39
v_and_b32 v40, -16, v40
v_or3_b32 v40, v40, v42, v38
v_cmp_ne_u32 vcc, 0, v40
s_cbranch_vccz L_cen2_ok""")
    retry("L_cen2")
    A(f"L_cen2_ok:\ns_mov_b32 s{sCEN}, 0\ns_branch L_cen2_back")
A("L_done:")
if PROF:
    stamp(6)
    flush_stamps(32, 7)
    A(f"""
s_lshl_b32 s3, s2, 2
s_add_u32 s3, s3, s{sw}
s_lshl_b32 s3, s3, 8
s_add_u32 s3, s3, {PROF_OFF}
v_lshlrev_b32 v30, 2, v{vL}
v_add_u32 v30, s3, v30
global_store_dword v30, v{vPROF}, {sp(sWS)}""")
A("L_end:\ns_endpgm")
A.L.extend(OOL)
A.raw('.section .rodata,"a"'); A.raw(".p2align 6"); A.raw(f".amdhsa_kernel {NAME}_kernel")
for l in ["next_free_vgpr 512", "next_free_sgpr 102", "accum_offset 256", "group_segment_fixed_size 0", "kernarg_size 88",
          "user_sgpr_count 2", "user_sgpr_kernarg_segment_ptr 1", "system_sgpr_workgroup_id_x 1"]:
    A.raw("  .amdhsa_" + l)
A.raw(".end_amdhsa_kernel")
text = "\n".join(H) + "\n" + A.text()
if opt("al", 3):
    from align8 import align
    text, wd, np_ = align(text, None, opt("al", 3))
    print("aligned: widened", wd, "nops", np_, file=sys.stderr)
open(out, "w").write(text)
print("instrs", len(A.L), "nops inserted", A.nopcount, file=sys.stderr)
```

```python
import sys, math, struct
sys.path.insert(0, "gen")
from asmlib import Asm

NAME = "interleave_layers__gqa_block_cached__dense_activation_silu__decode"
out = sys.argv[1]
O = dict(kv.split("=") for kv in sys.argv[2:])
def opt(k, d): return type(d)(O.get(k, d))
PROF = opt("prof", 0); SWZ = opt("swz", 13)
SLEEP_B = opt("sb", 14); SLEEP_E = opt("se", 14); SLEEP_F = opt("sf", 8)
FORCE_SLOW = opt("slow", 0); EXP = opt("exp", "")
POL = {"nt": " nt", "none": "", "sc1": " sc1"}
PFO = POL[opt("pfo", "none")]; PF12 = POL[opt("pf12", "none")]; PFQ = POL[opt("pfq", "none")]; WPOL = POL[opt("wpol", "none")]
CW = opt("cw", 3); DROP = opt("drop", "").split(","); CLRP = " sc1" + POL[opt("clrpol", "none")]
W12PF = opt("w12pf", 1)
INO = opt("ino", 0); IN12 = opt("in12", 0)
WPOS0 = opt("wpos0", 20); WSTEP = opt("wstep", 2); MBG = opt("mbg", 1)
def f2u(x): return struct.unpack("<I", struct.pack("<f", x))[0]
LOG2E = 1.4426950408889634
QSCALE = LOG2E / math.sqrt(128.0)

ML, HS, YS, ZS, OS = 16384, 24576, 32768, 49152, 65536
QP = 65536 + 262144
LS = QP + 131072
EPO = 2 * LS; FLG = EPO + 1024; CS = FLG + 3072
WS_BYTES = CS + 65536
PROF_OFF = 16 << 20
LWQ = 0; KST = 16384; LW2 = LWQ
XB = KST + 4 * 32768; RED0 = XB + 2048; RED1 = RED0 + 1024; REDA = RED0 + 2048; ST0 = RED0 + 2560; MB = RED0 + 2688; OB = RED0 + 3072
QB = OB; XQ = RED0
LDS_BYTES = OB + 8192
assert LDS_BYTES <= 163840
sX, sK, sV, sWQ, sWO, sW1, sW2, sOUT, sWS = 4, 6, 8, 10, 12, 16, 18, 20, 24
rK, rV, rWQ, rWO, rW1, rW2, rWS = 28, 32, 36, 40, 44, 48, 52
sg, sb, sj, sw, sFAST, sLAYER, sBUD = 56, 57, 58, 59, 60, 61, 62
sSELLO, sSELHI = 63, 64
sQpub, sQget, sMLpub, sMLget, sHpub, sHget, sYpub, sYget, sZpub, sZget, sOpub, sOget = range(65, 77)
sYget1, sZget1 = 77, 78
sT0, sT1, sT2, sT3 = 26, 27, 14, 15
sVb, sKm, sOclr = 79, 80, 81
sTAG0, sTAG1 = 22, 23
sjf, sU, skq = 98, 99, 21 + 80
sCEN = 11
sYo, sZo = 4, 5
sSTAMP = 82
def srd(r): return f"s[{r}:{r+3}]"
def sp(r): return f"s[{r}:{r+1}]"
vL, vXBw, vXBr, vRED, vREDA, vQP, vMLad, vGad, vHad, vQad, vPAIR, vOBw = range(0, 12)
vSEL = 12; vX = 16
vOBr, vOpub, vMBw, vMBr, vST, vZpub = 20, 21, 22, 23, 24, 25
vVo = 26; vXQw = 27
aCS = 236; aXQr = 238; aQBw = 239
vQ = 28; vD0, vD1 = 44, 48; vROT = 52; vACC = 64; vR = 96
vPROF = 255
vW1o, vW2o, vT1, vT2, vTrO = 224, 225, 226, 227, 228
vSEL2 = 232
def vq(r, n=4): return f"v[{r}:{r+n-1}]"
def aq(r, n=4): return f"a[{r}:{r+n-1}]"
aK, aWQ, aWO, aW1, aW2 = 0, 128, 160, 192, 208
DUMMY = "a[252:255]"
Z1W = opt("z1w", 0)
aW2b = [144, 148, 152, 156, 240, 244, 248]

A = Asm()
uid = [0]
def lab(p):
    uid[0] += 1
    return f"L_{p}{uid[0]}"
def exec_set(lo, hi): A(f"s_mov_b32 exec_lo, {lo:#x}\ns_mov_b32 exec_hi, {hi:#x}")
def exec_all(): A("s_mov_b64 exec, -1")
def sreg(i): return sSTAMP + 2*i if i < 8 else {8: 0, 9: 6}[i]
def stamp(i):
    if PROF: A(f"s_mem{'time' if PROF >= 4 else 'realtime'} s[{sreg(i)}:{sreg(i)+1}]")
def flush_stamps(base, n):
    if not PROF: return
    A("s_waitcnt lgkmcnt(0)")
    for i in range(n): A(f"v_writelane_b32 v{vPROF}, s{sreg(i)}, {base+i}")
def retry(loop):
    A(f"s_sub_u32 s{sBUD}, s{sBUD}, 1\ns_cbranch_scc0 {loop}\ns_mov_b32 s{sBUD}, 0")
def pub_store(ins):
    a, b = lab("ps"), lab("pe")
    A(f"s_cmp_eq_u32 s{sFAST}, 0\ns_cbranch_scc1 {a}")
    A(ins, cond=True)
    A(f"s_branch {b}\n{a}:")
    A(ins + " sc1", cond=True)
    A(f"{b}:")
class only:
    def __init__(self, cc, reg, val):
        self.neg = {"eq": "lg", "lg": "eq", "lt": "ge", "ge": "lt"}[cc]; self.reg = reg; self.val = val
    def __enter__(self):
        self.l = lab("sk")
        A(f"s_cmp_{self.neg}_u32 s{self.reg}, {self.val}\ns_cbranch_scc1 {self.l}")
    def __exit__(self, *a): A(f"{self.l}:")
OOL = []
class ool:
    def __init__(self, cc, reg, val): self.cc = cc; self.reg = reg; self.val = val
    def __enter__(self):
        self.l = lab("oo"); self.b = lab("ob")
        A(f"s_cmp_{self.cc}_u32 s{self.reg}, {self.val}\ns_cbranch_scc1 {self.l}")
        self.save = A.L; A.L = []
        A(f"{self.l}:\ns_nop 7")
    def __exit__(self, *a):
        A(f"s_nop 4\ns_branch {self.b}")
        OOL.extend(A.L); A.L = self.save
        A(f"{self.b}:")
def mksrd(r, p, nbytes):
    A(f"s_mov_b32 s{r}, s{p}\ns_and_b32 s{r+1}, s{p+1}, 0xffff\ns_mov_b32 s{r+2}, {nbytes:#x}\ns_mov_b32 s{r+3}, 0x20000")
def dma(vo, r, sbase, m0reg, m0add, soffadd, tag, pol, cond=False):
    A(f"s_add_u32 m0, s{m0reg}, {m0add}\ns_add_u32 s3, s{sbase}, {soffadd}")
    A(f"buffer_load_dwordx4 v{vo}, {srd(r)}, s3 offen{pol} lds", tag=tag, cond=cond)
def tr_reads(adst, vbase, steps, tiles, sstep, tstep, second, base=0):
    for t in range(tiles):
        for s in range(steps):
            d = adst + (t*steps + s)*4
            A(f"ds_read_b64_tr_b16 a[{d}:{d+1}], v{vbase} offset:{base + s*sstep + t*tstep}")
            A(f"ds_read_b64_tr_b16 a[{d+2}:{d+3}], v{vbase} offset:{base + s*sstep + t*tstep + second}")
def pack_pairs(v, t):
    A(f"v_mov_b32_dpp v{t}, v{v} quad_perm:[1,0,3,2] row_mask:0xf bank_mask:0xf\nv_cvt_pk_bf16_f32 v{v}, v{v}, v{t}")
DPPF = "row_mask:0xf bank_mask:0xf"

hdr = open(f"cdna_kernels/{NAME}.s.ref").read().split("\n")
H = [l for l in hdr if l.startswith(";") and "@launch" not in l and not l.startswith("; Override") and not l.startswith("; grid=ceil")]
H.append(f"; @launch grid=(256,1,1) block=(256,1,1) lds={LDS_BYTES}")
A.raw('.amdgcn_target "amdgcn-amd-amdhsa--gfx950"')
A.raw(".text"); A.raw(f".globl {NAME}_kernel"); A.raw(".p2align 8"); A.raw(f".type {NAME}_kernel,@function")
A.raw(f"{NAME}_kernel:")

tn, tq = 31, 32
vKo = vR; vKr = vR + 4; vWa = vR + 8; vTa = vR + 9
vEP = vR + 10; vXr = vR + 12; vX0 = vR + 16; vX1 = vR + 20; vXA0 = vACC
stamp(0)
A(f"""
s_cmp_ge_u32 s2, 256
s_cbranch_scc1 L_end
s_load_dwordx16 s[4:19], s[0:1], 0
s_load_dwordx2 s[20:21], s[0:1], 64
s_load_dwordx2 s[24:25], s[0:1], 80
v_lshrrev_b32 v30, 6, v0
v_and_b32 v{vL}, 63, v0
s_and_b32 s{sg}, s2, 7
v_readfirstlane_b32 s{sw}, v30
s_lshr_b32 s{sU}, s2, 3               ; jj
s_lshr_b32 s{sb}, s{sU}, 4
s_and_b32 s{sj}, s{sU}, 15
s_and_b32 s3, s{sj}, 6
s_cmp_eq_u32 s3, 6
s_cselect_b32 s3, 8, 0
s_xor_b32 s{sjf}, s{sj}, s3
v_and_b32 v{tn}, 15, v{vL}
v_lshrrev_b32 v{tq}, 4, v{vL}
s_lshl_b32 s{sT0}, s2, 2
s_add_u32 s{sT0}, s{sT0}, s{sw}
s_mul_i32 s{sT0}, s{sT0}, {SWZ}
s_and_b32 s{sT0}, s{sT0}, 31      ; r
s_lshl_b32 s{sT1}, s{sb}, 3
s_add_u32 s{sT1}, s{sT1}, s{sg}   ; bg
s_lshl_b32 s{sVb}, s{sT1}, 21
s_lshl_b32 s3, s{sj}, 17
s_add_u32 s{sVb}, s{sVb}, s3
s_lshl_b32 s3, s{sw}, 15
s_add_u32 s{sVb}, s{sVb}, s3
s_add_u32 s{sKm}, s3, {KST}
s_lshl_b32 s3, s{sT0}, 10
s_add_u32 s{sVb}, s{sVb}, s3
v_lshlrev_b32 v{vVo}, 4, v{vL}
v_mov_b32 v{vKo}, v{vVo}
v_xor_b32 v{vKo+1}, 64, v{vVo}
v_xor_b32 v{vKo+2}, 128, v{vVo}
v_xor_b32 v{vKo+3}, 192, v{vVo}
v_lshrrev_b32 v35, 3, v{vL}
v_and_b32 v36, 7, v{vL}
v_lshlrev_b32 v36, 4, v36
v_lshl_add_u32 v{vWa}, v35, 13, v36
s_and_b32 s{sT1}, s{sU}, 3            ; kq
s_lshl_b32 s{sBUD}, s{sT1}, 20
s_lshl_b32 s3, s{sw}, 18
s_add_u32 s{sBUD}, s{sBUD}, s3
s_lshl_b32 s3, s{sg}, 10
s_add_u32 s{sBUD}, s{sBUD}, s3
s_lshr_b32 s{sT0}, s{sU}, 2           ; cb
s_lshl_b32 s3, s{sT0}, 7
s_add_u32 s{sBUD}, s{sBUD}, s3
s_lshl_b32 s{sLAYER}, s{sw}, 12
s_mov_b32 s{skq}, s{sT1}
s_lshl_b32 s{sQpub}, s{sg}, 13
s_lshl_b32 s3, s{sT0}, 8
s_add_u32 s{sQpub}, s{sQpub}, s3
s_lshl_b32 s3, s{sT1}, 11
s_add_u32 s{sQpub}, s{sQpub}, s3
; x addresses
v_and_b32 v33, 1, v{tq}
v_lshlrev_b32 v33, 3, v33
v_lshl_add_u32 v33, v{tn}, 4, v33      ; 16n+8(q&1)
s_lshl_b32 s3, s{sb}, 10
s_lshl_b32 s{sT0}, s{sw}, 8
s_add_u32 s3, s3, s{sT0}
v_add_u32 v34, s3, v33
v_lshrrev_b32 v35, 5, v{vL}
v_lshlrev_b32 v35, 10, v35
v_xor_b32 v34, v34, v35
v_mov_b32 v37, {EPO}
s_lshl_b32 s{sU}, s{sU}, 2
s_add_u32 s{sU}, s{sU}, s{sw}          ; u = jj*4+w
s_waitcnt lgkmcnt(0)
""")
def scalars():
    A(f"""
s_mov_b32 s{sSELLO}, 0x05040100
s_mov_b32 s{sSELHI}, 0x07060302
s_lshl_b32 s{sT1}, s{sg}, 1
s_add_u32 s{sT1}, s{sT1}, s{sb}          ; gb
s_lshl_b32 s{sQget}, s{sb}, 3
s_add_u32 s{sQget}, s{sQget}, s{sg}
s_lshl_b32 s{sQget}, s{sQget}, 13
s_lshl_b32 s3, s{sw}, 9
s_add_u32 s{sQget}, s{sQget}, s3
s_add_u32 s{sQget}, s{sQget}, {QP}
s_lshl_b32 s{sMLget}, s{sT1}, 9
s_add_u32 s{sHget}, s{sMLget}, {HS}
s_add_u32 s{sMLget}, s{sMLget}, {ML}
s_lshl_b32 s3, s{sj}, 5
s_add_u32 s{sT2}, s{sMLget}, s3
s_lshl_b32 s3, s{sjf}, 5
s_add_u32 s{sHpub}, s{sHget}, s3
s_lshl_b32 s3, s{sj}, 3
s_add_u32 s{sMLpub}, s{sMLget}, s3
s_lshl_b32 s3, s{sw}, 7
s_add_u32 s{sMLget}, s{sMLget}, s3
s_lshl_b32 s{sOget}, s{sT1}, 14
s_add_u32 s{sOget}, s{sOget}, {OS}
s_lshl_b32 s3, s{sj}, 10
s_add_u32 s{sOclr}, s{sOget}, s3
s_lshl_b32 s3, s{sj}, 4
s_add_u32 s{sOpub}, s{sOget}, s3
s_lshl_b32 s3, s{sw}, 10
s_add_u32 s{sOpub}, s{sOpub}, s3
s_lshl_b32 s3, s{sw}, 12
s_add_u32 s{sOget}, s{sOget}, s3
s_lshl_b32 s{sYget}, s{sb}, 13
s_add_u32 s{sYget}, s{sYget}, {YS}
s_add_u32 s{sYget1}, s{sYget}, 4096
s_add_u32 s{sZget}, s{sYget}, {ZS-YS}
s_add_u32 s{sZget1}, s{sZget}, 4096
s_lshl_b32 s3, s{sg}, 10
s_add_u32 s{sYpub}, s{sYget}, s3
s_lshl_b32 s3, s{sj}, 6
s_add_u32 s{sYpub}, s{sYpub}, s3
s_add_u32 s{sZpub}, s{sYpub}, {ZS-YS}
""")
def clears():
    A(f"""
v_mul_u32_u24 v47, {LS}, v{tq}
v_mov_b32 v45, s{sYpub}
v_mov_b32 v46, s{sT2}
v_subrev_u32 v46, 64, v46
v_cmp_le_u32 vcc, 4, v{tn}
v_cndmask_b32 v45, v45, v46, vcc
v_mov_b32 v46, s{sHpub}
v_subrev_u32 v46, 96, v46
v_cmp_le_u32 vcc, 6, v{tn}
v_cndmask_b32 v45, v45, v46, vcc
v_mov_b32 v46, s{sYpub}
v_subrev_u32 v46, 128, v46
v_cmp_le_u32 vcc, 8, v{tn}
v_cndmask_b32 v45, v45, v46, vcc
v_mov_b32 v46, s{sZpub}
v_subrev_u32 v46, 192, v46
v_cmp_le_u32 vcc, 12, v{tn}
v_cndmask_b32 v45, v45, v46, vcc
v_lshl_add_u32 v45, v{tn}, 4, v45
v_add_u32 v45, v45, v47
s_add_u32 s3, s{sQpub}, {CS}
v_lshlrev_b32 v46, 4, v{tn}
v_add_u32 v47, s3, v46
v_cmp_le_u32 vcc, 32, v{vL}
v_cndmask_b32 v45, v45, v47, vcc
v_and_b32 v47, 1, v{tq}
v_lshl_add_u32 v46, v47, 16, v46
v_lshrrev_b32 v47, 1, v{tq}
v_mul_u32_u24 v47, {LS}, v47
v_add_u32 v46, v46, v47
s_add_u32 s{sT2}, s{sQpub}, {QP}
v_mov_b32 v48, -1
v_mov_b32 v49, -1
v_mov_b32 v50, -1
v_mov_b32 v51, -1
s_add_u32 s3, s{sOclr}, {LS}
""")
    exec_set(0xffffffff, 0xffff)
    A(f"buffer_store_dwordx4 v[48:51], v45, {srd(rWS)}, 0 offen{CLRP}", cond=True)
    exec_all()
    A(f"buffer_store_dwordx4 v[48:51], v46, {srd(rWS)}, s{sT2} offen{CLRP}", cond=True)
    A(f"buffer_store_dwordx4 v[48:51], v{vVo}, {srd(rWS)}, s{sOclr} offen{CLRP}", cond=True)
    A(f"buffer_store_dwordx4 v[48:51], v{vVo}, {srd(rWS)}, s3 offen{CLRP}", tag="clr", cond=True)
def tags():
    A(f"""
v_readfirstlane_b32 s{sTAG0}, v{vEP}
v_readfirstlane_b32 s{sTAG1}, v{vEP+1}
s_add_u32 s{sTAG0}, s{sTAG0}, 1
s_andn2_b32 s{sTAG1}, s{sTAG1}, 15""")
def flag():
    with (ool if opt("ool", 0) else only)("eq", sw, CW):
        A.vwait("clr")
        tags()
        A(f"""
s_getreg_b32 s3, hwreg(HW_REG_XCC_ID, 0, 4)
s_or_b32 s3, s3, s{sTAG1}
v_mov_b32 v46, s{sTAG0}
v_mov_b32 v47, s3
s_lshl_b32 s3, s{sb}, 3
s_add_u32 s3, s3, s{sg}
s_lshl_b32 s3, s3, 4
s_add_u32 s3, s3, s{sj}
s_lshl_b32 s3, s3, 3
s_add_u32 s3, s3, {FLG}
v_mov_b32 v45, 0""")
        exec_set(1, 0)
        A(f"buffer_store_dwordx2 v[46:47], v45, {srd(rWS)}, s3 offen sc1", cond=True)
        exec_all()
def kdma(n):
    A(f"s_add_u32 m0, s{sKm}, {n*1024}\ns_xor_b32 s{sT0}, s{sVb}, {n*1024}")
    A(f"buffer_load_dwordx4 v{vKo+(n&3)}, {srd(rK)}, s{sT0} offen{POL[opt('kvpol','nt')]} lds", tag=f"K{n}")
def kread(k):
    A.vwait(f"K{4*k+3}")
    for s in range(4): A(f"ds_read_b128 {aq(aK+16*k+4*s)}, v{vKr+s} offset:{k*4096}")
def vload(n):
    A(f"s_xor_b32 s{sT1}, s{sVb}, {n*1024}")
    A(f"buffer_load_dwordx4 {vq(vR+32+4*n)}, v{vVo}, {srd(rV)}, s{sT1} offen{POL[opt('kvpol','nt')]}", tag=f"V{n}")
base = [("K", n) for n in range(32)] + [("V", n) for n in range(32)]
wl = []
if IN12: wl += [("W1", i) for i in range(4)] + [("W2", i) for i in range(4)]
if INO: wl = [("WO", i) for i in range(8)] + wl if opt("worder", 0) == 0 else wl + [("WO", i) for i in range(8)]
pend = []
for kind, n in base:
    pend.append((kind, n))
    pos = n if kind == "K" else 32 + n
    if wl and pos >= WPOS0 and (pos - WPOS0) % WSTEP == 0:
        pend.append(wl.pop(0)); assert pos < 32 + 8*MBG + 7
assert not wl
kr = [0]; allow_kread = [False]; wfirst = [True]
sWOb, sW1b, sW2b = 8, 9, 10
def wdma(kind, n):
    if "w" in DROP:
        if opt("fakew", 0):
            A(f"s_lshl_b32 s3, s{sU}, 12\ns_lshl_b32 s{sWOb}, s{sg}, 19\ns_add_u32 s{sWOb}, s{sWOb}, s3")
            fk = [("WO", i) for i in range(4)] + [("W1", 0), ("W1", 1), ("W2", 0), ("W2", 1)]
            if kind == "WO" and n < 4: A(f"buffer_load_dwordx4 {DUMMY}, v{vVo}, {srd(rWO)}, s{sWOb} offen offset:{1024*n} nt")
            if kind == "W1":
                A(f"s_lshl_b32 s3, s2, 2\ns_add_u32 s3, s3, s{sw}\ns_mul_i32 s3, s3, 1792")
                if n < 2: A(f"buffer_load_dwordx4 {DUMMY}, v{vVo}, {srd(rW1)}, s3 offen offset:{768*n} nt")
                else: A(f"buffer_load_dwordx4 {DUMMY}, v{vVo}, {srd(rW2)}, s3 offen offset:{768*(n-2)} nt")
        return
    if wfirst[0]:
        wfirst[0] = False
        assert kr[0] >= 4
        A(f"""s_waitcnt lgkmcnt(0)
v_lshrrev_b32 v111, 2, v{vL}
v_and_b32 v112, 3, v{vL}
v_lshlrev_b32 v112, 4, v112
v_lshl_add_u32 v111, v111, 10, v112
v_lshrrev_b32 v112, 1, v{vL}
v_mul_u32_u24 v112, 3584, v112
v_and_b32 v113, 1, v{vL}
v_lshl_add_u32 v112, v113, 4, v112
s_lshl_b32 s{sWOb}, s{sg}, 19
s_lshl_b32 s3, s{sw}, 17
s_add_u32 s{sWOb}, s{sWOb}, s3
s_lshl_b32 s3, s{sj}, 6
s_add_u32 s{sWOb}, s{sWOb}, s3
s_mul_i32 s{sW2b}, s{sg}, {224*1024}
s_add_u32 s{sW2b}, s{sW2b}, s3
s_lshl_b32 s3, s{sw}, 14
s_add_u32 s{sW2b}, s{sW2b}, s3
s_mul_i32 s{sW1b}, s{sw}, {128*3584}
s_mul_i32 s3, s{sg}, 448
s_add_u32 s{sW1b}, s{sW1b}, s3
s_lshl_b32 s3, s{sjf}, 5
s_add_u32 s{sW1b}, s{sW1b}, s3""")
    if kind == "WO": dma(111, rWO, sWOb, sKm, 1024*n, n << 14, f"WO{n}", " nt")
    elif kind == "W1":
        with only("lt", sjf, 14): dma(112, rW1, sW1b, sKm, 8192 + 1024*n, n*32*3584, "W1", " nt", cond=True)
    elif n < 3: dma(111, rW2, sW2b, sKm, 12288 + 1024*n, n*64*1024, "W2", " nt")
    else:
        with only("lt", sw, 2): dma(111, rW2, sW2b, sKm, 12288 + 1024*n, n*64*1024, "W2", " nt", cond=True)
def stream(k=1, upto=None):
    if upto is not None:
        nxt = [n if kd == "K" else 32 + n for kd, n in pend if kd in "KV"][0]
        if nxt > upto: return
    while pend and (k > 0 or upto is not None):
        kind, n = pend.pop(0)
        if kind[0] == "W":
            wdma(kind, n); continue
        kdma(n) if kind == "K" else vload(n)
        pos = n if kind == "K" else 32 + n
        if PFOPOS > 0 and pos == PFOPOS: pf_wo()
        if allow_kread[0]:
            while kr[0] < 8 and 4*kr[0] + 3 + opt("klag", 16) <= pos:
                kread(kr[0]); kr[0] += 1
        k -= 1
        if upto is not None and pos == upto: break
        if upto is None and k <= 0: break

def pf_wo():
    A(f"s_lshl_b32 s3, s{sU}, 12\ns_lshl_b32 s{sT2}, s{sg}, 19\ns_add_u32 s{sT2}, s{sT2}, s3")
    for i in range(4): A(f"buffer_load_dwordx4 {DUMMY}, v{vVo}, {srd(rWO)}, s{sT2} offen offset:{1024*i}{PFO}")
    for x in range(1, opt("redo", 1)):
        A(f"s_xor_b32 s3, s{sT2}, {[0, 64, 32, 96][x] << 12}")
        for i in range(4): A(f"buffer_load_dwordx4 {DUMMY}, v{vVo}, {srd(rWO)}, s3 offen offset:{1024*i}{PFO}")
PFOPOS = opt('pfopos', -1)
mksrd(rWQ, sWQ, 512*4096*2); mksrd(rK, sK, 1 << 25); mksrd(rWS, sWS, WS_BYTES)
if PFOPOS >= 0: mksrd(rWO, sWO, 4096*512*2)
A(f"global_load_dwordx2 {vq(vEP,2)}, v37, {sp(sWS)} sc1", tag="ep")
with (ool if opt("ool", 0) else only)("eq", sw, CW):
    scalars()
    if "clr" not in DROP: clears()
    else: A.vq.append(("clr", True))
if "wa" not in DROP:
    for i in range(4): dma(vWa, rWQ, sBUD, sLAYER, LWQ + 1024*i, i << 16, f"WA{i}", " nt")
A(f"global_load_dwordx2 {vq(vXr,2)}, v34, {sp(sX)}", tag="x")
if PFOPOS == 0: pf_wo()
stream(opt("k0", 6))
stamp(1)
mksrd(rV, sV, 1 << 25); mksrd(rWO, sWO, 4096*512*2); mksrd(rW1, sW1, 512*1792*2); mksrd(rW2, sW2, 1792*512*2)
if opt("ool", 0): scalars()
else:
    with only("lg", sw, CW): scalars()
A(f"s_mov_b32 s{sLAYER}, 0\ns_mov_b32 s{sBUD}, 400000")
TLB = opt("tlb", 0)
if TLB:
    exec_set(1, 0)
    A(f"v_mov_b32 v44, 0")
    A(f"buffer_load_dword a255, v44, {srd(rV)}, s{sVb} offen nt")
    if TLB in (2, 3):
        A(f"s_lshl_b32 s3, s{sg}, 19")
        A(f"buffer_load_dword a255, v44, {srd(rWO)}, s3 offen nt")
        A(f"s_mul_i32 s3, s{sw}, {128*3584}")
        A(f"buffer_load_dword a255, v44, {srd(rW1)}, s3 offen nt")
        A(f"s_mul_i32 s3, s{sg}, {224*1024}")
        A(f"buffer_load_dword a255, v44, {srd(rW2)}, s3 offen nt")
    if TLB == 3:
        A(f"global_load_dword a255, v44, {sp(sOUT)} nt")
    if TLB == 4:
        A(f"s_or_b32 s3, s{sg}, s{sj}")
        with only("eq", 3, 0): A(f"global_load_dword a255, v44, {sp(sOUT)} nt", cond=True)
    exec_all()
A(f"""
s_lshl_b32 s3, s{sw}, 9
s_add_u32 s3, s3, {XB}
v_add_u32 v{vXBw}, s3, v33
v_lshrrev_b32 v44, 3, v{tn}
v_lshlrev_b32 v44, 8, v44
v_lshl_add_u32 v44, v{tq}, 4, v44
v_add_u32 v{vXBr}, s3, v44
v_lshlrev_b32 v47, 2, v{vL}                ; 4l
v_add_u32 v44, s3, v47
v_mov_b32 v41, 0x3f803f80
ds_write_b32 v44, v41 offset:256
s_lshl_b32 s3, s{sw}, 2
s_add_u32 s{sT1}, s3, {RED1}
v_add_u32 v{vRED}, s{sT1}, v{vVo}
v_lshrrev_b32 v46, 5, v{vL}
v_lshl_add_u32 v46, v46, 4, v{tn}
v_lshlrev_b32 v46, 4, v46
s_add_u32 s{sT1}, s3, {REDA}
v_add_u32 v{vREDA}, s{sT1}, v46
s_add_u32 s{sT1}, s3, {ST0}
v_mov_b32 v{vST}, s{sT1}
v_and_b32 v42, 3, v{vL}                    ; l&3
v_lshlrev_b32 v43, 4, v42
v_add_u32 v{vMBw}, {MB}, v43
v_add_u32 v{vMBw}, s3, v{vMBw}
s_lshl_b32 s3, s{sw}, 8
v_lshlrev_b32 v43, 4, v{tq}                ; 16q
v_add_u32 v{vMBr}, {MB}, v43
v_and_b32 v44, 1, v{tq}
v_lshlrev_b32 v44, 16, v44
v_lshl_add_u32 v{vQP}, v{tn}, 2, v44       ; batch*65536 + 4n
v_lshrrev_b32 v44, 5, v{vL}
v_xor_b32 v44, s{sb}, v44
v_lshlrev_b32 v44, 8, v44
v_add_u32 v44, {XQ}, v44
v_add_u32 v{vXQw}, v44, v33
v_bfe_u32 v44, v{vL}, 2, 1
v_lshlrev_b32 v44, 8, v44
v_add3_u32 v44, v44, v43, 0
v_add_u32 v44, {XQ}, v44
v_accvgpr_write_b32 a{aXQr}, v44
v_lshrrev_b32 v44, 2, v{vL}
v_lshlrev_b32 v44, 6, v44
v_lshl_add_u32 v44, v42, 2, v44
s_lshl_b32 s{sT1}, s{sw}, 4
s_add_u32 s{sT1}, s{sT1}, {QB}
v_add_u32 v44, s{sT1}, v44
v_accvgpr_write_b32 a{aQBw}, v44
v_lshlrev_b32 v44, 4, v{tn}
v_lshl_add_u32 v44, v{tq}, 10, v44
v_add_u32 v{vGad}, s3, v44
v_mov_b32 v{vHad}, v43
v_lshlrev_b32 v44, 4, v42
v_lshl_add_u32 v{vQad}, v{tq}, 6, v44
v_add_u32 v{vQad}, {QB}, v{vQad}
v_lshl_add_u32 v44, v{tq}, 2, v42
v_lshlrev_b32 v{vMLad}, 3, v44
v_lshrrev_b32 v44, 1, v{vL}
v_lshlrev_b32 v{vPAIR}, 2, v44
s_lshl_b32 s3, s{sw}, 11
s_add_u32 s3, s3, {OB}
v_lshlrev_b32 v44, 4, v{tn}
v_add_u32 v{vOBw}, s3, v{vVo}
s_lshl_b32 s3, s{sw}, 9
s_add_u32 s3, s3, {OB}
v_lshl_add_u32 v44, v{tq}, 2, v44
v_add_u32 v{vOBr}, s3, v44
v_lshrrev_b32 v45, 2, v{tn}                ; n>>2
v_lshlrev_b32 v44, 8, v45
v_lshl_add_u32 v44, v42, 2, v44
v_lshl_add_u32 v{vOpub}, v{tq}, 12, v44
s_and_b32 s3, s{sw}, 1
s_lshl_b32 s3, s3, 5
v_lshlrev_b32 v44, 3, v{tq}
v_add_u32 v{vZpub}, s3, v44
{"v_and_b32 v46, 4, v%d" % tn if Z1W else ""}
{"v_lshl_add_u32 v%d, v46, 3, v44" % vZpub if Z1W else ""}
v_mul_u32_u24 v44, 1088, v42
v_lshl_add_u32 v44, v45, 8, v44
v_add_u32 v44, v44, v43
""")
for s in range(4): A(f"v_xor_b32 v46, {64*s}, v44\nv_add_u32 v{vKr+s}, s{sKm}, v46")
A(f"""
v_and_b32 v44, 1, v{tn}
v_lshlrev_b32 v44, 4, v44
v_mov_b32 v46, 0x3f80
v_lshlrev_b32 v46, v44, v46
v_lshrrev_b32 v44, 1, v{tn}
""")
for i in range(4): A(f"v_cmp_eq_u32 vcc, {i}, v44\nv_cndmask_b32 v{vSEL+i}, 0, v46, vcc")
A(f"""
v_lshl_add_u32 v46, v{tq}, 3, v45          ; 8q+r
v_lshlrev_b32 v46, 7, v46
v_lshl_add_u32 v46, v42, 3, v46
s_lshl_b32 s3, s{sw}, 5
v_add_u32 v{vTa}, s3, v46
""")
stream(opt("k1", 2))
if opt("fpos", 12) < 0: flag()

vXP = 28; vXA = 32; vG0 = 48
vS, vSQ, vTm = 30, 31, 56
vMean, vRs = 62, 63
def unpack_x():
    A(f"""
v_lshlrev_b32 v{vX}, 16, v{vXP}
v_and_b32 v{vX+1}, 0xffff0000, v{vXP}
v_lshlrev_b32 v{vX+2}, 16, v{vXP+1}
v_and_b32 v{vX+3}, 0xffff0000, v{vXP+1}""")
def stat_ops():
    o = [f"v_add_f32 v{vS}, v{vX}, v{vX+1}", f"v_mul_f32 v{vSQ}, v{vX}, v{vX}", f"v_add_f32 v{vTm}, v{vX+2}, v{vX+3}",
         f"v_fmac_f32 v{vSQ}, v{vX+1}, v{vX+1}", f"v_add_f32 v{vS}, v{vS}, v{vTm}",
         f"v_fmac_f32 v{vSQ}, v{vX+2}, v{vX+2}", f"v_fmac_f32 v{vSQ}, v{vX+3}, v{vX+3}"]
    for c in ("row_ror:8 " + DPPF, "row_ror:4 " + DPPF, "row_ror:2 " + DPPF, "row_ror:1 " + DPPF, "row_bcast:15 row_mask:0xa bank_mask:0xf"):
        o += [f"v_add_f32_dpp v{vS}, v{vS}, v{vS} {c}", f"v_add_f32_dpp v{vSQ}, v{vSQ}, v{vSQ} {c}"]
    return o
def stat_write(st_off):
    exec_set(0x10000, 0)
    A(f"ds_write2_b32 v{vST}, v{vS}, v{vSQ} offset0:{st_off//4} offset1:{st_off//4+4}")
    exec_all()
def qproj(first):
    with only("eq", sw, f"s{skq}"): A(f"ds_write_b64 v{vXQw}, v[{vXP}:{vXP+1}]")
    A(f"v_accvgpr_read_b32 v57, a{aXQr}")
    unpack_x()
    for i in stat_ops(): A(i)
    stat_write(0)
    A("s_waitcnt lgkmcnt(0)\ns_barrier")
    if first:
        tr_reads(aWQ, vTa, 4, 1, 4096, 0, 512, base=LWQ)
        stream(2)
    for s_ in range(4): A(f"ds_read_b128 {vq(vXA+4*s_)}, v57 offset:{64*s_}")
    A(f"v_mov_b32 v58, {ST0}")
    A(f"ds_read_b128 v[52:55], v58\nds_read_b128 v[56:59], v58 offset:16")
    A(f"s_lshl_b32 s3, s{sw}, 6\ns_add_u32 s3, s3, s{sQpub}\ns_add_u32 s{sT2}, s3, {CS}\ns_add_u32 s3, s3, {QP}")
    for s_ in range(4):
        A(f"s_waitcnt lgkmcnt({0 if (PROF or first) else 5-s_})")
        A(f"v_mfma_f32_16x16x32_bf16 {vq(vG0)}, {vq(vXA+4*s_)}, {aq(aWQ+4*s_)}, {'0' if s_ == 0 else vq(vG0)}")
    A(f"""s_waitcnt lgkmcnt(0)
v_add_f32 v52, v52, v53
v_add_f32 v54, v54, v55
v_add_f32 v56, v56, v57
v_add_f32 v58, v58, v59
v_add_f32 v52, v52, v54
v_add_f32 v56, v56, v58""")
    if not first:
        exec_set(0xffffffff, 0)
        pub_store(f"buffer_store_dword v{vG0}, v{vQP}, {srd(rWS)}, s3 offen")
        exec_all()
    else: stream(2)
    A(f"""
v_mul_f32 v{vMean}, {f2u(1.0/512):#x}, v52
v_mul_f32 v56, {f2u(1.0/512):#x}, v56
v_fma_f32 v56, -v{vMean}, v{vMean}, v56
v_max_f32 v56, 0, v56
v_add_f32 v56, {f2u(1e-5):#x}, v56
v_rsq_f32 v56, v56
v_mul_f32 v{vRs}, {f2u(QSCALE):#x}, v56""")
    if first:
        for i in range(4): A(f"v_mov_b32 v{vXA+i}, 0x3f803f80")
        for s_ in range(4):
            A(f"v_mfma_f32_16x16x32_bf16 v[52:55], {vq(vXA)}, {aq(aWQ+4*s_)}, {'0' if s_ == 0 else 'v[52:55]'}")
        if opt("fpos", 12) >= 0:
            stream(upto=opt("fpos", 12))
            flag()
            stream(upto=opt("b2pos", 16))
            A("s_barrier")
        A(f"s_lshl_b32 s3, s{sw}, 6\ns_add_u32 s3, s3, s{sQpub}\ns_add_u32 s{sT2}, s3, {CS}\ns_add_u32 s3, s3, {QP}")
        exec_set(0xffffffff, 0)
        A(f"buffer_store_dword v{vG0}, v{vQP}, {srd(rWS)}, s3 offen sc1")
        exec_set(0xffff, 0)
        A(f"buffer_store_dword v52, v{vQP}, {srd(rWS)}, s{sT2} offen sc1")
        exec_all()
def q_loads(dst, soff, tag=None, cond=False):
    for k in range(4): A(f"buffer_load_dwordx2 v[{dst+2*k}:{dst+2*k+1}], v60, {srd(rWS)}, s{soff} offen offset:{2048*k if k < 2 else 2048*(k-2)} sc1" if k < 2 else
                         f"buffer_load_dwordx2 v[{dst+2*k}:{dst+2*k+1}], v61, {srd(rWS)}, s{soff} offen offset:{2048*(k-2)} sc1", tag=tag, cond=cond)
def q_addr(): A(f"v_lshlrev_b32 v60, 3, v{vL}\nv_add_u32 v61, 4096, v60")
def sum4(d):
    A(f"v_add_f32 v{d}, v{d}, v{d+2}\nv_add_f32 v{d+1}, v{d+1}, v{d+3}\nv_add_f32 v{d+4}, v{d+4}, v{d+6}\nv_add_f32 v{d+5}, v{d+5}, v{d+7}\nv_add_f32 v{d}, v{d}, v{d+4}\nv_add_f32 v{d+1}, v{d+1}, v{d+5}")
def q_finish(cs):
    A(f"""
v_fma_f32 v44, -v{vMean}, v{cs}, v44
v_fma_f32 v45, -v{vMean}, v{cs+1}, v45
v_mul_f32 v44, v44, v{vRs}
v_mul_f32 v45, v45, v{vRs}
v_cvt_pk_bf16_f32 v44, v44, v45
ds_write_b32 v59, v44
s_waitcnt lgkmcnt(0)
s_barrier""")
    for s_ in range(4): A(f"ds_read_b128 {vq(vQ+4*s_)}, v{vQad} offset:{256*s_}")
A.vwait("x")
stamp(2)
tags()
A(f"""
s_cmp_eq_u32 s{sw}, s{skq}
s_cselect_b32 s3, 64, 32
v_cmp_gt_u32 vcc, s3, v{vL}
v_cndmask_b32 v{vXP}, 0, v{vXr}, vcc
v_cndmask_b32 v{vXP+1}, 0, v{vXr+1}, vcc
s_xor_b32 s{sYo}, s{sYget}, 8192
s_xor_b32 s{sZo}, s{sZget}, 8192""")
qproj(True)
stamp(3)
allow_kread[0] = True
stream(upto=opt("cenpos", 30))
def cen_loads(cond):
    A(f"s_mov_b32 s3, {FLG}")
    A(f"buffer_load_dwordx4 v[32:35], v{vVo}, {srd(rWS)}, s3 offen sc1", cond=cond)
    A(f"buffer_load_dwordx4 v[36:39], v{vVo}, {srd(rWS)}, s3 offen offset:1024 sc1", tag="cen", cond=cond)
if "cen" not in DROP: cen_loads(False)
else: A.vq.append(("cen", True))
stream(opt("cenlag", 10))
A.vwait("cen")
lcen, lcok = lab("cen"), lab("cok")
A(f"{lcen}:")
if "cen" in DROP or "clr" in DROP: A(f"s_branch {lcok}")
for i in range(4):
    A(f"v_xor_b32 v{32+2*i}, s{sTAG0}, v{32+2*i}\nv_xor_b32 v{33+2*i}, s{sTAG1}, v{33+2*i}")
CSPLIT = opt("csplit", 1)
A(f"""
v_or3_b32 v40, v33, v35, v37
v_or3_b32 v42, v32, v34, v36
v_or_b32 v40, v40, v39
v_and_b32 v40, -16, v40
v_or3_b32 v40, v40, v42, v38
v_cmp_ne_u32 vcc, 0, v40""")
if CSPLIT: A(f"""s_or_b32 s{sCEN}, vcc_lo, vcc_hi
s_lshl_b32 s3, s{sg}, 3
s_lshr_b64 s[{sT2}:{sT2+1}], vcc, s3
s_and_b32 s{sT2}, s{sT2}, 0xff
s_cbranch_scc0 {lcok}
s_sleep 4""")
else: A(f"s_cbranch_vccz {lcok}\ns_sleep 4")
cen_loads(True)
A("s_waitcnt vmcnt(0)")
retry(lcen)
A(f"{lcok}:")
stamp(4)
if PROF: A(f"s_mov_b32 s12, s{sBUD}")
A(f"""
s_getreg_b32 s3, hwreg(HW_REG_XCC_ID, 0, 4)
v_xor_b32 v33, s3, v33
v_xor_b32 v35, s3, v35
v_xor_b32 v37, s3, v37
v_xor_b32 v39, s3, v39
v_or_b32 v33, v33, v35
v_or3_b32 v33, v33, v37, v39
v_cmp_eq_u32 vcc, 0, v33
s_lshl_b32 s3, s{sg}, 3
s_lshr_b64 s[{sT2}:{sT2+1}], vcc, s3
s_and_b32 s{sT2}, s{sT2}, 0xff
s_cmp_eq_u32 s{sT2}, 0xff
s_cselect_b32 s{sFAST}, {0 if FORCE_SLOW else 1}, 0
s_lshl_b32 s{sT3}, s{sg}, 13
s_lshl_b32 s3, s{sw}, 9
s_add_u32 s{sT3}, s{sT3}, s3
s_add_u32 s{sT3}, s{sT3}, {CS}""")
q_addr()
stream(upto=opt("qpos", 42))
if "q" not in DROP: q_loads(44, sQget); q_loads(32, sT3, tag="Q")
else: A.vq.append(("Q", True))
stream(opt("qlag", 8))
A.vwait("Q")
lq1, lq1ok = lab("ql"), lab("qlok")
A(f"{lq1}:")
if DROP != [""] and DROP != ["w"]: A(f"s_branch {lq1ok}")
sum4(44); sum4(32)
A(f"""v_add_f32 v40, v44, v45
v_add_f32 v41, v32, v33
v_cmp_u_f32 vcc, v40, v41
s_cbranch_vccz {lq1ok}""")
q_loads(44, sQget, cond=True); q_loads(32, sT3, cond=True)
A("s_waitcnt vmcnt(0)")
retry(lq1)
A(f"""{lq1ok}:
v_accvgpr_write_b32 a{aCS}, v32
v_accvgpr_write_b32 a{aCS+1}, v33
v_accvgpr_read_b32 v59, a{aQBw}
v_mov_b32 v56, v32
v_mov_b32 v57, v33""")
assert kr[0] == 8
if PROF: A(f"s_mov_b32 s13, s{sBUD}")
q_finish(56)
stream(1)
A(f"s_waitcnt lgkmcnt(0)")
stamp(5)

def qk(filler=None):
    tiles = [(t, u) for t in range(4) for u in range(2)]
    def dreg(k):
        t, u = tiles[k]
        return (vD0 if u == 0 else vD1) if t == 0 else vROT + 4*(k % 3)
    def sel(k):
        t, u = tiles[k]
        if t == 0: return []
        return [f"v_mov_b32_dpp v{(vD0 if u == 0 else vD1)+r}, v{dreg(k)+r} quad_perm:[0,1,2,3] row_mask:0xf bank_mask:{1 << t:#x}" for r in range(4)]
    for k in range(8):
        ex = sel(k-2) if k >= 2 else []
        for s in range(4):
            c = "0" if s == 0 else vq(dreg(k))
            A(f"v_mfma_f32_16x16x32_bf16 {vq(dreg(k))}, {aq(aK+16*k+4*s)}, {vq(vQ+4*s)}, {c}")
            if ex: A(ex.pop(0))
        if filler: filler(k)
    for k in (6, 7):
        for i in sel(k): A(i)
vM, vTt, vLs, vP = 32, 33, 34, 28
vF = 36; vMM = 40
def softmax():
    A(f"""
v_max3_f32 v{vM}, v{vD0}, v{vD0+1}, v{vD0+2}
v_max3_f32 v{vTt}, v{vD0+3}, v{vD1}, v{vD1+1}
v_max3_f32 v{vM}, v{vM}, v{vD1+2}, v{vD1+3}
v_max_f32 v{vM}, v{vM}, v{vTt}
v_max_f32_dpp v{vM}, v{vM}, v{vM} row_ror:4 {DPPF}
v_max_f32_dpp v{vM}, v{vM}, v{vM} row_ror:8 {DPPF}
v_mov_b32 v{vTt}, v{vM}
v_permlane16_swap_b32 v{vM}, v{vTt}
v_max_f32 v{vM}, v{vM}, v{vTt}
v_mov_b32 v{vTt}, v{vM}
v_permlane32_swap_b32 v{vM}, v{vTt}
v_max_f32 v{vM}, v{vM}, v{vTt}""")
    for r in range(8): A(f"v_sub_f32 v{vD0+r}, v{vD0+r}, v{vM}")
    A(f"ds_write_b32 v{vMBw}, v{vM}")
    for r in range(8): A(f"v_exp_f32 v{vD0+r}, v{vD0+r}")
    for p in range(4): A(f"v_cvt_pk_bf16_f32 v{vP+p}, v{vD0+2*p}, v{vD0+2*p+1}")
def aop(t): return vP if t == 0 else vROT + 4*(t-1)
def shifts(t): return [f"v_mov_b32_dpp v{aop(t)+p}, v{vP+p} row_ror:{16-4*t} {DPPF}" for p in range(4)]
def lsum_ops():
    return [f"v_add_f32 v{vLs}, v{vD0}, v{vD0+1}", f"v_add_f32 v{vTt}, v{vD0+2}, v{vD0+3}",
            f"v_add_f32 v{vLs}, v{vLs}, v{vD1}", f"v_add_f32 v{vTt}, v{vTt}, v{vD1+1}",
            f"v_add_f32 v{vLs}, v{vLs}, v{vD1+2}", f"v_add_f32 v{vTt}, v{vTt}, v{vD1+3}",
            f"v_add_f32 v{vLs}, v{vLs}, v{vTt}",
            f"v_add_f32_dpp v{vLs}, v{vLs}, v{vLs} row_ror:4 {DPPF}",
            f"v_add_f32_dpp v{vLs}, v{vLs}, v{vLs} row_ror:8 {DPPF}",
            f"v_mov_b32 v{vTt}, v{vLs}", f"v_permlane16_swap_b32 v{vLs}, v{vTt}", f"v_add_f32 v{vLs}, v{vLs}, v{vTt}",
            f"v_mov_b32 v{vTt}, v{vLs}", f"v_permlane32_swap_b32 v{vLs}, v{vTt}", f"v_add_f32 v{vLs}, v{vLs}, v{vTt}",
            f"ds_write_b32 v{vMBw}, v{vLs} offset:64"]
def fw_ops():
    return [f"ds_read_b128 {vq(vF)}, v{vMBr}", "s_waitcnt lgkmcnt(0)",
            f"v_max3_f32 v{vMM}, v{vF}, v{vF+1}, v{vF+2}", f"v_max_f32 v{vMM}, v{vMM}, v{vF+3}"] + \
           [f"v_sub_f32 v{vF+i}, v{vF+i}, v{vMM}" for i in range(4)] + [f"v_exp_f32 v{vF+i}, v{vF+i}" for i in range(4)]
def owrite(half): return f"ds_write_b128 v{vOBw}, {vq(vACC+16*half)} offset:{1024*half}"
sROW = {1: 28, 2: 30, 3: 36}
def row_masks():
    A(f"s_mov_b32 s28, 0xffff0000\ns_mov_b32 s29, 0\ns_mov_b32 s30, 0\ns_mov_b32 s31, 0xffff\ns_mov_b32 s36, 0\ns_mov_b32 s37, 0xffff0000")
def merge(jd):
    d = vACC + 16*(jd >> 2)
    return [f"v_cndmask_b32 v{d+h}, v{d+h}, v{vACC+4*jd+h}, {sp(sROW[jd & 3])}" for h in range(4)]
def pv_mfma(t, jd, first):
    c = "0" if first else vq(vACC+4*jd)
    A(f"v_mfma_f32_16x16x32_bf16 {vq(vACC+4*jd)}, {vq(aop((t - jd) & 3))}, {vq(vR+32*t+4*jd)}, {c}")

def pf_w12(t0, t1):
    pf_w12_(t0, t1)
    if opt("red12", 1) > 1:
        A(f"s_xor_b32 s{sU}, s{sU}, 64"); pf_w12_(t0, t1)
def pf_w12_(t0, t1):
    A(f"""
s_mul_i32 s{sT2}, s{sU}, {4*3584}
s_mul_i32 s3, s{sg}, 448
s_add_u32 s{sT2}, s{sT2}, s3
v_lshrrev_b32 v{t0}, 5, v{vL}
v_mul_u32_u24 v{t0}, 3584, v{t0}
v_and_b32 v{t1}, 31, v{vL}
v_lshl_add_u32 v{t0}, v{t1}, 4, v{t0}
s_add_u32 s3, s{sT2}, {2*3584}""")
    exec_set(0x0fffffff, 0x0fffffff)
    A(f"buffer_load_dwordx4 {DUMMY}, v{t0}, {srd(rW1)}, s{sT2} offen{PF12}")
    A(f"buffer_load_dwordx4 {DUMMY}, v{t0}, {srd(rW1)}, s3 offen{PF12}")
    A(f"""
s_mul_i32 s{sT2}, s{sU}, {14*128}
s_mul_i32 s3, s{sg}, {224*1024}
s_add_u32 s{sT2}, s{sT2}, s3""")
    exec_set(0xffffffff, 0x00ffffff)
    A(f"buffer_load_dwordx4 {DUMMY}, v{vVo}, {srd(rW2)}, s{sT2} offen{PF12}")
    A(f"buffer_load_dwordx4 {DUMMY}, v{vVo}, {srd(rW2)}, s{sT2} offen offset:896{PF12}")
    exec_all()
def tail_pf():
    if "tail" in DROP: return
    if not INO and PFOPOS == -1: pf_wo()
    if W12PF == 0 and not IN12: pf_w12(41, 42)
    lw = lab("wu"); lw2 = lab("wu")
    A(f"""
v_lshlrev_b32 v35, 7, v{vL}
s_and_b32 s3, s{sw}, 1
s_mul_i32 s3, s3, {LS}
s_cmp_ge_u32 s{sw}, 2
s_cbranch_scc1 {lw}
s_add_u32 s3, s3, s{sOclr}
v_and_b32 v41, 0x380, v35
s_branch {lw2}
{lw}:
v_and_b32 v41, 1, v{vL}
v_lshlrev_b32 v41, 7, v41
v_bfe_u32 v42, v{vL}, 1, 1
v_lshl_add_u32 v41, v42, 16, v41
s_add_u32 s{sT2}, s{sQpub}, {QP}
v_add_u32 v41, s{sT2}, v41
s_sub_u32 s{sT2}, s{sMLpub}, 512
v_add_u32 v42, s{sT2}, v35
v_cmp_le_u32 vcc, 4, v{vL}
v_cndmask_b32 v41, v41, v42, vcc
v_mov_b32 v42, s{sHpub}
v_cmp_le_u32 vcc, 8, v{vL}
v_cndmask_b32 v41, v41, v42, vcc
{lw2}:""")
    exec_set(0x1ff, 0)
    if not opt("nowu", 0): A(f"buffer_load_dword a253, v41, {srd(rWS)}, s3 offen sc1")
    A(f"""
s_getpc_b64 s[{sT2}:{sT2+1}]
L_pc:
s_add_u32 s{sT2}, s{sT2}, L_comb-L_pc
s_addc_u32 s{sT2+1}, s{sT2+1}, 0""")
    exec_all()
    A(f"v_min_u32 v42, L_end-L_comb, v35")
    A(f"s_nop 0")
    if not opt("nocode", 0): A(f"global_load_dword a254, v42, s[{sT2}:{sT2+1}]{POL[opt('cpol','none')]}")

qk(filler=lambda k: stream(2))
stream(40)
softmax()
for t in (1, 2, 3):
    for i in shifts(t): A(i)
for i in lsum_ops(): A(i)
row_masks()
stamp(6)
for t in range(4):
    A.vwait(f"V{8*t+7}")
    raw = vR + 32*(t+1); dst = vR + 32*t
    for jd in range(8):
        for p in range(4):
            A(f"v_perm_b32 v{dst+4*jd+p}, v{raw+4*(2*p+1)+(jd>>1)}, v{raw+4*(2*p)+(jd>>1)}, s{sSELHI if jd & 1 else sSELLO}")
        if jd: pv_mfma(t, jd-1, t == 0)
        if t == 3:
            for i in {4: merge(1), 5: merge(2), 6: merge(3) + [owrite(0)]}.get(jd, []): A(i)
    pv_mfma(t, 7, t == 0)
    if t == 3:
        for i in merge(5) + merge(6): A(i)
    if t == MBG:
        A("s_waitcnt lgkmcnt(0)\ns_barrier")
        for i in fw_ops(): A(i)
        if INO or IN12:
            A(f"""
v_lshrrev_b32 v44, 2, v{vL}
v_and_b32 v44, 3, v44                     ; r
v_and_b32 v45, 3, v{vL}
v_lshlrev_b32 v45, 3, v45                 ; 8c
v_lshrrev_b32 v46, 4, v{vL}               ; q
v_lshl_add_u32 v47, v46, 3, v44           ; 8q+r
v_lshl_add_u32 v47, v47, 5, v45
v_add_u32 v47, s{sKm}, v47                ; w1
v_and_b32 v48, 1, v44
v_lshrrev_b32 v49, 1, v44
v_lshl_add_u32 v48, v49, 3, v48
v_lshl_add_u32 v48, v46, 5, v48
v_lshl_add_u32 v48, v48, 6, v45
v_add_u32 v48, s{sKm}, v48                ; wo
v_and_b32 v49, 1, v46
v_lshl_add_u32 v44, v49, 3, v44
v_lshl_add_u32 v44, v44, 6, v45
v_lshrrev_b32 v46, 1, v46
v_lshl_add_u32 v44, v46, 15, v44
s_and_b32 s3, s{sw}, 1
s_lshl_b32 s3, s3, 5
s_add_u32 s3, s3, {KST + 12288}
v_add_u32 v44, s3, v44                    ; w2
v_add_u32 v45, 65536, v44""")
            if "w" in DROP:
                for i in range(aWO, 236): A(f"v_accvgpr_write_b32 a{i}, 0")
            if INO and "w" not in DROP: tr_reads(aWO, 48, 4, 2, 128, 32, 1024)
            if IN12 and "w" not in DROP:
                tr_reads(aW1, 47, 4, 1, 1024, 0, 128, base=8192)
                for st in range(7):
                    o_ = (st >> 1)*1024; r_ = 45 if st & 1 else 44
                    A(f"ds_read_b64_tr_b16 a[{aW2+4*st}:{aW2+4*st+1}], v{r_} offset:{o_}")
                    A(f"ds_read_b64_tr_b16 a[{aW2+4*st+2}:{aW2+4*st+3}], v{r_} offset:{o_+256}")
    if t == opt("pfg", 3): tail_pf()
WOEARLY = opt("woearly", 0)
def wo_burst(t0, t1, vo):
    A(f"""
v_lshrrev_b32 v{t0}, 2, v{vL}
v_and_b32 v{t1}, 3, v{vL}
v_lshlrev_b32 v{t1}, 4, v{t1}
v_lshl_add_u32 v{vo}, v{t0}, 10, v{t1}
s_lshl_b32 s{sT2}, s{sg}, 19
s_lshl_b32 s3, s{sw}, 17
s_add_u32 s{sT2}, s{sT2}, s3
s_lshl_b32 s3, s{sj}, 6
s_add_u32 s{sT2}, s{sT2}, s3""")
    for n in range(8): dma(vo, rWO, sT2, sKm, 1024*n, n << 14, f"WO{n}", WPOL)
if WOEARLY: wo_burst(41, 42, 43)
for i in merge(7) + [owrite(1)]: A(i)
stamp(7)
flush_stamps(0, 8)
if PROF: A(f"v_writelane_b32 v{vPROF}, s12, 8\nv_writelane_b32 v{vPROF}, s13, 9")
if EXP == "stream": A("s_branch L_done")

def xproc(aW, tiles, red_off, st_off, skip_label=None, pre=None):
    exec_set(0xffffffff, 0)
    A(f"ds_write_b64 v{vXBw}, v[{vXP}:{vXP+1}]")
    exec_all()
    for s in range(4): A(f"ds_read_b128 {vq(vXA+4*s)}, v{vXBr} offset:{64*s}")
    unpack_x()
    if skip_label: A(f"s_cbranch_scc1 {skip_label}")
    dp = stat_ops()
    for _ in range(11): A(dp.pop(0))
    if pre: pre()
    A("s_waitcnt lgkmcnt(0)")
    for s in range(4):
        A(f"v_mfma_f32_16x16x32_bf16 {vq(vG0)}, {vq(vXA+4*s)}, {aq(aW+4*s)}, {'0' if s == 0 else vq(vG0)}")
        for _ in range(2):
            if dp: A(dp.pop(0))
    stat_write(st_off)
    A(f"ds_write_b32 v{vRED}, v{vG0} offset:{red_off}")
def ln_final(red_off, st_off):
    A(f"""
ds_read_b128 v[36:39], v{vST} offset:{st_off}
ds_read_b128 v[40:43], v{vST} offset:{st_off+16}
ds_read_b128 v[28:31], v{vRED} offset:{red_off}
ds_read_b128 v[32:35], v{vRED} offset:{red_off+512}
s_mov_b32 s3, {f2u(1.0/512):#x}
v_mov_b32 v44, {f2u(1e-5):#x}
s_waitcnt lgkmcnt({0 if PROF else 2})
v_add_f32 v36, v36, v37
v_add_f32 v38, v38, v39
v_add_f32 v40, v40, v41
v_add_f32 v42, v42, v43
v_add_f32 v36, v36, v38
v_add_f32 v40, v40, v42
v_mul_f32 v36, s3, v36                ; mean
v_fma_f32 v41, s3, v40, v44           ; E[x^2] + eps
s_waitcnt lgkmcnt(0)
v_add_f32 v28, v28, v29
v_fma_f32 v41, -v36, v36, v41
v_add_f32 v30, v30, v31
v_max_f32 v41, v44, v41
v_add_f32 v32, v32, v33
v_rsq_f32 v41, v41
v_add_f32 v34, v34, v35
v_add_f32 v28, v28, v30
v_add_f32 v32, v32, v34
v_fma_f32 v28, -v36, v32, v28
v_mul_f32 v28, v28, v41
""")

A("L_comb:")
A("s_waitcnt lgkmcnt(0)\ns_barrier")
for w in range(4): A(f"ds_read2st64_b32 v[{44+2*w}:{45+2*w}], v{vOBr} offset0:{8*w} offset1:{8*w+1}")
A(f"ds_read_b128 v[52:55], v{vMBr} offset:64")
A("s_waitcnt lgkmcnt(1)" if not PROF else "s_waitcnt lgkmcnt(0)")
A(f"v_mul_f32 v44, v{vF}, v44\nv_mul_f32 v45, v{vF}, v45")
for w in range(1, 4): A(f"v_fmac_f32 v44, v{vF+w}, v{44+2*w}\nv_fmac_f32 v45, v{vF+w}, v{45+2*w}")
A("v_cvt_pk_bf16_f32 v44, v44, v45")
pub_store(f"buffer_store_dword v44, v{vOpub}, {srd(rWS)}, s{sOpub} offen")
with only("eq", sw, 0):
    A(f"""
s_waitcnt lgkmcnt(0)
v_mul_f32 v{vMM+1}, v{vF}, v52
v_fmac_f32 v{vMM+1}, v{vF+1}, v53
v_fmac_f32 v{vMM+1}, v{vF+2}, v54
v_fmac_f32 v{vMM+1}, v{vF+3}, v55
v_lshlrev_b32 v46, 3, v{vL}""")
    exec_set(0x00010001, 0x00010001)
    pub_store(f"buffer_store_dwordx2 v[{vMM}:{vMM+1}], v46, {srd(rWS)}, s{sMLpub} offen")
    exec_all()
stamp(0)
vO = 28; vml = 44; vDy = 48
la, laok, la0 = lab("pa"), lab("paok"), lab("pa0")
def a_loads():
    A(f"buffer_load_dwordx2 v[{vml}:{vml+1}], v{vMLad}, {srd(rWS)}, s{sMLget} offen sc1")
    for s in range(4): A(f"buffer_load_dwordx4 {vq(vO+4*s)}, v{vVo}, {srd(rWS)}, s{sOget} offen offset:{1024*s} sc1")
las = lab("as")
A(f"s_cmp_lg_u32 s{sLAYER}, 0\ns_cbranch_scc1 {las}")
A(f"""
v_lshrrev_b32 v56, 2, v{vL}
v_and_b32 v57, 3, v{vL}
v_lshlrev_b32 v58, 4, v57
v_lshl_add_u32 v{vW2o}, v56, 10, v58
s_lshl_b32 s{sT2}, s{sg}, 19
s_lshl_b32 s3, s{sw}, 17
s_add_u32 s{sT2}, s{sT2}, s3
s_lshl_b32 s3, s{sj}, 6
s_add_u32 s{sT2}, s{sT2}, s3""")
if not INO and not WOEARLY:
    for n in range(8): dma(vW2o, rWO, sT2, sKm, 1024*n, n << 14, f"WO{n}", WPOL)
a_loads()
NX = 0
A(f"""
v_lshrrev_b32 v58, 1, v{vL}
v_mul_u32_u24 v{vW1o}, 3584, v58
v_and_b32 v58, 1, v{vL}
v_lshl_add_u32 v{vW1o}, v58, 4, v{vW1o}
v_and_b32 v56, 3, v56                     ; r
v_lshrrev_b32 v58, 4, v{vL}               ; q
v_lshlrev_b32 v57, 3, v57                 ; 8c
v_and_b32 v59, 1, v56
v_lshrrev_b32 v60, 1, v56
v_lshl_add_u32 v59, v60, 3, v59
v_lshl_add_u32 v59, v58, 5, v59
v_lshl_add_u32 v59, v59, 6, v57
v_add_u32 v{vTrO}, s{sKm}, v59
v_lshl_add_u32 v56, v58, 3, v56           ; 8q+r
v_lshl_add_u32 v58, v56, 5, v57
v_add_u32 v{vT1}, s{sKm}, v58
v_lshl_add_u32 v58, v56, 6, v57
s_and_b32 s3, s{sw}, 1
s_lshl_b32 s3, s3, 5
s_add_u32 s3, s3, {LW2}
v_add_u32 v{vT2}, s3, v58
v_mov_b32_dpp v{vSEL2}, v{vSEL} row_ror:8 {DPPF}
v_mov_b32_dpp v{vSEL2+1}, v{vSEL+1} row_ror:8 {DPPF}
v_mov_b32_dpp v{vSEL2+2}, v{vSEL+2} row_ror:8 {DPPF}
v_mov_b32_dpp v{vSEL2+3}, v{vSEL+3} row_ror:8 {DPPF}
s_waitcnt vmcnt({5+NX})""")
if PROF == 2: stamp(4)
if not INO: tr_reads(aWO, vTrO, 4, 2, 128, 32, 1024)
A(f"s_waitcnt lgkmcnt(0)\ns_branch {la0}")
A(f"{las}:")
if opt("sa", 4): A(f"s_sleep {opt('sa', 4)}")
A(f"{la}:")
a_loads()
A(f"{la0}:")
wc = [f"v_max_f32_dpp v57, v{vml}, v{vml} quad_perm:[1,0,3,2] {DPPF}",
      f"v_max_f32_dpp v57, v57, v57 quad_perm:[2,3,0,1] {DPPF}",
      "v_mov_b32 v58, v57", "v_permlane16_swap_b32 v57, v58", "v_max_f32 v57, v57, v58",
      "v_mov_b32 v58, v57", "v_permlane32_swap_b32 v57, v58", "v_max_f32 v57, v57, v58",
      f"v_sub_f32 v57, v{vml}, v57", "v_exp_f32 v57, v57", f"v_mul_f32 v58, v57, v{vml+1}",
      f"v_add_f32_dpp v58, v58, v58 quad_perm:[1,0,3,2] {DPPF}", f"v_add_f32_dpp v58, v58, v58 quad_perm:[2,3,0,1] {DPPF}",
      "v_mov_b32 v59, v58"]
A(f"s_waitcnt vmcnt(4)\nv_cmp_u_f32 vcc, v{vml}, v{vml+1}")
A(wc.pop(0))
A(f"s_cbranch_vccnz L_aretry")
A(wc.pop(0)); A(wc.pop(0))
for s in range(4):
    A(f"s_waitcnt vmcnt({3-s})")
    for t in range(2):
        c = "0" if s == 0 else vq(vDy+4*t)
        A(f"v_mfma_f32_16x16x32_bf16 {vq(vDy+4*t)}, {vq(vO+4*s)}, {aq(aWO+(t*4+s)*4)}, {c}")
        for _ in range(1 if s < 3 else 2):
            if wc: A(wc.pop(0))
while wc: A(wc.pop(0))
A(f"""
v_mul_f32_dpp v60, v57, v{vDy} quad_perm:[0,0,0,0] {DPPF}
s_nop 0
v_permlane16_swap_b32 v58, v59
v_mul_f32_dpp v61, v57, v{vDy+4} quad_perm:[0,0,0,0] {DPPF}
v_fmac_f32_dpp v60, v57, v{vDy+1} quad_perm:[1,1,1,1] {DPPF}
v_add_f32 v58, v58, v59
v_fmac_f32_dpp v61, v57, v{vDy+5} quad_perm:[1,1,1,1] {DPPF}
v_fmac_f32_dpp v60, v57, v{vDy+2} quad_perm:[2,2,2,2] {DPPF}
v_mov_b32 v59, v58
v_fmac_f32_dpp v61, v57, v{vDy+6} quad_perm:[2,2,2,2] {DPPF}
v_fmac_f32_dpp v60, v57, v{vDy+3} quad_perm:[3,3,3,3] {DPPF}
v_permlane32_swap_b32 v58, v59
v_fmac_f32_dpp v61, v57, v{vDy+7} quad_perm:[3,3,3,3] {DPPF}
v_add_f32 v58, v58, v59
v_rcp_f32 v58, v58
v_permlane32_swap_b32 v60, v61
v_add_f32 v60, v60, v61
v_mov_b32 v61, v60
v_permlane16_swap_b32 v60, v61
v_add_f32 v60, v60, v61
v_mul_f32 v60, v60, v58
v_cmp_u_f32 vcc, v60, v60
ds_write_b32 v{vREDA}, v60
s_cbranch_vccz {laok}
L_aretry:""")
if opt("adrain", 1): A("s_waitcnt vmcnt(0)")
retry(la)
A(f"{laok}:")
stamp(1)
if W12PF == 1 and not IN12:
    with only("eq", sLAYER, 0): pf_w12(62, 63)
A("s_waitcnt lgkmcnt(0)\ns_barrier")
ly, ly2 = lab("y"), lab("y2")
A(f"s_cmp_lg_u32 s{sw}, 0\ns_cbranch_scc1 {ly}")
A(f"""
ds_read_b128 v[28:31], v{vRED} offset:{REDA-RED1}
s_waitcnt lgkmcnt(0)
v_add_f32 v28, v28, v29
v_add_f32 v30, v30, v31
v_add_f32 v28, v28, v30""")
pack_pairs(28, 29)
exec_set(0x55555555, 0)
A(f"buffer_store_dword v28, v{vPAIR}, {srd(rWS)}, s{sYpub} offen sc1")
exec_all()
A(f"s_branch {ly2}\n{ly}:")
if opt("wb", 0) == 2:
    with only("eq", sw, 3):
        with only("eq", sLAYER, 1): A("buffer_wbl2 sc1")
A(f"s_sleep 2\n{ly2}:")
stamp(2)
def gather(s0, s1, lp, so=None):
    lg, lok, lchk, lo = lab(lp), lab(lp + "ok"), lab(lp + "ck"), lab(lp + "o")
    A(f"{lg}:")
    A(f"buffer_load_dwordx4 v[32:35], v{vGad}, {srd(rWS)}, s{s0} offen sc1")
    A(f"buffer_load_dwordx4 v[36:39], v{vGad}, {srd(rWS)}, s{s1} offen sc1")
    if so is not None:
        A(f"s_cmp_eq_u32 s{sw}, s{skq}\ns_cbranch_scc1 {lo}")
    A(f"""s_waitcnt vmcnt(1)
v_mfma_f32_16x16x32_bf16 v[40:43], {vq(vSEL)}, v[32:35], {vq(vX)}
s_waitcnt vmcnt(0)
v_mfma_f32_16x16x32_bf16 v[40:43], {vq(vSEL)}, v[36:39], v[40:43]""")
    if so is not None:
        A(f"s_nop 6\ns_branch {lchk}\n{lo}:\ns_add_u32 s3, s{so}, 4096")
        A(f"buffer_load_dwordx4 v[44:47], v{vGad}, {srd(rWS)}, s{so} offen sc1")
        A(f"buffer_load_dwordx4 v[48:51], v{vGad}, {srd(rWS)}, s3 offen sc1")
        A(f"""s_waitcnt vmcnt(3)
v_mfma_f32_16x16x32_bf16 v[40:43], {vq(vSEL)}, v[32:35], {vq(vX)}
s_waitcnt vmcnt(2)
v_mfma_f32_16x16x32_bf16 v[40:43], {vq(vSEL)}, v[36:39], v[40:43]
s_waitcnt vmcnt(1)
v_mfma_f32_16x16x32_bf16 v[40:43], {vq(vSEL2)}, v[44:47], v[40:43]
s_waitcnt vmcnt(0)
v_mfma_f32_16x16x32_bf16 v[40:43], {vq(vSEL2)}, v[48:51], v[40:43]""")
    A(f"{lchk}:")
    A(f"v_cmp_u_f32 vcc, v40, v40\ns_cbranch_vccz {lok}")
    if opt("gsleep", 0): A(f"s_sleep {opt('gsleep', 0)}")
    retry(lg)
    A(f"{lok}:")
    A(f"v_cvt_pk_bf16_f32 v{vXP}, v40, v41\nv_cvt_pk_bf16_f32 v{vXP+1}, v42, v43")
def w12_burst():
    A(f"""
s_mul_i32 s{sT2}, s{sw}, {128*3584}
s_mul_i32 s3, s{sg}, 448
s_add_u32 s{sT2}, s{sT2}, s3
s_lshl_b32 s3, s{sjf}, 5
s_add_u32 s{sT2}, s{sT2}, s3""")
    for i in range(4): dma(vW1o, rW1, sT2, sKm, 8192 + 1024*i, i*32*3584, "W1", WPOL)
    A(f"""
s_mul_i32 s{sT2}, s{sg}, {224*1024}
s_lshl_b32 s3, s{sj}, 6
s_add_u32 s{sT2}, s{sT2}, s3
s_lshl_b32 s3, s{sw}, 14
s_add_u32 s{sT2}, s{sT2}, s3
s_lshl_b32 s{sT3}, s{sw}, 10""")
    if not opt("w2late", 2):
        for i in range(4): dma(vW2o, rW2, sT2, sT3, LW2 + 4096*i, i*64*1024, "W2", WPOL)
    return 8
l1, l2 = lab("b"), lab("b")
if CSPLIT:
    A(f"s_cmp_lg_u32 s{sCEN}, 0\ns_cbranch_scc1 L_cen2\nL_cen2_back:")
if IN12: A(f"s_sleep {SLEEP_B}")
else:
    A(f"s_cmp_lg_u32 s{sLAYER}, 0\ns_cbranch_scc1 {l1}")
    w12_burst()
    A(f"s_sleep {opt('sb0', 10)}\ns_branch {l2}\n{l1}:\ns_sleep {SLEEP_B}\n{l2}:")
gather(sYget, sYget1, "gb", so=sYo)
stamp(3)
NB = 0
W2L = opt("w2late", 2)
if W2L == 1:
    with only("eq", sLAYER, 0):
        for i in range(4): dma(vW2o, rW2, sT2, sT3, LW2 + 4096*i, i*64*1024, "W2", WPOL)
if W2L == 2:
    NB = 63
    with only("eq", sLAYER, 0):
        with only("ge", sw, 2):
            A(f"""
s_mul_i32 s{sT2}, s{sg}, {224*1024}
s_lshl_b32 s3, s{sj}, 6
s_add_u32 s{sT2}, s{sT2}, s3
s_and_b32 s3, s{sw}, 1
s_lshl_b32 s3, s3, 5
s_add_u32 s{sT2}, s{sT2}, s3
v_lshrrev_b32 v56, 1, v{vL}
v_and_b32 v57, 1, v{vL}
v_lshlrev_b32 v57, 4, v57
v_lshl_add_u32 v56, v56, 10, v57""")
            for i in range(7): dma(56, rW2, sT2, sKm, 16384 + 1024*i, i*32*1024, "W2", WPOL)
def w1_land():
    with only("eq", sLAYER, 0):
        A(f"s_waitcnt vmcnt({min(63, 4+NB)})")
        tr_reads(aW1, vT1, 4, 1, 1024, 0, 128, base=8192)
lb = lab("nof")
A(f"s_cmp_ge_u32 s{sjf}, 14")
xproc(aW1, 1, 0, 32, skip_label=lb, pre=None if IN12 else w1_land)
A(f"{lb}:\ns_waitcnt vmcnt({NB}) lgkmcnt(0)\ns_barrier")
lh = lab("h")
A(f"s_cmp_lg_u32 s{sw}, 0\ns_cbranch_scc1 {lh}\ns_cmp_ge_u32 s{sjf}, 14\ns_cbranch_scc1 {lh}")
ln_final(0, 32)
A(f"""
v_mul_f32 v29, {f2u(-LOG2E):#x}, v28
v_exp_f32 v29, v29
v_add_f32 v29, 1.0, v29
v_rcp_f32 v29, v29
v_mul_f32 v28, v28, v29""")
pack_pairs(28, 29)
exec_set(0x5555, 0)
pub_store(f"buffer_store_dword v28, v{vPAIR}, {srd(rWS)}, s{sHpub} offen")
exec_all()
A(f"{lh}:")
if PROF != 2: stamp(4)
ld, ldok, ldsk = lab("pd"), lab("pdok"), lab("pdsk")
if Z1W:
    A(f"s_cmp_lg_u32 s{sw}, 2\ns_cbranch_scc1 {ldsk}")
    A(f"s_cmp_lg_u32 s{sLAYER}, 0\ns_cbranch_scc1 {ld}")
    tr_reads(aW2, vT2, 7, 1, 2048, 0, 256)
    for s in range(7): tr_reads(aW2b[s], vT2, 1, 1, 0, 0, 256, base=2048*s + 32)
    A("s_waitcnt lgkmcnt(0)")
    A(f"{ld}:")
    for s in range(7): A(f"buffer_load_dwordx4 {vq(28+4*s)}, v{vHad}, {srd(rWS)}, s{sHget} offen offset:{64*s} sc1")
    for s in range(7):
        A(f"s_waitcnt vmcnt({6-s})")
        A(f"v_mfma_f32_16x16x32_bf16 v[56:59], {aq(aW2+4*s)}, {vq(28+4*s)}, {'0' if s == 0 else 'v[56:59]'}")
        A(f"v_mfma_f32_16x16x32_bf16 v[60:63], {aq(aW2b[s])}, {vq(28+4*s)}, {'0' if s == 0 else 'v[60:63]'}")
    A(f"v_cmp_u_f32 vcc, v56, v56\nv_cvt_pk_bf16_f32 v56, v56, v57\nv_cvt_pk_bf16_f32 v57, v58, v59\ns_cbranch_vccz {ldok}")
    retry(ld)
    A(f"{ldok}:")
    exec_set(0x00f000f0, 0x00f000f0)
    A("v_cvt_pk_bf16_f32 v56, v60, v61\nv_cvt_pk_bf16_f32 v57, v62, v63")
    exec_set(0x00110011, 0x00110011)
    A(f"buffer_store_dwordx2 v[56:57], v{vZpub}, {srd(rWS)}, s{sZpub} offen sc1")
    exec_all()
else:
    A(f"s_cmp_lt_u32 s{sw}, 2\ns_cbranch_scc1 {ldsk}")
    if not IN12:
        lds_ = lab("ds")
        A(f"s_cmp_lg_u32 s{sLAYER}, 0\ns_cbranch_scc1 {lds_}")
        if W2L == 2:
            A("s_waitcnt vmcnt(0)")
            tr_reads(aW2, vT1, 7, 1, 1024, 0, 128, base=16384)
        else: tr_reads(aW2, vT2, 7, 1, 2048, 0, 256)
        A(f"s_waitcnt lgkmcnt(0)\ns_branch {ld}\n{lds_}:")
        if opt("sd", 6): A(f"s_sleep {opt('sd', 6)}")
    A(f"{ld}:")
    for s in range(7): A(f"buffer_load_dwordx4 {vq(28+4*s)}, v{vHad}, {srd(rWS)}, s{sHget} offen offset:{64*s} sc1")
    for s in range(7):
        A(f"s_waitcnt vmcnt({6-s})")
        A(f"v_mfma_f32_16x16x32_bf16 v[56:59], {aq(aW2+4*s)}, {vq(28+4*s)}, {'0' if s == 0 else 'v[56:59]'}")
    A(f"v_cmp_u_f32 vcc, v56, v56\nv_cvt_pk_bf16_f32 v56, v56, v57\nv_cvt_pk_bf16_f32 v57, v58, v59\ns_cbranch_vccz {ldok}")
    retry(ld)
    A(f"{ldok}:")
    exec_set(0x00010001, 0x00010001)
    A(f"buffer_store_dwordx2 v[56:57], v{vZpub}, {srd(rWS)}, s{sZpub} offen sc1")
    exec_all()
A(f"{ldsk}:")
stamp(5)
A(f"s_cmp_lg_u32 s{sLAYER}, 0\ns_cbranch_scc1 L_final")
A("s_barrier")
A(f"s_sleep {SLEEP_E}")
gather(sZget, sZget1, "ge", so=sZo)
stamp(6)
A(f"s_add_u32 s{rWS}, s{rWS}, {LS}\ns_addc_u32 s{rWS+1}, s{rWS+1}, 0\ns_mov_b32 s{rWS+2}, {WS_BYTES-LS:#x}\ns_mov_b32 s{sLAYER}, 1")
qproj(False)
A(f"s_mov_b32 s{skq}, 99")
stamp(7)
q_addr()
A(f"v_accvgpr_read_b32 v56, a{aCS}\nv_accvgpr_read_b32 v57, a{aCS+1}\nv_accvgpr_read_b32 v59, a{aQBw}")
lg, lgok = lab("pg"), lab("pgok")
if opt("sg", 2): A(f"s_sleep {opt('sg', 2)}")
A(f"{lg}:")
q_loads(44, sQget)
A("s_waitcnt vmcnt(0)")
sum4(44)
A(f"v_cmp_u_f32 vcc, v44, v45\ns_cbranch_vccz {lgok}")
retry(lg)
A(f"{lgok}:")
stamp(8)
q_finish(56)
if opt("wb", 0):
    with only("eq", sw, 3): A("buffer_wbl2 sc1")
A("s_waitcnt lgkmcnt(0)")
if PROF in (3, 4): stamp(1)
qk()
if PROF in (3, 4): stamp(2)
softmax()
if PROF in (3, 4): stamp(3)
order = [((jd + k) & 3, jd) for k in range(4) for jd in range(4)] + [((jd + k) & 3, jd) for jd in range(4, 8) for k in range(4)]
ls = lsum_ops(); fw = fw_ops()
sh = shifts(1) + shifts(2) + shifts(3)
slow = lambda x: "_dpp" in x or "permlane" in x or "v_exp" in x
ex = ls[:7] + ["s_waitcnt lgkmcnt(0)", "s_barrier", fw[0]] + ls[7:] + ["s_waitcnt lgkmcnt(2)" if not PROF else "s_waitcnt lgkmcnt(0)"] + fw[2:4]
post = {1: merge(1), 2: merge(2), 3: merge(3) + [owrite(0)], 5: merge(5), 6: merge(6), 7: merge(7) + [owrite(1)]}
seen = set(); cnt = {}; done = {}; ready = []
for i, (t, jd) in enumerate(order):
    pv_mfma(t, jd, jd not in seen); seen.add(jd)
    cnt[jd] = cnt.get(jd, 0) + 1
    if cnt[jd] == 4 and jd in post: done[jd] = len(A.L)
    for j2, p2 in list(done.items()):
        if sum(x.states() for x in A.L[p2:]) >= 8:
            ready += post[j2]; del done[j2]
    if sh:
        A(sh.pop(0))
        if i % 4 == 3:
            A(ex.pop(0)); A(ex.pop(0))
        continue
    budget = 2
    while budget > 0 and (ex or ready):
        q_ = ex if (ex and (i < 20 or not ready)) else ready
        x = q_.pop(0); A(x); budget -= 2 if slow(x) else 1
while ex: A(ex.pop(0))
for i in ready: A(i)
for j2 in done:
    for i in post[j2]: A(i)
for i in fw[4:]: A(i)
stamp(9)
flush_stamps(16, 10)
A("s_branch L_comb")
A("L_final:")
if opt("wb", 0) == 1:
    with only("eq", sw, 0): A("buffer_wbl2 sc1")
A(f"s_or_b32 s3, s{sg}, s{sj}\ns_cmp_lg_u32 s3, 0\ns_cbranch_scc1 L_done")
if opt("fbar", 1): A("s_barrier")
A(f"s_sleep {SLEEP_F}")
gather(sZget, sZget1, "gf")
A(f"""
s_lshl_b32 s3, s{sb}, 10
s_lshl_b32 s{sT0}, s{sw}, 8
s_add_u32 s3, s3, s{sT0}
s_lshl_b32 s{sT0}, s{sw}, 9
s_add_u32 s{sT0}, s{sT0}, {XB}
s_sub_u32 s3, s3, s{sT0}
v_add_u32 v30, s3, v{vXBw}""")
exec_set(0xffffffff, 0)
A(f"global_store_dwordx2 v30, v[{vXP}:{vXP+1}], {sp(sOUT)}")
with only("eq", sb, 0):
    A(f"v_mov_b32 v30, {EPO}\nv_mov_b32 v31, s{sTAG0}")
    exec_set(1, 0)
    A(f"global_store_dword v30, v31, {sp(sWS)} sc1")
exec_all()
if CSPLIT:
    A("s_branch L_done\nL_cen2:")
    cen_loads(True)
    A("s_waitcnt vmcnt(0)")
    for i in range(4):
        A(f"v_xor_b32 v{32+2*i}, s{sTAG0}, v{32+2*i}\nv_xor_b32 v{33+2*i}, s{sTAG1}, v{33+2*i}")
    A(f"""
v_or3_b32 v40, v33, v35, v37
v_or3_b32 v42, v32, v34, v36
v_or_b32 v40, v40, v39
v_and_b32 v40, -16, v40
v_or3_b32 v40, v40, v42, v38
v_cmp_ne_u32 vcc, 0, v40
s_cbranch_vccz L_cen2_ok""")
    retry("L_cen2")
    A(f"L_cen2_ok:\ns_mov_b32 s{sCEN}, 0\ns_branch L_cen2_back")
A("L_done:")
if PROF:
    stamp(6)
    flush_stamps(32, 7)
    A(f"""
s_lshl_b32 s3, s2, 2
s_add_u32 s3, s3, s{sw}
s_lshl_b32 s3, s3, 8
s_add_u32 s3, s3, {PROF_OFF}
v_lshlrev_b32 v30, 2, v{vL}
v_add_u32 v30, s3, v30
global_store_dword v30, v{vPROF}, {sp(sWS)}""")
A("L_end:\ns_endpgm")
A.L.extend(OOL)
A.raw('.section .rodata,"a"'); A.raw(".p2align 6"); A.raw(f".amdhsa_kernel {NAME}_kernel")
for l in ["next_free_vgpr 512", "next_free_sgpr 102", "accum_offset 256", "group_segment_fixed_size 0", "kernarg_size 88",
          "user_sgpr_count 2", "user_sgpr_kernarg_segment_ptr 1", "system_sgpr_workgroup_id_x 1"]:
    A.raw("  .amdhsa_" + l)
A.raw(".end_amdhsa_kernel")
text = "\n".join(H) + "\n" + A.text()
if opt("al", 3):
    from align8 import align
    text, wd, np_ = align(text, None, opt("al", 3))
    print("aligned: widened", wd, "nops", np_, file=sys.stderr)
open(out, "w").write(text)
print("instrs", len(A.L), "nops inserted", A.nopcount, file=sys.stderr)
```

```python
import sys, math, struct
sys.path.insert(0, "gen")
from asmlib import Asm

NAME = "interleave_layers__gqa_block_cached__dense_activation_silu__decode"
out = sys.argv[1]
O = dict(kv.split("=") for kv in sys.argv[2:])
def opt(k, d): return type(d)(O.get(k, d))
PROF = opt("prof", 0); SWZ = opt("swz", 13)
SLEEP_B = opt("sb", 14); SLEEP_E = opt("se", 14); SLEEP_F = opt("sf", 8)
FORCE_SLOW = opt("slow", 0); EXP = opt("exp", "")
POL = {"nt": " nt", "none": "", "sc1": " sc1"}
PFO = POL[opt("pfo", "none")]; PF12 = POL[opt("pf12", "none")]; PFQ = POL[opt("pfq", "none")]; WPOL = POL[opt("wpol", "none")]
CW = opt("cw", 3); DROP = opt("drop", "").split(","); CLRP = " sc1" + POL[opt("clrpol", "none")]
W12PF = opt("w12pf", 1)
INO = opt("ino", 0); IN12 = opt("in12", 0)
WPOS0 = opt("wpos0", 20); WSTEP = opt("wstep", 2); MBG = opt("mbg", 1)
def f2u(x): return struct.unpack("<I", struct.pack("<f", x))[0]
LOG2E = 1.4426950408889634
QSCALE = LOG2E / math.sqrt(128.0)

ML, HS, YS, ZS, OS = 16384, 24576, 32768, 49152, 65536
QP = 65536 + 262144
LS = QP + 131072
EPO = 2 * LS; FLG = EPO + 1024; CS = FLG + 3072
WS_BYTES = CS + 65536
PROF_OFF = 16 << 20
LWQ = 0; KST = 16384; LW2 = LWQ
XB = KST + 4 * 32768; RED0 = XB + 2048; RED1 = RED0 + 1024; REDA = RED0 + 2048; ST0 = RED0 + 2560; MB = RED0 + 2688; OB = RED0 + 3072
QB = OB; XQ = RED0
LDS_BYTES = OB + 8192
assert LDS_BYTES <= 163840
sX, sK, sV, sWQ, sWO, sW1, sW2, sOUT, sWS = 4, 6, 8, 10, 12, 16, 18, 20, 24
rK, rV, rWQ, rWO, rW1, rW2, rWS = 28, 32, 36, 40, 44, 48, 52
sg, sb, sj, sw, sFAST, sLAYER, sBUD = 56, 57, 58, 59, 60, 61, 62
sSELLO, sSELHI = 63, 64
sQpub, sQget, sMLpub, sMLget, sHpub, sHget, sYpub, sYget, sZpub, sZget, sOpub, sOget = range(65, 77)
sYget1, sZget1 = 77, 78
sT0, sT1, sT2, sT3 = 26, 27, 14, 15
sVb, sKm, sOclr = 79, 80, 81
sTAG0, sTAG1 = 22, 23
sjf, sU, skq = 98, 99, 21 + 80
sCEN = 11
sYo, sZo = 4, 5
sSTAMP = 82
def srd(r): return f"s[{r}:{r+3}]"
def sp(r): return f"s[{r}:{r+1}]"
vL, vXBw, vXBr, vRED, vREDA, vQP, vMLad, vGad, vHad, vQad, vPAIR, vOBw = range(0, 12)
vSEL = 12; vX = 16
vOBr, vOpub, vMBw, vMBr, vST, vZpub = 20, 21, 22, 23, 24, 25
vVo = 26; vXQw = 27
aCS = 236; aXQr = 238; aQBw = 239
vQ = 28; vD0, vD1 = 44, 48; vROT = 52; vACC = 64; vR = 96
vPROF = 255
vW1o, vW2o, vT1, vT2, vTrO = 224, 225, 226, 227, 228
vSEL2 = 232
def vq(r, n=4): return f"v[{r}:{r+n-1}]"
def aq(r, n=4): return f"a[{r}:{r+n-1}]"
aK, aWQ, aWO, aW1, aW2 = 0, 128, 160, 192, 208
DUMMY = "a[252:255]"
Z1W = opt("z1w", 0)
aW2b = [144, 148, 152, 156, 240, 244, 248]

A = Asm()
uid = [0]
def lab(p):
    uid[0] += 1
    return f"L_{p}{uid[0]}"
def exec_set(lo, hi): A(f"s_mov_b32 exec_lo, {lo:#x}\ns_mov_b32 exec_hi, {hi:#x}")
def exec_all(): A("s_mov_b64 exec, -1")
def sreg(i): return sSTAMP + 2*i if i < 8 else {8: 0, 9: 6}[i]
def stamp(i):
    if PROF: A(f"s_mem{'time' if PROF >= 4 else 'realtime'} s[{sreg(i)}:{sreg(i)+1}]")
def flush_stamps(base, n):
    if not PROF: return
    A("s_waitcnt lgkmcnt(0)")
    for i in range(n): A(f"v_writelane_b32 v{vPROF}, s{sreg(i)}, {base+i}")
def retry(loop):
    A(f"s_sub_u32 s{sBUD}, s{sBUD}, 1\ns_cbranch_scc0 {loop}\ns_mov_b32 s{sBUD}, 0")
def pub_store(ins):
    a, b = lab("ps"), lab("pe")
    A(f"s_cmp_eq_u32 s{sFAST}, 0\ns_cbranch_scc1 {a}")
    A(ins, cond=True)
    A(f"s_branch {b}\n{a}:")
    A(ins + " sc1", cond=True)
    A(f"{b}:")
class only:
    def __init__(self, cc, reg, val):
        self.neg = {"eq": "lg", "lg": "eq", "lt": "ge", "ge": "lt"}[cc]; self.reg = reg; self.val = val
    def __enter__(self):
        self.l = lab("sk")
        A(f"s_cmp_{self.neg}_u32 s{self.reg}, {self.val}\ns_cbranch_scc1 {self.l}")
    def __exit__(self, *a): A(f"{self.l}:")
OOL = []
class ool:
    def __init__(self, cc, reg, val): self.cc = cc; self.reg = reg; self.val = val
    def __enter__(self):
        self.l = lab("oo"); self.b = lab("ob")
        A(f"s_cmp_{self.cc}_u32 s{self.reg}, {self.val}\ns_cbranch_scc1 {self.l}")
        self.save = A.L; A.L = []
        A(f"{self.l}:\ns_nop 7")
    def __exit__(self, *a):
        A(f"s_nop 4\ns_branch {self.b}")
        OOL.extend(A.L); A.L = self.save
        A(f"{self.b}:")
def mksrd(r, p, nbytes):
    A(f"s_mov_b32 s{r}, s{p}\ns_and_b32 s{r+1}, s{p+1}, 0xffff\ns_mov_b32 s{r+2}, {nbytes:#x}\ns_mov_b32 s{r+3}, 0x20000")
def dma(vo, r, sbase, m0reg, m0add, soffadd, tag, pol, cond=False):
    A(f"s_add_u32 m0, s{m0reg}, {m0add}\ns_add_u32 s3, s{sbase}, {soffadd}")
    A(f"buffer_load_dwordx4 v{vo}, {srd(r)}, s3 offen{pol} lds", tag=tag, cond=cond)
def tr_reads(adst, vbase, steps, tiles, sstep, tstep, second, base=0):
    for t in range(tiles):
        for s in range(steps):
            d = adst + (t*steps + s)*4
            A(f"ds_read_b64_tr_b16 a[{d}:{d+1}], v{vbase} offset:{base + s*sstep + t*tstep}")
            A(f"ds_read_b64_tr_b16 a[{d+2}:{d+3}], v{vbase} offset:{base + s*sstep + t*tstep + second}")
def pack_pairs(v, t):
    A(f"v_mov_b32_dpp v{t}, v{v} quad_perm:[1,0,3,2] row_mask:0xf bank_mask:0xf\nv_cvt_pk_bf16_f32 v{v}, v{v}, v{t}")
DPPF = "row_mask:0xf bank_mask:0xf"

hdr = open(f"cdna_kernels/{NAME}.s.ref").read().split("\n")
H = [l for l in hdr if l.startswith(";") and "@launch" not in l and not l.startswith("; Override") and not l.startswith("; grid=ceil")]
H.append(f"; @launch grid=(256,1,1) block=(256,1,1) lds={LDS_BYTES}")
A.raw('.amdgcn_target "amdgcn-amd-amdhsa--gfx950"')
A.raw(".text"); A.raw(f".globl {NAME}_kernel"); A.raw(".p2align 8"); A.raw(f".type {NAME}_kernel,@function")
A.raw(f"{NAME}_kernel:")

tn, tq = 31, 32
vKo = vR; vKr = vR + 4; vWa = vR + 8; vTa = vR + 9
vEP = vR + 10; vXr = vR + 12; vX0 = vR + 16; vX1 = vR + 20; vXA0 = vACC
stamp(0)
A(f"""
s_cmp_ge_u32 s2, 256
s_cbranch_scc1 L_end
s_load_dwordx16 s[4:19], s[0:1], 0
s_load_dwordx2 s[20:21], s[0:1], 64
s_load_dwordx2 s[24:25], s[0:1], 80
v_lshrrev_b32 v30, 6, v0
v_and_b32 v{vL}, 63, v0
s_and_b32 s{sg}, s2, 7
v_readfirstlane_b32 s{sw}, v30
s_lshr_b32 s{sU}, s2, 3               ; jj
s_lshr_b32 s{sb}, s{sU}, 4
s_and_b32 s{sj}, s{sU}, 15
s_and_b32 s3, s{sj}, 6
s_cmp_eq_u32 s3, 6
s_cselect_b32 s3, 8, 0
s_xor_b32 s{sjf}, s{sj}, s3
v_and_b32 v{tn}, 15, v{vL}
v_lshrrev_b32 v{tq}, 4, v{vL}
s_lshl_b32 s{sT0}, s2, 2
s_add_u32 s{sT0}, s{sT0}, s{sw}
s_mul_i32 s{sT0}, s{sT0}, {SWZ}
s_and_b32 s{sT0}, s{sT0}, 31      ; r
s_lshl_b32 s{sT1}, s{sb}, 3
s_add_u32 s{sT1}, s{sT1}, s{sg}   ; bg
s_lshl_b32 s{sVb}, s{sT1}, 21
s_lshl_b32 s3, s{sj}, 17
s_add_u32 s{sVb}, s{sVb}, s3
s_lshl_b32 s3, s{sw}, 15
s_add_u32 s{sVb}, s{sVb}, s3
s_add_u32 s{sKm}, s3, {KST}
s_lshl_b32 s3, s{sT0}, 10
s_add_u32 s{sVb}, s{sVb}, s3
v_lshlrev_b32 v{vVo}, 4, v{vL}
v_mov_b32 v{vKo}, v{vVo}
v_xor_b32 v{vKo+1}, 64, v{vVo}
v_xor_b32 v{vKo+2}, 128, v{vVo}
v_xor_b32 v{vKo+3}, 192, v{vVo}
v_lshrrev_b32 v35, 3, v{vL}
v_and_b32 v36, 7, v{vL}
v_lshlrev_b32 v36, 4, v36
v_lshl_add_u32 v{vWa}, v35, 13, v36
s_and_b32 s{sT1}, s{sU}, 3            ; kq
s_lshl_b32 s{sBUD}, s{sT1}, 20
s_lshl_b32 s3, s{sw}, 18
s_add_u32 s{sBUD}, s{sBUD}, s3
s_lshl_b32 s3, s{sg}, 10
s_add_u32 s{sBUD}, s{sBUD}, s3
s_lshr_b32 s{sT0}, s{sU}, 2           ; cb
s_lshl_b32 s3, s{sT0}, 7
s_add_u32 s{sBUD}, s{sBUD}, s3
s_lshl_b32 s{sLAYER}, s{sw}, 12
s_mov_b32 s{skq}, s{sT1}
s_lshl_b32 s{sQpub}, s{sg}, 13
s_lshl_b32 s3, s{sT0}, 8
s_add_u32 s{sQpub}, s{sQpub}, s3
s_lshl_b32 s3, s{sT1}, 11
s_add_u32 s{sQpub}, s{sQpub}, s3
; x addresses
v_and_b32 v33, 1, v{tq}
v_lshlrev_b32 v33, 3, v33
v_lshl_add_u32 v33, v{tn}, 4, v33      ; 16n+8(q&1)
s_lshl_b32 s3, s{sb}, 10
s_lshl_b32 s{sT0}, s{sw}, 8
s_add_u32 s3, s3, s{sT0}
v_add_u32 v34, s3, v33
v_lshrrev_b32 v35, 5, v{vL}
v_lshlrev_b32 v35, 10, v35
v_xor_b32 v34, v34, v35
v_mov_b32 v37, {EPO}
s_lshl_b32 s{sU}, s{sU}, 2
s_add_u32 s{sU}, s{sU}, s{sw}          ; u = jj*4+w
s_waitcnt lgkmcnt(0)
""")
def scalars():
    A(f"""
s_mov_b32 s{sSELLO}, 0x05040100
s_mov_b32 s{sSELHI}, 0x07060302
s_lshl_b32 s{sT1}, s{sg}, 1
s_add_u32 s{sT1}, s{sT1}, s{sb}          ; gb
s_lshl_b32 s{sQget}, s{sb}, 3
s_add_u32 s{sQget}, s{sQget}, s{sg}
s_lshl_b32 s{sQget}, s{sQget}, 13
s_lshl_b32 s3, s{sw}, 9
s_add_u32 s{sQget}, s{sQget}, s3
s_add_u32 s{sQget}, s{sQget}, {QP}
s_lshl_b32 s{sMLget}, s{sT1}, 9
s_add_u32 s{sHget}, s{sMLget}, {HS}
s_add_u32 s{sMLget}, s{sMLget}, {ML}
s_lshl_b32 s3, s{sj}, 5
s_add_u32 s{sT2}, s{sMLget}, s3
s_lshl_b32 s3, s{sjf}, 5
s_add_u32 s{sHpub}, s{sHget}, s3
s_lshl_b32 s3, s{sj}, 3
s_add_u32 s{sMLpub}, s{sMLget}, s3
s_lshl_b32 s3, s{sw}, 7
s_add_u32 s{sMLget}, s{sMLget}, s3
s_lshl_b32 s{sOget}, s{sT1}, 14
s_add_u32 s{sOget}, s{sOget}, {OS}
s_lshl_b32 s3, s{sj}, 10
s_add_u32 s{sOclr}, s{sOget}, s3
s_lshl_b32 s3, s{sj}, 4
s_add_u32 s{sOpub}, s{sOget}, s3
s_lshl_b32 s3, s{sw}, 10
s_add_u32 s{sOpub}, s{sOpub}, s3
s_lshl_b32 s3, s{sw}, 12
s_add_u32 s{sOget}, s{sOget}, s3
s_lshl_b32 s{sYget}, s{sb}, 13
s_add_u32 s{sYget}, s{sYget}, {YS}
s_add_u32 s{sYget1}, s{sYget}, 4096
s_add_u32 s{sZget}, s{sYget}, {ZS-YS}
s_add_u32 s{sZget1}, s{sZget}, 4096
s_lshl_b32 s3, s{sg}, 10
s_add_u32 s{sYpub}, s{sYget}, s3
s_lshl_b32 s3, s{sj}, 6
s_add_u32 s{sYpub}, s{sYpub}, s3
s_add_u32 s{sZpub}, s{sYpub}, {ZS-YS}
""")
def clears():
    A(f"""
v_mul_u32_u24 v47, {LS}, v{tq}
v_mov_b32 v45, s{sYpub}
v_mov_b32 v46, s{sT2}
v_subrev_u32 v46, 64, v46
v_cmp_le_u32 vcc, 4, v{tn}
v_cndmask_b32 v45, v45, v46, vcc
v_mov_b32 v46, s{sHpub}
v_subrev_u32 v46, 96, v46
v_cmp_le_u32 vcc, 6, v{tn}
v_cndmask_b32 v45, v45, v46, vcc
v_mov_b32 v46, s{sYpub}
v_subrev_u32 v46, 128, v46
v_cmp_le_u32 vcc, 8, v{tn}
v_cndmask_b32 v45, v45, v46, vcc
v_mov_b32 v46, s{sZpub}
v_subrev_u32 v46, 192, v46
v_cmp_le_u32 vcc, 12, v{tn}
v_cndmask_b32 v45, v45, v46, vcc
v_lshl_add_u32 v45, v{tn}, 4, v45
v_add_u32 v45, v45, v47
s_add_u32 s3, s{sQpub}, {CS}
v_lshlrev_b32 v46, 4, v{tn}
v_add_u32 v47, s3, v46
v_cmp_le_u32 vcc, 32, v{vL}
v_cndmask_b32 v45, v45, v47, vcc
v_and_b32 v47, 1, v{tq}
v_lshl_add_u32 v46, v47, 16, v46
v_lshrrev_b32 v47, 1, v{tq}
v_mul_u32_u24 v47, {LS}, v47
v_add_u32 v46, v46, v47
s_add_u32 s{sT2}, s{sQpub}, {QP}
v_mov_b32 v48, -1
v_mov_b32 v49, -1
v_mov_b32 v50, -1
v_mov_b32 v51, -1
s_add_u32 s3, s{sOclr}, {LS}
""")
    exec_set(0xffffffff, 0xffff)
    A(f"buffer_store_dwordx4 v[48:51], v45, {srd(rWS)}, 0 offen{CLRP}", cond=True)
    exec_all()
    A(f"buffer_store_dwordx4 v[48:51], v46, {srd(rWS)}, s{sT2} offen{CLRP}", cond=True)
    A(f"buffer_store_dwordx4 v[48:51], v{vVo}, {srd(rWS)}, s{sOclr} offen{CLRP}", cond=True)
    A(f"buffer_store_dwordx4 v[48:51], v{vVo}, {srd(rWS)}, s3 offen{CLRP}", tag="clr", cond=True)
def tags():
    A(f"""
v_readfirstlane_b32 s{sTAG0}, v{vEP}
v_readfirstlane_b32 s{sTAG1}, v{vEP+1}
s_add_u32 s{sTAG0}, s{sTAG0}, 1
s_andn2_b32 s{sTAG1}, s{sTAG1}, 15""")
def flag():
    with (ool if opt("ool", 0) else only)("eq", sw, CW):
        A.vwait("clr")
        tags()
        A(f"""
s_getreg_b32 s3, hwreg(HW_REG_XCC_ID, 0, 4)
s_or_b32 s3, s3, s{sTAG1}
v_mov_b32 v46, s{sTAG0}
v_mov_b32 v47, s3
s_lshl_b32 s3, s{sb}, 3
s_add_u32 s3, s3, s{sg}
s_lshl_b32 s3, s3, 4
s_add_u32 s3, s3, s{sj}
s_lshl_b32 s3, s3, 3
s_add_u32 s3, s3, {FLG}
v_mov_b32 v45, 0""")
        exec_set(1, 0)
        A(f"buffer_store_dwordx2 v[46:47], v45, {srd(rWS)}, s3 offen sc1", cond=True)
        exec_all()
def kdma(n):
    A(f"s_add_u32 m0, s{sKm}, {n*1024}\ns_xor_b32 s{sT0}, s{sVb}, {n*1024}")
    A(f"buffer_load_dwordx4 v{vKo+(n&3)}, {srd(rK)}, s{sT0} offen{POL[opt('kvpol','nt')]} lds", tag=f"K{n}")
def kread(k):
    A.vwait(f"K{4*k+3}")
    for s in range(4): A(f"ds_read_b128 {aq(aK+16*k+4*s)}, v{vKr+s} offset:{k*4096}")
def vload(n):
    A(f"s_xor_b32 s{sT1}, s{sVb}, {n*1024}")
    A(f"buffer_load_dwordx4 {vq(vR+32+4*n)}, v{vVo}, {srd(rV)}, s{sT1} offen{POL[opt('kvpol','nt')]}", tag=f"V{n}")
base = [("K", n) for n in range(32)] + [("V", n) for n in range(32)]
wl = []
if IN12: wl += [("W1", i) for i in range(4)] + [("W2", i) for i in range(4)]
if INO: wl = [("WO", i) for i in range(8)] + wl if opt("worder", 0) == 0 else wl + [("WO", i) for i in range(8)]
pend = []
for kind, n in base:
    pend.append((kind, n))
    pos = n if kind == "K" else 32 + n
    if wl and pos >= WPOS0 and (pos - WPOS0) % WSTEP == 0:
        pend.append(wl.pop(0)); assert pos < 32 + 8*MBG + 7
assert not wl
kr = [0]; allow_kread = [False]; wfirst = [True]
sWOb, sW1b, sW2b = 8, 9, 10
def wdma(kind, n):
    if "w" in DROP:
        if opt("fakew", 0):
            A(f"s_lshl_b32 s3, s{sU}, 12\ns_lshl_b32 s{sWOb}, s{sg}, 19\ns_add_u32 s{sWOb}, s{sWOb}, s3")
            fk = [("WO", i) for i in range(4)] + [("W1", 0), ("W1", 1), ("W2", 0), ("W2", 1)]
            if kind == "WO" and n < 4: A(f"buffer_load_dwordx4 {DUMMY}, v{vVo}, {srd(rWO)}, s{sWOb} offen offset:{1024*n} nt")
            if kind == "W1":
                A(f"s_lshl_b32 s3, s2, 2\ns_add_u32 s3, s3, s{sw}\ns_mul_i32 s3, s3, 1792")
                if n < 2: A(f"buffer_load_dwordx4 {DUMMY}, v{vVo}, {srd(rW1)}, s3 offen offset:{768*n} nt")
                else: A(f"buffer_load_dwordx4 {DUMMY}, v{vVo}, {srd(rW2)}, s3 offen offset:{768*(n-2)} nt")
        return
    if wfirst[0]:
        wfirst[0] = False
        assert kr[0] >= 4
        A(f"""s_waitcnt lgkmcnt(0)
v_lshrrev_b32 v111, 2, v{vL}
v_and_b32 v112, 3, v{vL}
v_lshlrev_b32 v112, 4, v112
v_lshl_add_u32 v111, v111, 10, v112
v_lshrrev_b32 v112, 1, v{vL}
v_mul_u32_u24 v112, 3584, v112
v_and_b32 v113, 1, v{vL}
v_lshl_add_u32 v112, v113, 4, v112
s_lshl_b32 s{sWOb}, s{sg}, 19
s_lshl_b32 s3, s{sw}, 17
s_add_u32 s{sWOb}, s{sWOb}, s3
s_lshl_b32 s3, s{sj}, 6
s_add_u32 s{sWOb}, s{sWOb}, s3
s_mul_i32 s{sW2b}, s{sg}, {224*1024}
s_add_u32 s{sW2b}, s{sW2b}, s3
s_lshl_b32 s3, s{sw}, 14
s_add_u32 s{sW2b}, s{sW2b}, s3
s_mul_i32 s{sW1b}, s{sw}, {128*3584}
s_mul_i32 s3, s{sg}, 448
s_add_u32 s{sW1b}, s{sW1b}, s3
s_lshl_b32 s3, s{sjf}, 5
s_add_u32 s{sW1b}, s{sW1b}, s3""")
    if kind == "WO": dma(111, rWO, sWOb, sKm, 1024*n, n << 14, f"WO{n}", " nt")
    elif kind == "W1":
        with only("lt", sjf, 14): dma(112, rW1, sW1b, sKm, 8192 + 1024*n, n*32*3584, "W1", " nt", cond=True)
    elif n < 3: dma(111, rW2, sW2b, sKm, 12288 + 1024*n, n*64*1024, "W2", " nt")
    else:
        with only("lt", sw, 2): dma(111, rW2, sW2b, sKm, 12288 + 1024*n, n*64*1024, "W2", " nt", cond=True)
def stream(k=1, upto=None):
    if upto is None and k <= 0: return
    if upto is not None:
        nxt = [n if kd == "K" else 32 + n for kd, n in pend if kd in "KV"][0]
        if nxt > upto: return
    while pend and (k > 0 or upto is not None):
        kind, n = pend.pop(0)
        if kind[0] == "W":
            wdma(kind, n); continue
        kdma(n) if kind == "K" else vload(n)
        pos = n if kind == "K" else 32 + n
        if PFOPOS > 0 and pos == PFOPOS: pf_wo()
        if allow_kread[0]:
            while kr[0] < 8 and 4*kr[0] + 3 + opt("klag", 16) <= pos:
                kread(kr[0]); kr[0] += 1
        k -= 1
        if upto is not None and pos == upto: break
        if upto is None and k <= 0: break

def pf_wo():
    A(f"s_lshl_b32 s3, s{sU}, 12\ns_lshl_b32 s{sT2}, s{sg}, 19\ns_add_u32 s{sT2}, s{sT2}, s3")
    for i in range(4): A(f"buffer_load_dwordx4 {DUMMY}, v{vVo}, {srd(rWO)}, s{sT2} offen offset:{1024*i}{PFO}")
    for x in range(1, opt("redo", 1)):
        A(f"s_xor_b32 s3, s{sT2}, {[0, 64, 32, 96][x] << 12}")
        for i in range(4): A(f"buffer_load_dwordx4 {DUMMY}, v{vVo}, {srd(rWO)}, s3 offen offset:{1024*i}{PFO}")
PFOPOS = opt('pfopos', -1)
mksrd(rK, sK, 1 << 25)
stream(opt("kf", 0))
mksrd(rWQ, sWQ, 512*4096*2); mksrd(rWS, sWS, WS_BYTES)
if PFOPOS >= 0: mksrd(rWO, sWO, 4096*512*2)
A(f"global_load_dwordx2 {vq(vEP,2)}, v37, {sp(sWS)} sc1", tag="ep")
with (ool if opt("ool", 0) else only)("eq", sw, CW):
    scalars()
    if "clr" not in DROP: clears()
    else: A.vq.append(("clr", True))
if "wa" not in DROP:
    for i in range(4): dma(vWa, rWQ, sBUD, sLAYER, LWQ + 1024*i, i << 16, f"WA{i}", " nt")
A(f"global_load_dwordx2 {vq(vXr,2)}, v34, {sp(sX)}", tag="x")
if PFOPOS == 0: pf_wo()
stream(opt("k0", 6) - opt("kf", 0))
stamp(1)
mksrd(rV, sV, 1 << 25); mksrd(rWO, sWO, 4096*512*2); mksrd(rW1, sW1, 512*1792*2); mksrd(rW2, sW2, 1792*512*2)
if opt("ool", 0): scalars()
else:
    with only("lg", sw, CW): scalars()
A(f"s_mov_b32 s{sLAYER}, 0\ns_mov_b32 s{sBUD}, 400000")
TLB = opt("tlb", 1)
if TLB:
    exec_set(1, 0)
    A(f"v_mov_b32 v44, 0")
    A(f"buffer_load_dword a255, v44, {srd(rV)}, s{sVb} offen nt")
    if TLB in (2, 3):
        A(f"s_lshl_b32 s3, s{sg}, 19")
        A(f"buffer_load_dword a255, v44, {srd(rWO)}, s3 offen nt")
        A(f"s_mul_i32 s3, s{sw}, {128*3584}")
        A(f"buffer_load_dword a255, v44, {srd(rW1)}, s3 offen nt")
        A(f"s_mul_i32 s3, s{sg}, {224*1024}")
        A(f"buffer_load_dword a255, v44, {srd(rW2)}, s3 offen nt")
    if TLB == 3:
        A(f"global_load_dword a255, v44, {sp(sOUT)} nt")
    if TLB == 4:
        A(f"s_or_b32 s3, s{sg}, s{sj}")
        with only("eq", 3, 0): A(f"global_load_dword a255, v44, {sp(sOUT)} nt", cond=True)
    exec_all()
A(f"""
s_lshl_b32 s3, s{sw}, 9
s_add_u32 s3, s3, {XB}
v_add_u32 v{vXBw}, s3, v33
v_lshrrev_b32 v44, 3, v{tn}
v_lshlrev_b32 v44, 8, v44
v_lshl_add_u32 v44, v{tq}, 4, v44
v_add_u32 v{vXBr}, s3, v44
v_lshlrev_b32 v47, 2, v{vL}                ; 4l
v_add_u32 v44, s3, v47
v_mov_b32 v41, 0x3f803f80
ds_write_b32 v44, v41 offset:256
s_lshl_b32 s3, s{sw}, 2
s_add_u32 s{sT1}, s3, {RED1}
v_add_u32 v{vRED}, s{sT1}, v{vVo}
v_lshrrev_b32 v46, 5, v{vL}
v_lshl_add_u32 v46, v46, 4, v{tn}
v_lshlrev_b32 v46, 4, v46
s_add_u32 s{sT1}, s3, {REDA}
v_add_u32 v{vREDA}, s{sT1}, v46
s_add_u32 s{sT1}, s3, {ST0}
v_mov_b32 v{vST}, s{sT1}
v_and_b32 v42, 3, v{vL}                    ; l&3
v_lshlrev_b32 v43, 4, v42
v_add_u32 v{vMBw}, {MB}, v43
v_add_u32 v{vMBw}, s3, v{vMBw}
s_lshl_b32 s3, s{sw}, 8
v_lshlrev_b32 v43, 4, v{tq}                ; 16q
v_add_u32 v{vMBr}, {MB}, v43
v_and_b32 v44, 1, v{tq}
v_lshlrev_b32 v44, 16, v44
v_lshl_add_u32 v{vQP}, v{tn}, 2, v44       ; batch*65536 + 4n
v_lshrrev_b32 v44, 5, v{vL}
v_xor_b32 v44, s{sb}, v44
v_lshlrev_b32 v44, 8, v44
v_add_u32 v44, {XQ}, v44
v_add_u32 v{vXQw}, v44, v33
v_bfe_u32 v44, v{vL}, 2, 1
v_lshlrev_b32 v44, 8, v44
v_add3_u32 v44, v44, v43, 0
v_add_u32 v44, {XQ}, v44
v_accvgpr_write_b32 a{aXQr}, v44
v_lshrrev_b32 v44, 2, v{vL}
v_lshlrev_b32 v44, 6, v44
v_lshl_add_u32 v44, v42, 2, v44
s_lshl_b32 s{sT1}, s{sw}, 4
s_add_u32 s{sT1}, s{sT1}, {QB}
v_add_u32 v44, s{sT1}, v44
v_accvgpr_write_b32 a{aQBw}, v44
v_lshlrev_b32 v44, 4, v{tn}
v_lshl_add_u32 v44, v{tq}, 10, v44
v_add_u32 v{vGad}, s3, v44
v_mov_b32 v{vHad}, v43
v_lshlrev_b32 v44, 4, v42
v_lshl_add_u32 v{vQad}, v{tq}, 6, v44
v_add_u32 v{vQad}, {QB}, v{vQad}
v_lshl_add_u32 v44, v{tq}, 2, v42
v_lshlrev_b32 v{vMLad}, 3, v44
v_lshrrev_b32 v44, 1, v{vL}
v_lshlrev_b32 v{vPAIR}, 2, v44
s_lshl_b32 s3, s{sw}, 11
s_add_u32 s3, s3, {OB}
v_lshlrev_b32 v44, 4, v{tn}
v_add_u32 v{vOBw}, s3, v{vVo}
s_lshl_b32 s3, s{sw}, 9
s_add_u32 s3, s3, {OB}
v_lshl_add_u32 v44, v{tq}, 2, v44
v_add_u32 v{vOBr}, s3, v44
v_lshrrev_b32 v45, 2, v{tn}                ; n>>2
v_lshlrev_b32 v44, 8, v45
v_lshl_add_u32 v44, v42, 2, v44
v_lshl_add_u32 v{vOpub}, v{tq}, 12, v44
s_and_b32 s3, s{sw}, 1
s_lshl_b32 s3, s3, 5
v_lshlrev_b32 v44, 3, v{tq}
v_add_u32 v{vZpub}, s3, v44
{"v_and_b32 v46, 4, v%d" % tn if Z1W else ""}
{"v_lshl_add_u32 v%d, v46, 3, v44" % vZpub if Z1W else ""}
v_mul_u32_u24 v44, 1088, v42
v_lshl_add_u32 v44, v45, 8, v44
v_add_u32 v44, v44, v43
""")
for s in range(4): A(f"v_xor_b32 v46, {64*s}, v44\nv_add_u32 v{vKr+s}, s{sKm}, v46")
A(f"""
v_and_b32 v44, 1, v{tn}
v_lshlrev_b32 v44, 4, v44
v_mov_b32 v46, 0x3f80
v_lshlrev_b32 v46, v44, v46
v_lshrrev_b32 v44, 1, v{tn}
""")
for i in range(4): A(f"v_cmp_eq_u32 vcc, {i}, v44\nv_cndmask_b32 v{vSEL+i}, 0, v46, vcc")
A(f"""
v_lshl_add_u32 v46, v{tq}, 3, v45          ; 8q+r
v_lshlrev_b32 v46, 7, v46
v_lshl_add_u32 v46, v42, 3, v46
s_lshl_b32 s3, s{sw}, 5
v_add_u32 v{vTa}, s3, v46
""")
stream(opt("k1", 2))
if opt("fpos", 12) < 0: flag()

vXP = 28; vXA = 32; vG0 = 48
vS, vSQ, vTm = 30, 31, 56
vMean, vRs = 62, 63
def unpack_x():
    A(f"""
v_lshlrev_b32 v{vX}, 16, v{vXP}
v_and_b32 v{vX+1}, 0xffff0000, v{vXP}
v_lshlrev_b32 v{vX+2}, 16, v{vXP+1}
v_and_b32 v{vX+3}, 0xffff0000, v{vXP+1}""")
def stat_ops():
    o = [f"v_add_f32 v{vS}, v{vX}, v{vX+1}", f"v_mul_f32 v{vSQ}, v{vX}, v{vX}", f"v_add_f32 v{vTm}, v{vX+2}, v{vX+3}",
         f"v_fmac_f32 v{vSQ}, v{vX+1}, v{vX+1}", f"v_add_f32 v{vS}, v{vS}, v{vTm}",
         f"v_fmac_f32 v{vSQ}, v{vX+2}, v{vX+2}", f"v_fmac_f32 v{vSQ}, v{vX+3}, v{vX+3}"]
    for c in ("row_ror:8 " + DPPF, "row_ror:4 " + DPPF, "row_ror:2 " + DPPF, "row_ror:1 " + DPPF, "row_bcast:15 row_mask:0xa bank_mask:0xf"):
        o += [f"v_add_f32_dpp v{vS}, v{vS}, v{vS} {c}", f"v_add_f32_dpp v{vSQ}, v{vSQ}, v{vSQ} {c}"]
    return o
def stat_write(st_off):
    exec_set(0x10000, 0)
    A(f"ds_write2_b32 v{vST}, v{vS}, v{vSQ} offset0:{st_off//4} offset1:{st_off//4+4}")
    exec_all()
def qproj(first):
    with only("eq", sw, f"s{skq}"): A(f"ds_write_b64 v{vXQw}, v[{vXP}:{vXP+1}]")
    A(f"v_accvgpr_read_b32 v57, a{aXQr}")
    unpack_x()
    for i in stat_ops(): A(i)
    stat_write(0)
    A("s_waitcnt lgkmcnt(0)\ns_barrier")
    if first:
        tr_reads(aWQ, vTa, 4, 1, 4096, 0, 512, base=LWQ)
        stream(2)
    for s_ in range(4): A(f"ds_read_b128 {vq(vXA+4*s_)}, v57 offset:{64*s_}")
    A(f"v_mov_b32 v58, {ST0}")
    A(f"ds_read_b128 v[52:55], v58\nds_read_b128 v[56:59], v58 offset:16")
    A(f"s_lshl_b32 s3, s{sw}, 6\ns_add_u32 s3, s3, s{sQpub}\ns_add_u32 s{sT2}, s3, {CS}\ns_add_u32 s3, s3, {QP}")
    for s_ in range(4):
        A(f"s_waitcnt lgkmcnt({0 if (PROF or first) else 5-s_})")
        A(f"v_mfma_f32_16x16x32_bf16 {vq(vG0)}, {vq(vXA+4*s_)}, {aq(aWQ+4*s_)}, {'0' if s_ == 0 else vq(vG0)}")
    A(f"""s_waitcnt lgkmcnt(0)
v_add_f32 v52, v52, v53
v_add_f32 v54, v54, v55
v_add_f32 v56, v56, v57
v_add_f32 v58, v58, v59
v_add_f32 v52, v52, v54
v_add_f32 v56, v56, v58""")
    if not first:
        exec_set(0xffffffff, 0)
        pub_store(f"buffer_store_dword v{vG0}, v{vQP}, {srd(rWS)}, s3 offen")
        exec_all()
    else: stream(2)
    A(f"""
v_mul_f32 v{vMean}, {f2u(1.0/512):#x}, v52
v_mul_f32 v56, {f2u(1.0/512):#x}, v56
v_fma_f32 v56, -v{vMean}, v{vMean}, v56
v_max_f32 v56, 0, v56
v_add_f32 v56, {f2u(1e-5):#x}, v56
v_rsq_f32 v56, v56
v_mul_f32 v{vRs}, {f2u(QSCALE):#x}, v56""")
    if first:
        for i in range(4): A(f"v_mov_b32 v{vXA+i}, 0x3f803f80")
        for s_ in range(4):
            A(f"v_mfma_f32_16x16x32_bf16 v[52:55], {vq(vXA)}, {aq(aWQ+4*s_)}, {'0' if s_ == 0 else 'v[52:55]'}")
        if opt("fpos", 12) >= 0:
            stream(upto=opt("fpos", 12))
            flag()
            stream(upto=opt("b2pos", 16))
            A("s_barrier")
        A(f"s_lshl_b32 s3, s{sw}, 6\ns_add_u32 s3, s3, s{sQpub}\ns_add_u32 s{sT2}, s3, {CS}\ns_add_u32 s3, s3, {QP}")
        exec_set(0xffffffff, 0)
        A(f"buffer_store_dword v{vG0}, v{vQP}, {srd(rWS)}, s3 offen sc1")
        exec_set(0xffff, 0)
        A(f"buffer_store_dword v52, v{vQP}, {srd(rWS)}, s{sT2} offen sc1")
        exec_all()
def q_loads(dst, soff, tag=None, cond=False):
    for k in range(4): A(f"buffer_load_dwordx2 v[{dst+2*k}:{dst+2*k+1}], v60, {srd(rWS)}, s{soff} offen offset:{2048*k if k < 2 else 2048*(k-2)} sc1" if k < 2 else
                         f"buffer_load_dwordx2 v[{dst+2*k}:{dst+2*k+1}], v61, {srd(rWS)}, s{soff} offen offset:{2048*(k-2)} sc1", tag=tag, cond=cond)
def q_addr(): A(f"v_lshlrev_b32 v60, 3, v{vL}\nv_add_u32 v61, 4096, v60")
def sum4(d):
    A(f"v_add_f32 v{d}, v{d}, v{d+2}\nv_add_f32 v{d+1}, v{d+1}, v{d+3}\nv_add_f32 v{d+4}, v{d+4}, v{d+6}\nv_add_f32 v{d+5}, v{d+5}, v{d+7}\nv_add_f32 v{d}, v{d}, v{d+4}\nv_add_f32 v{d+1}, v{d+1}, v{d+5}")
def q_finish(cs):
    A(f"""
v_fma_f32 v44, -v{vMean}, v{cs}, v44
v_fma_f32 v45, -v{vMean}, v{cs+1}, v45
v_mul_f32 v44, v44, v{vRs}
v_mul_f32 v45, v45, v{vRs}
v_cvt_pk_bf16_f32 v44, v44, v45
ds_write_b32 v59, v44
s_waitcnt lgkmcnt(0)
s_barrier""")
    for s_ in range(4): A(f"ds_read_b128 {vq(vQ+4*s_)}, v{vQad} offset:{256*s_}")
A.vwait("x")
stamp(2)
tags()
A(f"""
s_cmp_eq_u32 s{sw}, s{skq}
s_cselect_b32 s3, 64, 32
v_cmp_gt_u32 vcc, s3, v{vL}
v_cndmask_b32 v{vXP}, 0, v{vXr}, vcc
v_cndmask_b32 v{vXP+1}, 0, v{vXr+1}, vcc
s_xor_b32 s{sYo}, s{sYget}, 8192
s_xor_b32 s{sZo}, s{sZget}, 8192""")
qproj(True)
stamp(3)
allow_kread[0] = True
stream(upto=opt("cenpos", 30))
def cen_loads(cond):
    A(f"s_mov_b32 s3, {FLG}")
    A(f"buffer_load_dwordx4 v[32:35], v{vVo}, {srd(rWS)}, s3 offen sc1", cond=cond)
    A(f"buffer_load_dwordx4 v[36:39], v{vVo}, {srd(rWS)}, s3 offen offset:1024 sc1", tag="cen", cond=cond)
if "cen" not in DROP: cen_loads(False)
else: A.vq.append(("cen", True))
stream(opt("cenlag", 10))
A.vwait("cen")
lcen, lcok = lab("cen"), lab("cok")
A(f"{lcen}:")
if "cen" in DROP or "clr" in DROP: A(f"s_branch {lcok}")
for i in range(4):
    A(f"v_xor_b32 v{32+2*i}, s{sTAG0}, v{32+2*i}\nv_xor_b32 v{33+2*i}, s{sTAG1}, v{33+2*i}")
CSPLIT = opt("csplit", 1)
A(f"""
v_or3_b32 v40, v33, v35, v37
v_or3_b32 v42, v32, v34, v36
v_or_b32 v40, v40, v39
v_and_b32 v40, -16, v40
v_or3_b32 v40, v40, v42, v38
v_cmp_ne_u32 vcc, 0, v40""")
if CSPLIT: A(f"""s_or_b32 s{sCEN}, vcc_lo, vcc_hi
s_lshl_b32 s3, s{sg}, 3
s_lshr_b64 s[{sT2}:{sT2+1}], vcc, s3
s_and_b32 s{sT2}, s{sT2}, 0xff
s_cbranch_scc0 {lcok}
s_sleep 4""")
else: A(f"s_cbranch_vccz {lcok}\ns_sleep 4")
cen_loads(True)
A("s_waitcnt vmcnt(0)")
retry(lcen)
A(f"{lcok}:")
stamp(4)
if PROF: A(f"s_mov_b32 s12, s{sBUD}")
A(f"""
s_getreg_b32 s3, hwreg(HW_REG_XCC_ID, 0, 4)
v_xor_b32 v33, s3, v33
v_xor_b32 v35, s3, v35
v_xor_b32 v37, s3, v37
v_xor_b32 v39, s3, v39
v_or_b32 v33, v33, v35
v_or3_b32 v33, v33, v37, v39
v_cmp_eq_u32 vcc, 0, v33
s_lshl_b32 s3, s{sg}, 3
s_lshr_b64 s[{sT2}:{sT2+1}], vcc, s3
s_and_b32 s{sT2}, s{sT2}, 0xff
s_cmp_eq_u32 s{sT2}, 0xff
s_cselect_b32 s{sFAST}, {0 if FORCE_SLOW else 1}, 0
s_lshl_b32 s{sT3}, s{sg}, 13
s_lshl_b32 s3, s{sw}, 9
s_add_u32 s{sT3}, s{sT3}, s3
s_add_u32 s{sT3}, s{sT3}, {CS}""")
q_addr()
stream(upto=opt("qpos", 42))
if "q" not in DROP: q_loads(44, sQget); q_loads(32, sT3, tag="Q")
else: A.vq.append(("Q", True))
stream(opt("qlag", 8))
A.vwait("Q")
lq1, lq1ok = lab("ql"), lab("qlok")
A(f"{lq1}:")
if DROP != [""] and DROP != ["w"]: A(f"s_branch {lq1ok}")
sum4(44); sum4(32)
A(f"""v_add_f32 v40, v44, v45
v_add_f32 v41, v32, v33
v_cmp_u_f32 vcc, v40, v41
s_cbranch_vccz {lq1ok}""")
q_loads(44, sQget, cond=True); q_loads(32, sT3, cond=True)
A("s_waitcnt vmcnt(0)")
retry(lq1)
A(f"""{lq1ok}:
v_accvgpr_write_b32 a{aCS}, v32
v_accvgpr_write_b32 a{aCS+1}, v33
v_accvgpr_read_b32 v59, a{aQBw}
v_mov_b32 v56, v32
v_mov_b32 v57, v33""")
assert kr[0] == 8
if PROF: A(f"s_mov_b32 s13, s{sBUD}")
q_finish(56)
stream(1)
A(f"s_waitcnt lgkmcnt(0)")
stamp(5)

def qk(filler=None):
    tiles = [(t, u) for t in range(4) for u in range(2)]
    def dreg(k):
        t, u = tiles[k]
        return (vD0 if u == 0 else vD1) if t == 0 else vROT + 4*(k % 3)
    def sel(k):
        t, u = tiles[k]
        if t == 0: return []
        return [f"v_mov_b32_dpp v{(vD0 if u == 0 else vD1)+r}, v{dreg(k)+r} quad_perm:[0,1,2,3] row_mask:0xf bank_mask:{1 << t:#x}" for r in range(4)]
    for k in range(8):
        ex = sel(k-2) if k >= 2 else []
        for s in range(4):
            c = "0" if s == 0 else vq(dreg(k))
            A(f"v_mfma_f32_16x16x32_bf16 {vq(dreg(k))}, {aq(aK+16*k+4*s)}, {vq(vQ+4*s)}, {c}")
            if ex: A(ex.pop(0))
        if filler: filler(k)
    for k in (6, 7):
        for i in sel(k): A(i)
vM, vTt, vLs, vP = 32, 33, 34, 28
vF = 36; vMM = 40
def softmax():
    A(f"""
v_max3_f32 v{vM}, v{vD0}, v{vD0+1}, v{vD0+2}
v_max3_f32 v{vTt}, v{vD0+3}, v{vD1}, v{vD1+1}
v_max3_f32 v{vM}, v{vM}, v{vD1+2}, v{vD1+3}
v_max_f32 v{vM}, v{vM}, v{vTt}
v_max_f32_dpp v{vM}, v{vM}, v{vM} row_ror:4 {DPPF}
v_max_f32_dpp v{vM}, v{vM}, v{vM} row_ror:8 {DPPF}
v_mov_b32 v{vTt}, v{vM}
v_permlane16_swap_b32 v{vM}, v{vTt}
v_max_f32 v{vM}, v{vM}, v{vTt}
v_mov_b32 v{vTt}, v{vM}
v_permlane32_swap_b32 v{vM}, v{vTt}
v_max_f32 v{vM}, v{vM}, v{vTt}""")
    for r in range(8): A(f"v_sub_f32 v{vD0+r}, v{vD0+r}, v{vM}")
    A(f"ds_write_b32 v{vMBw}, v{vM}")
    for r in range(8): A(f"v_exp_f32 v{vD0+r}, v{vD0+r}")
    for p in range(4): A(f"v_cvt_pk_bf16_f32 v{vP+p}, v{vD0+2*p}, v{vD0+2*p+1}")
def aop(t): return vP if t == 0 else vROT + 4*(t-1)
def shifts(t): return [f"v_mov_b32_dpp v{aop(t)+p}, v{vP+p} row_ror:{16-4*t} {DPPF}" for p in range(4)]
def lsum_ops():
    return [f"v_add_f32 v{vLs}, v{vD0}, v{vD0+1}", f"v_add_f32 v{vTt}, v{vD0+2}, v{vD0+3}",
            f"v_add_f32 v{vLs}, v{vLs}, v{vD1}", f"v_add_f32 v{vTt}, v{vTt}, v{vD1+1}",
            f"v_add_f32 v{vLs}, v{vLs}, v{vD1+2}", f"v_add_f32 v{vTt}, v{vTt}, v{vD1+3}",
            f"v_add_f32 v{vLs}, v{vLs}, v{vTt}",
            f"v_add_f32_dpp v{vLs}, v{vLs}, v{vLs} row_ror:4 {DPPF}",
            f"v_add_f32_dpp v{vLs}, v{vLs}, v{vLs} row_ror:8 {DPPF}",
            f"v_mov_b32 v{vTt}, v{vLs}", f"v_permlane16_swap_b32 v{vLs}, v{vTt}", f"v_add_f32 v{vLs}, v{vLs}, v{vTt}",
            f"v_mov_b32 v{vTt}, v{vLs}", f"v_permlane32_swap_b32 v{vLs}, v{vTt}", f"v_add_f32 v{vLs}, v{vLs}, v{vTt}",
            f"ds_write_b32 v{vMBw}, v{vLs} offset:64"]
def fw_ops():
    return [f"ds_read_b128 {vq(vF)}, v{vMBr}", "s_waitcnt lgkmcnt(0)",
            f"v_max3_f32 v{vMM}, v{vF}, v{vF+1}, v{vF+2}", f"v_max_f32 v{vMM}, v{vMM}, v{vF+3}"] + \
           [f"v_sub_f32 v{vF+i}, v{vF+i}, v{vMM}" for i in range(4)] + [f"v_exp_f32 v{vF+i}, v{vF+i}" for i in range(4)]
def owrite(half): return f"ds_write_b128 v{vOBw}, {vq(vACC+16*half)} offset:{1024*half}"
sROW = {1: 28, 2: 30, 3: 36}
def row_masks():
    A(f"s_mov_b32 s28, 0xffff0000\ns_mov_b32 s29, 0\ns_mov_b32 s30, 0\ns_mov_b32 s31, 0xffff\ns_mov_b32 s36, 0\ns_mov_b32 s37, 0xffff0000")
def merge(jd):
    d = vACC + 16*(jd >> 2)
    return [f"v_cndmask_b32 v{d+h}, v{d+h}, v{vACC+4*jd+h}, {sp(sROW[jd & 3])}" for h in range(4)]
def pv_mfma(t, jd, first):
    c = "0" if first else vq(vACC+4*jd)
    A(f"v_mfma_f32_16x16x32_bf16 {vq(vACC+4*jd)}, {vq(aop((t - jd) & 3))}, {vq(vR+32*t+4*jd)}, {c}")

def pf_w12(t0, t1):
    pf_w12_(t0, t1)
    if opt("red12", 1) > 1:
        A(f"s_xor_b32 s{sU}, s{sU}, 64"); pf_w12_(t0, t1)
def pf_w12_(t0, t1):
    A(f"""
s_mul_i32 s{sT2}, s{sU}, {4*3584}
s_mul_i32 s3, s{sg}, 448
s_add_u32 s{sT2}, s{sT2}, s3
v_lshrrev_b32 v{t0}, 5, v{vL}
v_mul_u32_u24 v{t0}, 3584, v{t0}
v_and_b32 v{t1}, 31, v{vL}
v_lshl_add_u32 v{t0}, v{t1}, 4, v{t0}
s_add_u32 s3, s{sT2}, {2*3584}""")
    exec_set(0x0fffffff, 0x0fffffff)
    A(f"buffer_load_dwordx4 {DUMMY}, v{t0}, {srd(rW1)}, s{sT2} offen{PF12}")
    A(f"buffer_load_dwordx4 {DUMMY}, v{t0}, {srd(rW1)}, s3 offen{PF12}")
    A(f"""
s_mul_i32 s{sT2}, s{sU}, {14*128}
s_mul_i32 s3, s{sg}, {224*1024}
s_add_u32 s{sT2}, s{sT2}, s3""")
    exec_set(0xffffffff, 0x00ffffff)
    A(f"buffer_load_dwordx4 {DUMMY}, v{vVo}, {srd(rW2)}, s{sT2} offen{PF12}")
    A(f"buffer_load_dwordx4 {DUMMY}, v{vVo}, {srd(rW2)}, s{sT2} offen offset:896{PF12}")
    exec_all()
def tail_pf():
    if "tail" in DROP: return
    if not INO and PFOPOS == -1: pf_wo()
    if W12PF == 0 and not IN12: pf_w12(41, 42)
    lw = lab("wu"); lw2 = lab("wu")
    A(f"""
v_lshlrev_b32 v35, 7, v{vL}
s_and_b32 s3, s{sw}, 1
s_mul_i32 s3, s3, {LS}
s_cmp_ge_u32 s{sw}, 2
s_cbranch_scc1 {lw}
s_add_u32 s3, s3, s{sOclr}
v_and_b32 v41, 0x380, v35
s_branch {lw2}
{lw}:
v_and_b32 v41, 1, v{vL}
v_lshlrev_b32 v41, 7, v41
v_bfe_u32 v42, v{vL}, 1, 1
v_lshl_add_u32 v41, v42, 16, v41
s_add_u32 s{sT2}, s{sQpub}, {QP}
v_add_u32 v41, s{sT2}, v41
s_sub_u32 s{sT2}, s{sMLpub}, 512
v_add_u32 v42, s{sT2}, v35
v_cmp_le_u32 vcc, 4, v{vL}
v_cndmask_b32 v41, v41, v42, vcc
v_mov_b32 v42, s{sHpub}
v_cmp_le_u32 vcc, 8, v{vL}
v_cndmask_b32 v41, v41, v42, vcc
{lw2}:""")
    exec_set(0x1ff, 0)
    if not opt("nowu", 0): A(f"buffer_load_dword a253, v41, {srd(rWS)}, s3 offen sc1")
    A(f"""
s_getpc_b64 s[{sT2}:{sT2+1}]
L_pc:
s_add_u32 s{sT2}, s{sT2}, L_comb-L_pc
s_addc_u32 s{sT2+1}, s{sT2+1}, 0""")
    exec_all()
    A(f"v_min_u32 v42, L_end-L_comb, v35")
    A(f"s_nop 0")
    if not opt("nocode", 0): A(f"global_load_dword a254, v42, s[{sT2}:{sT2+1}]{POL[opt('cpol','none')]}")

qk(filler=lambda k: stream(2))
stream(40)
softmax()
for t in (1, 2, 3):
    for i in shifts(t): A(i)
for i in lsum_ops(): A(i)
row_masks()
stamp(6)
for t in range(4):
    A.vwait(f"V{8*t+7}")
    raw = vR + 32*(t+1); dst = vR + 32*t
    for jd in range(8):
        for p in range(4):
            A(f"v_perm_b32 v{dst+4*jd+p}, v{raw+4*(2*p+1)+(jd>>1)}, v{raw+4*(2*p)+(jd>>1)}, s{sSELHI if jd & 1 else sSELLO}")
        if jd: pv_mfma(t, jd-1, t == 0)
        if t == 3:
            for i in {4: merge(1), 5: merge(2), 6: merge(3) + [owrite(0)]}.get(jd, []): A(i)
    pv_mfma(t, 7, t == 0)
    if t == 3:
        for i in merge(5) + merge(6): A(i)
    if t == MBG:
        A("s_waitcnt lgkmcnt(0)\ns_barrier")
        for i in fw_ops(): A(i)
        if INO or IN12:
            A(f"""
v_lshrrev_b32 v44, 2, v{vL}
v_and_b32 v44, 3, v44                     ; r
v_and_b32 v45, 3, v{vL}
v_lshlrev_b32 v45, 3, v45                 ; 8c
v_lshrrev_b32 v46, 4, v{vL}               ; q
v_lshl_add_u32 v47, v46, 3, v44           ; 8q+r
v_lshl_add_u32 v47, v47, 5, v45
v_add_u32 v47, s{sKm}, v47                ; w1
v_and_b32 v48, 1, v44
v_lshrrev_b32 v49, 1, v44
v_lshl_add_u32 v48, v49, 3, v48
v_lshl_add_u32 v48, v46, 5, v48
v_lshl_add_u32 v48, v48, 6, v45
v_add_u32 v48, s{sKm}, v48                ; wo
v_and_b32 v49, 1, v46
v_lshl_add_u32 v44, v49, 3, v44
v_lshl_add_u32 v44, v44, 6, v45
v_lshrrev_b32 v46, 1, v46
v_lshl_add_u32 v44, v46, 15, v44
s_and_b32 s3, s{sw}, 1
s_lshl_b32 s3, s3, 5
s_add_u32 s3, s3, {KST + 12288}
v_add_u32 v44, s3, v44                    ; w2
v_add_u32 v45, 65536, v44""")
            if "w" in DROP:
                for i in range(aWO, 236): A(f"v_accvgpr_write_b32 a{i}, 0")
            if INO and "w" not in DROP: tr_reads(aWO, 48, 4, 2, 128, 32, 1024)
            if IN12 and "w" not in DROP:
                tr_reads(aW1, 47, 4, 1, 1024, 0, 128, base=8192)
                for st in range(7):
                    o_ = (st >> 1)*1024; r_ = 45 if st & 1 else 44
                    A(f"ds_read_b64_tr_b16 a[{aW2+4*st}:{aW2+4*st+1}], v{r_} offset:{o_}")
                    A(f"ds_read_b64_tr_b16 a[{aW2+4*st+2}:{aW2+4*st+3}], v{r_} offset:{o_+256}")
    if t == opt("pfg", 3): tail_pf()
WOEARLY = opt("woearly", 0)
def wo_burst(t0, t1, vo):
    A(f"""
v_lshrrev_b32 v{t0}, 2, v{vL}
v_and_b32 v{t1}, 3, v{vL}
v_lshlrev_b32 v{t1}, 4, v{t1}
v_lshl_add_u32 v{vo}, v{t0}, 10, v{t1}
s_lshl_b32 s{sT2}, s{sg}, 19
s_lshl_b32 s3, s{sw}, 17
s_add_u32 s{sT2}, s{sT2}, s3
s_lshl_b32 s3, s{sj}, 6
s_add_u32 s{sT2}, s{sT2}, s3""")
    for n in range(8): dma(vo, rWO, sT2, sKm, 1024*n, n << 14, f"WO{n}", WPOL)
if WOEARLY: wo_burst(41, 42, 43)
for i in merge(7) + [owrite(1)]: A(i)
stamp(7)
flush_stamps(0, 8)
if PROF: A(f"v_writelane_b32 v{vPROF}, s12, 8\nv_writelane_b32 v{vPROF}, s13, 9")
if EXP == "stream": A("s_branch L_done")

def xproc(aW, tiles, red_off, st_off, skip_label=None, pre=None):
    exec_set(0xffffffff, 0)
    A(f"ds_write_b64 v{vXBw}, v[{vXP}:{vXP+1}]")
    exec_all()
    for s in range(4): A(f"ds_read_b128 {vq(vXA+4*s)}, v{vXBr} offset:{64*s}")
    unpack_x()
    if skip_label: A(f"s_cbranch_scc1 {skip_label}")
    dp = stat_ops()
    for _ in range(11): A(dp.pop(0))
    if pre: pre()
    A("s_waitcnt lgkmcnt(0)")
    for s in range(4):
        A(f"v_mfma_f32_16x16x32_bf16 {vq(vG0)}, {vq(vXA+4*s)}, {aq(aW+4*s)}, {'0' if s == 0 else vq(vG0)}")
        for _ in range(2):
            if dp: A(dp.pop(0))
    stat_write(st_off)
    A(f"ds_write_b32 v{vRED}, v{vG0} offset:{red_off}")
def ln_final(red_off, st_off):
    A(f"""
ds_read_b128 v[36:39], v{vST} offset:{st_off}
ds_read_b128 v[40:43], v{vST} offset:{st_off+16}
ds_read_b128 v[28:31], v{vRED} offset:{red_off}
ds_read_b128 v[32:35], v{vRED} offset:{red_off+512}
s_mov_b32 s3, {f2u(1.0/512):#x}
v_mov_b32 v44, {f2u(1e-5):#x}
s_waitcnt lgkmcnt({0 if PROF else 2})
v_add_f32 v36, v36, v37
v_add_f32 v38, v38, v39
v_add_f32 v40, v40, v41
v_add_f32 v42, v42, v43
v_add_f32 v36, v36, v38
v_add_f32 v40, v40, v42
v_mul_f32 v36, s3, v36                ; mean
v_fma_f32 v41, s3, v40, v44           ; E[x^2] + eps
s_waitcnt lgkmcnt(0)
v_add_f32 v28, v28, v29
v_fma_f32 v41, -v36, v36, v41
v_add_f32 v30, v30, v31
v_max_f32 v41, v44, v41
v_add_f32 v32, v32, v33
v_rsq_f32 v41, v41
v_add_f32 v34, v34, v35
v_add_f32 v28, v28, v30
v_add_f32 v32, v32, v34
v_fma_f32 v28, -v36, v32, v28
v_mul_f32 v28, v28, v41
""")

A("L_comb:")
A("s_waitcnt lgkmcnt(0)\ns_barrier")
for w in range(4): A(f"ds_read2st64_b32 v[{44+2*w}:{45+2*w}], v{vOBr} offset0:{8*w} offset1:{8*w+1}")
A(f"ds_read_b128 v[52:55], v{vMBr} offset:64")
A("s_waitcnt lgkmcnt(1)" if not PROF else "s_waitcnt lgkmcnt(0)")
A(f"v_mul_f32 v44, v{vF}, v44\nv_mul_f32 v45, v{vF}, v45")
for w in range(1, 4): A(f"v_fmac_f32 v44, v{vF+w}, v{44+2*w}\nv_fmac_f32 v45, v{vF+w}, v{45+2*w}")
A("v_cvt_pk_bf16_f32 v44, v44, v45")
pub_store(f"buffer_store_dword v44, v{vOpub}, {srd(rWS)}, s{sOpub} offen")
with only("eq", sw, 0):
    A(f"""
s_waitcnt lgkmcnt(0)
v_mul_f32 v{vMM+1}, v{vF}, v52
v_fmac_f32 v{vMM+1}, v{vF+1}, v53
v_fmac_f32 v{vMM+1}, v{vF+2}, v54
v_fmac_f32 v{vMM+1}, v{vF+3}, v55
v_lshlrev_b32 v46, 3, v{vL}""")
    exec_set(0x00010001, 0x00010001)
    pub_store(f"buffer_store_dwordx2 v[{vMM}:{vMM+1}], v46, {srd(rWS)}, s{sMLpub} offen")
    exec_all()
stamp(0)
vO = 28; vml = 44; vDy = 48
la, laok, la0 = lab("pa"), lab("paok"), lab("pa0")
def a_loads():
    A(f"buffer_load_dwordx2 v[{vml}:{vml+1}], v{vMLad}, {srd(rWS)}, s{sMLget} offen sc1")
    for s in range(4): A(f"buffer_load_dwordx4 {vq(vO+4*s)}, v{vVo}, {srd(rWS)}, s{sOget} offen offset:{1024*s} sc1")
las = lab("as")
A(f"s_cmp_lg_u32 s{sLAYER}, 0\ns_cbranch_scc1 {las}")
A(f"""
v_lshrrev_b32 v56, 2, v{vL}
v_and_b32 v57, 3, v{vL}
v_lshlrev_b32 v58, 4, v57
v_lshl_add_u32 v{vW2o}, v56, 10, v58
s_lshl_b32 s{sT2}, s{sg}, 19
s_lshl_b32 s3, s{sw}, 17
s_add_u32 s{sT2}, s{sT2}, s3
s_lshl_b32 s3, s{sj}, 6
s_add_u32 s{sT2}, s{sT2}, s3""")
if not INO and not WOEARLY:
    for n in range(8): dma(vW2o, rWO, sT2, sKm, 1024*n, n << 14, f"WO{n}", WPOL)
a_loads()
NX = 0
A(f"""
v_lshrrev_b32 v58, 1, v{vL}
v_mul_u32_u24 v{vW1o}, 3584, v58
v_and_b32 v58, 1, v{vL}
v_lshl_add_u32 v{vW1o}, v58, 4, v{vW1o}
v_and_b32 v56, 3, v56                     ; r
v_lshrrev_b32 v58, 4, v{vL}               ; q
v_lshlrev_b32 v57, 3, v57                 ; 8c
v_and_b32 v59, 1, v56
v_lshrrev_b32 v60, 1, v56
v_lshl_add_u32 v59, v60, 3, v59
v_lshl_add_u32 v59, v58, 5, v59
v_lshl_add_u32 v59, v59, 6, v57
v_add_u32 v{vTrO}, s{sKm}, v59
v_lshl_add_u32 v56, v58, 3, v56           ; 8q+r
v_lshl_add_u32 v58, v56, 5, v57
v_add_u32 v{vT1}, s{sKm}, v58
v_lshl_add_u32 v58, v56, 6, v57
s_and_b32 s3, s{sw}, 1
s_lshl_b32 s3, s3, 5
s_add_u32 s3, s3, {LW2}
v_add_u32 v{vT2}, s3, v58
v_mov_b32_dpp v{vSEL2}, v{vSEL} row_ror:8 {DPPF}
v_mov_b32_dpp v{vSEL2+1}, v{vSEL+1} row_ror:8 {DPPF}
v_mov_b32_dpp v{vSEL2+2}, v{vSEL+2} row_ror:8 {DPPF}
v_mov_b32_dpp v{vSEL2+3}, v{vSEL+3} row_ror:8 {DPPF}
s_waitcnt vmcnt({5+NX})""")
if PROF == 2: stamp(4)
if not INO: tr_reads(aWO, vTrO, 4, 2, 128, 32, 1024)
A(f"s_waitcnt lgkmcnt(0)\ns_branch {la0}")
A(f"{las}:")
if opt("sa", 4): A(f"s_sleep {opt('sa', 4)}")
A(f"{la}:")
a_loads()
A(f"{la0}:")
wc = [f"v_max_f32_dpp v57, v{vml}, v{vml} quad_perm:[1,0,3,2] {DPPF}",
      f"v_max_f32_dpp v57, v57, v57 quad_perm:[2,3,0,1] {DPPF}",
      "v_mov_b32 v58, v57", "v_permlane16_swap_b32 v57, v58", "v_max_f32 v57, v57, v58",
      "v_mov_b32 v58, v57", "v_permlane32_swap_b32 v57, v58", "v_max_f32 v57, v57, v58",
      f"v_sub_f32 v57, v{vml}, v57", "v_exp_f32 v57, v57", f"v_mul_f32 v58, v57, v{vml+1}",
      f"v_add_f32_dpp v58, v58, v58 quad_perm:[1,0,3,2] {DPPF}", f"v_add_f32_dpp v58, v58, v58 quad_perm:[2,3,0,1] {DPPF}",
      "v_mov_b32 v59, v58"]
A(f"s_waitcnt vmcnt(4)\nv_cmp_u_f32 vcc, v{vml}, v{vml+1}")
A(wc.pop(0))
A(f"s_cbranch_vccnz L_aretry")
A(wc.pop(0)); A(wc.pop(0))
for s in range(4):
    A(f"s_waitcnt vmcnt({3-s})")
    for t in range(2):
        c = "0" if s == 0 else vq(vDy+4*t)
        A(f"v_mfma_f32_16x16x32_bf16 {vq(vDy+4*t)}, {vq(vO+4*s)}, {aq(aWO+(t*4+s)*4)}, {c}")
        for _ in range(1 if s < 3 else 2):
            if wc: A(wc.pop(0))
while wc: A(wc.pop(0))
A(f"""
v_mul_f32_dpp v60, v57, v{vDy} quad_perm:[0,0,0,0] {DPPF}
s_nop 0
v_permlane16_swap_b32 v58, v59
v_mul_f32_dpp v61, v57, v{vDy+4} quad_perm:[0,0,0,0] {DPPF}
v_fmac_f32_dpp v60, v57, v{vDy+1} quad_perm:[1,1,1,1] {DPPF}
v_add_f32 v58, v58, v59
v_fmac_f32_dpp v61, v57, v{vDy+5} quad_perm:[1,1,1,1] {DPPF}
v_fmac_f32_dpp v60, v57, v{vDy+2} quad_perm:[2,2,2,2] {DPPF}
v_mov_b32 v59, v58
v_fmac_f32_dpp v61, v57, v{vDy+6} quad_perm:[2,2,2,2] {DPPF}
v_fmac_f32_dpp v60, v57, v{vDy+3} quad_perm:[3,3,3,3] {DPPF}
v_permlane32_swap_b32 v58, v59
v_fmac_f32_dpp v61, v57, v{vDy+7} quad_perm:[3,3,3,3] {DPPF}
v_add_f32 v58, v58, v59
v_rcp_f32 v58, v58
v_permlane32_swap_b32 v60, v61
v_add_f32 v60, v60, v61
v_mov_b32 v61, v60
v_permlane16_swap_b32 v60, v61
v_add_f32 v60, v60, v61
v_mul_f32 v60, v60, v58
v_cmp_u_f32 vcc, v60, v60
ds_write_b32 v{vREDA}, v60
s_cbranch_vccz {laok}
L_aretry:""")
if opt("adrain", 1): A("s_waitcnt vmcnt(0)")
retry(la)
A(f"{laok}:")
stamp(1)
if W12PF == 1 and not IN12:
    with only("eq", sLAYER, 0): pf_w12(62, 63)
A("s_waitcnt lgkmcnt(0)\ns_barrier")
ly, ly2 = lab("y"), lab("y2")
A(f"s_cmp_lg_u32 s{sw}, 0\ns_cbranch_scc1 {ly}")
A(f"""
ds_read_b128 v[28:31], v{vRED} offset:{REDA-RED1}
s_waitcnt lgkmcnt(0)
v_add_f32 v28, v28, v29
v_add_f32 v30, v30, v31
v_add_f32 v28, v28, v30""")
pack_pairs(28, 29)
exec_set(0x55555555, 0)
A(f"buffer_store_dword v28, v{vPAIR}, {srd(rWS)}, s{sYpub} offen sc1")
exec_all()
A(f"s_branch {ly2}\n{ly}:")
if opt("wb", 0) == 2:
    with only("eq", sw, 3):
        with only("eq", sLAYER, 1): A("buffer_wbl2 sc1")
A(f"s_sleep 2\n{ly2}:")
stamp(2)
def gather(s0, s1, lp, so=None):
    lg, lok, lchk, lo = lab(lp), lab(lp + "ok"), lab(lp + "ck"), lab(lp + "o")
    A(f"{lg}:")
    A(f"buffer_load_dwordx4 v[32:35], v{vGad}, {srd(rWS)}, s{s0} offen sc1")
    A(f"buffer_load_dwordx4 v[36:39], v{vGad}, {srd(rWS)}, s{s1} offen sc1")
    if so is not None:
        A(f"s_cmp_eq_u32 s{sw}, s{skq}\ns_cbranch_scc1 {lo}")
    A(f"""s_waitcnt vmcnt(1)
v_mfma_f32_16x16x32_bf16 v[40:43], {vq(vSEL)}, v[32:35], {vq(vX)}
s_waitcnt vmcnt(0)
v_mfma_f32_16x16x32_bf16 v[40:43], {vq(vSEL)}, v[36:39], v[40:43]""")
    if so is not None:
        A(f"s_nop 6\ns_branch {lchk}\n{lo}:\ns_add_u32 s3, s{so}, 4096")
        A(f"buffer_load_dwordx4 v[44:47], v{vGad}, {srd(rWS)}, s{so} offen sc1")
        A(f"buffer_load_dwordx4 v[48:51], v{vGad}, {srd(rWS)}, s3 offen sc1")
        A(f"""s_waitcnt vmcnt(3)
v_mfma_f32_16x16x32_bf16 v[40:43], {vq(vSEL)}, v[32:35], {vq(vX)}
s_waitcnt vmcnt(2)
v_mfma_f32_16x16x32_bf16 v[40:43], {vq(vSEL)}, v[36:39], v[40:43]
s_waitcnt vmcnt(1)
v_mfma_f32_16x16x32_bf16 v[40:43], {vq(vSEL2)}, v[44:47], v[40:43]
s_waitcnt vmcnt(0)
v_mfma_f32_16x16x32_bf16 v[40:43], {vq(vSEL2)}, v[48:51], v[40:43]""")
    A(f"{lchk}:")
    A(f"v_cmp_u_f32 vcc, v40, v40\ns_cbranch_vccz {lok}")
    if opt("gsleep", 0): A(f"s_sleep {opt('gsleep', 0)}")
    retry(lg)
    A(f"{lok}:")
    A(f"v_cvt_pk_bf16_f32 v{vXP}, v40, v41\nv_cvt_pk_bf16_f32 v{vXP+1}, v42, v43")
def w12_burst():
    A(f"""
s_mul_i32 s{sT2}, s{sw}, {128*3584}
s_mul_i32 s3, s{sg}, 448
s_add_u32 s{sT2}, s{sT2}, s3
s_lshl_b32 s3, s{sjf}, 5
s_add_u32 s{sT2}, s{sT2}, s3""")
    for i in range(4): dma(vW1o, rW1, sT2, sKm, 8192 + 1024*i, i*32*3584, "W1", WPOL)
    A(f"""
s_mul_i32 s{sT2}, s{sg}, {224*1024}
s_lshl_b32 s3, s{sj}, 6
s_add_u32 s{sT2}, s{sT2}, s3
s_lshl_b32 s3, s{sw}, 14
s_add_u32 s{sT2}, s{sT2}, s3
s_lshl_b32 s{sT3}, s{sw}, 10""")
    if not opt("w2late", 2):
        for i in range(4): dma(vW2o, rW2, sT2, sT3, LW2 + 4096*i, i*64*1024, "W2", WPOL)
    return 8
l1, l2 = lab("b"), lab("b")
if CSPLIT:
    A(f"s_cmp_lg_u32 s{sCEN}, 0\ns_cbranch_scc1 L_cen2\nL_cen2_back:")
if IN12: A(f"s_sleep {SLEEP_B}")
else:
    A(f"s_cmp_lg_u32 s{sLAYER}, 0\ns_cbranch_scc1 {l1}")
    w12_burst()
    A(f"s_sleep {opt('sb0', 10)}\ns_branch {l2}\n{l1}:\ns_sleep {SLEEP_B}\n{l2}:")
gather(sYget, sYget1, "gb", so=sYo)
stamp(3)
NB = 0
W2L = opt("w2late", 2)
if W2L == 1:
    with only("eq", sLAYER, 0):
        for i in range(4): dma(vW2o, rW2, sT2, sT3, LW2 + 4096*i, i*64*1024, "W2", WPOL)
if W2L == 2:
    NB = 63
    with only("eq", sLAYER, 0):
        with only("ge", sw, 2):
            A(f"""
s_mul_i32 s{sT2}, s{sg}, {224*1024}
s_lshl_b32 s3, s{sj}, 6
s_add_u32 s{sT2}, s{sT2}, s3
s_and_b32 s3, s{sw}, 1
s_lshl_b32 s3, s3, 5
s_add_u32 s{sT2}, s{sT2}, s3
v_lshrrev_b32 v56, 1, v{vL}
v_and_b32 v57, 1, v{vL}
v_lshlrev_b32 v57, 4, v57
v_lshl_add_u32 v56, v56, 10, v57""")
            for i in range(7): dma(56, rW2, sT2, sKm, 16384 + 1024*i, i*32*1024, "W2", WPOL)
def w1_land():
    with only("eq", sLAYER, 0):
        A(f"s_waitcnt vmcnt({min(63, 4+NB)})")
        tr_reads(aW1, vT1, 4, 1, 1024, 0, 128, base=8192)
lb = lab("nof")
A(f"s_cmp_ge_u32 s{sjf}, 14")
xproc(aW1, 1, 0, 32, skip_label=lb, pre=None if IN12 else w1_land)
A(f"{lb}:\ns_waitcnt vmcnt({NB}) lgkmcnt(0)\ns_barrier")
if opt("clean", 0):
    with only("eq", sw, 1):
        for i in range(4): A(f"v_mov_b32 v{28+i}, -1")
        A(f"buffer_store_dwordx4 v[28:31], v{vVo}, {srd(rWS)}, s{sOclr} offen sc1")
        if opt("clean", 0) >= 2:
            A(f"""v_and_b32 v32, 15, v{vL}
v_lshlrev_b32 v32, 4, v32
s_lshl_b32 s3, s{sb}, 16
s_add_u32 s3, s3, s{sQpub}
s_add_u32 s3, s3, {QP}""")
            A(f"v_and_b32 v33, 16, v{vL}\nv_lshlrev_b32 v33, 6, v33\nv_add_u32 v32, v32, v33\ns_and_b32 s3, s3, 0xfffffbff")
            exec_set(0xffffffff, 0)
            A(f"buffer_store_dwordx4 v[28:31], v32, {srd(rWS)}, s3 offen sc1")
            exec_all()
lh = lab("h")
A(f"s_cmp_lg_u32 s{sw}, 0\ns_cbranch_scc1 {lh}\ns_cmp_ge_u32 s{sjf}, 14\ns_cbranch_scc1 {lh}")
ln_final(0, 32)
A(f"""
v_mul_f32 v29, {f2u(-LOG2E):#x}, v28
v_exp_f32 v29, v29
v_add_f32 v29, 1.0, v29
v_rcp_f32 v29, v29
v_mul_f32 v28, v28, v29""")
pack_pairs(28, 29)
exec_set(0x5555, 0)
pub_store(f"buffer_store_dword v28, v{vPAIR}, {srd(rWS)}, s{sHpub} offen")
exec_all()
A(f"{lh}:")
if PROF != 2: stamp(4)
ld, ldok, ldsk = lab("pd"), lab("pdok"), lab("pdsk")
if Z1W:
    A(f"s_cmp_lg_u32 s{sw}, 2\ns_cbranch_scc1 {ldsk}")
    A(f"s_cmp_lg_u32 s{sLAYER}, 0\ns_cbranch_scc1 {ld}")
    tr_reads(aW2, vT2, 7, 1, 2048, 0, 256)
    for s in range(7): tr_reads(aW2b[s], vT2, 1, 1, 0, 0, 256, base=2048*s + 32)
    A("s_waitcnt lgkmcnt(0)")
    A(f"{ld}:")
    for s in range(7): A(f"buffer_load_dwordx4 {vq(28+4*s)}, v{vHad}, {srd(rWS)}, s{sHget} offen offset:{64*s} sc1")
    for s in range(7):
        A(f"s_waitcnt vmcnt({6-s})")
        A(f"v_mfma_f32_16x16x32_bf16 v[56:59], {aq(aW2+4*s)}, {vq(28+4*s)}, {'0' if s == 0 else 'v[56:59]'}")
        A(f"v_mfma_f32_16x16x32_bf16 v[60:63], {aq(aW2b[s])}, {vq(28+4*s)}, {'0' if s == 0 else 'v[60:63]'}")
    A(f"v_cmp_u_f32 vcc, v56, v56\nv_cvt_pk_bf16_f32 v56, v56, v57\nv_cvt_pk_bf16_f32 v57, v58, v59\ns_cbranch_vccz {ldok}")
    retry(ld)
    A(f"{ldok}:")
    exec_set(0x00f000f0, 0x00f000f0)
    A("v_cvt_pk_bf16_f32 v56, v60, v61\nv_cvt_pk_bf16_f32 v57, v62, v63")
    exec_set(0x00110011, 0x00110011)
    A(f"buffer_store_dwordx2 v[56:57], v{vZpub}, {srd(rWS)}, s{sZpub} offen sc1")
    exec_all()
else:
    A(f"s_cmp_lt_u32 s{sw}, 2\ns_cbranch_scc1 {ldsk}")
    if not IN12:
        lds_ = lab("ds")
        A(f"s_cmp_lg_u32 s{sLAYER}, 0\ns_cbranch_scc1 {lds_}")
        if W2L == 2:
            A("s_waitcnt vmcnt(0)")
            tr_reads(aW2, vT1, 7, 1, 1024, 0, 128, base=16384)
        else: tr_reads(aW2, vT2, 7, 1, 2048, 0, 256)
        A(f"s_waitcnt lgkmcnt(0)\ns_branch {ld}\n{lds_}:")
        if opt("sd", 6): A(f"s_sleep {opt('sd', 6)}")
    A(f"{ld}:")
    for s in range(7): A(f"buffer_load_dwordx4 {vq(28+4*s)}, v{vHad}, {srd(rWS)}, s{sHget} offen offset:{64*s} sc1")
    for s in range(7):
        A(f"s_waitcnt vmcnt({6-s})")
        A(f"v_mfma_f32_16x16x32_bf16 v[56:59], {aq(aW2+4*s)}, {vq(28+4*s)}, {'0' if s == 0 else 'v[56:59]'}")
    A(f"v_cmp_u_f32 vcc, v56, v56\nv_cvt_pk_bf16_f32 v56, v56, v57\nv_cvt_pk_bf16_f32 v57, v58, v59\ns_cbranch_vccz {ldok}")
    retry(ld)
    A(f"{ldok}:")
    exec_set(0x00010001, 0x00010001)
    A(f"buffer_store_dwordx2 v[56:57], v{vZpub}, {srd(rWS)}, s{sZpub} offen sc1")
    exec_all()
A(f"{ldsk}:")
stamp(5)
A(f"s_cmp_lg_u32 s{sLAYER}, 0\ns_cbranch_scc1 L_final")
A("s_barrier")
A(f"s_sleep {SLEEP_E}")
gather(sZget, sZget1, "ge", so=sZo)
stamp(6)
A(f"s_add_u32 s{rWS}, s{rWS}, {LS}\ns_addc_u32 s{rWS+1}, s{rWS+1}, 0\ns_mov_b32 s{rWS+2}, {WS_BYTES-LS:#x}\ns_mov_b32 s{sLAYER}, 1")
qproj(False)
A(f"s_mov_b32 s{skq}, 99")
stamp(7)
q_addr()
A(f"v_accvgpr_read_b32 v56, a{aCS}\nv_accvgpr_read_b32 v57, a{aCS+1}\nv_accvgpr_read_b32 v59, a{aQBw}")
lg, lgok = lab("pg"), lab("pgok")
if opt("sg", 2): A(f"s_sleep {opt('sg', 2)}")
A(f"{lg}:")
q_loads(44, sQget)
A("s_waitcnt vmcnt(0)")
sum4(44)
A(f"v_cmp_u_f32 vcc, v44, v45\ns_cbranch_vccz {lgok}")
retry(lg)
A(f"{lgok}:")
stamp(8)
q_finish(56)
if opt("wb", 0):
    with only("eq", sw, 3): A("buffer_wbl2 sc1")
A("s_waitcnt lgkmcnt(0)")
if PROF in (3, 4): stamp(1)
qk()
if PROF in (3, 4): stamp(2)
softmax()
if PROF in (3, 4): stamp(3)
order = [((jd + k) & 3, jd) for k in range(4) for jd in range(4)] + [((jd + k) & 3, jd) for jd in range(4, 8) for k in range(4)]
ls = lsum_ops(); fw = fw_ops()
sh = shifts(1) + shifts(2) + shifts(3)
slow = lambda x: "_dpp" in x or "permlane" in x or "v_exp" in x
ex = ls[:7] + ["s_waitcnt lgkmcnt(0)", "s_barrier", fw[0]] + ls[7:] + ["s_waitcnt lgkmcnt(2)" if not PROF else "s_waitcnt lgkmcnt(0)"] + fw[2:4]
post = {1: merge(1), 2: merge(2), 3: merge(3) + [owrite(0)], 5: merge(5), 6: merge(6), 7: merge(7) + [owrite(1)]}
seen = set(); cnt = {}; done = {}; ready = []
for i, (t, jd) in enumerate(order):
    pv_mfma(t, jd, jd not in seen); seen.add(jd)
    cnt[jd] = cnt.get(jd, 0) + 1
    if cnt[jd] == 4 and jd in post: done[jd] = len(A.L)
    for j2, p2 in list(done.items()):
        if sum(x.states() for x in A.L[p2:]) >= 8:
            ready += post[j2]; del done[j2]
    if sh:
        A(sh.pop(0))
        if i % 4 == 3:
            A(ex.pop(0)); A(ex.pop(0))
        continue
    budget = 2
    while budget > 0 and (ex or ready):
        q_ = ex if (ex and (i < 20 or not ready)) else ready
        x = q_.pop(0); A(x); budget -= 2 if slow(x) else 1
while ex: A(ex.pop(0))
for i in ready: A(i)
for j2 in done:
    for i in post[j2]: A(i)
for i in fw[4:]: A(i)
stamp(9)
flush_stamps(16, 10)
A("s_branch L_comb")
A("L_final:")
if opt("wb", 0) == 1:
    with only("eq", sw, 0): A("buffer_wbl2 sc1")
A(f"s_or_b32 s3, s{sg}, s{sj}\ns_cmp_lg_u32 s3, 0\ns_cbranch_scc1 L_done")
if opt("fbar", 1): A("s_barrier")
A(f"s_sleep {SLEEP_F}")
gather(sZget, sZget1, "gf")
A(f"""
s_lshl_b32 s3, s{sb}, 10
s_lshl_b32 s{sT0}, s{sw}, 8
s_add_u32 s3, s3, s{sT0}
s_lshl_b32 s{sT0}, s{sw}, 9
s_add_u32 s{sT0}, s{sT0}, {XB}
s_sub_u32 s3, s3, s{sT0}
v_add_u32 v30, s3, v{vXBw}""")
exec_set(0xffffffff, 0)
A(f"global_store_dwordx2 v30, v[{vXP}:{vXP+1}], {sp(sOUT)}")
with only("eq", sb, 0):
    A(f"v_mov_b32 v30, {EPO}\nv_mov_b32 v31, s{sTAG0}")
    exec_set(1, 0)
    A(f"global_store_dword v30, v31, {sp(sWS)} sc1")
exec_all()
if CSPLIT:
    A("s_branch L_done\nL_cen2:")
    cen_loads(True)
    A("s_waitcnt vmcnt(0)")
    for i in range(4):
        A(f"v_xor_b32 v{32+2*i}, s{sTAG0}, v{32+2*i}\nv_xor_b32 v{33+2*i}, s{sTAG1}, v{33+2*i}")
    A(f"""
v_or3_b32 v40, v33, v35, v37
v_or3_b32 v42, v32, v34, v36
v_or_b32 v40, v40, v39
v_and_b32 v40, -16, v40
v_or3_b32 v40, v40, v42, v38
v_cmp_ne_u32 vcc, 0, v40
s_cbranch_vccz L_cen2_ok""")
    retry("L_cen2")
    A(f"L_cen2_ok:\ns_mov_b32 s{sCEN}, 0\ns_branch L_cen2_back")
A("L_done:")
if PROF:
    stamp(6)
    flush_stamps(32, 7)
    A(f"""
s_lshl_b32 s3, s2, 2
s_add_u32 s3, s3, s{sw}
s_lshl_b32 s3, s3, 8
s_add_u32 s3, s3, {PROF_OFF}
v_lshlrev_b32 v30, 2, v{vL}
v_add_u32 v30, s3, v30
global_store_dword v30, v{vPROF}, {sp(sWS)}""")
A("L_end:\ns_endpgm")
A.L.extend(OOL)
A.raw('.section .rodata,"a"'); A.raw(".p2align 6"); A.raw(f".amdhsa_kernel {NAME}_kernel")
for l in ["next_free_vgpr 512", "next_free_sgpr 102", "accum_offset 256", "group_segment_fixed_size 0", "kernarg_size 88",
          "user_sgpr_count 2", "user_sgpr_kernarg_segment_ptr 1", "system_sgpr_workgroup_id_x 1"]:
    A.raw("  .amdhsa_" + l)
A.raw(".end_amdhsa_kernel")
text = "\n".join(H) + "\n" + A.text()
if opt("al", 3):
    from align8 import align
    text, wd, np_ = align(text, None, opt("al", 3))
    print("aligned: widened", wd, "nops", np_, file=sys.stderr)
open(out, "w").write(text)
print("instrs", len(A.L), "nops inserted", A.nopcount, file=sys.stderr)
```

```python
import sys, math, struct
sys.path.insert(0, "gen")
from asmlib import Asm

NAME = "interleave_layers__gqa_block_cached__dense_activation_silu__decode"
out = sys.argv[1]
O = dict(kv.split("=") for kv in sys.argv[2:])
def opt(k, d): return type(d)(O.get(k, d))
PROF = opt("prof", 0); ABC = [int(x) for x in opt("abc", "0,13,20").split(",")]
SLEEP_B = opt("sb", 14); SLEEP_E = opt("se", 16); SLEEP_F = opt("sf", 7)
FORCE_SLOW = opt("slow", 0); EXP = opt("exp", "")
POL = {"nt": " nt", "none": "", "sc1": " sc1"}
PFO = POL[opt("pfo", "none")]; PF12 = POL[opt("pf12", "none")]; PFQ = POL[opt("pfq", "none")]; WPOL = POL[opt("wpol", "none")]
CW = opt("cw", 3); DROP = opt("drop", "").split(","); CLRP = " sc1" + POL[opt("clrpol", "none")]
W12PF = opt("w12pf", 1)
INO = opt("ino", 0); IN12 = opt("in12", 0)
WPOS0 = opt("wpos0", 20); WSTEP = opt("wstep", 2); MBG = opt("mbg", 1)
def f2u(x): return struct.unpack("<I", struct.pack("<f", x))[0]
LOG2E = 1.4426950408889634
QSCALE = LOG2E / math.sqrt(128.0)

ML, HS, YS, ZS, OS = 16384, 24576, 32768, 49152, 65536
QP = 65536 + 262144
LS = QP + 131072
EPO = 2 * LS; FLG = EPO + 1024; CS = FLG + 3072
WS_BYTES = CS + 65536
PROF_OFF = 16 << 20
LWQ = 0; KST = 16384; LW2 = LWQ
XB = KST + 4 * 32768; RED0 = XB + 2048; RED1 = RED0 + 1024; REDA = RED0 + 2048; ST0 = RED0 + 2560; MB = RED0 + 2688; OB = RED0 + 3072
QB = OB; XQ = RED0
LDS_BYTES = OB + 8192
assert LDS_BYTES <= 163840
sX, sK, sV, sWQ, sWO, sW1, sW2, sOUT, sWS = 4, 6, 8, 10, 12, 16, 18, 20, 24
rK, rV, rWQ, rWO, rW1, rW2, rWS = 28, 32, 36, 40, 44, 48, 52
sg, sb, sj, sw, sFAST, sLAYER, sBUD = 56, 57, 58, 59, 60, 61, 62
sSELLO, sSELHI = 63, 64
sQpub, sQget, sMLpub, sMLget, sHpub, sHget, sYpub, sYget, sZpub, sZget, sOpub, sOget = range(65, 77)
sYget1, sZget1 = 77, 78
sT0, sT1, sT2, sT3 = 26, 27, 14, 15
sVb, sKm, sOclr = 79, 80, 81
sTAG0, sTAG1 = 22, 23
sjf, sU, skq = 98, 99, 21 + 80
sCEN = 11
sYo, sZo = 4, 5
sSTAMP = 82
def srd(r): return f"s[{r}:{r+3}]"
def sp(r): return f"s[{r}:{r+1}]"
vL, vXBw, vXBr, vRED, vREDA, vQP, vMLad, vGad, vHad, vQad, vPAIR, vOBw = range(0, 12)
vSEL = 12; vX = 16
vOBr, vOpub, vMBw, vMBr, vST, vZpub = 20, 21, 22, 23, 24, 25
vVo = 26; vXQw = 27
aCS = 236; aXQr = 238; aQBw = 239
vQ = 28; vD0, vD1 = 44, 48; vROT = 52; vACC = 64; vR = 96
vPROF = 255
vW1o, vW2o, vT1, vT2, vTrO = 224, 225, 226, 227, 228
vSEL2 = 232
def vq(r, n=4): return f"v[{r}:{r+n-1}]"
def aq(r, n=4): return f"a[{r}:{r+n-1}]"
aK, aWQ, aWO, aW1, aW2 = 0, 128, 160, 192, 208
DUMMY = "a[252:255]"
Z1W = opt("z1w", 0)
aW2b = [144, 148, 152, 156, 240, 244, 248]

A = Asm()
uid = [0]
def lab(p):
    uid[0] += 1
    return f"L_{p}{uid[0]}"
def exec_set(lo, hi): A(f"s_mov_b32 exec_lo, {lo:#x}\ns_mov_b32 exec_hi, {hi:#x}")
def exec_all(): A("s_mov_b64 exec, -1")
def sreg(i): return sSTAMP + 2*i if i < 8 else {8: 0, 9: 6}[i]
def stamp(i):
    if PROF: A(f"s_mem{'time' if PROF >= 4 else 'realtime'} s[{sreg(i)}:{sreg(i)+1}]")
def flush_stamps(base, n):
    if not PROF: return
    A("s_waitcnt lgkmcnt(0)")
    for i in range(n): A(f"v_writelane_b32 v{vPROF}, s{sreg(i)}, {base+i}")
def retry(loop):
    A(f"s_sub_u32 s{sBUD}, s{sBUD}, 1\ns_cbranch_scc0 {loop}\ns_mov_b32 s{sBUD}, 0")
OOL = []
def pub_store(ins):
    from asmlib import Ins
    a, b = lab("ps"), lab("pe")
    A(f"s_cmp_eq_u32 s{sFAST}, 0\ns_cbranch_scc1 {a}")
    A(ins, cond=True)
    A(f"{b}:")
    OOL.extend([Ins(f"{a}:"), Ins("s_nop 7"), Ins(ins + " sc1"), Ins(f"s_branch {b}")])
class only:
    def __init__(self, cc, reg, val):
        self.neg = {"eq": "lg", "lg": "eq", "lt": "ge", "ge": "lt"}[cc]; self.reg = reg; self.val = val
    def __enter__(self):
        self.l = lab("sk")
        A(f"s_cmp_{self.neg}_u32 s{self.reg}, {self.val}\ns_cbranch_scc1 {self.l}")
    def __exit__(self, *a): A(f"{self.l}:")
class ool:
    def __init__(self, cc, reg, val): self.cc = cc; self.reg = reg; self.val = val
    def __enter__(self):
        self.l = lab("oo"); self.b = lab("ob")
        A(f"s_cmp_{self.cc}_u32 s{self.reg}, {self.val}\ns_cbranch_scc1 {self.l}")
        self.save = A.L; A.L = []
        A(f"{self.l}:\ns_nop 7")
    def __exit__(self, *a):
        A(f"s_nop 4\ns_branch {self.b}")
        OOL.extend(A.L); A.L = self.save
        A(f"{self.b}:")
def mksrd(r, p, nbytes):
    A(f"s_mov_b32 s{r}, s{p}\ns_and_b32 s{r+1}, s{p+1}, 0xffff\ns_mov_b32 s{r+2}, {nbytes:#x}\ns_mov_b32 s{r+3}, 0x20000")
def dma(vo, r, sbase, m0reg, m0add, soffadd, tag, pol, cond=False):
    A(f"s_add_u32 m0, s{m0reg}, {m0add}\ns_add_u32 s3, s{sbase}, {soffadd}")
    A(f"buffer_load_dwordx4 v{vo}, {srd(r)}, s3 offen{pol} lds", tag=tag, cond=cond)
def tr_reads(adst, vbase, steps, tiles, sstep, tstep, second, base=0):
    for t in range(tiles):
        for s in range(steps):
            d = adst + (t*steps + s)*4
            A(f"ds_read_b64_tr_b16 a[{d}:{d+1}], v{vbase} offset:{base + s*sstep + t*tstep}")
            A(f"ds_read_b64_tr_b16 a[{d+2}:{d+3}], v{vbase} offset:{base + s*sstep + t*tstep + second}")
def pack_pairs(v, t):
    A(f"v_mov_b32_dpp v{t}, v{v} quad_perm:[1,0,3,2] row_mask:0xf bank_mask:0xf\nv_cvt_pk_bf16_f32 v{v}, v{v}, v{t}")
DPPF = "row_mask:0xf bank_mask:0xf"

hdr = open(f"cdna_kernels/{NAME}.s.ref").read().split("\n")
H = [l for l in hdr if l.startswith(";") and "@launch" not in l and not l.startswith("; Override") and not l.startswith("; grid=ceil")]
H.append(f"; @launch grid=(256,1,1) block=(256,1,1) lds={LDS_BYTES}")
A.raw('.amdgcn_target "amdgcn-amd-amdhsa--gfx950"')
A.raw(".text"); A.raw(f".globl {NAME}_kernel"); A.raw(".p2align 8"); A.raw(f".type {NAME}_kernel,@function")
A.raw(f"{NAME}_kernel:")

tn, tq = 31, 32
vKo = vR; vKr = vR + 4; vWa = vR + 8; vTa = vR + 9
vEP = vR + 10; vXr = vR + 12; vX0 = vR + 16; vX1 = vR + 20; vXA0 = vACC
stamp(0)
A(f"""
s_cmp_ge_u32 s2, 256
s_cbranch_scc1 L_end
s_load_dwordx16 s[4:19], s[0:1], 0
s_load_dwordx2 s[20:21], s[0:1], 64
s_load_dwordx2 s[24:25], s[0:1], 80
v_lshrrev_b32 v30, 6, v0
v_and_b32 v{vL}, 63, v0
s_and_b32 s{sg}, s2, 7
v_readfirstlane_b32 s{sw}, v30
s_lshr_b32 s{sU}, s2, 3               ; jj
s_lshr_b32 s{sb}, s{sU}, 4
s_and_b32 s{sj}, s{sU}, 15
s_and_b32 s3, s{sj}, 6
s_cmp_eq_u32 s3, 6
s_cselect_b32 s3, 8, 0
s_xor_b32 s{sjf}, s{sj}, s3
v_and_b32 v{tn}, 15, v{vL}
v_lshrrev_b32 v{tq}, 4, v{vL}
s_mul_i32 s{sT0}, s{sU}, {ABC[0]}
s_mul_i32 s3, s{sw}, {ABC[1]}
s_add_u32 s{sT0}, s{sT0}, s3
s_mul_i32 s3, s{sg}, {ABC[2]}
s_add_u32 s{sT0}, s{sT0}, s3
s_and_b32 s{sT0}, s{sT0}, 31      ; r
s_lshl_b32 s{sT1}, s{sb}, 3
s_add_u32 s{sT1}, s{sT1}, s{sg}   ; bg
s_lshl_b32 s{sVb}, s{sT1}, 21
s_lshl_b32 s3, s{sj}, 17
s_add_u32 s{sVb}, s{sVb}, s3
s_lshl_b32 s3, s{sw}, 15
s_add_u32 s{sVb}, s{sVb}, s3
s_add_u32 s{sKm}, s3, {KST}
s_lshl_b32 s3, s{sT0}, 10
s_add_u32 s{sVb}, s{sVb}, s3
v_lshlrev_b32 v{vVo}, 4, v{vL}
v_mov_b32 v{vKo}, v{vVo}
v_xor_b32 v{vKo+1}, 64, v{vVo}
v_xor_b32 v{vKo+2}, 128, v{vVo}
v_xor_b32 v{vKo+3}, 192, v{vVo}
v_lshrrev_b32 v35, 3, v{vL}
v_and_b32 v36, 7, v{vL}
v_lshlrev_b32 v36, 4, v36
v_lshl_add_u32 v{vWa}, v35, 13, v36
s_and_b32 s{sT1}, s{sU}, 3            ; kq
s_lshl_b32 s{sBUD}, s{sT1}, 20
s_lshl_b32 s3, s{sw}, 18
s_add_u32 s{sBUD}, s{sBUD}, s3
s_lshl_b32 s3, s{sg}, 10
s_add_u32 s{sBUD}, s{sBUD}, s3
s_lshr_b32 s{sT0}, s{sU}, 2           ; cb
s_lshl_b32 s3, s{sT0}, 7
s_add_u32 s{sBUD}, s{sBUD}, s3
s_lshl_b32 s{sLAYER}, s{sw}, 12
s_mov_b32 s{skq}, s{sT1}
s_lshl_b32 s{sQpub}, s{sg}, 13
s_lshl_b32 s3, s{sT0}, 8
s_add_u32 s{sQpub}, s{sQpub}, s3
s_lshl_b32 s3, s{sT1}, 11
s_add_u32 s{sQpub}, s{sQpub}, s3
; x addresses
v_and_b32 v33, 1, v{tq}
v_lshlrev_b32 v33, 3, v33
v_lshl_add_u32 v33, v{tn}, 4, v33      ; 16n+8(q&1)
s_lshl_b32 s3, s{sb}, 10
s_lshl_b32 s{sT0}, s{sw}, 8
s_add_u32 s3, s3, s{sT0}
v_add_u32 v34, s3, v33
v_lshrrev_b32 v35, 5, v{vL}
v_lshlrev_b32 v35, 10, v35
v_xor_b32 v34, v34, v35
v_mov_b32 v37, {EPO}
s_lshl_b32 s{sU}, s{sU}, 2
s_add_u32 s{sU}, s{sU}, s{sw}          ; u = jj*4+w
s_waitcnt lgkmcnt(0)
""")
def scalars():
    A(f"""
s_mov_b32 s{sSELLO}, 0x05040100
s_mov_b32 s{sSELHI}, 0x07060302
s_lshl_b32 s{sT1}, s{sg}, 1
s_add_u32 s{sT1}, s{sT1}, s{sb}          ; gb
s_lshl_b32 s{sQget}, s{sb}, 3
s_add_u32 s{sQget}, s{sQget}, s{sg}
s_lshl_b32 s{sQget}, s{sQget}, 13
s_lshl_b32 s3, s{sw}, 9
s_add_u32 s{sQget}, s{sQget}, s3
s_add_u32 s{sQget}, s{sQget}, {QP}
s_lshl_b32 s{sMLget}, s{sT1}, 9
s_add_u32 s{sHget}, s{sMLget}, {HS}
s_add_u32 s{sMLget}, s{sMLget}, {ML}
s_lshl_b32 s3, s{sj}, 5
s_add_u32 s{sT2}, s{sMLget}, s3
s_lshl_b32 s3, s{sjf}, 5
s_add_u32 s{sHpub}, s{sHget}, s3
s_lshl_b32 s3, s{sj}, 3
s_add_u32 s{sMLpub}, s{sMLget}, s3
s_lshl_b32 s3, s{sw}, 7
s_add_u32 s{sMLget}, s{sMLget}, s3
s_lshl_b32 s{sOget}, s{sT1}, 14
s_add_u32 s{sOget}, s{sOget}, {OS}
s_lshl_b32 s3, s{sj}, 10
s_add_u32 s{sOclr}, s{sOget}, s3
s_lshl_b32 s3, s{sj}, 4
s_add_u32 s{sOpub}, s{sOget}, s3
s_lshl_b32 s3, s{sw}, 10
s_add_u32 s{sOpub}, s{sOpub}, s3
s_lshl_b32 s3, s{sw}, 12
s_add_u32 s{sOget}, s{sOget}, s3
s_lshl_b32 s{sYget}, s{sb}, 13
s_add_u32 s{sYget}, s{sYget}, {YS}
s_add_u32 s{sYget1}, s{sYget}, 4096
s_add_u32 s{sZget}, s{sYget}, {ZS-YS}
s_add_u32 s{sZget1}, s{sZget}, 4096
s_lshl_b32 s3, s{sg}, 10
s_add_u32 s{sYpub}, s{sYget}, s3
s_lshl_b32 s3, s{sj}, 6
s_add_u32 s{sYpub}, s{sYpub}, s3
s_add_u32 s{sZpub}, s{sYpub}, {ZS-YS}
""")
def clears():
    A(f"""
v_mul_u32_u24 v47, {LS}, v{tq}
v_mov_b32 v45, s{sYpub}
v_mov_b32 v46, s{sT2}
v_subrev_u32 v46, 64, v46
v_cmp_le_u32 vcc, 4, v{tn}
v_cndmask_b32 v45, v45, v46, vcc
v_mov_b32 v46, s{sHpub}
v_subrev_u32 v46, 96, v46
v_cmp_le_u32 vcc, 6, v{tn}
v_cndmask_b32 v45, v45, v46, vcc
v_mov_b32 v46, s{sYpub}
v_subrev_u32 v46, 128, v46
v_cmp_le_u32 vcc, 8, v{tn}
v_cndmask_b32 v45, v45, v46, vcc
v_mov_b32 v46, s{sZpub}
v_subrev_u32 v46, 192, v46
v_cmp_le_u32 vcc, 12, v{tn}
v_cndmask_b32 v45, v45, v46, vcc
v_lshl_add_u32 v45, v{tn}, 4, v45
v_add_u32 v45, v45, v47
s_add_u32 s3, s{sQpub}, {CS}
v_lshlrev_b32 v46, 4, v{tn}
v_add_u32 v47, s3, v46
v_cmp_le_u32 vcc, 32, v{vL}
v_cndmask_b32 v45, v45, v47, vcc
v_and_b32 v47, 1, v{tq}
v_lshl_add_u32 v46, v47, 16, v46
v_lshrrev_b32 v47, 1, v{tq}
v_mul_u32_u24 v47, {LS}, v47
v_add_u32 v46, v46, v47
s_add_u32 s{sT2}, s{sQpub}, {QP}
v_mov_b32 v48, -1
v_mov_b32 v49, -1
v_mov_b32 v50, -1
v_mov_b32 v51, -1
s_add_u32 s3, s{sOclr}, {LS}
""")
    exec_set(0xffffffff, 0xffff)
    A(f"buffer_store_dwordx4 v[48:51], v45, {srd(rWS)}, 0 offen{CLRP}", cond=True)
    exec_all()
    A(f"buffer_store_dwordx4 v[48:51], v46, {srd(rWS)}, s{sT2} offen{CLRP}", cond=True)
    A(f"buffer_store_dwordx4 v[48:51], v{vVo}, {srd(rWS)}, s{sOclr} offen{CLRP}", cond=True)
    A(f"buffer_store_dwordx4 v[48:51], v{vVo}, {srd(rWS)}, s3 offen{CLRP}", tag="clr", cond=True)
def tags():
    A(f"""
v_readfirstlane_b32 s{sTAG0}, v{vEP}
v_readfirstlane_b32 s{sTAG1}, v{vEP+1}
s_add_u32 s{sTAG0}, s{sTAG0}, 1
s_andn2_b32 s{sTAG1}, s{sTAG1}, 15""")
def flag():
    with (ool if opt("ool", 0) else only)("eq", sw, CW):
        A.vwait("clr")
        tags()
        A(f"""
s_getreg_b32 s3, hwreg(HW_REG_XCC_ID, 0, 4)
s_or_b32 s3, s3, s{sTAG1}
v_mov_b32 v46, s{sTAG0}
v_mov_b32 v47, s3
s_lshl_b32 s3, s{sb}, 3
s_add_u32 s3, s3, s{sg}
s_lshl_b32 s3, s3, 4
s_add_u32 s3, s3, s{sj}
s_lshl_b32 s3, s3, 3
s_add_u32 s3, s3, {FLG}
v_mov_b32 v45, 0""")
        exec_set(1, 0)
        A(f"buffer_store_dwordx2 v[46:47], v45, {srd(rWS)}, s3 offen sc1", cond=True)
        exec_all()
def kdma(n):
    A(f"s_add_u32 m0, s{sKm}, {n*1024}\ns_xor_b32 s{sT0}, s{sVb}, {n*1024}")
    A(f"buffer_load_dwordx4 v{vKo+(n&3)}, {srd(rK)}, s{sT0} offen{POL[opt('kvpol','nt')]} lds", tag=f"K{n}")
def kread(k):
    A.vwait(f"K{4*k+3}")
    for s in range(4): A(f"ds_read_b128 {aq(aK+16*k+4*s)}, v{vKr+s} offset:{k*4096}")
def vload(n):
    A(f"s_xor_b32 s{sT1}, s{sVb}, {n*1024}")
    A(f"buffer_load_dwordx4 {vq(vR+32+4*n)}, v{vVo}, {srd(rV)}, s{sT1} offen{POL[opt('kvpol','nt')]}", tag=f"V{n}")
base = [("K", n) for n in range(32)] + [("V", n) for n in range(32)]
wl = []
if IN12: wl += [("W1", i) for i in range(4)] + [("W2", i) for i in range(4)]
if INO: wl = [("WO", i) for i in range(8)] + wl if opt("worder", 0) == 0 else wl + [("WO", i) for i in range(8)]
pend = []
for kind, n in base:
    pend.append((kind, n))
    pos = n if kind == "K" else 32 + n
    if wl and pos >= WPOS0 and (pos - WPOS0) % WSTEP == 0:
        pend.append(wl.pop(0)); assert pos < 32 + 8*MBG + 7
assert not wl
kr = [0]; allow_kread = [False]; wfirst = [True]
sWOb, sW1b, sW2b = 8, 9, 10
def wdma(kind, n):
    if "w" in DROP:
        if opt("fakew", 0):
            A(f"s_lshl_b32 s3, s{sU}, 12\ns_lshl_b32 s{sWOb}, s{sg}, 19\ns_add_u32 s{sWOb}, s{sWOb}, s3")
            fk = [("WO", i) for i in range(4)] + [("W1", 0), ("W1", 1), ("W2", 0), ("W2", 1)]
            if kind == "WO" and n < 4: A(f"buffer_load_dwordx4 {DUMMY}, v{vVo}, {srd(rWO)}, s{sWOb} offen offset:{1024*n} nt")
            if kind == "W1":
                A(f"s_lshl_b32 s3, s2, 2\ns_add_u32 s3, s3, s{sw}\ns_mul_i32 s3, s3, 1792")
                if n < 2: A(f"buffer_load_dwordx4 {DUMMY}, v{vVo}, {srd(rW1)}, s3 offen offset:{768*n} nt")
                else: A(f"buffer_load_dwordx4 {DUMMY}, v{vVo}, {srd(rW2)}, s3 offen offset:{768*(n-2)} nt")
        return
    if wfirst[0]:
        wfirst[0] = False
        assert kr[0] >= 4
        A(f"""s_waitcnt lgkmcnt(0)
v_lshrrev_b32 v111, 2, v{vL}
v_and_b32 v112, 3, v{vL}
v_lshlrev_b32 v112, 4, v112
v_lshl_add_u32 v111, v111, 10, v112
v_lshrrev_b32 v112, 1, v{vL}
v_mul_u32_u24 v112, 3584, v112
v_and_b32 v113, 1, v{vL}
v_lshl_add_u32 v112, v113, 4, v112
s_lshl_b32 s{sWOb}, s{sg}, 19
s_lshl_b32 s3, s{sw}, 17
s_add_u32 s{sWOb}, s{sWOb}, s3
s_lshl_b32 s3, s{sj}, 6
s_add_u32 s{sWOb}, s{sWOb}, s3
s_mul_i32 s{sW2b}, s{sg}, {224*1024}
s_add_u32 s{sW2b}, s{sW2b}, s3
s_lshl_b32 s3, s{sw}, 14
s_add_u32 s{sW2b}, s{sW2b}, s3
s_mul_i32 s{sW1b}, s{sw}, {128*3584}
s_mul_i32 s3, s{sg}, 448
s_add_u32 s{sW1b}, s{sW1b}, s3
s_lshl_b32 s3, s{sjf}, 5
s_add_u32 s{sW1b}, s{sW1b}, s3""")
    if kind == "WO": dma(111, rWO, sWOb, sKm, 1024*n, n << 14, f"WO{n}", " nt")
    elif kind == "W1":
        with only("lt", sjf, 14): dma(112, rW1, sW1b, sKm, 8192 + 1024*n, n*32*3584, "W1", " nt", cond=True)
    elif n < 3: dma(111, rW2, sW2b, sKm, 12288 + 1024*n, n*64*1024, "W2", " nt")
    else:
        with only("lt", sw, 2): dma(111, rW2, sW2b, sKm, 12288 + 1024*n, n*64*1024, "W2", " nt", cond=True)
def stream(k=1, upto=None):
    if upto is None and k <= 0: return
    if upto is not None:
        nxt = [n if kd == "K" else 32 + n for kd, n in pend if kd in "KV"][0]
        if nxt > upto: return
    while pend and (k > 0 or upto is not None):
        kind, n = pend.pop(0)
        if kind[0] == "W":
            wdma(kind, n); continue
        kdma(n) if kind == "K" else vload(n)
        pos = n if kind == "K" else 32 + n
        if PFOPOS > 0 and pos == PFOPOS: pf_wo()
        if allow_kread[0]:
            while kr[0] < 8 and 4*kr[0] + 3 + opt("klag", 16) <= pos:
                kread(kr[0]); kr[0] += 1
        k -= 1
        if upto is not None and pos == upto: break
        if upto is None and k <= 0: break

def pf_wo():
    A(f"s_lshl_b32 s3, s{sU}, 12\ns_lshl_b32 s{sT2}, s{sg}, 19\ns_add_u32 s{sT2}, s{sT2}, s3")
    for i in range(4): A(f"buffer_load_dwordx4 {DUMMY}, v{vVo}, {srd(rWO)}, s{sT2} offen offset:{1024*i}{PFO}")
    for x in [int(c) for c in opt("xg", "")]:
        A(f"s_xor_b32 s3, s{sT2}, {x << 19}")
        for i in range(4): A(f"buffer_load_dwordx4 {DUMMY}, v{vVo}, {srd(rWO)}, s3 offen offset:{1024*i}{PFO}")
    for x in range(1, opt("redo", 1)):
        A(f"s_xor_b32 s3, s{sT2}, {[0, 64, 32, 96][x] << 12}")
        for i in range(4): A(f"buffer_load_dwordx4 {DUMMY}, v{vVo}, {srd(rWO)}, s3 offen offset:{1024*i}{PFO}")
PFOPOS = opt('pfopos', -1)
mksrd(rK, sK, 1 << 25)
stream(opt("kf", 0))
mksrd(rWQ, sWQ, 512*4096*2); mksrd(rWS, sWS, WS_BYTES)
if PFOPOS >= 0: mksrd(rWO, sWO, 4096*512*2)
A(f"global_load_dwordx2 {vq(vEP,2)}, v37, {sp(sWS)} sc1", tag="ep")
with (ool if opt("ool", 0) else only)("eq", sw, CW):
    scalars()
    if "clr" not in DROP: clears()
    else: A.vq.append(("clr", True))
if "wa" not in DROP:
    for i in range(4): dma(vWa, rWQ, sBUD, sLAYER, LWQ + 1024*i, i << 16, f"WA{i}", " nt")
A(f"global_load_dwordx2 {vq(vXr,2)}, v34, {sp(sX)}", tag="x")
if PFOPOS == 0: pf_wo()
stream(opt("k0", 6) - opt("kf", 0))
stamp(1)
mksrd(rV, sV, 1 << 25); mksrd(rWO, sWO, 4096*512*2); mksrd(rW1, sW1, 512*1792*2); mksrd(rW2, sW2, 1792*512*2)
if opt("ool", 0): scalars()
else:
    with only("lg", sw, CW): scalars()
A(f"s_mov_b32 s{sLAYER}, 0\ns_mov_b32 s{sBUD}, 400000")
TLB = opt("tlb", 1)
if TLB:
    exec_set(1, 0)
    A(f"v_mov_b32 v44, 0")
    A(f"buffer_load_dword a255, v44, {srd(rV)}, s{sVb} offen nt")
    if TLB in (2, 3):
        A(f"s_lshl_b32 s3, s{sg}, 19")
        A(f"buffer_load_dword a255, v44, {srd(rWO)}, s3 offen nt")
        A(f"s_mul_i32 s3, s{sw}, {128*3584}")
        A(f"buffer_load_dword a255, v44, {srd(rW1)}, s3 offen nt")
        A(f"s_mul_i32 s3, s{sg}, {224*1024}")
        A(f"buffer_load_dword a255, v44, {srd(rW2)}, s3 offen nt")
    if TLB == 3:
        A(f"global_load_dword a255, v44, {sp(sOUT)} nt")
    if TLB == 4:
        A(f"s_or_b32 s3, s{sg}, s{sj}")
        with only("eq", 3, 0): A(f"global_load_dword a255, v44, {sp(sOUT)} nt", cond=True)
    exec_all()
A(f"""
s_lshl_b32 s3, s{sw}, 9
s_add_u32 s3, s3, {XB}
v_add_u32 v{vXBw}, s3, v33
v_lshrrev_b32 v44, 3, v{tn}
v_lshlrev_b32 v44, 8, v44
v_lshl_add_u32 v44, v{tq}, 4, v44
v_add_u32 v{vXBr}, s3, v44
v_lshlrev_b32 v47, 2, v{vL}                ; 4l
v_add_u32 v44, s3, v47
v_mov_b32 v41, 0x3f803f80
ds_write_b32 v44, v41 offset:256
s_lshl_b32 s3, s{sw}, 2
s_add_u32 s{sT1}, s3, {RED1}
v_add_u32 v{vRED}, s{sT1}, v{vVo}
v_lshrrev_b32 v46, 5, v{vL}
v_lshl_add_u32 v46, v46, 4, v{tn}
v_lshlrev_b32 v46, 4, v46
s_add_u32 s{sT1}, s3, {REDA}
v_add_u32 v{vREDA}, s{sT1}, v46
s_add_u32 s{sT1}, s3, {ST0}
v_mov_b32 v{vST}, s{sT1}
v_and_b32 v42, 3, v{vL}                    ; l&3
v_lshlrev_b32 v43, 4, v42
v_add_u32 v{vMBw}, {MB}, v43
v_add_u32 v{vMBw}, s3, v{vMBw}
s_lshl_b32 s3, s{sw}, 8
v_lshlrev_b32 v43, 4, v{tq}                ; 16q
v_add_u32 v{vMBr}, {MB}, v43
v_and_b32 v44, 1, v{tq}
v_lshlrev_b32 v44, 16, v44
v_lshl_add_u32 v{vQP}, v{tn}, 2, v44       ; batch*65536 + 4n
v_lshrrev_b32 v44, 5, v{vL}
v_xor_b32 v44, s{sb}, v44
v_lshlrev_b32 v44, 8, v44
v_add_u32 v44, {XQ}, v44
v_add_u32 v{vXQw}, v44, v33
v_bfe_u32 v44, v{vL}, 2, 1
v_lshlrev_b32 v44, 8, v44
v_add3_u32 v44, v44, v43, 0
v_add_u32 v44, {XQ}, v44
v_accvgpr_write_b32 a{aXQr}, v44
v_lshrrev_b32 v44, 2, v{vL}
v_lshlrev_b32 v44, 6, v44
v_lshl_add_u32 v44, v42, 2, v44
s_lshl_b32 s{sT1}, s{sw}, 4
s_add_u32 s{sT1}, s{sT1}, {QB}
v_add_u32 v44, s{sT1}, v44
v_accvgpr_write_b32 a{aQBw}, v44
v_lshlrev_b32 v44, 4, v{tn}
v_lshl_add_u32 v44, v{tq}, 10, v44
v_add_u32 v{vGad}, s3, v44
v_mov_b32 v{vHad}, v43
v_lshlrev_b32 v44, 4, v42
v_lshl_add_u32 v{vQad}, v{tq}, 6, v44
v_add_u32 v{vQad}, {QB}, v{vQad}
v_lshl_add_u32 v44, v{tq}, 2, v42
v_lshlrev_b32 v{vMLad}, 3, v44
v_lshlrev_b32 v{vPAIR}, 1, v{vL}
s_lshl_b32 s3, s{sw}, 11
s_add_u32 s3, s3, {OB}
v_lshlrev_b32 v44, 4, v{tn}
v_add_u32 v{vOBw}, s3, v{vVo}
s_lshl_b32 s3, s{sw}, 9
s_add_u32 s3, s3, {OB}
v_lshl_add_u32 v44, v{tq}, 2, v44
v_add_u32 v{vOBr}, s3, v44
v_lshrrev_b32 v45, 2, v{tn}                ; n>>2
v_lshlrev_b32 v44, 8, v45
v_lshl_add_u32 v44, v42, 2, v44
v_lshl_add_u32 v{vOpub}, v{tq}, 12, v44
s_and_b32 s3, s{sw}, 1
s_lshl_b32 s3, s3, 5
v_lshlrev_b32 v44, 3, v{tq}
v_add_u32 v{vZpub}, s3, v44
{"v_and_b32 v46, 4, v%d" % tn if Z1W else ""}
{"v_lshl_add_u32 v%d, v46, 3, v44" % vZpub if Z1W else ""}
v_mul_u32_u24 v44, 1088, v42
v_lshl_add_u32 v44, v45, 8, v44
v_add_u32 v44, v44, v43
""")
for s in range(4): A(f"v_xor_b32 v46, {64*s}, v44\nv_add_u32 v{vKr+s}, s{sKm}, v46")
A(f"""
v_and_b32 v44, 1, v{tn}
v_lshlrev_b32 v44, 4, v44
v_mov_b32 v46, 0x3f80
v_lshlrev_b32 v46, v44, v46
v_lshrrev_b32 v44, 1, v{tn}
""")
for i in range(4): A(f"v_cmp_eq_u32 vcc, {i}, v44\nv_cndmask_b32 v{vSEL+i}, 0, v46, vcc")
A(f"""
v_lshl_add_u32 v46, v{tq}, 3, v45          ; 8q+r
v_lshlrev_b32 v46, 7, v46
v_lshl_add_u32 v46, v42, 3, v46
s_lshl_b32 s3, s{sw}, 5
v_add_u32 v{vTa}, s3, v46
""")
stream(opt("k1", 2))
if opt("fpos", 12) < 0: flag()

vXP = 28; vXA = 32; vG0 = 48
vS, vSQ, vTm = 30, 31, 56
vMean, vRs = 62, 63
def unpack_x():
    A(f"""
v_lshlrev_b32 v{vX}, 16, v{vXP}
v_and_b32 v{vX+1}, 0xffff0000, v{vXP}
v_lshlrev_b32 v{vX+2}, 16, v{vXP+1}
v_and_b32 v{vX+3}, 0xffff0000, v{vXP+1}""")
def stat_ops():
    o = [f"v_add_f32 v{vS}, v{vX}, v{vX+1}", f"v_mul_f32 v{vSQ}, v{vX}, v{vX}", f"v_add_f32 v{vTm}, v{vX+2}, v{vX+3}",
         f"v_fmac_f32 v{vSQ}, v{vX+1}, v{vX+1}", f"v_add_f32 v{vS}, v{vS}, v{vTm}",
         f"v_fmac_f32 v{vSQ}, v{vX+2}, v{vX+2}", f"v_fmac_f32 v{vSQ}, v{vX+3}, v{vX+3}"]
    for c in ("row_ror:8 " + DPPF, "row_ror:4 " + DPPF, "row_ror:2 " + DPPF, "row_ror:1 " + DPPF, "row_bcast:15 row_mask:0xa bank_mask:0xf"):
        o += [f"v_add_f32_dpp v{vS}, v{vS}, v{vS} {c}", f"v_add_f32_dpp v{vSQ}, v{vSQ}, v{vSQ} {c}"]
    return o
def stat_write(st_off):
    exec_set(0x10000, 0)
    A(f"ds_write2_b32 v{vST}, v{vS}, v{vSQ} offset0:{st_off//4} offset1:{st_off//4+4}")
    exec_all()
def qproj(first):
    with only("eq", sw, f"s{skq}"): A(f"ds_write_b64 v{vXQw}, v[{vXP}:{vXP+1}]")
    A(f"v_accvgpr_read_b32 v57, a{aXQr}")
    unpack_x()
    for i in stat_ops(): A(i)
    stat_write(0)
    A("s_waitcnt lgkmcnt(0)\ns_barrier")
    if first:
        tr_reads(aWQ, vTa, 4, 1, 4096, 0, 512, base=LWQ)
        stream(2)
    for s_ in range(4): A(f"ds_read_b128 {vq(vXA+4*s_)}, v57 offset:{64*s_}")
    A(f"v_mov_b32 v58, {ST0}")
    A(f"ds_read_b128 v[52:55], v58\nds_read_b128 v[56:59], v58 offset:16")
    A(f"s_lshl_b32 s3, s{sw}, 6\ns_add_u32 s3, s3, s{sQpub}\ns_add_u32 s{sT2}, s3, {CS}\ns_add_u32 s3, s3, {QP}")
    for s_ in range(4):
        A(f"s_waitcnt lgkmcnt({0 if (PROF or first) else 5-s_})")
        A(f"v_mfma_f32_16x16x32_bf16 {vq(vG0)}, {vq(vXA+4*s_)}, {aq(aWQ+4*s_)}, {'0' if s_ == 0 else vq(vG0)}")
    A(f"""s_waitcnt lgkmcnt(0)
v_add_f32 v52, v52, v53
v_add_f32 v54, v54, v55
v_add_f32 v56, v56, v57
v_add_f32 v58, v58, v59
v_add_f32 v52, v52, v54
v_add_f32 v56, v56, v58""")
    if not first:
        exec_set(0xffffffff, 0)
        pub_store(f"buffer_store_dword v{vG0}, v{vQP}, {srd(rWS)}, s3 offen")
        exec_all()
    else: stream(2)
    A(f"""
v_mul_f32 v{vMean}, {f2u(1.0/512):#x}, v52
v_mul_f32 v56, {f2u(1.0/512):#x}, v56
v_fma_f32 v56, -v{vMean}, v{vMean}, v56
v_max_f32 v56, 0, v56
v_add_f32 v56, {f2u(1e-5):#x}, v56
v_rsq_f32 v56, v56
v_mul_f32 v{vRs}, {f2u(QSCALE):#x}, v56""")
    if first:
        for i in range(4): A(f"v_mov_b32 v{vXA+i}, 0x3f803f80")
        for s_ in range(4):
            A(f"v_mfma_f32_16x16x32_bf16 v[52:55], {vq(vXA)}, {aq(aWQ+4*s_)}, {'0' if s_ == 0 else 'v[52:55]'}")
        if opt("fpos", 12) >= 0:
            stream(upto=opt("fpos", 12))
            flag()
            stream(upto=opt("b2pos", 16))
            A("s_barrier")
        A(f"s_lshl_b32 s3, s{sw}, 6\ns_add_u32 s3, s3, s{sQpub}\ns_add_u32 s{sT2}, s3, {CS}\ns_add_u32 s3, s3, {QP}")
        exec_set(0xffffffff, 0)
        A(f"buffer_store_dword v{vG0}, v{vQP}, {srd(rWS)}, s3 offen sc1")
        exec_set(0xffff, 0)
        A(f"buffer_store_dword v52, v{vQP}, {srd(rWS)}, s{sT2} offen sc1")
        exec_all()
def q_loads(dst, soff, tag=None, cond=False):
    for k in range(4): A(f"buffer_load_dwordx2 v[{dst+2*k}:{dst+2*k+1}], v60, {srd(rWS)}, s{soff} offen offset:{2048*k if k < 2 else 2048*(k-2)} sc1" if k < 2 else
                         f"buffer_load_dwordx2 v[{dst+2*k}:{dst+2*k+1}], v61, {srd(rWS)}, s{soff} offen offset:{2048*(k-2)} sc1", tag=tag, cond=cond)
def q_addr(): A(f"v_lshlrev_b32 v60, 3, v{vL}\nv_add_u32 v61, 4096, v60")
def sum4(d):
    A(f"v_add_f32 v{d}, v{d}, v{d+2}\nv_add_f32 v{d+1}, v{d+1}, v{d+3}\nv_add_f32 v{d+4}, v{d+4}, v{d+6}\nv_add_f32 v{d+5}, v{d+5}, v{d+7}\nv_add_f32 v{d}, v{d}, v{d+4}\nv_add_f32 v{d+1}, v{d+1}, v{d+5}")
def q_finish(cs):
    A(f"""
v_fma_f32 v44, -v{vMean}, v{cs}, v44
v_fma_f32 v45, -v{vMean}, v{cs+1}, v45
v_mul_f32 v44, v44, v{vRs}
v_mul_f32 v45, v45, v{vRs}
v_cvt_pk_bf16_f32 v44, v44, v45
ds_write_b32 v59, v44
s_waitcnt lgkmcnt(0)
s_barrier""")
    for s_ in range(4): A(f"ds_read_b128 {vq(vQ+4*s_)}, v{vQad} offset:{256*s_}")
A.vwait("x")
stamp(2)
tags()
A(f"""
s_cmp_eq_u32 s{sw}, s{skq}
s_cselect_b32 s3, 64, 32
v_cmp_gt_u32 vcc, s3, v{vL}
v_cndmask_b32 v{vXP}, 0, v{vXr}, vcc
v_cndmask_b32 v{vXP+1}, 0, v{vXr+1}, vcc
s_xor_b32 s{sYo}, s{sYget}, 8192
s_xor_b32 s{sZo}, s{sZget}, 8192""")
qproj(True)
stamp(3)
allow_kread[0] = True
stream(upto=opt("cenpos", 30))
def cen_loads(cond):
    A(f"s_mov_b32 s3, {FLG}")
    A(f"buffer_load_dwordx4 v[32:35], v{vVo}, {srd(rWS)}, s3 offen sc1", cond=cond)
    A(f"buffer_load_dwordx4 v[36:39], v{vVo}, {srd(rWS)}, s3 offen offset:1024 sc1", tag="cen", cond=cond)
if "cen" not in DROP: cen_loads(False)
else: A.vq.append(("cen", True))
stream(opt("cenlag", 10))
A.vwait("cen")
lcen, lcok = lab("cen"), lab("cok")
A(f"{lcen}:")
if "cen" in DROP or "clr" in DROP: A(f"s_branch {lcok}")
for i in range(4):
    A(f"v_xor_b32 v{32+2*i}, s{sTAG0}, v{32+2*i}\nv_xor_b32 v{33+2*i}, s{sTAG1}, v{33+2*i}")
CSPLIT = opt("csplit", 1)
A(f"""
v_or3_b32 v40, v33, v35, v37
v_or3_b32 v42, v32, v34, v36
v_or_b32 v40, v40, v39
v_and_b32 v40, -16, v40
v_or3_b32 v40, v40, v42, v38
v_cmp_ne_u32 vcc, 0, v40""")
if CSPLIT: A(f"""s_or_b32 s{sCEN}, vcc_lo, vcc_hi
s_lshl_b32 s3, s{sg}, 3
s_lshr_b64 s[{sT2}:{sT2+1}], vcc, s3
s_and_b32 s{sT2}, s{sT2}, 0xff
s_cbranch_scc0 {lcok}
s_sleep 4""")
else: A(f"s_cbranch_vccz {lcok}\ns_sleep 4")
cen_loads(True)
A("s_waitcnt vmcnt(0)")
retry(lcen)
A(f"{lcok}:")
stamp(4)
if PROF: A(f"s_mov_b32 s12, s{sBUD}")
A(f"""
s_getreg_b32 s3, hwreg(HW_REG_XCC_ID, 0, 4)
v_xor_b32 v33, s3, v33
v_xor_b32 v35, s3, v35
v_xor_b32 v37, s3, v37
v_xor_b32 v39, s3, v39
v_or_b32 v33, v33, v35
v_or3_b32 v33, v33, v37, v39
v_cmp_eq_u32 vcc, 0, v33
s_lshl_b32 s3, s{sg}, 3
s_lshr_b64 s[{sT2}:{sT2+1}], vcc, s3
s_and_b32 s{sT2}, s{sT2}, 0xff
s_cmp_eq_u32 s{sT2}, 0xff
s_cselect_b32 s{sFAST}, {0 if FORCE_SLOW else 1}, 0
s_lshl_b32 s{sT3}, s{sg}, 13
s_lshl_b32 s3, s{sw}, 9
s_add_u32 s{sT3}, s{sT3}, s3
s_add_u32 s{sT3}, s{sT3}, {CS}""")
q_addr()
stream(upto=opt("qpos", 42))
if "q" not in DROP: q_loads(44, sQget); q_loads(32, sT3, tag="Q")
else: A.vq.append(("Q", True))
stream(opt("qlag", 8))
A.vwait("Q")
lq1, lq1ok = lab("ql"), lab("qlok")
A(f"{lq1}:")
if DROP != [""] and DROP != ["w"]: A(f"s_branch {lq1ok}")
sum4(44); sum4(32)
A(f"""v_add_f32 v40, v44, v45
v_add_f32 v41, v32, v33
v_cmp_u_f32 vcc, v40, v41
s_cbranch_vccz {lq1ok}""")
q_loads(44, sQget, cond=True); q_loads(32, sT3, cond=True)
A("s_waitcnt vmcnt(0)")
retry(lq1)
A(f"""{lq1ok}:
v_accvgpr_write_b32 a{aCS}, v32
v_accvgpr_write_b32 a{aCS+1}, v33
v_accvgpr_read_b32 v59, a{aQBw}
v_mov_b32 v56, v32
v_mov_b32 v57, v33""")
assert kr[0] == 8
if PROF: A(f"s_mov_b32 s13, s{sBUD}")
q_finish(56)
stream(1)
A(f"s_waitcnt lgkmcnt(0)")
stamp(5)

def qk(filler=None):
    tiles = [(t, u) for t in range(4) for u in range(2)]
    def dreg(k):
        t, u = tiles[k]
        return (vD0 if u == 0 else vD1) if t == 0 else vROT + 4*(k % 3)
    def sel(k):
        t, u = tiles[k]
        if t == 0: return []
        return [f"v_mov_b32_dpp v{(vD0 if u == 0 else vD1)+r}, v{dreg(k)+r} quad_perm:[0,1,2,3] row_mask:0xf bank_mask:{1 << t:#x}" for r in range(4)]
    for k in range(8):
        ex = sel(k-2) if k >= 2 else []
        for s in range(4):
            c = "0" if s == 0 else vq(dreg(k))
            A(f"v_mfma_f32_16x16x32_bf16 {vq(dreg(k))}, {aq(aK+16*k+4*s)}, {vq(vQ+4*s)}, {c}")
            if ex: A(ex.pop(0))
        if filler: filler(k)
    for k in (6, 7):
        for i in sel(k): A(i)
vM, vTt, vLs, vP = 32, 33, 34, 28
vF = 36; vMM = 40
def softmax():
    A(f"""
v_max3_f32 v{vM}, v{vD0}, v{vD0+1}, v{vD0+2}
v_max3_f32 v{vTt}, v{vD0+3}, v{vD1}, v{vD1+1}
v_max3_f32 v{vM}, v{vM}, v{vD1+2}, v{vD1+3}
v_max_f32 v{vM}, v{vM}, v{vTt}
v_max_f32_dpp v{vM}, v{vM}, v{vM} row_ror:4 {DPPF}
v_max_f32_dpp v{vM}, v{vM}, v{vM} row_ror:8 {DPPF}
v_mov_b32 v{vTt}, v{vM}
v_permlane16_swap_b32 v{vM}, v{vTt}
v_max_f32 v{vM}, v{vM}, v{vTt}
v_mov_b32 v{vTt}, v{vM}
v_permlane32_swap_b32 v{vM}, v{vTt}
v_max_f32 v{vM}, v{vM}, v{vTt}""")
    for r in range(8): A(f"v_sub_f32 v{vD0+r}, v{vD0+r}, v{vM}")
    A(f"ds_write_b32 v{vMBw}, v{vM}")
    for r in range(8): A(f"v_exp_f32 v{vD0+r}, v{vD0+r}")
    for p in range(4): A(f"v_cvt_pk_bf16_f32 v{vP+p}, v{vD0+2*p}, v{vD0+2*p+1}")
def aop(t): return vP if t == 0 else vROT + 4*(t-1)
def shifts(t): return [f"v_mov_b32_dpp v{aop(t)+p}, v{vP+p} row_ror:{16-4*t} {DPPF}" for p in range(4)]
def lsum_ops():
    return [f"v_add_f32 v{vLs}, v{vD0}, v{vD0+1}", f"v_add_f32 v{vTt}, v{vD0+2}, v{vD0+3}",
            f"v_add_f32 v{vLs}, v{vLs}, v{vD1}", f"v_add_f32 v{vTt}, v{vTt}, v{vD1+1}",
            f"v_add_f32 v{vLs}, v{vLs}, v{vD1+2}", f"v_add_f32 v{vTt}, v{vTt}, v{vD1+3}",
            f"v_add_f32 v{vLs}, v{vLs}, v{vTt}",
            f"v_add_f32_dpp v{vLs}, v{vLs}, v{vLs} row_ror:4 {DPPF}",
            f"v_add_f32_dpp v{vLs}, v{vLs}, v{vLs} row_ror:8 {DPPF}",
            f"v_mov_b32 v{vTt}, v{vLs}", f"v_permlane16_swap_b32 v{vLs}, v{vTt}", f"v_add_f32 v{vLs}, v{vLs}, v{vTt}",
            f"v_mov_b32 v{vTt}, v{vLs}", f"v_permlane32_swap_b32 v{vLs}, v{vTt}", f"v_add_f32 v{vLs}, v{vLs}, v{vTt}",
            f"ds_write_b32 v{vMBw}, v{vLs} offset:64"]
def fw_ops():
    return [f"ds_read_b128 {vq(vF)}, v{vMBr}", "s_waitcnt lgkmcnt(0)",
            f"v_max3_f32 v{vMM}, v{vF}, v{vF+1}, v{vF+2}", f"v_max_f32 v{vMM}, v{vMM}, v{vF+3}"] + \
           [f"v_sub_f32 v{vF+i}, v{vF+i}, v{vMM}" for i in range(4)] + [f"v_exp_f32 v{vF+i}, v{vF+i}" for i in range(4)]
def owrite(half): return f"ds_write_b128 v{vOBw}, {vq(vACC+16*half)} offset:{1024*half}"
sROW = {1: 28, 2: 30, 3: 36}
def row_masks():
    A(f"s_mov_b32 s28, 0xffff0000\ns_mov_b32 s29, 0\ns_mov_b32 s30, 0\ns_mov_b32 s31, 0xffff\ns_mov_b32 s36, 0\ns_mov_b32 s37, 0xffff0000")
def merge(jd):
    d = vACC + 16*(jd >> 2)
    return [f"v_cndmask_b32 v{d+h}, v{d+h}, v{vACC+4*jd+h}, {sp(sROW[jd & 3])}" for h in range(4)]
def pv_mfma(t, jd, first):
    c = "0" if first else vq(vACC+4*jd)
    A(f"v_mfma_f32_16x16x32_bf16 {vq(vACC+4*jd)}, {vq(aop((t - jd) & 3))}, {vq(vR+32*t+4*jd)}, {c}")

def pf_w12(t0, t1):
    pf_w12_(t0, t1)
    if opt("red12", 1) > 1:
        A(f"s_xor_b32 s{sU}, s{sU}, 64"); pf_w12_(t0, t1)
def pf_w12_(t0, t1):
    A(f"""
s_mul_i32 s{sT2}, s{sU}, {4*3584}
s_mul_i32 s3, s{sg}, 448
s_add_u32 s{sT2}, s{sT2}, s3
v_lshrrev_b32 v{t0}, 5, v{vL}
v_mul_u32_u24 v{t0}, 3584, v{t0}
v_and_b32 v{t1}, 31, v{vL}
v_lshl_add_u32 v{t0}, v{t1}, 4, v{t0}
s_add_u32 s3, s{sT2}, {2*3584}""")
    exec_set(0x0fffffff, 0x0fffffff)
    A(f"buffer_load_dwordx4 {DUMMY}, v{t0}, {srd(rW1)}, s{sT2} offen{PF12}")
    A(f"buffer_load_dwordx4 {DUMMY}, v{t0}, {srd(rW1)}, s3 offen{PF12}")
    A(f"""
s_mul_i32 s{sT2}, s{sU}, {14*128}
s_mul_i32 s3, s{sg}, {224*1024}
s_add_u32 s{sT2}, s{sT2}, s3""")
    exec_set(0xffffffff, 0x00ffffff)
    A(f"buffer_load_dwordx4 {DUMMY}, v{vVo}, {srd(rW2)}, s{sT2} offen{PF12}")
    A(f"buffer_load_dwordx4 {DUMMY}, v{vVo}, {srd(rW2)}, s{sT2} offen offset:896{PF12}")
    exec_all()
def tail_pf():
    if "tail" in DROP: return
    if not INO and PFOPOS == -1: pf_wo()
    if W12PF == 0 and not IN12: pf_w12(41, 42)
    lw = lab("wu"); lw2 = lab("wu")
    A(f"""
v_lshlrev_b32 v35, 7, v{vL}
s_and_b32 s3, s{sw}, 1
s_mul_i32 s3, s3, {LS}
s_cmp_ge_u32 s{sw}, 2
s_cbranch_scc1 {lw}
s_add_u32 s3, s3, s{sOclr}
v_and_b32 v41, 0x380, v35
s_branch {lw2}
{lw}:
v_and_b32 v41, 1, v{vL}
v_lshlrev_b32 v41, 7, v41
v_bfe_u32 v42, v{vL}, 1, 1
v_lshl_add_u32 v41, v42, 16, v41
s_add_u32 s{sT2}, s{sQpub}, {QP}
v_add_u32 v41, s{sT2}, v41
s_sub_u32 s{sT2}, s{sMLpub}, 512
v_add_u32 v42, s{sT2}, v35
v_cmp_le_u32 vcc, 4, v{vL}
v_cndmask_b32 v41, v41, v42, vcc
v_mov_b32 v42, s{sHpub}
v_cmp_le_u32 vcc, 8, v{vL}
v_cndmask_b32 v41, v41, v42, vcc
{lw2}:""")
    exec_set(0x1ff, 0)
    if not opt("nowu", 0): A(f"buffer_load_dword a253, v41, {srd(rWS)}, s3 offen sc1")
    A(f"""
s_getpc_b64 s[{sT2}:{sT2+1}]
L_pc:
s_add_u32 s{sT2}, s{sT2}, L_comb-L_pc
s_addc_u32 s{sT2+1}, s{sT2+1}, 0""")
    exec_all()
    A(f"v_min_u32 v42, L_end-L_comb, v35")
    A(f"s_nop 0")
    if not opt("nocode", 0): A(f"global_load_dword a254, v42, s[{sT2}:{sT2+1}]{POL[opt('cpol','none')]}")

qk(filler=lambda k: stream(2))
stream(40)
softmax()
for t in (1, 2, 3):
    for i in shifts(t): A(i)
for i in lsum_ops(): A(i)
row_masks()
stamp(6)
for t in range(4):
    A.vwait(f"V{8*t+7}")
    raw = vR + 32*(t+1); dst = vR + 32*t
    for jd in range(8):
        for p in range(4):
            A(f"v_perm_b32 v{dst+4*jd+p}, v{raw+4*(2*p+1)+(jd>>1)}, v{raw+4*(2*p)+(jd>>1)}, s{sSELHI if jd & 1 else sSELLO}")
        if jd: pv_mfma(t, jd-1, t == 0)
        if t == 3:
            for i in {4: merge(1), 5: merge(2), 6: merge(3) + [owrite(0)]}.get(jd, []): A(i)
    pv_mfma(t, 7, t == 0)
    if t == 3:
        for i in merge(5) + merge(6): A(i)
    if t == MBG:
        A("s_waitcnt lgkmcnt(0)\ns_barrier")
        for i in fw_ops(): A(i)
        if INO or IN12:
            A(f"""
v_lshrrev_b32 v44, 2, v{vL}
v_and_b32 v44, 3, v44                     ; r
v_and_b32 v45, 3, v{vL}
v_lshlrev_b32 v45, 3, v45                 ; 8c
v_lshrrev_b32 v46, 4, v{vL}               ; q
v_lshl_add_u32 v47, v46, 3, v44           ; 8q+r
v_lshl_add_u32 v47, v47, 5, v45
v_add_u32 v47, s{sKm}, v47                ; w1
v_and_b32 v48, 1, v44
v_lshrrev_b32 v49, 1, v44
v_lshl_add_u32 v48, v49, 3, v48
v_lshl_add_u32 v48, v46, 5, v48
v_lshl_add_u32 v48, v48, 6, v45
v_add_u32 v48, s{sKm}, v48                ; wo
v_and_b32 v49, 1, v46
v_lshl_add_u32 v44, v49, 3, v44
v_lshl_add_u32 v44, v44, 6, v45
v_lshrrev_b32 v46, 1, v46
v_lshl_add_u32 v44, v46, 15, v44
s_and_b32 s3, s{sw}, 1
s_lshl_b32 s3, s3, 5
s_add_u32 s3, s3, {KST + 12288}
v_add_u32 v44, s3, v44                    ; w2
v_add_u32 v45, 65536, v44""")
            if "w" in DROP:
                for i in range(aWO, 236): A(f"v_accvgpr_write_b32 a{i}, 0")
            if INO and "w" not in DROP: tr_reads(aWO, 48, 4, 2, 128, 32, 1024)
            if IN12 and "w" not in DROP:
                tr_reads(aW1, 47, 4, 1, 1024, 0, 128, base=8192)
                for st in range(7):
                    o_ = (st >> 1)*1024; r_ = 45 if st & 1 else 44
                    A(f"ds_read_b64_tr_b16 a[{aW2+4*st}:{aW2+4*st+1}], v{r_} offset:{o_}")
                    A(f"ds_read_b64_tr_b16 a[{aW2+4*st+2}:{aW2+4*st+3}], v{r_} offset:{o_+256}")
    if t == opt("pfg", 3): tail_pf()
WOEARLY = opt("woearly", 0)
def wo_burst(t0, t1, vo):
    A(f"""
v_lshrrev_b32 v{t0}, 2, v{vL}
v_and_b32 v{t1}, 3, v{vL}
v_lshlrev_b32 v{t1}, 4, v{t1}
v_lshl_add_u32 v{vo}, v{t0}, 10, v{t1}
s_lshl_b32 s{sT2}, s{sg}, 19
s_lshl_b32 s3, s{sw}, 17
s_add_u32 s{sT2}, s{sT2}, s3
s_lshl_b32 s3, s{sj}, 6
s_add_u32 s{sT2}, s{sT2}, s3""")
    for n in range(WOEARLY): dma(vo, rWO, sT2, sKm, 1024*n, n << 14, f"WO{n}", WPOL)
for i in merge(7) + [owrite(1)]: A(i)
if opt("pfg", 3) == 4: tail_pf()
if WOEARLY: wo_burst(41, 42, 43)
stamp(7)
flush_stamps(0, 8)
if PROF: A(f"v_writelane_b32 v{vPROF}, s12, 8\nv_writelane_b32 v{vPROF}, s13, 9")
if EXP == "stream": A("s_branch L_done")

def xproc(aW, tiles, red_off, st_off, skip_label=None, pre=None):
    exec_set(0xffffffff, 0)
    A(f"ds_write_b64 v{vXBw}, v[{vXP}:{vXP+1}]")
    exec_all()
    for s in range(4): A(f"ds_read_b128 {vq(vXA+4*s)}, v{vXBr} offset:{64*s}")
    unpack_x()
    if skip_label: A(f"s_cbranch_scc1 {skip_label}")
    dp = stat_ops()
    for _ in range(11): A(dp.pop(0))
    if pre: pre()
    A("s_waitcnt lgkmcnt(0)")
    for s in range(4):
        A(f"v_mfma_f32_16x16x32_bf16 {vq(vG0)}, {vq(vXA+4*s)}, {aq(aW+4*s)}, {'0' if s == 0 else vq(vG0)}")
        for _ in range(2):
            if dp: A(dp.pop(0))
    stat_write(st_off)
    A(f"ds_write_b32 v{vRED}, v{vG0} offset:{red_off}")
def ln_final(red_off, st_off):
    A(f"""
ds_read_b128 v[36:39], v{vST} offset:{st_off}
ds_read_b128 v[40:43], v{vST} offset:{st_off+16}
ds_read_b128 v[28:31], v{vRED} offset:{red_off}
ds_read_b128 v[32:35], v{vRED} offset:{red_off+512}
s_mov_b32 s3, {f2u(1.0/512):#x}
v_mov_b32 v44, {f2u(1e-5):#x}""")
    exec_set(0xffff, 0)
    A(f"""
s_waitcnt lgkmcnt({0 if PROF else 2})
v_add_f32 v36, v36, v37
v_add_f32 v38, v38, v39
v_add_f32 v40, v40, v41
v_add_f32 v42, v42, v43
v_add_f32 v36, v36, v38
v_add_f32 v40, v40, v42
v_mul_f32 v36, s3, v36                ; mean
v_fma_f32 v41, s3, v40, v44           ; E[x^2] + eps
s_waitcnt lgkmcnt(0)
v_add_f32 v32, v32, v33
v_fma_f32 v41, -v36, v36, v41
v_add_f32 v34, v34, v35
v_max_f32 v41, v44, v41
v_add_f32 v28, v28, v29
v_rsq_f32 v41, v41
v_add_f32 v30, v30, v31
v_add_f32 v32, v32, v34
v_add_f32 v28, v28, v30
v_mul_f32 v42, {f2u(-LOG2E):#x}, v41
v_fma_f32 v28, -v36, v32, v28
v_mul_f32 v29, v28, v42
""")

A("L_comb:")
A("s_waitcnt lgkmcnt(0)\ns_barrier")
for w in range(4): A(f"ds_read2st64_b32 v[{44+2*w}:{45+2*w}], v{vOBr} offset0:{8*w} offset1:{8*w+1}")
A(f"ds_read_b128 v[52:55], v{vMBr} offset:64")
A("s_waitcnt lgkmcnt(1)" if not PROF else "s_waitcnt lgkmcnt(0)")
A(f"v_mul_f32 v44, v{vF}, v44\nv_mul_f32 v45, v{vF}, v45")
for w in range(1, 4): A(f"v_fmac_f32 v44, v{vF+w}, v{44+2*w}\nv_fmac_f32 v45, v{vF+w}, v{45+2*w}")
A("v_cvt_pk_bf16_f32 v44, v44, v45")
pub_store(f"buffer_store_dword v44, v{vOpub}, {srd(rWS)}, s{sOpub} offen")
with only("eq", sw, 0):
    A(f"""
s_waitcnt lgkmcnt(0)
v_mul_f32 v{vMM+1}, v{vF}, v52
v_fmac_f32 v{vMM+1}, v{vF+1}, v53
v_fmac_f32 v{vMM+1}, v{vF+2}, v54
v_fmac_f32 v{vMM+1}, v{vF+3}, v55
v_lshlrev_b32 v46, 3, v{vL}""")
    exec_set(0x00010001, 0x00010001)
    pub_store(f"buffer_store_dwordx2 v[{vMM}:{vMM+1}], v46, {srd(rWS)}, s{sMLpub} offen")
    exec_all()
stamp(0)
vO = 28; vml = 44; vDy = 48
la, laok, la0 = lab("pa"), lab("paok"), lab("pa0")
def a_loads():
    A(f"buffer_load_dwordx2 v[{vml}:{vml+1}], v{vMLad}, {srd(rWS)}, s{sMLget} offen sc1")
    for s in range(4): A(f"buffer_load_dwordx4 {vq(vO+4*s)}, v{vVo}, {srd(rWS)}, s{sOget} offen offset:{1024*s} sc1")
las = lab("as")
A(f"s_cmp_lg_u32 s{sLAYER}, 0\ns_cbranch_scc1 {las}")
A(f"""
v_lshrrev_b32 v56, 2, v{vL}
v_and_b32 v57, 3, v{vL}
v_lshlrev_b32 v58, 4, v57
v_lshl_add_u32 v{vW2o}, v56, 10, v58
s_lshl_b32 s{sT2}, s{sg}, 19
s_lshl_b32 s3, s{sw}, 17
s_add_u32 s{sT2}, s{sT2}, s3
s_lshl_b32 s3, s{sj}, 6
s_add_u32 s{sT2}, s{sT2}, s3""")
if not INO:
    for n in range(WOEARLY, 8): dma(vW2o, rWO, sT2, sKm, 1024*n, n << 14, f"WO{n}", WPOL)
a_loads()
NX = 0
A(f"""
v_lshrrev_b32 v58, 1, v{vL}
v_mul_u32_u24 v{vW1o}, 3584, v58
v_and_b32 v58, 1, v{vL}
v_lshl_add_u32 v{vW1o}, v58, 4, v{vW1o}
v_and_b32 v56, 3, v56                     ; r
v_lshrrev_b32 v58, 4, v{vL}               ; q
v_lshlrev_b32 v57, 3, v57                 ; 8c
v_and_b32 v59, 1, v56
v_lshrrev_b32 v60, 1, v56
v_lshl_add_u32 v59, v60, 3, v59
v_lshl_add_u32 v59, v58, 5, v59
v_lshl_add_u32 v59, v59, 6, v57
v_add_u32 v{vTrO}, s{sKm}, v59
v_lshl_add_u32 v56, v58, 3, v56           ; 8q+r
v_lshl_add_u32 v58, v56, 5, v57
v_add_u32 v{vT1}, s{sKm}, v58
v_lshl_add_u32 v58, v56, 6, v57
s_and_b32 s3, s{sw}, 1
s_lshl_b32 s3, s3, 5
s_add_u32 s3, s3, {LW2}
v_add_u32 v{vT2}, s3, v58
v_mov_b32_dpp v{vSEL2}, v{vSEL} row_ror:8 {DPPF}
v_mov_b32_dpp v{vSEL2+1}, v{vSEL+1} row_ror:8 {DPPF}
v_mov_b32_dpp v{vSEL2+2}, v{vSEL+2} row_ror:8 {DPPF}
v_mov_b32_dpp v{vSEL2+3}, v{vSEL+3} row_ror:8 {DPPF}
s_waitcnt vmcnt({5+NX})""")
if PROF == 2: stamp(4)
if not INO: tr_reads(aWO, vTrO, 4, 2, 128, 32, 1024)
A(f"s_waitcnt lgkmcnt(0)\ns_branch {la0}")
A(f"{las}:")
if opt("sa", 4): A(f"s_sleep {opt('sa', 4)}")
A(f"{la}:")
a_loads()
A(f"{la0}:")
wc = [f"v_max_f32_dpp v57, v{vml}, v{vml} quad_perm:[1,0,3,2] {DPPF}",
      f"v_max_f32_dpp v57, v57, v57 quad_perm:[2,3,0,1] {DPPF}",
      "v_mov_b32 v58, v57", "v_permlane16_swap_b32 v57, v58", "v_max_f32 v57, v57, v58",
      "v_mov_b32 v58, v57", "v_permlane32_swap_b32 v57, v58", "v_max_f32 v57, v57, v58",
      f"v_sub_f32 v57, v{vml}, v57", "v_exp_f32 v57, v57", f"v_mul_f32 v58, v57, v{vml+1}",
      f"v_add_f32_dpp v58, v58, v58 quad_perm:[1,0,3,2] {DPPF}", f"v_add_f32_dpp v58, v58, v58 quad_perm:[2,3,0,1] {DPPF}",
      "v_mov_b32 v59, v58"]
A(f"s_waitcnt vmcnt(4)\nv_cmp_u_f32 vcc, v{vml}, v{vml+1}")
A(wc.pop(0))
A(f"s_cbranch_vccnz L_aretry")
A(wc.pop(0)); A(wc.pop(0))
for s in range(4):
    A(f"s_waitcnt vmcnt({3-s})")
    for t in range(2):
        c = "0" if s == 0 else vq(vDy+4*t)
        A(f"v_mfma_f32_16x16x32_bf16 {vq(vDy+4*t)}, {vq(vO+4*s)}, {aq(aWO+(t*4+s)*4)}, {c}")
        for _ in range(1 if s < 3 else 2):
            if wc: A(wc.pop(0))
while wc: A(wc.pop(0))
A(f"""
v_mul_f32_dpp v60, v57, v{vDy} quad_perm:[0,0,0,0] {DPPF}
s_nop 0
v_permlane16_swap_b32 v58, v59
v_mul_f32_dpp v61, v57, v{vDy+4} quad_perm:[0,0,0,0] {DPPF}
v_fmac_f32_dpp v60, v57, v{vDy+1} quad_perm:[1,1,1,1] {DPPF}
v_add_f32 v58, v58, v59
v_fmac_f32_dpp v61, v57, v{vDy+5} quad_perm:[1,1,1,1] {DPPF}
v_fmac_f32_dpp v60, v57, v{vDy+2} quad_perm:[2,2,2,2] {DPPF}
v_mov_b32 v59, v58
v_fmac_f32_dpp v61, v57, v{vDy+6} quad_perm:[2,2,2,2] {DPPF}
v_fmac_f32_dpp v60, v57, v{vDy+3} quad_perm:[3,3,3,3] {DPPF}
v_permlane32_swap_b32 v58, v59
v_fmac_f32_dpp v61, v57, v{vDy+7} quad_perm:[3,3,3,3] {DPPF}
v_add_f32 v58, v58, v59
v_rcp_f32 v58, v58
v_permlane32_swap_b32 v60, v61
v_add_f32 v60, v60, v61
v_mov_b32 v61, v60
v_permlane16_swap_b32 v60, v61
v_add_f32 v60, v60, v61
v_mul_f32 v60, v60, v58
v_cmp_u_f32 vcc, v60, v60
ds_write_b32 v{vREDA}, v60
s_cbranch_vccz {laok}
L_aretry:""")
if opt("adrain", 1): A("s_waitcnt vmcnt(0)")
if opt("alight", 0):
    lal = lab("al")
    A(f"s_cmp_lg_u32 s{sLAYER}, 0\ns_cbranch_scc1 {lal}x")
    A(f"{lal}:\ns_sub_u32 s{sBUD}, s{sBUD}, 1\ns_cbranch_scc1 {lal}g")
    if opt("abo", 0): A(f"s_sleep {opt('abo', 0)}")
    A(f"buffer_load_dwordx2 v[{vml}:{vml+1}], v{vMLad}, {srd(rWS)}, s{sMLget} offen sc1")
    A(f"""s_waitcnt vmcnt(0)
v_cmp_u_f32 vcc, v{vml}, v{vml+1}
s_cbranch_vccnz {lal}
s_branch {la}
{lal}g:
s_mov_b32 s{sBUD}, 0
{lal}x:""")
elif opt("abo", 0):
    with only("eq", sLAYER, 0): A(f"s_sleep {opt('abo', 0)}")
retry(la)
A(f"{laok}:")
stamp(1)
if W12PF == 1 and not IN12:
    with only("eq", sLAYER, 0): pf_w12(62, 63)
A("s_waitcnt lgkmcnt(0)\ns_barrier")
ly, ly2 = lab("y"), lab("y2")
A(f"s_cmp_lg_u32 s{sw}, 0\ns_cbranch_scc1 {ly}")
A(f"ds_read_b128 v[28:31], v{vRED} offset:{REDA-RED1}")
exec_set(0xffffffff, 0)
A(f"""
s_waitcnt lgkmcnt(0)
v_add_f32 v28, v28, v29
v_add_f32 v30, v30, v31
v_add_f32 v28, v28, v30""")
A("v_cvt_pk_bf16_f32 v28, v28, v28")
A(f"buffer_store_short v28, v{vPAIR}, {srd(rWS)}, s{sYpub} offen sc1")
exec_all()
A(f"s_branch {ly2}\n{ly}:")
if opt("wb", 0) == 2:
    with only("eq", sw, 3):
        with only("eq", sLAYER, 1): A("buffer_wbl2 sc1")
A(f"s_sleep 2\n{ly2}:")
stamp(2)
def gather(s0, s1, lp, so=None):
    lg, lok, lchk, lo = lab(lp), lab(lp + "ok"), lab(lp + "ck"), lab(lp + "o")
    A(f"{lg}:")
    A(f"buffer_load_dwordx4 v[32:35], v{vGad}, {srd(rWS)}, s{s0} offen sc1")
    A(f"buffer_load_dwordx4 v[36:39], v{vGad}, {srd(rWS)}, s{s1} offen sc1")
    if so is not None:
        A(f"s_cmp_eq_u32 s{sw}, s{skq}\ns_cbranch_scc1 {lo}")
    A(f"""s_waitcnt vmcnt(1)
v_mfma_f32_16x16x32_bf16 v[40:43], {vq(vSEL)}, v[32:35], {vq(vX)}
s_waitcnt vmcnt(0)
v_mfma_f32_16x16x32_bf16 v[40:43], {vq(vSEL)}, v[36:39], v[40:43]""")
    if so is not None:
        A(f"s_nop 6\ns_branch {lchk}\n{lo}:\ns_add_u32 s3, s{so}, 4096")
        A(f"buffer_load_dwordx4 v[44:47], v{vGad}, {srd(rWS)}, s{so} offen sc1")
        A(f"buffer_load_dwordx4 v[48:51], v{vGad}, {srd(rWS)}, s3 offen sc1")
        A(f"""s_waitcnt vmcnt(3)
v_mfma_f32_16x16x32_bf16 v[40:43], {vq(vSEL)}, v[32:35], {vq(vX)}
s_waitcnt vmcnt(2)
v_mfma_f32_16x16x32_bf16 v[40:43], {vq(vSEL)}, v[36:39], v[40:43]
s_waitcnt vmcnt(1)
v_mfma_f32_16x16x32_bf16 v[40:43], {vq(vSEL2)}, v[44:47], v[40:43]
s_waitcnt vmcnt(0)
v_mfma_f32_16x16x32_bf16 v[40:43], {vq(vSEL2)}, v[48:51], v[40:43]""")
    A(f"{lchk}:")
    A(f"v_cmp_u_f32 vcc, v40, v40\ns_cbranch_vccz {lok}")
    if opt("gsleep", 0): A(f"s_sleep {opt('gsleep', 0)}")
    retry(lg)
    A(f"{lok}:")
    A(f"v_cvt_pk_bf16_f32 v{vXP}, v40, v41\nv_cvt_pk_bf16_f32 v{vXP+1}, v42, v43")
def w12_burst():
    A(f"""
s_mul_i32 s{sT2}, s{sw}, {128*3584}
s_mul_i32 s3, s{sg}, 448
s_add_u32 s{sT2}, s{sT2}, s3
s_lshl_b32 s3, s{sjf}, 5
s_add_u32 s{sT2}, s{sT2}, s3""")
    for i in range(4): dma(vW1o, rW1, sT2, sKm, 8192 + 1024*i, i*32*3584, "W1", WPOL)
    A(f"""
s_mul_i32 s{sT2}, s{sg}, {224*1024}
s_lshl_b32 s3, s{sj}, 6
s_add_u32 s{sT2}, s{sT2}, s3
s_lshl_b32 s3, s{sw}, 14
s_add_u32 s{sT2}, s{sT2}, s3
s_lshl_b32 s{sT3}, s{sw}, 10""")
    if not opt("w2late", 2):
        for i in range(4): dma(vW2o, rW2, sT2, sT3, LW2 + 4096*i, i*64*1024, "W2", WPOL)
    return 8
l1, l2 = lab("b"), lab("b")
if CSPLIT:
    A(f"s_cmp_lg_u32 s{sCEN}, 0\ns_cbranch_scc1 L_cen2\nL_cen2_back:")
if IN12: A(f"s_sleep {SLEEP_B}")
else:
    A(f"s_cmp_lg_u32 s{sLAYER}, 0\ns_cbranch_scc1 {l1}")
    w12_burst()
    A(f"s_sleep {opt('sb0', 10)}\ns_branch {l2}\n{l1}:\ns_sleep {SLEEP_B}\n{l2}:")
gather(sYget, sYget1, "gb", so=sYo)
stamp(3)
NB = 0
W2L = opt("w2late", 2)
if W2L == 1:
    with only("eq", sLAYER, 0):
        for i in range(4): dma(vW2o, rW2, sT2, sT3, LW2 + 4096*i, i*64*1024, "W2", WPOL)
def w2_own():
    A(f"""
s_mul_i32 s{sT2}, s{sg}, {224*1024}
s_lshl_b32 s3, s{sj}, 6
s_add_u32 s{sT2}, s{sT2}, s3
s_and_b32 s3, s{sw}, 1
s_lshl_b32 s3, s3, 5
s_add_u32 s{sT2}, s{sT2}, s3
v_lshrrev_b32 v56, 1, v{vL}
v_and_b32 v57, 1, v{vL}
v_lshlrev_b32 v57, 4, v57
v_lshl_add_u32 v56, v56, 10, v57""")
    for i in range(7): dma(56, rW2, sT2, sKm, 16384 + 1024*i, i*32*1024, "W2", WPOL)
if W2L >= 2: NB = 63
if W2L == 2:
    with only("eq", sLAYER, 0):
        with only("ge", sw, 2): w2_own()
def w1_land():
    with only("eq", sLAYER, 0):
        A(f"s_waitcnt vmcnt({min(63, 4+NB)})")
        tr_reads(aW1, vT1, 4, 1, 1024, 0, 128, base=8192)
lb = lab("nof")
A(f"s_cmp_ge_u32 s{sjf}, 14")
xproc(aW1, 1, 0, 32, skip_label=lb, pre=None if IN12 else w1_land)
A(f"{lb}:\ns_waitcnt vmcnt({NB}) lgkmcnt(0)\ns_barrier")
if opt("clean", 0):
    with only("eq", sw, 1):
        for i in range(4): A(f"v_mov_b32 v{28+i}, -1")
        A(f"buffer_store_dwordx4 v[28:31], v{vVo}, {srd(rWS)}, s{sOclr} offen sc1")
        if opt("clean", 0) >= 2:
            A(f"""v_and_b32 v32, 15, v{vL}
v_lshlrev_b32 v32, 4, v32
s_lshl_b32 s3, s{sb}, 16
s_add_u32 s3, s3, s{sQpub}
s_add_u32 s3, s3, {QP}""")
            A(f"v_and_b32 v33, 16, v{vL}\nv_lshlrev_b32 v33, 6, v33\nv_add_u32 v32, v32, v33\ns_and_b32 s3, s3, 0xfffffbff")
            exec_set(0xffffffff, 0)
            A(f"buffer_store_dwordx4 v[28:31], v32, {srd(rWS)}, s3 offen sc1")
            exec_all()
lh = lab("h")
A(f"s_cmp_lg_u32 s{sw}, 0\ns_cbranch_scc1 {lh}\ns_cmp_ge_u32 s{sjf}, 14\ns_cbranch_scc1 {lh}")
ln_final(0, 32)
A(f"""
v_exp_f32 v29, v29
v_mul_f32 v28, v28, v41
v_add_f32 v29, 1.0, v29
v_rcp_f32 v29, v29
s_cmp_eq_u32 s{sFAST}, 0
v_mul_f32 v28, v28, v29
v_cvt_pk_bf16_f32 v28, v28, v28""")
pub_store(f"buffer_store_short v28, v{vPAIR}, {srd(rWS)}, s{sHpub} offen")
exec_all()
A(f"{lh}:")
if PROF != 2: stamp(4)
ld, ldok, ldsk = lab("pd"), lab("pdok"), lab("pdsk")
if Z1W:
    A(f"s_cmp_lg_u32 s{sw}, 2\ns_cbranch_scc1 {ldsk}")
    A(f"s_cmp_lg_u32 s{sLAYER}, 0\ns_cbranch_scc1 {ld}")
    tr_reads(aW2, vT2, 7, 1, 2048, 0, 256)
    for s in range(7): tr_reads(aW2b[s], vT2, 1, 1, 0, 0, 256, base=2048*s + 32)
    A("s_waitcnt lgkmcnt(0)")
    A(f"{ld}:")
    for s in range(7): A(f"buffer_load_dwordx4 {vq(28+4*s)}, v{vHad}, {srd(rWS)}, s{sHget} offen offset:{64*s} sc1")
    for s in range(7):
        A(f"s_waitcnt vmcnt({6-s})")
        A(f"v_mfma_f32_16x16x32_bf16 v[56:59], {aq(aW2+4*s)}, {vq(28+4*s)}, {'0' if s == 0 else 'v[56:59]'}")
        A(f"v_mfma_f32_16x16x32_bf16 v[60:63], {aq(aW2b[s])}, {vq(28+4*s)}, {'0' if s == 0 else 'v[60:63]'}")
    A(f"v_cmp_u_f32 vcc, v56, v56\nv_cvt_pk_bf16_f32 v56, v56, v57\nv_cvt_pk_bf16_f32 v57, v58, v59\ns_cbranch_vccz {ldok}")
    retry(ld)
    A(f"{ldok}:")
    exec_set(0x00f000f0, 0x00f000f0)
    A("v_cvt_pk_bf16_f32 v56, v60, v61\nv_cvt_pk_bf16_f32 v57, v62, v63")
    exec_set(0x00110011, 0x00110011)
    A(f"buffer_store_dwordx2 v[56:57], v{vZpub}, {srd(rWS)}, s{sZpub} offen sc1")
    exec_all()
else:
    A(f"s_cmp_lt_u32 s{sw}, 2\ns_cbranch_scc1 {ldsk}")
    if not IN12:
        lds_ = lab("ds")
        A(f"s_cmp_lg_u32 s{sLAYER}, 0\ns_cbranch_scc1 {lds_}")
        if W2L >= 2:
            if W2L == 3: w2_own()
            A("s_waitcnt vmcnt(0)")
            tr_reads(aW2, vT1, 7, 1, 1024, 0, 128, base=16384)
        else: tr_reads(aW2, vT2, 7, 1, 2048, 0, 256)
        A(f"s_waitcnt lgkmcnt(0)\ns_branch {ld}\n{lds_}:")
        if opt("sd", 6): A(f"s_sleep {opt('sd', 6)}")
    A(f"{ld}:")
    if opt("dmask", 1): exec_set(0x00010001, 0x00010001)
    for s in range(7): A(f"buffer_load_dwordx4 {vq(28+4*s)}, v{vHad}, {srd(rWS)}, s{sHget} offen offset:{64*s} sc1")
    for s in range(7):
        A(f"s_waitcnt vmcnt({6-s})")
        A(f"v_mfma_f32_16x16x32_bf16 v[56:59], {aq(aW2+4*s)}, {vq(28+4*s)}, {'0' if s == 0 else 'v[56:59]'}")
    A(f"v_cmp_u_f32 vcc, v56, v56\nv_cvt_pk_bf16_f32 v56, v56, v57\nv_cvt_pk_bf16_f32 v57, v58, v59\ns_cbranch_vccz {ldok}")
    retry(ld)
    A(f"{ldok}:")
    exec_set(0x00010001, 0x00010001)
    A(f"buffer_store_dwordx2 v[56:57], v{vZpub}, {srd(rWS)}, s{sZpub} offen sc1")
    exec_all()
A(f"{ldsk}:")
stamp(5)
A(f"s_cmp_lg_u32 s{sLAYER}, 0\ns_cbranch_scc1 L_final")
A("s_barrier")
A(f"s_sleep {SLEEP_E}")
gather(sZget, sZget1, "ge", so=sZo)
stamp(6)
if opt("q2", 1):
    with only("eq", sw, f"s{skq}"): A(f"ds_write_b64 v{vXQw}, v[{vXP}:{vXP+1}]")
    A(f"v_accvgpr_read_b32 v57, a{aXQr}")
    A(f"s_add_u32 s{rWS}, s{rWS}, {LS}\ns_addc_u32 s{rWS+1}, s{rWS+1}, 0\ns_mov_b32 s{rWS+2}, {WS_BYTES-LS:#x}\ns_mov_b32 s{sLAYER}, 1")
    A(f"s_lshl_b32 s3, s{sw}, 6\ns_add_u32 s3, s3, s{sQpub}\ns_add_u32 s3, s3, {QP}")
    A("s_waitcnt lgkmcnt(0)\ns_barrier")
    for s_ in range(4): A(f"ds_read_b128 {vq(vXA+4*s_)}, v57 offset:{64*s_}")
    unpack_x()
    so = stat_ops()
    for _ in range(7): A(so.pop(0))
    for s_ in range(4):
        A(f"s_waitcnt lgkmcnt({0 if PROF else 3-s_})")
        A(f"v_mfma_f32_16x16x32_bf16 {vq(vG0)}, {vq(vXA+4*s_)}, {aq(aWQ+4*s_)}, {'0' if s_ == 0 else vq(vG0)}")
    for _ in range(4): A(so.pop(0))
    exec_set(0xffffffff, 0)
    pub_store(f"buffer_store_dword v{vG0}, v{vQP}, {srd(rWS)}, s3 offen")
    exec_all()
    if PROF: stamp(7)
    for i in so: A(i)
    stat_write(0)
    A(f"v_mov_b32 v58, {ST0}\ns_waitcnt lgkmcnt(0)\ns_barrier")
    A(f"ds_read_b128 v[52:55], v58\nds_read_b128 v[56:59], v58 offset:16")
    q_addr()
    q_loads(44, sQget)
    A(f"""s_waitcnt lgkmcnt(0)
v_add_f32 v52, v52, v53
v_add_f32 v54, v54, v55
v_add_f32 v56, v56, v57
v_add_f32 v58, v58, v59
v_add_f32 v52, v52, v54
v_add_f32 v56, v56, v58
v_mul_f32 v{vMean}, {f2u(1.0/512):#x}, v52
v_mul_f32 v56, {f2u(1.0/512):#x}, v56
v_fma_f32 v56, -v{vMean}, v{vMean}, v56
v_max_f32 v56, 0, v56
v_add_f32 v56, {f2u(1e-5):#x}, v56
v_rsq_f32 v56, v56
v_mul_f32 v{vRs}, {f2u(QSCALE):#x}, v56""")
else:
    A(f"s_add_u32 s{rWS}, s{rWS}, {LS}\ns_addc_u32 s{rWS+1}, s{rWS+1}, 0\ns_mov_b32 s{rWS+2}, {WS_BYTES-LS:#x}\ns_mov_b32 s{sLAYER}, 1")
    qproj(False)
A(f"s_mov_b32 s{skq}, 99")
if not opt("q2", 1):
    stamp(7)
    q_addr()
A(f"v_accvgpr_read_b32 v56, a{aCS}\nv_accvgpr_read_b32 v57, a{aCS+1}\nv_accvgpr_read_b32 v59, a{aQBw}")
lg, lgok = lab("pg"), lab("pgok")
lg0 = lab("pg0")
if opt("q2", 1): A(f"s_branch {lg0}")
elif opt("sg", 2): A(f"s_sleep {opt('sg', 2)}")
A(f"{lg}:")
q_loads(44, sQget)
A(f"{lg0}:\ns_waitcnt vmcnt(0)")
sum4(44)
A(f"v_cmp_u_f32 vcc, v44, v45\ns_cbranch_vccz {lgok}")
retry(lg)
A(f"{lgok}:")
stamp(8)
q_finish(56)
if opt("wb", 0):
    with only("eq", sw, 3): A("buffer_wbl2 sc1")
A("s_waitcnt lgkmcnt(0)")
if PROF in (3, 4): stamp(1)
qk()
if PROF in (3, 4): stamp(2)
softmax()
if PROF in (3, 4): stamp(3)
order = [((jd + k) & 3, jd) for k in range(4) for jd in range(4)] + [((jd + k) & 3, jd) for jd in range(4, 8) for k in range(4)]
ls = lsum_ops(); fw = fw_ops()
sh = shifts(1) + shifts(2) + shifts(3)
slow = lambda x: "_dpp" in x or "permlane" in x or "v_exp" in x
ex = ls[:7] + ["s_waitcnt lgkmcnt(0)", "s_barrier", fw[0]] + ls[7:] + ["s_waitcnt lgkmcnt(2)" if not PROF else "s_waitcnt lgkmcnt(0)"] + fw[2:4]
post = {1: merge(1), 2: merge(2), 3: merge(3) + [owrite(0)], 5: merge(5), 6: merge(6), 7: merge(7) + [owrite(1)]}
seen = set(); cnt = {}; done = {}; ready = []
for i, (t, jd) in enumerate(order):
    pv_mfma(t, jd, jd not in seen); seen.add(jd)
    cnt[jd] = cnt.get(jd, 0) + 1
    if cnt[jd] == 4 and jd in post: done[jd] = len(A.L)
    for j2, p2 in list(done.items()):
        if sum(x.states() for x in A.L[p2:]) >= 8:
            ready += post[j2]; del done[j2]
    if sh:
        A(sh.pop(0))
        if i % 4 == 3:
            A(ex.pop(0)); A(ex.pop(0))
        continue
    budget = 2
    while budget > 0 and (ex or ready):
        q_ = ex if (ex and (i < 20 or not ready)) else ready
        x = q_.pop(0); A(x); budget -= 2 if slow(x) else 1
while ex: A(ex.pop(0))
for i in ready: A(i)
for j2 in done:
    for i in post[j2]: A(i)
for i in fw[4:]: A(i)
stamp(9)
flush_stamps(16, 10)
A("s_branch L_comb")
A("L_final:")
if opt("wb", 0) == 1:
    with only("eq", sw, 0): A("buffer_wbl2 sc1")
A(f"s_or_b32 s3, s{sg}, s{sj}\ns_cmp_lg_u32 s3, 0\ns_cbranch_scc1 L_done")
if opt("fbar", 1): A("s_barrier")
A(f"s_sleep {SLEEP_F}")
gather(sZget, sZget1, "gf")
A(f"""
s_lshl_b32 s3, s{sb}, 10
s_lshl_b32 s{sT0}, s{sw}, 8
s_add_u32 s3, s3, s{sT0}
s_lshl_b32 s{sT0}, s{sw}, 9
s_add_u32 s{sT0}, s{sT0}, {XB}
s_sub_u32 s3, s3, s{sT0}
v_add_u32 v30, s3, v{vXBw}""")
exec_set(0xffffffff, 0)
A(f"global_store_dwordx2 v30, v[{vXP}:{vXP+1}], {sp(sOUT)}")
with only("eq", sb, 0):
    A(f"v_mov_b32 v30, {EPO}\nv_mov_b32 v31, s{sTAG0}")
    exec_set(1, 0)
    A(f"global_store_dword v30, v31, {sp(sWS)} sc1")
exec_all()
if CSPLIT:
    A("s_branch L_done\nL_cen2:")
    cen_loads(True)
    A("s_waitcnt vmcnt(0)")
    for i in range(4):
        A(f"v_xor_b32 v{32+2*i}, s{sTAG0}, v{32+2*i}\nv_xor_b32 v{33+2*i}, s{sTAG1}, v{33+2*i}")
    A(f"""
v_or3_b32 v40, v33, v35, v37
v_or3_b32 v42, v32, v34, v36
v_or_b32 v40, v40, v39
v_and_b32 v40, -16, v40
v_or3_b32 v40, v40, v42, v38
v_cmp_ne_u32 vcc, 0, v40
s_cbranch_vccz L_cen2_ok""")
    retry("L_cen2")
    A(f"L_cen2_ok:\ns_mov_b32 s{sCEN}, 0\ns_branch L_cen2_back")
A("L_done:")
if PROF:
    stamp(6)
    flush_stamps(32, 7)
    A(f"""
s_lshl_b32 s3, s2, 2
s_add_u32 s3, s3, s{sw}
s_lshl_b32 s3, s3, 8
s_add_u32 s3, s3, {PROF_OFF}
v_lshlrev_b32 v30, 2, v{vL}
v_add_u32 v30, s3, v30
global_store_dword v30, v{vPROF}, {sp(sWS)}""")
A("L_end:\ns_endpgm")
A.L.extend(OOL)
A.raw('.section .rodata,"a"'); A.raw(".p2align 6"); A.raw(f".amdhsa_kernel {NAME}_kernel")
for l in ["next_free_vgpr 512", "next_free_sgpr 102", "accum_offset 256", "group_segment_fixed_size 0", "kernarg_size 88",
          "user_sgpr_count 2", "user_sgpr_kernarg_segment_ptr 1", "system_sgpr_workgroup_id_x 1"]:
    A.raw("  .amdhsa_" + l)
A.raw(".end_amdhsa_kernel")
text = "\n".join(H) + "\n" + A.text()
if opt("al", 3):
    from align8 import align
    text, wd, np_ = align(text, None, opt("al", 3))
    print("aligned: widened", wd, "nops", np_, file=sys.stderr)
open(out, "w").write(text)
print("instrs", len(A.L), "nops inserted", A.nopcount, file=sys.stderr)
```

```python
import sys, math, struct
sys.path.insert(0, "gen")
from asmlib import Asm

NAME = "interleave_layers__gqa_block_cached__dense_activation_silu__decode"
out = sys.argv[1]
O = dict(kv.split("=") for kv in sys.argv[2:])
def opt(k, d): return type(d)(O.get(k, d))
PROF = opt("prof", 0); ABC = [int(x) for x in opt("abc", "0,13,20").split(",")]
SLEEP_B = opt("sb", 14); SLEEP_E = opt("se", 16); SLEEP_F = opt("sf", 7)
FORCE_SLOW = opt("slow", 0); EXP = opt("exp", "")
POL = {"nt": " nt", "none": "", "sc1": " sc1"}
PFO = POL[opt("pfo", "none")]; PF12 = POL[opt("pf12", "none")]; PFQ = POL[opt("pfq", "none")]; WPOL = POL[opt("wpol", "none")]
CW = opt("cw", 3); DROP = opt("drop", "").split(","); CLRP = " sc1" + POL[opt("clrpol", "none")]
W12PF = opt("w12pf", 1)
INO = opt("ino", 0); IN12 = opt("in12", 0)
WPOS0 = opt("wpos0", 20); WSTEP = opt("wstep", 2); MBG = opt("mbg", 1)
def f2u(x): return struct.unpack("<I", struct.pack("<f", x))[0]
LOG2E = 1.4426950408889634
QSCALE = LOG2E / math.sqrt(128.0)

ML, HS, YS, ZS, OS = 16384, 24576, 32768, 49152, 65536
QP = 65536 + 262144
LS = QP + 131072
EPO = 2 * LS; FLG = EPO + 1024; CS = FLG + 3072
WS_BYTES = CS + 65536
PROF_OFF = 16 << 20
LWQ = 0; KST = 16384; LW2 = LWQ
XB = KST + 4 * 32768; RED0 = XB + 2048; RED1 = RED0 + 1024; REDA = RED0 + 2048; ST0 = RED0 + 2560; MB = RED0 + 2688; OB = RED0 + 3072
QB = OB; XQ = RED0
LDS_BYTES = OB + 8192
assert LDS_BYTES <= 163840
sX, sK, sV, sWQ, sWO, sW1, sW2, sOUT, sWS = 4, 6, 8, 10, 12, 16, 18, 20, 24
rK, rV, rWQ, rWO, rW1, rW2, rWS = 28, 32, 36, 40, 44, 48, 52
sg, sb, sj, sw, sFAST, sLAYER, sBUD = 56, 57, 58, 59, 60, 61, 62
sSELLO, sSELHI = 63, 64
sQpub, sQget, sMLpub, sMLget, sHpub, sHget, sYpub, sYget, sZpub, sZget, sOpub, sOget = range(65, 77)
sYget1, sZget1 = 77, 78
sT0, sT1, sT2, sT3 = 26, 27, 14, 15
sVb, sKm, sOclr = 79, 80, 81
sTAG0, sTAG1 = 22, 23
sjf, sU, skq = 98, 99, 21 + 80
sCEN = 11
sYo, sZo = 4, 5
sSTAMP = 82
def srd(r): return f"s[{r}:{r+3}]"
def sp(r): return f"s[{r}:{r+1}]"
vL, vXBw, vXBr, vRED, vREDA, vQP, vMLad, vGad, vHad, vQad, vPAIR, vOBw = range(0, 12)
vSEL = 12; vX = 16
vOBr, vOpub, vMBw, vMBr, vST, vZpub = 20, 21, 22, 23, 24, 25
vVo = 26; vXQw = 27
aCS = 236; aXQr = 238; aQBw = 239
vQ = 28; vD0, vD1 = 44, 48; vROT = 52; vACC = 64; vR = 96
vPROF = 255
vW1o, vW2o, vT1, vT2, vTrO = 224, 225, 226, 227, 228
vSEL2 = 232
def vq(r, n=4): return f"v[{r}:{r+n-1}]"
def aq(r, n=4): return f"a[{r}:{r+n-1}]"
aK, aWQ, aWO, aW1, aW2 = 0, 128, 160, 192, 208
DUMMY = "a[252:255]"
Z1W = opt("z1w", 0)
aW2b = [144, 148, 152, 156, 240, 244, 248]

A = Asm()
uid = [0]
def lab(p):
    uid[0] += 1
    return f"L_{p}{uid[0]}"
def exec_set(lo, hi): A(f"s_mov_b32 exec_lo, {lo:#x}\ns_mov_b32 exec_hi, {hi:#x}")
def exec_all(): A("s_mov_b64 exec, -1")
def sreg(i): return sSTAMP + 2*i if i < 8 else {8: 0, 9: 6}[i]
def stamp(i):
    if PROF: A(f"s_mem{'time' if PROF >= 4 else 'realtime'} s[{sreg(i)}:{sreg(i)+1}]")
def flush_stamps(base, n):
    if not PROF: return
    A("s_waitcnt lgkmcnt(0)")
    for i in range(n): A(f"v_writelane_b32 v{vPROF}, s{sreg(i)}, {base+i}")
def retry(loop):
    A(f"s_sub_u32 s{sBUD}, s{sBUD}, 1\ns_cbranch_scc0 {loop}\ns_mov_b32 s{sBUD}, 0")
OOL = []
def pub_store(ins):
    from asmlib import Ins
    a, b = lab("ps"), lab("pe")
    A(f"s_cmp_eq_u32 s{sFAST}, 0\ns_cbranch_scc1 {a}")
    A(ins, cond=True)
    A(f"{b}:")
    OOL.extend([Ins(f"{a}:"), Ins("s_nop 7"), Ins(ins + " sc1"), Ins(f"s_branch {b}")])
class only:
    def __init__(self, cc, reg, val):
        self.neg = {"eq": "lg", "lg": "eq", "lt": "ge", "ge": "lt"}[cc]; self.reg = reg; self.val = val
    def __enter__(self):
        self.l = lab("sk")
        A(f"s_cmp_{self.neg}_u32 s{self.reg}, {self.val}\ns_cbranch_scc1 {self.l}")
    def __exit__(self, *a): A(f"{self.l}:")
class ool:
    def __init__(self, cc, reg, val): self.cc = cc; self.reg = reg; self.val = val
    def __enter__(self):
        self.l = lab("oo"); self.b = lab("ob")
        A(f"s_cmp_{self.cc}_u32 s{self.reg}, {self.val}\ns_cbranch_scc1 {self.l}")
        self.save = A.L; A.L = []
        A(f"{self.l}:\ns_nop 7")
    def __exit__(self, *a):
        A(f"s_nop 4\ns_branch {self.b}")
        OOL.extend(A.L); A.L = self.save
        A(f"{self.b}:")
def mksrd(r, p, nbytes):
    A(f"s_mov_b32 s{r}, s{p}\ns_and_b32 s{r+1}, s{p+1}, 0xffff\ns_mov_b32 s{r+2}, {nbytes:#x}\ns_mov_b32 s{r+3}, 0x20000")
def dma(vo, r, sbase, m0reg, m0add, soffadd, tag, pol, cond=False):
    A(f"s_add_u32 m0, s{m0reg}, {m0add}\ns_add_u32 s3, s{sbase}, {soffadd}")
    A(f"buffer_load_dwordx4 v{vo}, {srd(r)}, s3 offen{pol} lds", tag=tag, cond=cond)
def tr_reads(adst, vbase, steps, tiles, sstep, tstep, second, base=0):
    for t in range(tiles):
        for s in range(steps):
            d = adst + (t*steps + s)*4
            A(f"ds_read_b64_tr_b16 a[{d}:{d+1}], v{vbase} offset:{base + s*sstep + t*tstep}")
            A(f"ds_read_b64_tr_b16 a[{d+2}:{d+3}], v{vbase} offset:{base + s*sstep + t*tstep + second}")
def pack_pairs(v, t):
    A(f"v_mov_b32_dpp v{t}, v{v} quad_perm:[1,0,3,2] row_mask:0xf bank_mask:0xf\nv_cvt_pk_bf16_f32 v{v}, v{v}, v{t}")
DPPF = "row_mask:0xf bank_mask:0xf"

hdr = open(f"cdna_kernels/{NAME}.s.ref").read().split("\n")
H = [l for l in hdr if l.startswith(";") and "@launch" not in l and not l.startswith("; Override") and not l.startswith("; grid=ceil")]
H.append(f"; @launch grid=(256,1,1) block=(256,1,1) lds={LDS_BYTES}")
A.raw('.amdgcn_target "amdgcn-amd-amdhsa--gfx950"')
A.raw(".text"); A.raw(f".globl {NAME}_kernel"); A.raw(".p2align 8"); A.raw(f".type {NAME}_kernel,@function")
A.raw(f"{NAME}_kernel:")
for t in """One persistent workgroup per CU (256 x 4 waves, 512 registers per lane). Workgroup (g = id&7, b, j) owns 512 keys of
kv head g / batch b; K (AGPRs, MFMA A layout via LDS) and V (VGPRs, transposed with v_perm) are read from HBM once and
stay in registers for both layers. Between the phases small vectors are handed over through d_ws: slots are first set
to an all-ones (NaN) pattern, a census of tagged flags (tag = epoch word found in d_ws + 1) proves that, and a consumer
accepts a slot once no NaN pattern is left. Hand-offs inside a kv-head group use plain stores when the census shows the
whole group on one XCD (write-through stores otherwise); all hand-off loads bypass L1. Every wait is bounded.
The s_sleep in front of a first look at a slot keeps readers off lines that are still being written.""".split("\n"): A.raw("; " + t)

tn, tq = 31, 32
vKo = vR; vKr = vR + 4; vWa = vR + 8; vTa = vR + 9
vEP = vR + 10; vXr = vR + 12; vX0 = vR + 16; vX1 = vR + 20; vXA0 = vACC
stamp(0)
A(f"""
s_cmp_ge_u32 s2, 256
s_cbranch_scc1 L_end
s_load_dwordx16 s[4:19], s[0:1], 0
s_load_dwordx2 s[20:21], s[0:1], 64
s_load_dwordx2 s[24:25], s[0:1], 80
v_lshrrev_b32 v30, 6, v0
v_and_b32 v{vL}, 63, v0
s_and_b32 s{sg}, s2, 7
v_readfirstlane_b32 s{sw}, v30
s_lshr_b32 s{sU}, s2, 3               ; jj
s_lshr_b32 s{sb}, s{sU}, 4
s_and_b32 s{sj}, s{sU}, 15
s_and_b32 s3, s{sj}, 6
s_cmp_eq_u32 s3, 6
s_cselect_b32 s3, 8, 0
s_xor_b32 s{sjf}, s{sj}, s3
v_and_b32 v{tn}, 15, v{vL}
v_lshrrev_b32 v{tq}, 4, v{vL}
s_mul_i32 s{sT0}, s{sU}, {ABC[0]}
s_mul_i32 s3, s{sw}, {ABC[1]}
s_add_u32 s{sT0}, s{sT0}, s3
s_mul_i32 s3, s{sg}, {ABC[2]}
s_add_u32 s{sT0}, s{sT0}, s3
s_and_b32 s{sT0}, s{sT0}, 31      ; r
s_lshl_b32 s{sT1}, s{sb}, 3
s_add_u32 s{sT1}, s{sT1}, s{sg}   ; bg
s_lshl_b32 s{sVb}, s{sT1}, 21
s_lshl_b32 s3, s{sj}, 17
s_add_u32 s{sVb}, s{sVb}, s3
s_lshl_b32 s3, s{sw}, 15
s_add_u32 s{sVb}, s{sVb}, s3
s_add_u32 s{sKm}, s3, {KST}
s_lshl_b32 s3, s{sT0}, 10
s_add_u32 s{sVb}, s{sVb}, s3
v_lshlrev_b32 v{vVo}, 4, v{vL}
v_mov_b32 v{vKo}, v{vVo}
v_xor_b32 v{vKo+1}, 64, v{vVo}
v_xor_b32 v{vKo+2}, 128, v{vVo}
v_xor_b32 v{vKo+3}, 192, v{vVo}
v_lshrrev_b32 v35, 3, v{vL}
v_and_b32 v36, 7, v{vL}
v_lshlrev_b32 v36, 4, v36
v_lshl_add_u32 v{vWa}, v35, 13, v36
s_and_b32 s{sT1}, s{sU}, 3            ; kq
s_lshl_b32 s{sBUD}, s{sT1}, 20
s_lshl_b32 s3, s{sw}, 18
s_add_u32 s{sBUD}, s{sBUD}, s3
s_lshl_b32 s3, s{sg}, 10
s_add_u32 s{sBUD}, s{sBUD}, s3
s_lshr_b32 s{sT0}, s{sU}, 2           ; cb
s_lshl_b32 s3, s{sT0}, 7
s_add_u32 s{sBUD}, s{sBUD}, s3
s_lshl_b32 s{sLAYER}, s{sw}, 12
s_mov_b32 s{skq}, s{sT1}
s_lshl_b32 s{sQpub}, s{sg}, 13
s_lshl_b32 s3, s{sT0}, 8
s_add_u32 s{sQpub}, s{sQpub}, s3
s_lshl_b32 s3, s{sT1}, 11
s_add_u32 s{sQpub}, s{sQpub}, s3
; x addresses
v_and_b32 v33, 1, v{tq}
v_lshlrev_b32 v33, 3, v33
v_lshl_add_u32 v33, v{tn}, 4, v33      ; 16n+8(q&1)
s_lshl_b32 s3, s{sb}, 10
s_lshl_b32 s{sT0}, s{sw}, 8
s_add_u32 s3, s3, s{sT0}
v_add_u32 v34, s3, v33
v_lshrrev_b32 v35, 5, v{vL}
v_lshlrev_b32 v35, 10, v35
v_xor_b32 v34, v34, v35
v_mov_b32 v37, {EPO}
s_lshl_b32 s{sU}, s{sU}, 2
s_add_u32 s{sU}, s{sU}, s{sw}          ; u = jj*4+w
s_waitcnt lgkmcnt(0)
""")
def scalars():
    A(f"""
s_mov_b32 s{sSELLO}, 0x05040100
s_mov_b32 s{sSELHI}, 0x07060302
s_lshl_b32 s{sT1}, s{sg}, 1
s_add_u32 s{sT1}, s{sT1}, s{sb}          ; gb
s_lshl_b32 s{sQget}, s{sb}, 3
s_add_u32 s{sQget}, s{sQget}, s{sg}
s_lshl_b32 s{sQget}, s{sQget}, 13
s_lshl_b32 s3, s{sw}, 9
s_add_u32 s{sQget}, s{sQget}, s3
s_add_u32 s{sQget}, s{sQget}, {QP}
s_lshl_b32 s{sMLget}, s{sT1}, 9
s_add_u32 s{sHget}, s{sMLget}, {HS}
s_add_u32 s{sMLget}, s{sMLget}, {ML}
s_lshl_b32 s3, s{sj}, 5
s_add_u32 s{sT2}, s{sMLget}, s3
s_lshl_b32 s3, s{sjf}, 5
s_add_u32 s{sHpub}, s{sHget}, s3
s_lshl_b32 s3, s{sj}, 3
s_add_u32 s{sMLpub}, s{sMLget}, s3
s_lshl_b32 s3, s{sw}, 7
s_add_u32 s{sMLget}, s{sMLget}, s3
s_lshl_b32 s{sOget}, s{sT1}, 14
s_add_u32 s{sOget}, s{sOget}, {OS}
s_lshl_b32 s3, s{sj}, 10
s_add_u32 s{sOclr}, s{sOget}, s3
s_lshl_b32 s3, s{sj}, 4
s_add_u32 s{sOpub}, s{sOget}, s3
s_lshl_b32 s3, s{sw}, 10
s_add_u32 s{sOpub}, s{sOpub}, s3
s_lshl_b32 s3, s{sw}, 12
s_add_u32 s{sOget}, s{sOget}, s3
s_lshl_b32 s{sYget}, s{sb}, 13
s_add_u32 s{sYget}, s{sYget}, {YS}
s_add_u32 s{sYget1}, s{sYget}, 4096
s_add_u32 s{sZget}, s{sYget}, {ZS-YS}
s_add_u32 s{sZget1}, s{sZget}, 4096
s_lshl_b32 s3, s{sg}, 10
s_add_u32 s{sYpub}, s{sYget}, s3
s_lshl_b32 s3, s{sj}, 6
s_add_u32 s{sYpub}, s{sYpub}, s3
s_add_u32 s{sZpub}, s{sYpub}, {ZS-YS}
""")
def clears():
    A(f"""
v_mul_u32_u24 v47, {LS}, v{tq}
v_mov_b32 v45, s{sYpub}
v_mov_b32 v46, s{sT2}
v_subrev_u32 v46, 64, v46
v_cmp_le_u32 vcc, 4, v{tn}
v_cndmask_b32 v45, v45, v46, vcc
v_mov_b32 v46, s{sHpub}
v_subrev_u32 v46, 96, v46
v_cmp_le_u32 vcc, 6, v{tn}
v_cndmask_b32 v45, v45, v46, vcc
v_mov_b32 v46, s{sYpub}
v_subrev_u32 v46, 128, v46
v_cmp_le_u32 vcc, 8, v{tn}
v_cndmask_b32 v45, v45, v46, vcc
v_mov_b32 v46, s{sZpub}
v_subrev_u32 v46, 192, v46
v_cmp_le_u32 vcc, 12, v{tn}
v_cndmask_b32 v45, v45, v46, vcc
v_lshl_add_u32 v45, v{tn}, 4, v45
v_add_u32 v45, v45, v47
s_add_u32 s3, s{sQpub}, {CS}
v_lshlrev_b32 v46, 4, v{tn}
v_add_u32 v47, s3, v46
v_cmp_le_u32 vcc, 32, v{vL}
v_cndmask_b32 v45, v45, v47, vcc
v_and_b32 v47, 1, v{tq}
v_lshl_add_u32 v46, v47, 16, v46
v_lshrrev_b32 v47, 1, v{tq}
v_mul_u32_u24 v47, {LS}, v47
v_add_u32 v46, v46, v47
s_add_u32 s{sT2}, s{sQpub}, {QP}
v_mov_b32 v48, -1
v_mov_b32 v49, -1
v_mov_b32 v50, -1
v_mov_b32 v51, -1
s_add_u32 s3, s{sOclr}, {LS}
""")
    exec_set(0xffffffff, 0xffff)
    A(f"buffer_store_dwordx4 v[48:51], v45, {srd(rWS)}, 0 offen{CLRP}", cond=True)
    exec_all()
    A(f"buffer_store_dwordx4 v[48:51], v46, {srd(rWS)}, s{sT2} offen{CLRP}", cond=True)
    A(f"buffer_store_dwordx4 v[48:51], v{vVo}, {srd(rWS)}, s{sOclr} offen{CLRP}", cond=True)
    A(f"buffer_store_dwordx4 v[48:51], v{vVo}, {srd(rWS)}, s3 offen{CLRP}", tag="clr", cond=True)
def tags():
    A(f"""
v_readfirstlane_b32 s{sTAG0}, v{vEP}
v_readfirstlane_b32 s{sTAG1}, v{vEP+1}
s_add_u32 s{sTAG0}, s{sTAG0}, 1
s_andn2_b32 s{sTAG1}, s{sTAG1}, 15""")
def flag():
    with (ool if opt("ool", 0) else only)("eq", sw, CW):
        A.vwait("clr")
        tags()
        A(f"""
s_getreg_b32 s3, hwreg(HW_REG_XCC_ID, 0, 4)
s_or_b32 s3, s3, s{sTAG1}
v_mov_b32 v46, s{sTAG0}
v_mov_b32 v47, s3
s_lshl_b32 s3, s{sb}, 3
s_add_u32 s3, s3, s{sg}
s_lshl_b32 s3, s3, 4
s_add_u32 s3, s3, s{sj}
s_lshl_b32 s3, s3, 3
s_add_u32 s3, s3, {FLG}
v_mov_b32 v45, 0""")
        exec_set(1, 0)
        A(f"buffer_store_dwordx2 v[46:47], v45, {srd(rWS)}, s3 offen sc1", cond=True)
        exec_all()
def kdma(n):
    A(f"s_add_u32 m0, s{sKm}, {n*1024}\ns_xor_b32 s{sT0}, s{sVb}, {n*1024}")
    A(f"buffer_load_dwordx4 v{vKo+(n&3)}, {srd(rK)}, s{sT0} offen{POL[opt('kvpol','nt')]} lds", tag=f"K{n}")
def kread(k):
    A.vwait(f"K{4*k+3}")
    for s in range(4): A(f"ds_read_b128 {aq(aK+16*k+4*s)}, v{vKr+s} offset:{k*4096}")
def vload(n):
    A(f"s_xor_b32 s{sT1}, s{sVb}, {n*1024}")
    A(f"buffer_load_dwordx4 {vq(vR+32+4*n)}, v{vVo}, {srd(rV)}, s{sT1} offen{POL[opt('kvpol','nt')]}", tag=f"V{n}")
base = [("K", n) for n in range(32)] + [("V", n) for n in range(32)]
wl = []
if IN12: wl += [("W1", i) for i in range(4)] + [("W2", i) for i in range(4)]
if INO: wl = [("WO", i) for i in range(8)] + wl if opt("worder", 0) == 0 else wl + [("WO", i) for i in range(8)]
pend = []
for kind, n in base:
    pend.append((kind, n))
    pos = n if kind == "K" else 32 + n
    if wl and pos >= WPOS0 and (pos - WPOS0) % WSTEP == 0:
        pend.append(wl.pop(0)); assert pos < 32 + 8*MBG + 7
assert not wl
kr = [0]; allow_kread = [False]; wfirst = [True]
THR = opt("thr", 0); THR0 = opt("thr0", 16); sXC = 19
sWOb, sW1b, sW2b = 8, 9, 10
def wdma(kind, n):
    if "w" in DROP:
        if opt("fakew", 0):
            A(f"s_lshl_b32 s3, s{sU}, 12\ns_lshl_b32 s{sWOb}, s{sg}, 19\ns_add_u32 s{sWOb}, s{sWOb}, s3")
            fk = [("WO", i) for i in range(4)] + [("W1", 0), ("W1", 1), ("W2", 0), ("W2", 1)]
            if kind == "WO" and n < 4: A(f"buffer_load_dwordx4 {DUMMY}, v{vVo}, {srd(rWO)}, s{sWOb} offen offset:{1024*n} nt")
            if kind == "W1":
                A(f"s_lshl_b32 s3, s2, 2\ns_add_u32 s3, s3, s{sw}\ns_mul_i32 s3, s3, 1792")
                if n < 2: A(f"buffer_load_dwordx4 {DUMMY}, v{vVo}, {srd(rW1)}, s3 offen offset:{768*n} nt")
                else: A(f"buffer_load_dwordx4 {DUMMY}, v{vVo}, {srd(rW2)}, s3 offen offset:{768*(n-2)} nt")
        return
    if wfirst[0]:
        wfirst[0] = False
        assert kr[0] >= 4
        A(f"""s_waitcnt lgkmcnt(0)
v_lshrrev_b32 v111, 2, v{vL}
v_and_b32 v112, 3, v{vL}
v_lshlrev_b32 v112, 4, v112
v_lshl_add_u32 v111, v111, 10, v112
v_lshrrev_b32 v112, 1, v{vL}
v_mul_u32_u24 v112, 3584, v112
v_and_b32 v113, 1, v{vL}
v_lshl_add_u32 v112, v113, 4, v112
s_lshl_b32 s{sWOb}, s{sg}, 19
s_lshl_b32 s3, s{sw}, 17
s_add_u32 s{sWOb}, s{sWOb}, s3
s_lshl_b32 s3, s{sj}, 6
s_add_u32 s{sWOb}, s{sWOb}, s3
s_mul_i32 s{sW2b}, s{sg}, {224*1024}
s_add_u32 s{sW2b}, s{sW2b}, s3
s_lshl_b32 s3, s{sw}, 14
s_add_u32 s{sW2b}, s{sW2b}, s3
s_mul_i32 s{sW1b}, s{sw}, {128*3584}
s_mul_i32 s3, s{sg}, 448
s_add_u32 s{sW1b}, s{sW1b}, s3
s_lshl_b32 s3, s{sjf}, 5
s_add_u32 s{sW1b}, s{sW1b}, s3""")
    if kind == "WO": dma(111, rWO, sWOb, sKm, 1024*n, n << 14, f"WO{n}", " nt")
    elif kind == "W1":
        with only("lt", sjf, 14): dma(112, rW1, sW1b, sKm, 8192 + 1024*n, n*32*3584, "W1", " nt", cond=True)
    elif n < 3: dma(111, rW2, sW2b, sKm, 12288 + 1024*n, n*64*1024, "W2", " nt")
    else:
        with only("lt", sw, 2): dma(111, rW2, sW2b, sKm, 12288 + 1024*n, n*64*1024, "W2", " nt", cond=True)
def stream(k=1, upto=None):
    if upto is None and k <= 0: return
    if upto is not None:
        nxt = [n if kd == "K" else 32 + n for kd, n in pend if kd in "KV"][0]
        if nxt > upto: return
    while pend and (k > 0 or upto is not None):
        kind, n = pend.pop(0)
        if kind[0] == "W":
            wdma(kind, n); continue
        pos = n if kind == "K" else 32 + n
        if THR and THR0 <= pos < THR0 + THR:
            with only("lt", sXC, opt("thrx", 4)): A(f"s_waitcnt vmcnt({opt('thrn', 4)})")
        kdma(n) if kind == "K" else vload(n)
        if PFOPOS > 0 and pos == PFOPOS: pf_wo()
        if allow_kread[0]:
            while kr[0] < 8 and 4*kr[0] + 3 + opt("klag", 16) <= pos:
                kread(kr[0]); kr[0] += 1
        k -= 1
        if upto is not None and pos == upto: break
        if upto is None and k <= 0: break

def pf_wo():
    A(f"s_lshl_b32 s3, s{sU}, 12\ns_lshl_b32 s{sT2}, s{sg}, 19\ns_add_u32 s{sT2}, s{sT2}, s3")
    for i in range(4): A(f"buffer_load_dwordx4 {DUMMY}, v{vVo}, {srd(rWO)}, s{sT2} offen offset:{1024*i}{PFO}")
    for x in [int(c) for c in opt("xg", "")]:
        A(f"s_xor_b32 s3, s{sT2}, {x << 19}")
        for i in range(4): A(f"buffer_load_dwordx4 {DUMMY}, v{vVo}, {srd(rWO)}, s3 offen offset:{1024*i}{PFO}")
    for x in range(1, opt("redo", 1)):
        A(f"s_xor_b32 s3, s{sT2}, {[0, 64, 32, 96][x] << 12}")
        for i in range(4): A(f"buffer_load_dwordx4 {DUMMY}, v{vVo}, {srd(rWO)}, s3 offen offset:{1024*i}{PFO}")
PFOPOS = opt('pfopos', -1)
mksrd(rK, sK, 1 << 25)
stream(opt("kf", 0))
mksrd(rWQ, sWQ, 512*4096*2); mksrd(rWS, sWS, WS_BYTES)
if PFOPOS >= 0: mksrd(rWO, sWO, 4096*512*2)
A(f"global_load_dwordx2 {vq(vEP,2)}, v37, {sp(sWS)} sc1", tag="ep")
with (ool if opt("ool", 0) else only)("eq", sw, CW):
    scalars()
    if "clr" not in DROP: clears()
    else: A.vq.append(("clr", True))
if "wa" not in DROP:
    for i in range(4): dma(vWa, rWQ, sBUD, sLAYER, LWQ + 1024*i, i << 16, f"WA{i}", " nt")
A(f"global_load_dwordx2 {vq(vXr,2)}, v34, {sp(sX)}", tag="x")
if PFOPOS == 0: pf_wo()
stream(opt("k0", 6) - opt("kf", 0))
stamp(1)
mksrd(rV, sV, 1 << 25); mksrd(rWO, sWO, 4096*512*2); mksrd(rW1, sW1, 512*1792*2); mksrd(rW2, sW2, 1792*512*2)
if opt("ool", 0): scalars()
else:
    with only("lg", sw, CW): scalars()
A(f"s_mov_b32 s{sLAYER}, 0\ns_mov_b32 s{sBUD}, 400000")
if THR: A(f"s_getreg_b32 s{sXC}, hwreg(HW_REG_XCC_ID, 0, 4)")
TLB = opt("tlb", 1)
if TLB:
    exec_set(1, 0)
    A(f"v_mov_b32 v44, 0")
    A(f"buffer_load_dword a255, v44, {srd(rV)}, s{sVb} offen nt")
    if TLB in (2, 3):
        A(f"s_lshl_b32 s3, s{sg}, 19")
        A(f"buffer_load_dword a255, v44, {srd(rWO)}, s3 offen nt")
        A(f"s_mul_i32 s3, s{sw}, {128*3584}")
        A(f"buffer_load_dword a255, v44, {srd(rW1)}, s3 offen nt")
        A(f"s_mul_i32 s3, s{sg}, {224*1024}")
        A(f"buffer_load_dword a255, v44, {srd(rW2)}, s3 offen nt")
    if TLB == 3:
        A(f"global_load_dword a255, v44, {sp(sOUT)} nt")
    if TLB == 4:
        A(f"s_or_b32 s3, s{sg}, s{sj}")
        with only("eq", 3, 0): A(f"global_load_dword a255, v44, {sp(sOUT)} nt", cond=True)
    exec_all()
A(f"""
s_lshl_b32 s3, s{sw}, 9
s_add_u32 s3, s3, {XB}
v_add_u32 v{vXBw}, s3, v33
v_lshrrev_b32 v44, 3, v{tn}
v_lshlrev_b32 v44, 8, v44
v_lshl_add_u32 v44, v{tq}, 4, v44
v_add_u32 v{vXBr}, s3, v44
v_lshlrev_b32 v47, 2, v{vL}                ; 4l
v_add_u32 v44, s3, v47
v_mov_b32 v41, 0x3f803f80
ds_write_b32 v44, v41 offset:256
s_lshl_b32 s3, s{sw}, 2
s_add_u32 s{sT1}, s3, {RED1}
v_add_u32 v{vRED}, s{sT1}, v{vVo}
v_lshrrev_b32 v46, 5, v{vL}
v_lshl_add_u32 v46, v46, 4, v{tn}
v_lshlrev_b32 v46, 4, v46
s_add_u32 s{sT1}, s3, {REDA}
v_add_u32 v{vREDA}, s{sT1}, v46
s_add_u32 s{sT1}, s3, {ST0}
v_mov_b32 v{vST}, s{sT1}
v_and_b32 v42, 3, v{vL}                    ; l&3
v_lshlrev_b32 v43, 4, v42
v_add_u32 v{vMBw}, {MB}, v43
v_add_u32 v{vMBw}, s3, v{vMBw}
s_lshl_b32 s3, s{sw}, 8
v_lshlrev_b32 v43, 4, v{tq}                ; 16q
v_add_u32 v{vMBr}, {MB}, v43
v_and_b32 v44, 1, v{tq}
v_lshlrev_b32 v44, 16, v44
v_lshl_add_u32 v{vQP}, v{tn}, 2, v44       ; batch*65536 + 4n
v_lshrrev_b32 v44, 5, v{vL}
v_xor_b32 v44, s{sb}, v44
v_lshlrev_b32 v44, 8, v44
v_add_u32 v44, {XQ}, v44
v_add_u32 v{vXQw}, v44, v33
v_bfe_u32 v44, v{vL}, 2, 1
v_lshlrev_b32 v44, 8, v44
v_add3_u32 v44, v44, v43, 0
v_add_u32 v44, {XQ}, v44
v_accvgpr_write_b32 a{aXQr}, v44
v_lshrrev_b32 v44, 2, v{vL}
v_lshlrev_b32 v44, 6, v44
v_lshl_add_u32 v44, v42, 2, v44
s_lshl_b32 s{sT1}, s{sw}, 4
s_add_u32 s{sT1}, s{sT1}, {QB}
v_add_u32 v44, s{sT1}, v44
v_accvgpr_write_b32 a{aQBw}, v44
v_lshlrev_b32 v44, 4, v{tn}
v_lshl_add_u32 v44, v{tq}, 10, v44
v_add_u32 v{vGad}, s3, v44
v_mov_b32 v{vHad}, v43
v_lshlrev_b32 v44, 4, v42
v_lshl_add_u32 v{vQad}, v{tq}, 6, v44
v_add_u32 v{vQad}, {QB}, v{vQad}
v_lshl_add_u32 v44, v{tq}, 2, v42
v_lshlrev_b32 v{vMLad}, 3, v44
v_lshlrev_b32 v{vPAIR}, 1, v{vL}
s_lshl_b32 s3, s{sw}, 11
s_add_u32 s3, s3, {OB}
v_lshlrev_b32 v44, 4, v{tn}
v_add_u32 v{vOBw}, s3, v{vVo}
s_lshl_b32 s3, s{sw}, 9
s_add_u32 s3, s3, {OB}
v_lshl_add_u32 v44, v{tq}, 2, v44
v_add_u32 v{vOBr}, s3, v44
v_lshrrev_b32 v45, 2, v{tn}                ; n>>2
v_lshlrev_b32 v44, 8, v45
v_lshl_add_u32 v44, v42, 2, v44
v_lshl_add_u32 v{vOpub}, v{tq}, 12, v44
s_and_b32 s3, s{sw}, 1
s_lshl_b32 s3, s3, 5
v_lshlrev_b32 v44, 3, v{tq}
v_add_u32 v{vZpub}, s3, v44
{"v_and_b32 v46, 4, v%d" % tn if Z1W else ""}
{"v_lshl_add_u32 v%d, v46, 3, v44" % vZpub if Z1W else ""}
v_mul_u32_u24 v44, 1088, v42
v_lshl_add_u32 v44, v45, 8, v44
v_add_u32 v44, v44, v43
""")
for s in range(4): A(f"v_xor_b32 v46, {64*s}, v44\nv_add_u32 v{vKr+s}, s{sKm}, v46")
A(f"""
v_and_b32 v44, 1, v{tn}
v_lshlrev_b32 v44, 4, v44
v_mov_b32 v46, 0x3f80
v_lshlrev_b32 v46, v44, v46
v_lshrrev_b32 v44, 1, v{tn}
""")
for i in range(4): A(f"v_cmp_eq_u32 vcc, {i}, v44\nv_cndmask_b32 v{vSEL+i}, 0, v46, vcc")
A(f"""
v_lshl_add_u32 v46, v{tq}, 3, v45          ; 8q+r
v_lshlrev_b32 v46, 7, v46
v_lshl_add_u32 v46, v42, 3, v46
s_lshl_b32 s3, s{sw}, 5
v_add_u32 v{vTa}, s3, v46
""")
stream(opt("k1", 2))
if opt("fpos", 12) < 0: flag()

vXP = 28; vXA = 32; vG0 = 48
vS, vSQ, vTm = 30, 31, 56
vMean, vRs = 62, 63
def unpack_x():
    A(f"""
v_lshlrev_b32 v{vX}, 16, v{vXP}
v_and_b32 v{vX+1}, 0xffff0000, v{vXP}
v_lshlrev_b32 v{vX+2}, 16, v{vXP+1}
v_and_b32 v{vX+3}, 0xffff0000, v{vXP+1}""")
def stat_ops():
    o = [f"v_add_f32 v{vS}, v{vX}, v{vX+1}", f"v_mul_f32 v{vSQ}, v{vX}, v{vX}", f"v_add_f32 v{vTm}, v{vX+2}, v{vX+3}",
         f"v_fmac_f32 v{vSQ}, v{vX+1}, v{vX+1}", f"v_add_f32 v{vS}, v{vS}, v{vTm}",
         f"v_fmac_f32 v{vSQ}, v{vX+2}, v{vX+2}", f"v_fmac_f32 v{vSQ}, v{vX+3}, v{vX+3}"]
    for c in ("row_ror:8 " + DPPF, "row_ror:4 " + DPPF, "row_ror:2 " + DPPF, "row_ror:1 " + DPPF, "row_bcast:15 row_mask:0xa bank_mask:0xf"):
        o += [f"v_add_f32_dpp v{vS}, v{vS}, v{vS} {c}", f"v_add_f32_dpp v{vSQ}, v{vSQ}, v{vSQ} {c}"]
    return o
def stat_write(st_off):
    exec_set(0x10000, 0)
    A(f"ds_write2_b32 v{vST}, v{vS}, v{vSQ} offset0:{st_off//4} offset1:{st_off//4+4}")
    exec_all()
def qproj(first):
    with only("eq", sw, f"s{skq}"): A(f"ds_write_b64 v{vXQw}, v[{vXP}:{vXP+1}]")
    A(f"v_accvgpr_read_b32 v57, a{aXQr}")
    unpack_x()
    for i in stat_ops(): A(i)
    stat_write(0)
    A("s_waitcnt lgkmcnt(0)\ns_barrier")
    if first:
        tr_reads(aWQ, vTa, 4, 1, 4096, 0, 512, base=LWQ)
        stream(2)
    for s_ in range(4): A(f"ds_read_b128 {vq(vXA+4*s_)}, v57 offset:{64*s_}")
    A(f"v_mov_b32 v58, {ST0}")
    A(f"ds_read_b128 v[52:55], v58\nds_read_b128 v[56:59], v58 offset:16")
    A(f"s_lshl_b32 s3, s{sw}, 6\ns_add_u32 s3, s3, s{sQpub}\ns_add_u32 s{sT2}, s3, {CS}\ns_add_u32 s3, s3, {QP}")
    for s_ in range(4):
        A(f"s_waitcnt lgkmcnt({0 if (PROF or first) else 5-s_})")
        A(f"v_mfma_f32_16x16x32_bf16 {vq(vG0)}, {vq(vXA+4*s_)}, {aq(aWQ+4*s_)}, {'0' if s_ == 0 else vq(vG0)}")
    A(f"""s_waitcnt lgkmcnt(0)
v_add_f32 v52, v52, v53
v_add_f32 v54, v54, v55
v_add_f32 v56, v56, v57
v_add_f32 v58, v58, v59
v_add_f32 v52, v52, v54
v_add_f32 v56, v56, v58""")
    if not first:
        exec_set(0xffffffff, 0)
        pub_store(f"buffer_store_dword v{vG0}, v{vQP}, {srd(rWS)}, s3 offen")
        exec_all()
    else: stream(2)
    A(f"""
v_mul_f32 v{vMean}, {f2u(1.0/512):#x}, v52
v_mul_f32 v56, {f2u(1.0/512):#x}, v56
v_fma_f32 v56, -v{vMean}, v{vMean}, v56
v_max_f32 v56, 0, v56
v_add_f32 v56, {f2u(1e-5):#x}, v56
v_rsq_f32 v56, v56
v_mul_f32 v{vRs}, {f2u(QSCALE):#x}, v56""")
    if first:
        for i in range(4): A(f"v_mov_b32 v{vXA+i}, 0x3f803f80")
        for s_ in range(4):
            A(f"v_mfma_f32_16x16x32_bf16 v[52:55], {vq(vXA)}, {aq(aWQ+4*s_)}, {'0' if s_ == 0 else 'v[52:55]'}")
        if opt("fpos", 12) >= 0:
            stream(upto=opt("fpos", 12))
            flag()
            stream(upto=opt("b2pos", 16))
            A("s_barrier")
        A(f"s_lshl_b32 s3, s{sw}, 6\ns_add_u32 s3, s3, s{sQpub}\ns_add_u32 s{sT2}, s3, {CS}\ns_add_u32 s3, s3, {QP}")
        exec_set(0xffffffff, 0)
        A(f"buffer_store_dword v{vG0}, v{vQP}, {srd(rWS)}, s3 offen sc1")
        exec_set(0xffff, 0)
        A(f"buffer_store_dword v52, v{vQP}, {srd(rWS)}, s{sT2} offen sc1")
        exec_all()
def q_loads(dst, soff, tag=None, cond=False):
    for k in range(4): A(f"buffer_load_dwordx2 v[{dst+2*k}:{dst+2*k+1}], v60, {srd(rWS)}, s{soff} offen offset:{2048*k if k < 2 else 2048*(k-2)} sc1" if k < 2 else
                         f"buffer_load_dwordx2 v[{dst+2*k}:{dst+2*k+1}], v61, {srd(rWS)}, s{soff} offen offset:{2048*(k-2)} sc1", tag=tag, cond=cond)
def q_addr(): A(f"v_lshlrev_b32 v60, 3, v{vL}\nv_add_u32 v61, 4096, v60")
def sum4(d):
    A(f"v_add_f32 v{d}, v{d}, v{d+2}\nv_add_f32 v{d+1}, v{d+1}, v{d+3}\nv_add_f32 v{d+4}, v{d+4}, v{d+6}\nv_add_f32 v{d+5}, v{d+5}, v{d+7}\nv_add_f32 v{d}, v{d}, v{d+4}\nv_add_f32 v{d+1}, v{d+1}, v{d+5}")
def q_finish(cs):
    A(f"""
v_fma_f32 v44, -v{vMean}, v{cs}, v44
v_fma_f32 v45, -v{vMean}, v{cs+1}, v45
v_mul_f32 v44, v44, v{vRs}
v_mul_f32 v45, v45, v{vRs}
v_cvt_pk_bf16_f32 v44, v44, v45
ds_write_b32 v59, v44
s_waitcnt lgkmcnt(0)
s_barrier""")
    for s_ in range(4): A(f"ds_read_b128 {vq(vQ+4*s_)}, v{vQad} offset:{256*s_}")
A.vwait("x")
stamp(2)
tags()
A(f"""
s_cmp_eq_u32 s{sw}, s{skq}
s_cselect_b32 s3, 64, 32
v_cmp_gt_u32 vcc, s3, v{vL}
v_cndmask_b32 v{vXP}, 0, v{vXr}, vcc
v_cndmask_b32 v{vXP+1}, 0, v{vXr+1}, vcc
s_xor_b32 s{sYo}, s{sYget}, 8192
s_xor_b32 s{sZo}, s{sZget}, 8192""")
qproj(True)
stamp(3)
allow_kread[0] = True
stream(upto=opt("cenpos", 30))
A.raw("; ---- census of the flags")
def cen_loads(cond):
    A(f"s_mov_b32 s3, {FLG}")
    A(f"buffer_load_dwordx4 v[32:35], v{vVo}, {srd(rWS)}, s3 offen sc1", cond=cond)
    A(f"buffer_load_dwordx4 v[36:39], v{vVo}, {srd(rWS)}, s3 offen offset:1024 sc1", tag="cen", cond=cond)
if "cen" not in DROP: cen_loads(False)
else: A.vq.append(("cen", True))
stream(opt("cenlag", 10))
A.vwait("cen")
lcen, lcok = lab("cen"), lab("cok")
A(f"{lcen}:")
if "cen" in DROP or "clr" in DROP: A(f"s_branch {lcok}")
for i in range(4):
    A(f"v_xor_b32 v{32+2*i}, s{sTAG0}, v{32+2*i}\nv_xor_b32 v{33+2*i}, s{sTAG1}, v{33+2*i}")
CSPLIT = opt("csplit", 1)
A(f"""
v_or3_b32 v40, v33, v35, v37
v_or3_b32 v42, v32, v34, v36
v_or_b32 v40, v40, v39
v_and_b32 v40, -16, v40
v_or3_b32 v40, v40, v42, v38
v_cmp_ne_u32 vcc, 0, v40""")
if CSPLIT: A(f"""s_or_b32 s{sCEN}, vcc_lo, vcc_hi
s_lshl_b32 s3, s{sg}, 3
s_lshr_b64 s[{sT2}:{sT2+1}], vcc, s3
s_and_b32 s{sT2}, s{sT2}, 0xff
s_cbranch_scc0 {lcok}
s_sleep 4""")
else: A(f"s_cbranch_vccz {lcok}\ns_sleep 4")
cen_loads(True)
A("s_waitcnt vmcnt(0)")
retry(lcen)
A(f"{lcok}:")
stamp(4)
if PROF: A(f"s_mov_b32 s12, s{sBUD}")
A(f"""
s_getreg_b32 s3, hwreg(HW_REG_XCC_ID, 0, 4)
v_xor_b32 v33, s3, v33
v_xor_b32 v35, s3, v35
v_xor_b32 v37, s3, v37
v_xor_b32 v39, s3, v39
v_or_b32 v33, v33, v35
v_or3_b32 v33, v33, v37, v39
v_cmp_eq_u32 vcc, 0, v33
s_lshl_b32 s3, s{sg}, 3
s_lshr_b64 s[{sT2}:{sT2+1}], vcc, s3
s_and_b32 s{sT2}, s{sT2}, 0xff
s_cmp_eq_u32 s{sT2}, 0xff
s_cselect_b32 s{sFAST}, {0 if FORCE_SLOW else 1}, 0
s_lshl_b32 s{sT3}, s{sg}, 13
s_lshl_b32 s3, s{sw}, 9
s_add_u32 s{sT3}, s{sT3}, s3
s_add_u32 s{sT3}, s{sT3}, {CS}""")
q_addr()
stream(upto=opt("qpos", 42))
if "q" not in DROP: q_loads(44, sQget); q_loads(32, sT3, tag="Q")
else: A.vq.append(("Q", True))
stream(opt("qlag", 8))
A.vwait("Q")
lq1, lq1ok = lab("ql"), lab("qlok")
A(f"{lq1}:")
if DROP != [""] and DROP != ["w"]: A(f"s_branch {lq1ok}")
sum4(44); sum4(32)
A(f"""v_add_f32 v40, v44, v45
v_add_f32 v41, v32, v33
v_cmp_u_f32 vcc, v40, v41
s_cbranch_vccz {lq1ok}""")
q_loads(44, sQget, cond=True); q_loads(32, sT3, cond=True)
A("s_waitcnt vmcnt(0)")
retry(lq1)
A(f"""{lq1ok}:
v_accvgpr_write_b32 a{aCS}, v32
v_accvgpr_write_b32 a{aCS+1}, v33
v_accvgpr_read_b32 v59, a{aQBw}
v_mov_b32 v56, v32
v_mov_b32 v57, v33""")
assert kr[0] == 8
if PROF: A(f"s_mov_b32 s13, s{sBUD}")
q_finish(56)
stream(1)
A(f"s_waitcnt lgkmcnt(0)")
stamp(5)

def qk(filler=None):
    tiles = [(t, u) for t in range(4) for u in range(2)]
    def dreg(k):
        t, u = tiles[k]
        return (vD0 if u == 0 else vD1) if t == 0 else vROT + 4*(k % 3)
    def sel(k):
        t, u = tiles[k]
        if t == 0: return []
        return [f"v_mov_b32_dpp v{(vD0 if u == 0 else vD1)+r}, v{dreg(k)+r} quad_perm:[0,1,2,3] row_mask:0xf bank_mask:{1 << t:#x}" for r in range(4)]
    for k in range(8):
        ex = sel(k-2) if k >= 2 else []
        for s in range(4):
            c = "0" if s == 0 else vq(dreg(k))
            A(f"v_mfma_f32_16x16x32_bf16 {vq(dreg(k))}, {aq(aK+16*k+4*s)}, {vq(vQ+4*s)}, {c}")
            if ex: A(ex.pop(0))
        if filler: filler(k)
    for k in (6, 7):
        for i in sel(k): A(i)
vM, vTt, vLs, vP = 32, 33, 34, 28
vF = 36; vMM = 40
def softmax():
    A(f"""
v_max3_f32 v{vM}, v{vD0}, v{vD0+1}, v{vD0+2}
v_max3_f32 v{vTt}, v{vD0+3}, v{vD1}, v{vD1+1}
v_max3_f32 v{vM}, v{vM}, v{vD1+2}, v{vD1+3}
v_max_f32 v{vM}, v{vM}, v{vTt}
v_max_f32_dpp v{vM}, v{vM}, v{vM} row_ror:4 {DPPF}
v_max_f32_dpp v{vM}, v{vM}, v{vM} row_ror:8 {DPPF}
v_mov_b32 v{vTt}, v{vM}
v_permlane16_swap_b32 v{vM}, v{vTt}
v_max_f32 v{vM}, v{vM}, v{vTt}
v_mov_b32 v{vTt}, v{vM}
v_permlane32_swap_b32 v{vM}, v{vTt}
v_max_f32 v{vM}, v{vM}, v{vTt}""")
    for r in range(8): A(f"v_sub_f32 v{vD0+r}, v{vD0+r}, v{vM}")
    A(f"ds_write_b32 v{vMBw}, v{vM}")
    for r in range(8): A(f"v_exp_f32 v{vD0+r}, v{vD0+r}")
    for p in range(4): A(f"v_cvt_pk_bf16_f32 v{vP+p}, v{vD0+2*p}, v{vD0+2*p+1}")
def aop(t): return vP if t == 0 else vROT + 4*(t-1)
def shifts(t): return [f"v_mov_b32_dpp v{aop(t)+p}, v{vP+p} row_ror:{16-4*t} {DPPF}" for p in range(4)]
def lsum_ops():
    return [f"v_add_f32 v{vLs}, v{vD0}, v{vD0+1}", f"v_add_f32 v{vTt}, v{vD0+2}, v{vD0+3}",
            f"v_add_f32 v{vLs}, v{vLs}, v{vD1}", f"v_add_f32 v{vTt}, v{vTt}, v{vD1+1}",
            f"v_add_f32 v{vLs}, v{vLs}, v{vD1+2}", f"v_add_f32 v{vTt}, v{vTt}, v{vD1+3}",
            f"v_add_f32 v{vLs}, v{vLs}, v{vTt}",
            f"v_add_f32_dpp v{vLs}, v{vLs}, v{vLs} row_ror:4 {DPPF}",
            f"v_add_f32_dpp v{vLs}, v{vLs}, v{vLs} row_ror:8 {DPPF}",
            f"v_mov_b32 v{vTt}, v{vLs}", f"v_permlane16_swap_b32 v{vLs}, v{vTt}", f"v_add_f32 v{vLs}, v{vLs}, v{vTt}",
            f"v_mov_b32 v{vTt}, v{vLs}", f"v_permlane32_swap_b32 v{vLs}, v{vTt}", f"v_add_f32 v{vLs}, v{vLs}, v{vTt}",
            f"ds_write_b32 v{vMBw}, v{vLs} offset:64"]
def fw_ops():
    return [f"ds_read_b128 {vq(vF)}, v{vMBr}", "s_waitcnt lgkmcnt(0)",
            f"v_max3_f32 v{vMM}, v{vF}, v{vF+1}, v{vF+2}", f"v_max_f32 v{vMM}, v{vMM}, v{vF+3}"] + \
           [f"v_sub_f32 v{vF+i}, v{vF+i}, v{vMM}" for i in range(4)] + [f"v_exp_f32 v{vF+i}, v{vF+i}" for i in range(4)]
def owrite(half): return f"ds_write_b128 v{vOBw}, {vq(vACC+16*half)} offset:{1024*half}"
sROW = {1: 28, 2: 30, 3: 36}
def row_masks():
    A(f"s_mov_b32 s28, 0xffff0000\ns_mov_b32 s29, 0\ns_mov_b32 s30, 0\ns_mov_b32 s31, 0xffff\ns_mov_b32 s36, 0\ns_mov_b32 s37, 0xffff0000")
def merge(jd):
    d = vACC + 16*(jd >> 2)
    return [f"v_cndmask_b32 v{d+h}, v{d+h}, v{vACC+4*jd+h}, {sp(sROW[jd & 3])}" for h in range(4)]
def pv_mfma(t, jd, first):
    c = "0" if first else vq(vACC+4*jd)
    A(f"v_mfma_f32_16x16x32_bf16 {vq(vACC+4*jd)}, {vq(aop((t - jd) & 3))}, {vq(vR+32*t+4*jd)}, {c}")

def pf_w12(t0, t1):
    pf_w12_(t0, t1)
    if opt("red12", 1) > 1:
        A(f"s_xor_b32 s{sU}, s{sU}, 64"); pf_w12_(t0, t1)
def pf_w12_(t0, t1, which=3):
    A(f"""
s_mul_i32 s{sT2}, s{sU}, {4*3584}
s_mul_i32 s3, s{sg}, 448
s_add_u32 s{sT2}, s{sT2}, s3
v_lshrrev_b32 v{t0}, 5, v{vL}
v_mul_u32_u24 v{t0}, 3584, v{t0}
v_and_b32 v{t1}, 31, v{vL}
v_lshl_add_u32 v{t0}, v{t1}, 4, v{t0}
s_add_u32 s3, s{sT2}, {2*3584}""")
    exec_set(0x0fffffff, 0x0fffffff)
    if which & 1:
        A(f"buffer_load_dwordx4 {DUMMY}, v{t0}, {srd(rW1)}, s{sT2} offen{PF12}")
        A(f"buffer_load_dwordx4 {DUMMY}, v{t0}, {srd(rW1)}, s3 offen{PF12}")
    A(f"""
s_mul_i32 s{sT2}, s{sU}, {14*128}
s_mul_i32 s3, s{sg}, {224*1024}
s_add_u32 s{sT2}, s{sT2}, s3""")
    exec_set(0xffffffff, 0x00ffffff)
    if which & 2:
        A(f"buffer_load_dwordx4 {DUMMY}, v{vVo}, {srd(rW2)}, s{sT2} offen{PF12}")
        A(f"buffer_load_dwordx4 {DUMMY}, v{vVo}, {srd(rW2)}, s{sT2} offen offset:896{PF12}")
    exec_all()
def tail_pf():
    if "tail" in DROP: return
    if not INO and PFOPOS == -1: pf_wo()
    if W12PF == 0 and not IN12: pf_w12(41, 42)
    if W12PF == 5: pf_w12_(41, 42, 1)
    lw = lab("wu"); lw2 = lab("wu")
    A(f"""
v_lshlrev_b32 v35, 7, v{vL}
s_and_b32 s3, s{sw}, 1
s_mul_i32 s3, s3, {LS}
s_cmp_ge_u32 s{sw}, 2
s_cbranch_scc1 {lw}
s_add_u32 s3, s3, s{sOclr}
v_and_b32 v41, 0x380, v35
s_branch {lw2}
{lw}:
v_and_b32 v41, 1, v{vL}
v_lshlrev_b32 v41, 7, v41
v_bfe_u32 v42, v{vL}, 1, 1
v_lshl_add_u32 v41, v42, 16, v41
s_add_u32 s{sT2}, s{sQpub}, {QP}
v_add_u32 v41, s{sT2}, v41
s_sub_u32 s{sT2}, s{sMLpub}, 512
v_add_u32 v42, s{sT2}, v35
v_cmp_le_u32 vcc, 4, v{vL}
v_cndmask_b32 v41, v41, v42, vcc
v_mov_b32 v42, s{sHpub}
v_cmp_le_u32 vcc, 8, v{vL}
v_cndmask_b32 v41, v41, v42, vcc
{lw2}:""")
    exec_set(0x1ff, 0)
    if not opt("nowu", 0): A(f"buffer_load_dword a253, v41, {srd(rWS)}, s3 offen sc1")
    A(f"""
s_getpc_b64 s[{sT2}:{sT2+1}]
L_pc:
s_add_u32 s{sT2}, s{sT2}, L_comb-L_pc
s_addc_u32 s{sT2+1}, s{sT2+1}, 0""")
    exec_all()
    A(f"v_min_u32 v42, L_end-L_comb, v35")
    A(f"s_nop 0")
    if not opt("nocode", 0): A(f"global_load_dword a254, v42, s[{sT2}:{sT2+1}]{POL[opt('cpol','none')]}")

A.raw("; ---- attention, layer 1 (overlaps the rest of the V stream)")
qk(filler=lambda k: stream(2))
stream(40)
softmax()
for t in (1, 2, 3):
    for i in shifts(t): A(i)
for i in lsum_ops(): A(i)
row_masks()
WOEARLY = opt("woearly", 0)
def wo_burst(t0, t1, vo):
    A(f"""
v_lshrrev_b32 v{t0}, 2, v{vL}
v_and_b32 v{t1}, 3, v{vL}
v_lshlrev_b32 v{t1}, 4, v{t1}
v_lshl_add_u32 v{vo}, v{t0}, 10, v{t1}
s_lshl_b32 s{sT2}, s{sg}, 19
s_lshl_b32 s3, s{sw}, 17
s_add_u32 s{sT2}, s{sT2}, s3
s_lshl_b32 s3, s{sj}, 6
s_add_u32 s{sT2}, s{sT2}, s3""")
    for n in range(WOEARLY): dma(vo, rWO, sT2, sKm, 1024*n, n << 14, f"WO{n}", WPOL)
WOG = opt('wog', 3)
stamp(6)
for t in range(4):
    A.vwait(f"V{8*t+7}")
    raw = vR + 32*(t+1); dst = vR + 32*t
    for jd in range(8):
        for p in range(4):
            A(f"v_perm_b32 v{dst+4*jd+p}, v{raw+4*(2*p+1)+(jd>>1)}, v{raw+4*(2*p)+(jd>>1)}, s{sSELHI if jd & 1 else sSELLO}")
        if jd: pv_mfma(t, jd-1, t == 0)
        if t == 3:
            for i in {4: merge(1), 5: merge(2), 6: merge(3) + [owrite(0)]}.get(jd, []): A(i)
    pv_mfma(t, 7, t == 0)
    if t == 3:
        for i in merge(5) + merge(6): A(i)
    if t == MBG:
        A("s_waitcnt lgkmcnt(0)\ns_barrier")
        for i in fw_ops(): A(i)
        if INO or IN12:
            A(f"""
v_lshrrev_b32 v44, 2, v{vL}
v_and_b32 v44, 3, v44                     ; r
v_and_b32 v45, 3, v{vL}
v_lshlrev_b32 v45, 3, v45                 ; 8c
v_lshrrev_b32 v46, 4, v{vL}               ; q
v_lshl_add_u32 v47, v46, 3, v44           ; 8q+r
v_lshl_add_u32 v47, v47, 5, v45
v_add_u32 v47, s{sKm}, v47                ; w1
v_and_b32 v48, 1, v44
v_lshrrev_b32 v49, 1, v44
v_lshl_add_u32 v48, v49, 3, v48
v_lshl_add_u32 v48, v46, 5, v48
v_lshl_add_u32 v48, v48, 6, v45
v_add_u32 v48, s{sKm}, v48                ; wo
v_and_b32 v49, 1, v46
v_lshl_add_u32 v44, v49, 3, v44
v_lshl_add_u32 v44, v44, 6, v45
v_lshrrev_b32 v46, 1, v46
v_lshl_add_u32 v44, v46, 15, v44
s_and_b32 s3, s{sw}, 1
s_lshl_b32 s3, s3, 5
s_add_u32 s3, s3, {KST + 12288}
v_add_u32 v44, s3, v44                    ; w2
v_add_u32 v45, 65536, v44""")
            if "w" in DROP:
                for i in range(aWO, 236): A(f"v_accvgpr_write_b32 a{i}, 0")
            if INO and "w" not in DROP: tr_reads(aWO, 48, 4, 2, 128, 32, 1024)
            if IN12 and "w" not in DROP:
                tr_reads(aW1, 47, 4, 1, 1024, 0, 128, base=8192)
                for st in range(7):
                    o_ = (st >> 1)*1024; r_ = 45 if st & 1 else 44
                    A(f"ds_read_b64_tr_b16 a[{aW2+4*st}:{aW2+4*st+1}], v{r_} offset:{o_}")
                    A(f"ds_read_b64_tr_b16 a[{aW2+4*st+2}:{aW2+4*st+3}], v{r_} offset:{o_+256}")
    if t == opt("pfg", 3): tail_pf()
    if WOEARLY and t == WOG and t < 3: wo_burst(41, 42, 43)
for i in merge(7) + [owrite(1)]: A(i)
if opt("pfg", 3) == 4: tail_pf()
if WOEARLY and WOG == 3: wo_burst(41, 42, 43)
stamp(7)
flush_stamps(0, 8)
if PROF: A(f"v_writelane_b32 v{vPROF}, s12, 8\nv_writelane_b32 v{vPROF}, s13, 9\ns_getreg_b32 s12, hwreg(HW_REG_XCC_ID, 0, 4)\nv_writelane_b32 v{vPROF}, s12, 10")
if EXP == "stream": A("s_branch L_done")

def xproc(aW, tiles, red_off, st_off, skip_label=None, pre=None):
    exec_set(0xffffffff, 0)
    A(f"ds_write_b64 v{vXBw}, v[{vXP}:{vXP+1}]")
    exec_all()
    for s in range(4): A(f"ds_read_b128 {vq(vXA+4*s)}, v{vXBr} offset:{64*s}")
    unpack_x()
    if skip_label: A(f"s_cbranch_scc1 {skip_label}")
    dp = stat_ops()
    for _ in range(11): A(dp.pop(0))
    if pre: pre()
    A("s_waitcnt lgkmcnt(0)")
    for s in range(4):
        A(f"v_mfma_f32_16x16x32_bf16 {vq(vG0)}, {vq(vXA+4*s)}, {aq(aW+4*s)}, {'0' if s == 0 else vq(vG0)}")
        for _ in range(2):
            if dp: A(dp.pop(0))
    stat_write(st_off)
    A(f"ds_write_b32 v{vRED}, v{vG0} offset:{red_off}")
def ln_final(red_off, st_off):
    A(f"""
ds_read_b128 v[36:39], v{vST} offset:{st_off}
ds_read_b128 v[40:43], v{vST} offset:{st_off+16}
ds_read_b128 v[28:31], v{vRED} offset:{red_off}
ds_read_b128 v[32:35], v{vRED} offset:{red_off+512}
s_mov_b32 s3, {f2u(1.0/512):#x}
v_mov_b32 v44, {f2u(1e-5):#x}""")
    exec_set(0xffff, 0)
    A(f"""
s_waitcnt lgkmcnt({0 if PROF else 2})
v_add_f32 v36, v36, v37
v_add_f32 v38, v38, v39
v_add_f32 v40, v40, v41
v_add_f32 v42, v42, v43
v_add_f32 v36, v36, v38
v_add_f32 v40, v40, v42
v_mul_f32 v36, s3, v36                ; mean
v_fma_f32 v41, s3, v40, v44           ; E[x^2] + eps
s_waitcnt lgkmcnt(0)
v_add_f32 v32, v32, v33
v_fma_f32 v41, -v36, v36, v41
v_add_f32 v34, v34, v35
v_max_f32 v41, v44, v41
v_add_f32 v28, v28, v29
v_rsq_f32 v41, v41
v_add_f32 v30, v30, v31
v_add_f32 v32, v32, v34
v_add_f32 v28, v28, v30
v_mul_f32 v42, {f2u(-LOG2E):#x}, v41
v_fma_f32 v28, -v36, v32, v28
v_mul_f32 v29, v28, v42
""")

A.raw("; ---- per-layer chain: merge the four waves' partial outputs and publish them")
A("L_comb:")
A("s_waitcnt lgkmcnt(0)\ns_barrier")
for w in range(4): A(f"ds_read2st64_b32 v[{44+2*w}:{45+2*w}], v{vOBr} offset0:{8*w} offset1:{8*w+1}")
A(f"ds_read_b128 v[52:55], v{vMBr} offset:64")
A("s_waitcnt lgkmcnt(1)" if not PROF else "s_waitcnt lgkmcnt(0)")
A(f"v_mul_f32 v44, v{vF}, v44\nv_mul_f32 v45, v{vF}, v45")
for w in range(1, 4): A(f"v_fmac_f32 v44, v{vF+w}, v{44+2*w}\nv_fmac_f32 v45, v{vF+w}, v{45+2*w}")
A("v_cvt_pk_bf16_f32 v44, v44, v45")
pub_store(f"buffer_store_dword v44, v{vOpub}, {srd(rWS)}, s{sOpub} offen")
with only("eq", sw, 0):
    A(f"""
s_waitcnt lgkmcnt(0)
v_mul_f32 v{vMM+1}, v{vF}, v52
v_fmac_f32 v{vMM+1}, v{vF+1}, v53
v_fmac_f32 v{vMM+1}, v{vF+2}, v54
v_fmac_f32 v{vMM+1}, v{vF+3}, v55
v_lshlrev_b32 v46, 3, v{vL}""")
    exec_set(0x00010001, 0x00010001)
    pub_store(f"buffer_store_dwordx2 v[{vMM}:{vMM+1}], v46, {srd(rWS)}, s{sMLpub} offen")
    exec_all()
stamp(0)
vO = 28; vml = 44; vDy = 48
la, laok, la0 = lab("pa"), lab("paok"), lab("pa0")
def a_loads():
    A(f"buffer_load_dwordx2 v[{vml}:{vml+1}], v{vMLad}, {srd(rWS)}, s{sMLget} offen sc1")
    for s in range(4): A(f"buffer_load_dwordx4 {vq(vO+4*s)}, v{vVo}, {srd(rWS)}, s{sOget} offen offset:{1024*s} sc1")
las = lab("as")
A(f"s_cmp_lg_u32 s{sLAYER}, 0\ns_cbranch_scc1 {las}")
A(f"""
v_lshrrev_b32 v56, 2, v{vL}
v_and_b32 v57, 3, v{vL}
v_lshlrev_b32 v58, 4, v57
v_lshl_add_u32 v{vW2o}, v56, 10, v58
s_lshl_b32 s{sT2}, s{sg}, 19
s_lshl_b32 s3, s{sw}, 17
s_add_u32 s{sT2}, s{sT2}, s3
s_lshl_b32 s3, s{sj}, 6
s_add_u32 s{sT2}, s{sT2}, s3""")
if not INO:
    for n in range(WOEARLY, 8): dma(vW2o, rWO, sT2, sKm, 1024*n, n << 14, f"WO{n}", WPOL)
if W12PF == 6: pf_w12_(62, 63, 1)
a_loads()
NX = 0
A(f"""
v_lshrrev_b32 v58, 1, v{vL}
v_mul_u32_u24 v{vW1o}, 3584, v58
v_and_b32 v58, 1, v{vL}
v_lshl_add_u32 v{vW1o}, v58, 4, v{vW1o}
v_and_b32 v56, 3, v56                     ; r
v_lshrrev_b32 v58, 4, v{vL}               ; q
v_lshlrev_b32 v57, 3, v57                 ; 8c
v_and_b32 v59, 1, v56
v_lshrrev_b32 v60, 1, v56
v_lshl_add_u32 v59, v60, 3, v59
v_lshl_add_u32 v59, v58, 5, v59
v_lshl_add_u32 v59, v59, 6, v57
v_add_u32 v{vTrO}, s{sKm}, v59
v_lshl_add_u32 v56, v58, 3, v56           ; 8q+r
v_lshl_add_u32 v58, v56, 5, v57
v_add_u32 v{vT1}, s{sKm}, v58
v_lshl_add_u32 v58, v56, 6, v57
s_and_b32 s3, s{sw}, 1
s_lshl_b32 s3, s3, 5
s_add_u32 s3, s3, {LW2}
v_add_u32 v{vT2}, s3, v58
v_mov_b32_dpp v{vSEL2}, v{vSEL} row_ror:8 {DPPF}
v_mov_b32_dpp v{vSEL2+1}, v{vSEL+1} row_ror:8 {DPPF}
v_mov_b32_dpp v{vSEL2+2}, v{vSEL+2} row_ror:8 {DPPF}
v_mov_b32_dpp v{vSEL2+3}, v{vSEL+3} row_ror:8 {DPPF}
s_waitcnt vmcnt({5+NX})""")
if PROF == 2: stamp(4)
if not INO: tr_reads(aWO, vTrO, 4, 2, 128, 32, 1024)
A(f"s_waitcnt lgkmcnt(0)\ns_branch {la0}")
A(f"{las}:")
if opt("sa", 4): A(f"s_sleep {opt('sa', 4)}")
A(f"{la}:")
a_loads()
A(f"{la0}:")
wc = [f"v_max_f32_dpp v57, v{vml}, v{vml} quad_perm:[1,0,3,2] {DPPF}",
      f"v_max_f32_dpp v57, v57, v57 quad_perm:[2,3,0,1] {DPPF}",
      "v_mov_b32 v58, v57", "v_permlane16_swap_b32 v57, v58", "v_max_f32 v57, v57, v58",
      "v_mov_b32 v58, v57", "v_permlane32_swap_b32 v57, v58", "v_max_f32 v57, v57, v58",
      f"v_sub_f32 v57, v{vml}, v57", "v_exp_f32 v57, v57", f"v_mul_f32 v58, v57, v{vml+1}",
      f"v_add_f32_dpp v58, v58, v58 quad_perm:[1,0,3,2] {DPPF}", f"v_add_f32_dpp v58, v58, v58 quad_perm:[2,3,0,1] {DPPF}",
      "v_mov_b32 v59, v58"]
A(f"s_waitcnt vmcnt(4)\nv_cmp_u_f32 vcc, v{vml}, v{vml+1}")
A(wc.pop(0))
A(f"s_cbranch_vccnz L_aretry")
A(wc.pop(0)); A(wc.pop(0))
for s in range(4):
    A(f"s_waitcnt vmcnt({3-s})")
    for t in range(2):
        c = "0" if s == 0 else vq(vDy+4*t)
        A(f"v_mfma_f32_16x16x32_bf16 {vq(vDy+4*t)}, {vq(vO+4*s)}, {aq(aWO+(t*4+s)*4)}, {c}")
        for _ in range(1 if s < 3 else 2):
            if wc: A(wc.pop(0))
while wc: A(wc.pop(0))
A(f"""
v_mul_f32_dpp v60, v57, v{vDy} quad_perm:[0,0,0,0] {DPPF}
s_nop 0
v_permlane16_swap_b32 v58, v59
v_mul_f32_dpp v61, v57, v{vDy+4} quad_perm:[0,0,0,0] {DPPF}
v_fmac_f32_dpp v60, v57, v{vDy+1} quad_perm:[1,1,1,1] {DPPF}
v_add_f32 v58, v58, v59
v_fmac_f32_dpp v61, v57, v{vDy+5} quad_perm:[1,1,1,1] {DPPF}
v_fmac_f32_dpp v60, v57, v{vDy+2} quad_perm:[2,2,2,2] {DPPF}
v_mov_b32 v59, v58
v_fmac_f32_dpp v61, v57, v{vDy+6} quad_perm:[2,2,2,2] {DPPF}
v_fmac_f32_dpp v60, v57, v{vDy+3} quad_perm:[3,3,3,3] {DPPF}
v_permlane32_swap_b32 v58, v59
v_fmac_f32_dpp v61, v57, v{vDy+7} quad_perm:[3,3,3,3] {DPPF}
v_add_f32 v58, v58, v59
v_rcp_f32 v58, v58
v_permlane32_swap_b32 v60, v61
v_add_f32 v60, v60, v61
v_mov_b32 v61, v60
v_permlane16_swap_b32 v60, v61
v_add_f32 v60, v60, v61
v_mul_f32 v60, v60, v58
v_cmp_u_f32 vcc, v60, v60
ds_write_b32 v{vREDA}, v60
s_cbranch_vccz {laok}
L_aretry:""")
if opt("adrain", 1): A("s_waitcnt vmcnt(0)")
if opt("alight", 0):
    lal = lab("al")
    A(f"s_cmp_lg_u32 s{sLAYER}, 0\ns_cbranch_scc1 {lal}x")
    A(f"{lal}:\ns_sub_u32 s{sBUD}, s{sBUD}, 1\ns_cbranch_scc1 {lal}g")
    if opt("abo", 0): A(f"s_sleep {opt('abo', 0)}")
    A(f"buffer_load_dwordx2 v[{vml}:{vml+1}], v{vMLad}, {srd(rWS)}, s{sMLget} offen sc1")
    A(f"""s_waitcnt vmcnt(0)
v_cmp_u_f32 vcc, v{vml}, v{vml+1}
s_cbranch_vccnz {lal}
s_branch {la}
{lal}g:
s_mov_b32 s{sBUD}, 0
{lal}x:""")
elif opt("abo", 0):
    with only("eq", sLAYER, 0): A(f"s_sleep {opt('abo', 0)}")
retry(la)
A(f"{laok}:")
stamp(1)
if W12PF == 1 and not IN12:
    with only("eq", sLAYER, 0): pf_w12(62, 63)
if W12PF in (5, 6):
    with only("eq", sLAYER, 0): pf_w12_(62, 63, 2)
A("s_waitcnt lgkmcnt(0)\ns_barrier")
ly, ly2 = lab("y"), lab("y2")
A(f"s_cmp_lg_u32 s{sw}, 0\ns_cbranch_scc1 {ly}")
A(f"ds_read_b128 v[28:31], v{vRED} offset:{REDA-RED1}")
exec_set(0xffffffff, 0)
A(f"""
s_waitcnt lgkmcnt(0)
v_add_f32 v28, v28, v29
v_add_f32 v30, v30, v31
v_add_f32 v28, v28, v30""")
A("v_cvt_pk_bf16_f32 v28, v28, v28")
A(f"buffer_store_short v28, v{vPAIR}, {srd(rWS)}, s{sYpub} offen sc1")
exec_all()
A(f"s_branch {ly2}\n{ly}:")
if opt("wb", 0) == 2:
    with only("eq", sw, 3):
        with only("eq", sLAYER, 1): A("buffer_wbl2 sc1")
A(f"s_sleep 2\n{ly2}:")
stamp(2)
def gather(s0, s1, lp, so=None, after=None):
    lg, lok, lchk, lo = lab(lp), lab(lp + "ok"), lab(lp + "ck"), lab(lp + "o")
    A(f"{lg}:")
    A(f"buffer_load_dwordx4 v[32:35], v{vGad}, {srd(rWS)}, s{s0} offen sc1")
    A(f"buffer_load_dwordx4 v[36:39], v{vGad}, {srd(rWS)}, s{s1} offen sc1")
    if so is not None:
        A(f"s_cmp_eq_u32 s{sw}, s{skq}\ns_cbranch_scc1 {lo}")
    A(f"""s_waitcnt vmcnt(1)
v_mfma_f32_16x16x32_bf16 v[40:43], {vq(vSEL)}, v[32:35], {vq(vX)}
s_waitcnt vmcnt(0)
v_mfma_f32_16x16x32_bf16 v[40:43], {vq(vSEL)}, v[36:39], v[40:43]""")
    if so is not None:
        A(f"{'' if after else 's_nop 6'}\ns_branch {lchk}\n{lo}:\ns_add_u32 s3, s{so}, 4096")
        A(f"buffer_load_dwordx4 v[44:47], v{vGad}, {srd(rWS)}, s{so} offen sc1")
        A(f"buffer_load_dwordx4 v[48:51], v{vGad}, {srd(rWS)}, s3 offen sc1")
        A(f"""s_waitcnt vmcnt(3)
v_mfma_f32_16x16x32_bf16 v[40:43], {vq(vSEL)}, v[32:35], {vq(vX)}
s_waitcnt vmcnt(2)
v_mfma_f32_16x16x32_bf16 v[40:43], {vq(vSEL)}, v[36:39], v[40:43]
s_waitcnt vmcnt(1)
v_mfma_f32_16x16x32_bf16 v[40:43], {vq(vSEL2)}, v[44:47], v[40:43]
s_waitcnt vmcnt(0)
v_mfma_f32_16x16x32_bf16 v[40:43], {vq(vSEL2)}, v[48:51], v[40:43]""")
    A(f"{lchk}:")
    if after:
        A("s_nop 3"); after()
    A(f"v_cmp_u_f32 vcc, v40, v40\ns_cbranch_vccz {lok}")
    if opt("gsleep", 0): A(f"s_sleep {opt('gsleep', 0)}")
    retry(lg)
    A(f"{lok}:")
    A(f"v_cvt_pk_bf16_f32 v{vXP}, v40, v41\nv_cvt_pk_bf16_f32 v{vXP+1}, v42, v43")
def w12_burst():
    A(f"""
s_mul_i32 s{sT2}, s{sw}, {128*3584}
s_mul_i32 s3, s{sg}, 448
s_add_u32 s{sT2}, s{sT2}, s3
s_lshl_b32 s3, s{sjf}, 5
s_add_u32 s{sT2}, s{sT2}, s3""")
    for i in range(4): dma(vW1o, rW1, sT2, sKm, 8192 + 1024*i, i*32*3584, "W1", WPOL)
    A(f"""
s_mul_i32 s{sT2}, s{sg}, {224*1024}
s_lshl_b32 s3, s{sj}, 6
s_add_u32 s{sT2}, s{sT2}, s3
s_lshl_b32 s3, s{sw}, 14
s_add_u32 s{sT2}, s{sT2}, s3
s_lshl_b32 s{sT3}, s{sw}, 10""")
    if not opt("w2late", 4):
        for i in range(4): dma(vW2o, rW2, sT2, sT3, LW2 + 4096*i, i*64*1024, "W2", WPOL)
    return 8
l1, l2 = lab("b"), lab("b")
if CSPLIT:
    A(f"s_cmp_lg_u32 s{sCEN}, 0\ns_cbranch_scc1 L_cen2\nL_cen2_back:")
if IN12: A(f"s_sleep {SLEEP_B}")
else:
    A(f"s_cmp_lg_u32 s{sLAYER}, 0\ns_cbranch_scc1 {l1}")
    w12_burst()
    A(f"s_sleep {opt('sb0', 10)}\ns_branch {l2}\n{l1}:\ns_sleep {SLEEP_B}\n{l2}:")
def w1_early():
    with only("eq", sLAYER, 0): tr_reads(aW1, vT1, 4, 1, 1024, 0, 128, base=8192)
    A("s_nop 1")
gather(sYget, sYget1, "gb", so=sYo, after=w1_early if opt("w1e", 1) else None)
stamp(3)
NB = 0
W2L = opt("w2late", 4)
if W2L == 1:
    with only("eq", sLAYER, 0):
        for i in range(4): dma(vW2o, rW2, sT2, sT3, LW2 + 4096*i, i*64*1024, "W2", WPOL)
def w2_own():
    A(f"""
s_mul_i32 s{sT2}, s{sg}, {224*1024}
s_lshl_b32 s3, s{sj}, 6
s_add_u32 s{sT2}, s{sT2}, s3
s_and_b32 s3, s{sw}, 1
s_lshl_b32 s3, s3, 5
s_add_u32 s{sT2}, s{sT2}, s3
v_lshrrev_b32 v56, 1, v{vL}
v_and_b32 v57, 1, v{vL}
v_lshlrev_b32 v57, 4, v57
v_lshl_add_u32 v56, v56, 10, v57""")
    for i in range(7): dma(56, rW2, sT2, sKm, 16384 + 1024*i, i*32*1024, "W2", WPOL)
if W2L >= 2: NB = 63
if W2L == 2:
    with only("eq", sLAYER, 0):
        with only("ge", sw, 2): w2_own()
def w1_land():
    with only("eq", sLAYER, 0):
        A(f"s_waitcnt vmcnt({min(63, 4+NB)})")
        tr_reads(aW1, vT1, 4, 1, 1024, 0, 128, base=8192)
lb = lab("nof")
A(f"s_cmp_ge_u32 s{sjf}, 14")
xproc(aW1, 1, 0, 32, skip_label=lb, pre=None if (IN12 or opt('w1e', 1)) else w1_land)
A(f"{lb}:")
if W2L == 4:
    with only("eq", sLAYER, 0):
        for i in range(4): dma(vW2o, rW2, sT2, sT3, LW2 + 4096*i, i*64*1024, "W2", WPOL)
A(f"s_waitcnt vmcnt({NB}) lgkmcnt(0)\ns_barrier")
if opt("clean", 0):
    with only("eq", sw, 1):
        for i in range(4): A(f"v_mov_b32 v{28+i}, -1")
        A(f"buffer_store_dwordx4 v[28:31], v{vVo}, {srd(rWS)}, s{sOclr} offen sc1")
        if opt("clean", 0) >= 2:
            A(f"""v_and_b32 v32, 15, v{vL}
v_lshlrev_b32 v32, 4, v32
s_lshl_b32 s3, s{sb}, 16
s_add_u32 s3, s3, s{sQpub}
s_add_u32 s3, s3, {QP}""")
            A(f"v_and_b32 v33, 16, v{vL}\nv_lshlrev_b32 v33, 6, v33\nv_add_u32 v32, v32, v33\ns_and_b32 s3, s3, 0xfffffbff")
            exec_set(0xffffffff, 0)
            A(f"buffer_store_dwordx4 v[28:31], v32, {srd(rWS)}, s3 offen sc1")
            exec_all()
lh = lab("h")
A(f"s_cmp_lg_u32 s{sw}, 0\ns_cbranch_scc1 {lh}\ns_cmp_ge_u32 s{sjf}, 14\ns_cbranch_scc1 {lh}")
ln_final(0, 32)
A(f"""
v_exp_f32 v29, v29
v_mul_f32 v28, v28, v41
v_add_f32 v29, 1.0, v29
v_rcp_f32 v29, v29
s_cmp_eq_u32 s{sFAST}, 0
v_mul_f32 v28, v28, v29
v_cvt_pk_bf16_f32 v28, v28, v28""")
pub_store(f"buffer_store_short v28, v{vPAIR}, {srd(rWS)}, s{sHpub} offen")
exec_all()
A(f"{lh}:")
if PROF != 2: stamp(4)
if W2L == 4:
    with only("eq", sLAYER, 0): A("s_waitcnt vmcnt(0)\ns_barrier")
ld, ldok, ldsk = lab("pd"), lab("pdok"), lab("pdsk")
if Z1W:
    A(f"s_cmp_lg_u32 s{sw}, 2\ns_cbranch_scc1 {ldsk}")
    A(f"s_cmp_lg_u32 s{sLAYER}, 0\ns_cbranch_scc1 {ld}")
    tr_reads(aW2, vT2, 7, 1, 2048, 0, 256)
    for s in range(7): tr_reads(aW2b[s], vT2, 1, 1, 0, 0, 256, base=2048*s + 32)
    A("s_waitcnt lgkmcnt(0)")
    A(f"{ld}:")
    for s in range(7): A(f"buffer_load_dwordx4 {vq(28+4*s)}, v{vHad}, {srd(rWS)}, s{sHget} offen offset:{64*s} sc1")
    for s in range(7):
        A(f"s_waitcnt vmcnt({6-s})")
        A(f"v_mfma_f32_16x16x32_bf16 v[56:59], {aq(aW2+4*s)}, {vq(28+4*s)}, {'0' if s == 0 else 'v[56:59]'}")
        A(f"v_mfma_f32_16x16x32_bf16 v[60:63], {aq(aW2b[s])}, {vq(28+4*s)}, {'0' if s == 0 else 'v[60:63]'}")
    A(f"v_cmp_u_f32 vcc, v56, v56\nv_cvt_pk_bf16_f32 v56, v56, v57\nv_cvt_pk_bf16_f32 v57, v58, v59\ns_cbranch_vccz {ldok}")
    retry(ld)
    A(f"{ldok}:")
    exec_set(0x00f000f0, 0x00f000f0)
    A("v_cvt_pk_bf16_f32 v56, v60, v61\nv_cvt_pk_bf16_f32 v57, v62, v63")
    exec_set(0x00110011, 0x00110011)
    A(f"buffer_store_dwordx2 v[56:57], v{vZpub}, {srd(rWS)}, s{sZpub} offen sc1")
    exec_all()
else:
    A(f"s_cmp_lt_u32 s{sw}, 2\ns_cbranch_scc1 {ldsk}")
    if not IN12:
        lds_ = lab("ds")
        A(f"s_cmp_lg_u32 s{sLAYER}, 0\ns_cbranch_scc1 {lds_}")
        if W2L in (2, 3):
            if W2L == 3: w2_own()
            A("s_waitcnt vmcnt(0)")
            tr_reads(aW2, vT1, 7, 1, 1024, 0, 128, base=16384)
        else: tr_reads(aW2, vT2, 7, 1, 2048, 0, 256)
        A(f"s_waitcnt lgkmcnt(0)\ns_branch {ld}\n{lds_}:")
        if opt("sd", 6): A(f"s_sleep {opt('sd', 6)}")
    A(f"{ld}:")
    if opt("dmask", 1): exec_set(0x00010001, 0x00010001)
    for s in range(7): A(f"buffer_load_dwordx4 {vq(28+4*s)}, v{vHad}, {srd(rWS)}, s{sHget} offen offset:{64*s} sc1")
    for s in range(7):
        A(f"s_waitcnt vmcnt({6-s})")
        A(f"v_mfma_f32_16x16x32_bf16 v[56:59], {aq(aW2+4*s)}, {vq(28+4*s)}, {'0' if s == 0 else 'v[56:59]'}")
    A(f"v_cmp_u_f32 vcc, v56, v56\nv_cvt_pk_bf16_f32 v56, v56, v57\nv_cvt_pk_bf16_f32 v57, v58, v59\ns_cbranch_vccz {ldok}")
    retry(ld)
    A(f"{ldok}:")
    exec_set(0x00010001, 0x00010001)
    A(f"buffer_store_dwordx2 v[56:57], v{vZpub}, {srd(rWS)}, s{sZpub} offen sc1")
    exec_all()
A(f"{ldsk}:")
stamp(5)
A(f"s_cmp_lg_u32 s{sLAYER}, 0\ns_cbranch_scc1 L_final")
A("s_barrier")
A(f"s_sleep {SLEEP_E}")
gather(sZget, sZget1, "ge", so=sZo)
stamp(6)
if opt("q2", 1):
    with only("eq", sw, f"s{skq}"): A(f"ds_write_b64 v{vXQw}, v[{vXP}:{vXP+1}]")
    A(f"v_accvgpr_read_b32 v57, a{aXQr}")
    A(f"s_add_u32 s{rWS}, s{rWS}, {LS}\ns_addc_u32 s{rWS+1}, s{rWS+1}, 0\ns_mov_b32 s{rWS+2}, {WS_BYTES-LS:#x}\ns_mov_b32 s{sLAYER}, 1")
    A(f"s_lshl_b32 s3, s{sw}, 6\ns_add_u32 s3, s3, s{sQpub}\ns_add_u32 s3, s3, {QP}")
    A("s_waitcnt lgkmcnt(0)\ns_barrier")
    for s_ in range(4): A(f"ds_read_b128 {vq(vXA+4*s_)}, v57 offset:{64*s_}")
    unpack_x()
    so = stat_ops()
    for _ in range(7): A(so.pop(0))
    for s_ in range(4):
        A(f"s_waitcnt lgkmcnt({0 if PROF else 3-s_})")
        A(f"v_mfma_f32_16x16x32_bf16 {vq(vG0)}, {vq(vXA+4*s_)}, {aq(aWQ+4*s_)}, {'0' if s_ == 0 else vq(vG0)}")
    for _ in range(4): A(so.pop(0))
    exec_set(0xffffffff, 0)
    pub_store(f"buffer_store_dword v{vG0}, v{vQP}, {srd(rWS)}, s3 offen")
    exec_all()
    if PROF: stamp(7)
    for i in so: A(i)
    stat_write(0)
    A(f"v_mov_b32 v58, {ST0}\ns_waitcnt lgkmcnt(0)\ns_barrier")
    A(f"ds_read_b128 v[52:55], v58\nds_read_b128 v[56:59], v58 offset:16")
    q_addr()
    q_loads(44, sQget)
    A(f"""s_waitcnt lgkmcnt(0)
v_add_f32 v52, v52, v53
v_add_f32 v54, v54, v55
v_add_f32 v56, v56, v57
v_add_f32 v58, v58, v59
v_add_f32 v52, v52, v54
v_add_f32 v56, v56, v58
v_mul_f32 v{vMean}, {f2u(1.0/512):#x}, v52
v_mul_f32 v56, {f2u(1.0/512):#x}, v56
v_fma_f32 v56, -v{vMean}, v{vMean}, v56
v_max_f32 v56, 0, v56
v_add_f32 v56, {f2u(1e-5):#x}, v56
v_rsq_f32 v56, v56
v_mul_f32 v{vRs}, {f2u(QSCALE):#x}, v56""")
else:
    A(f"s_add_u32 s{rWS}, s{rWS}, {LS}\ns_addc_u32 s{rWS+1}, s{rWS+1}, 0\ns_mov_b32 s{rWS+2}, {WS_BYTES-LS:#x}\ns_mov_b32 s{sLAYER}, 1")
    qproj(False)
A(f"s_mov_b32 s{skq}, 99")
if not opt("q2", 1):
    stamp(7)
    q_addr()
A(f"v_accvgpr_read_b32 v56, a{aCS}\nv_accvgpr_read_b32 v57, a{aCS+1}\nv_accvgpr_read_b32 v59, a{aQBw}")
lg, lgok = lab("pg"), lab("pgok")
lg0 = lab("pg0")
if opt("q2", 1): A(f"s_branch {lg0}")
elif opt("sg", 2): A(f"s_sleep {opt('sg', 2)}")
A(f"{lg}:")
q_loads(44, sQget)
A(f"{lg0}:\ns_waitcnt vmcnt(0)")
sum4(44)
A(f"v_cmp_u_f32 vcc, v44, v45\ns_cbranch_vccz {lgok}")
retry(lg)
A(f"{lgok}:")
stamp(8)
q_finish(56)
if opt("wb", 0):
    with only("eq", sw, 3): A("buffer_wbl2 sc1")
A("s_waitcnt lgkmcnt(0)")
if PROF in (3, 4): stamp(1)
qk()
if PROF in (3, 4): stamp(2)
softmax()
if PROF in (3, 4): stamp(3)
order = [((jd + k) & 3, jd) for k in range(4) for jd in range(4)] + [((jd + k) & 3, jd) for jd in range(4, 8) for k in range(4)]
ls = lsum_ops(); fw = fw_ops()
sh = shifts(1) + shifts(2) + shifts(3)
slow = lambda x: "_dpp" in x or "permlane" in x or "v_exp" in x
ex = ls[:7] + ["s_waitcnt lgkmcnt(0)", "s_barrier", fw[0]] + ls[7:] + ["s_waitcnt lgkmcnt(2)" if not PROF else "s_waitcnt lgkmcnt(0)"] + fw[2:4]
post = {1: merge(1), 2: merge(2), 3: merge(3) + [owrite(0)], 5: merge(5), 6: merge(6), 7: merge(7) + [owrite(1)]}
seen = set(); cnt = {}; done = {}; ready = []
for i, (t, jd) in enumerate(order):
    pv_mfma(t, jd, jd not in seen); seen.add(jd)
    cnt[jd] = cnt.get(jd, 0) + 1
    if cnt[jd] == 4 and jd in post: done[jd] = len(A.L)
    for j2, p2 in list(done.items()):
        if sum(x.states() for x in A.L[p2:]) >= 8:
            ready += post[j2]; del done[j2]
    if sh:
        A(sh.pop(0))
        if i % 4 == 3:
            A(ex.pop(0)); A(ex.pop(0))
        continue
    budget = 2
    while budget > 0 and (ex or ready):
        q_ = ex if (ex and (i < 20 or not ready)) else ready
        x = q_.pop(0); A(x); budget -= 2 if slow(x) else 1
while ex: A(ex.pop(0))
for i in ready: A(i)
for j2 in done:
    for i in post[j2]: A(i)
for i in fw[4:]: A(i)
stamp(9)
flush_stamps(16, 10)
A("s_branch L_comb")
A("L_final:")
if opt("wb", 0) == 1:
    with only("eq", sw, 0): A("buffer_wbl2 sc1")
A(f"s_or_b32 s3, s{sg}, s{sj}\ns_cmp_lg_u32 s3, 0\ns_cbranch_scc1 L_done")
if opt("fbar", 1): A("s_barrier")
A(f"s_sleep {SLEEP_F}")
gather(sZget, sZget1, "gf")
A(f"""
s_lshl_b32 s3, s{sb}, 10
s_lshl_b32 s{sT0}, s{sw}, 8
s_add_u32 s3, s3, s{sT0}
s_lshl_b32 s{sT0}, s{sw}, 9
s_add_u32 s{sT0}, s{sT0}, {XB}
s_sub_u32 s3, s3, s{sT0}
v_add_u32 v30, s3, v{vXBw}""")
exec_set(0xffffffff, 0)
A(f"global_store_dwordx2 v30, v[{vXP}:{vXP+1}], {sp(sOUT)}")
with only("eq", sb, 0):
    A(f"v_mov_b32 v30, {EPO}\nv_mov_b32 v31, s{sTAG0}")
    exec_set(1, 0)
    A(f"global_store_dword v30, v31, {sp(sWS)} sc1")
exec_all()
if CSPLIT:
    A("s_branch L_done\nL_cen2:")
    cen_loads(True)
    A("s_waitcnt vmcnt(0)")
    for i in range(4):
        A(f"v_xor_b32 v{32+2*i}, s{sTAG0}, v{32+2*i}\nv_xor_b32 v{33+2*i}, s{sTAG1}, v{33+2*i}")
    A(f"""
v_or3_b32 v40, v33, v35, v37
v_or3_b32 v42, v32, v34, v36
v_or_b32 v40, v40, v39
v_and_b32 v40, -16, v40
v_or3_b32 v40, v40, v42, v38
v_cmp_ne_u32 vcc, 0, v40
s_cbranch_vccz L_cen2_ok""")
    retry("L_cen2")
    A(f"L_cen2_ok:\ns_mov_b32 s{sCEN}, 0\ns_branch L_cen2_back")
A("L_done:")
if PROF:
    stamp(6)
    flush_stamps(32, 7)
    A(f"""
s_lshl_b32 s3, s2, 2
s_add_u32 s3, s3, s{sw}
s_lshl_b32 s3, s3, 8
s_add_u32 s3, s3, {PROF_OFF}
v_lshlrev_b32 v30, 2, v{vL}
v_add_u32 v30, s3, v30
global_store_dword v30, v{vPROF}, {sp(sWS)}""")
A("L_end:\ns_endpgm")
A.L.extend(OOL)
A.raw('.section .rodata,"a"'); A.raw(".p2align 6"); A.raw(f".amdhsa_kernel {NAME}_kernel")
for l in ["next_free_vgpr 512", "next_free_sgpr 102", "accum_offset 256", "group_segment_fixed_size 0", "kernarg_size 88",
          "user_sgpr_count 2", "user_sgpr_kernarg_segment_ptr 1", "system_sgpr_workgroup_id_x 1"]:
    A.raw("  .amdhsa_" + l)
A.raw(".end_amdhsa_kernel")
text = "\n".join(H) + "\n" + A.text()
if opt("al", 3):
    from align8 import align
    text, wd, np_ = align(text, None, opt("al", 3))
    print("aligned: widened", wd, "nops", np_, file=sys.stderr)
open(out, "w").write(text)
print("instrs", len(A.L), "nops inserted", A.nopcount, file=sys.stderr)
```

```python
import sys, math, struct
sys.path.insert(0, "gen")
from asmlib import Asm

NAME = "interleave_layers__gqa_block_cached__dense_activation_silu__decode"
out = sys.argv[1]
O = dict(kv.split("=") for kv in sys.argv[2:])
def opt(k, d): return type(d)(O.get(k, d))
PROF = opt("prof", 0); ABC = [int(x) for x in opt("abc", "0,13,20").split(",")]
SLEEP_B = opt("sb", 14); SLEEP_E = opt("se", 16); SLEEP_F = opt("sf", 7)
FORCE_SLOW = opt("slow", 0); EXP = opt("exp", "")
POL = {"nt": " nt", "none": "", "sc1": " sc1"}
PFO = POL[opt("pfo", "none")]; PF12 = POL[opt("pf12", "none")]; PFQ = POL[opt("pfq", "none")]; WPOL = POL[opt("wpol", "none")]
CW = opt("cw", 3); DROP = opt("drop", "").split(","); CLRP = " sc1" + POL[opt("clrpol", "none")]
W12PF = opt("w12pf", 1)
INO = opt("ino", 0); IN12 = opt("in12", 0)
WPOS0 = opt("wpos0", 20); WSTEP = opt("wstep", 2); MBG = opt("mbg", 1)
def f2u(x): return struct.unpack("<I", struct.pack("<f", x))[0]
LOG2E = 1.4426950408889634
QSCALE = LOG2E / math.sqrt(128.0)

ML, HS, YS, ZS, OS = 16384, 24576, 32768, 49152, 65536
QP = 65536 + 262144
LS = QP + 131072
EPO = 2 * LS; FLG = EPO + 1024; CS = FLG + 3072
WS_BYTES = CS + 65536
PROF_OFF = 16 << 20
LWQ = 0; KST = 16384; LW2 = LWQ
XB = KST + 4 * 32768; RED0 = XB + 2048; RED1 = RED0 + 1024; REDA = RED0 + 2048; ST0 = RED0 + 2560; MB = RED0 + 2688; OB = RED0 + 3072
QB = OB; XQ = RED0
LDS_BYTES = OB + 8192
assert LDS_BYTES <= 163840
sX, sK, sV, sWQ, sWO, sW1, sW2, sOUT, sWS = 4, 6, 8, 10, 12, 16, 18, 20, 24
rK, rV, rWQ, rWO, rW1, rW2, rWS = 28, 32, 36, 40, 44, 48, 52
sg, sb, sj, sw, sFAST, sLAYER, sBUD = 56, 57, 58, 59, 60, 61, 62
sSELLO, sSELHI = 63, 64
sQpub, sQget, sMLpub, sMLget, sHpub, sHget, sYpub, sYget, sZpub, sZget, sOpub, sOget = range(65, 77)
sYget1, sZget1 = 77, 78
sT0, sT1, sT2, sT3 = 26, 27, 14, 15
sVb, sKm, sOclr = 79, 80, 81
sTAG0, sTAG1 = 22, 23
sjf, sU, skq = 98, 99, 21 + 80
sCEN = 11
sYo, sZo = 4, 5
sSTAMP = 82
def srd(r): return f"s[{r}:{r+3}]"
def sp(r): return f"s[{r}:{r+1}]"
vL, vXBw, vXBr, vRED, vREDA, vQP, vMLad, vGad, vHad, vQad, vPAIR, vOBw = range(0, 12)
vSEL = 12; vX = 16
vOBr, vOpub, vMBw, vMBr, vST, vZpub = 20, 21, 22, 23, 24, 25
vVo = 26; vXQw = 27
aCS = 236; aXQr = 238; aQBw = 239
vQ = 28; vD0, vD1 = 44, 48; vROT = 52; vACC = 64; vR = 96
vPROF = 255
vW1o, vW2o, vT1, vT2, vTrO = 224, 225, 226, 227, 228
vSEL2 = 232
def vq(r, n=4): return f"v[{r}:{r+n-1}]"
def aq(r, n=4): return f"a[{r}:{r+n-1}]"
aK, aWQ, aWO, aW1, aW2 = 0, 128, 160, 192, 208
DUMMY = "a[252:255]"
Z1W = opt("z1w", 0)
aW2b = [144, 148, 152, 156, 240, 244, 248]

A = Asm()
uid = [0]
def lab(p):
    uid[0] += 1
    return f"L_{p}{uid[0]}"
def exec_set(lo, hi): A(f"s_mov_b32 exec_lo, {lo:#x}\ns_mov_b32 exec_hi, {hi:#x}")
def exec_all(): A("s_mov_b64 exec, -1")
def sreg(i): return sSTAMP + 2*i if i < 8 else {8: 0, 9: 6}[i]
def stamp(i):
    if PROF: A(f"s_mem{'time' if PROF >= 4 else 'realtime'} s[{sreg(i)}:{sreg(i)+1}]")
def flush_stamps(base, n):
    if not PROF: return
    A("s_waitcnt lgkmcnt(0)")
    for i in range(n): A(f"v_writelane_b32 v{vPROF}, s{sreg(i)}, {base+i}")
def retry(loop):
    A(f"s_sub_u32 s{sBUD}, s{sBUD}, 1\ns_cbranch_scc0 {loop}\ns_mov_b32 s{sBUD}, 0")
OOL = []
def pub_store(ins):
    from asmlib import Ins
    a, b = lab("ps"), lab("pe")
    A(f"s_cmp_eq_u32 s{sFAST}, 0\ns_cbranch_scc1 {a}")
    A(ins, cond=True)
    A(f"{b}:")
    OOL.extend([Ins(f"{a}:"), Ins("s_nop 7"), Ins(ins + " sc1"), Ins(f"s_branch {b}")])
class only:
    def __init__(self, cc, reg, val):
        self.neg = {"eq": "lg", "lg": "eq", "lt": "ge", "ge": "lt"}[cc]; self.reg = reg; self.val = val
    def __enter__(self):
        self.l = lab("sk")
        A(f"s_cmp_{self.neg}_u32 s{self.reg}, {self.val}\ns_cbranch_scc1 {self.l}")
    def __exit__(self, *a): A(f"{self.l}:")
class ool:
    def __init__(self, cc, reg, val): self.cc = cc; self.reg = reg; self.val = val
    def __enter__(self):
        self.l = lab("oo"); self.b = lab("ob")
        A(f"s_cmp_{self.cc}_u32 s{self.reg}, {self.val}\ns_cbranch_scc1 {self.l}")
        self.save = A.L; A.L = []
        A(f"{self.l}:\ns_nop 7")
    def __exit__(self, *a):
        A(f"s_nop 4\ns_branch {self.b}")
        OOL.extend(A.L); A.L = self.save
        A(f"{self.b}:")
def mksrd(r, p, nbytes):
    A(f"s_mov_b32 s{r}, s{p}\ns_and_b32 s{r+1}, s{p+1}, 0xffff\ns_mov_b32 s{r+2}, {nbytes:#x}\ns_mov_b32 s{r+3}, 0x20000")
def dma(vo, r, sbase, m0reg, m0add, soffadd, tag, pol, cond=False):
    A(f"s_add_u32 m0, s{m0reg}, {m0add}\ns_add_u32 s3, s{sbase}, {soffadd}")
    A(f"buffer_load_dwordx4 v{vo}, {srd(r)}, s3 offen{pol} lds", tag=tag, cond=cond)
def tr_reads(adst, vbase, steps, tiles, sstep, tstep, second, base=0):
    for t in range(tiles):
        for s in range(steps):
            d = adst + (t*steps + s)*4
            A(f"ds_read_b64_tr_b16 a[{d}:{d+1}], v{vbase} offset:{base + s*sstep + t*tstep}")
            A(f"ds_read_b64_tr_b16 a[{d+2}:{d+3}], v{vbase} offset:{base + s*sstep + t*tstep + second}")
def pack_pairs(v, t):
    A(f"v_mov_b32_dpp v{t}, v{v} quad_perm:[1,0,3,2] row_mask:0xf bank_mask:0xf\nv_cvt_pk_bf16_f32 v{v}, v{v}, v{t}")
DPPF = "row_mask:0xf bank_mask:0xf"

hdr = open(f"cdna_kernels/{NAME}.s.ref").read().split("\n")
H = [l for l in hdr if l.startswith(";") and "@launch" not in l and not l.startswith("; Override") and not l.startswith("; grid=ceil")]
H.append(f"; @launch grid=(256,1,1) block=(256,1,1) lds={LDS_BYTES}")
A.raw('.amdgcn_target "amdgcn-amd-amdhsa--gfx950"')
A.raw(".text"); A.raw(f".globl {NAME}_kernel"); A.raw(".p2align 8"); A.raw(f".type {NAME}_kernel,@function")
A.raw(f"{NAME}_kernel:")
for t in """One persistent workgroup per CU (256 x 4 waves, 512 registers per lane). Workgroup (g = id&7, b, j) owns 512 keys of
kv head g / batch b; K (AGPRs, MFMA A layout via LDS) and V (VGPRs, transposed with v_perm) are read from HBM once and
stay in registers for both layers. Between the phases small vectors are handed over through d_ws: slots are first set
to an all-ones (NaN) pattern, a census of tagged flags (tag = epoch word found in d_ws + 1) proves that, and a consumer
accepts a slot once no NaN pattern is left. Hand-offs inside a kv-head group use plain stores when the census shows the
whole group on one XCD (write-through stores otherwise); all hand-off loads bypass L1. Every wait is bounded.
The s_sleep in front of a first look at a slot keeps readers off lines that are still being written.""".split("\n"): A.raw("; " + t)

tn, tq = 31, 32
vKo = vR; vKr = vR + 4; vWa = vR + 8; vTa = vR + 9
vEP = vR + 10; vXr = vR + 12; vX0 = vR + 16; vX1 = vR + 20; vXA0 = vACC
stamp(0)
A(f"""
s_cmp_ge_u32 s2, 256
s_cbranch_scc1 L_end
s_load_dwordx16 s[4:19], s[0:1], 0
s_load_dwordx2 s[20:21], s[0:1], 64
s_load_dwordx2 s[24:25], s[0:1], 80
v_lshrrev_b32 v30, 6, v0
v_and_b32 v{vL}, 63, v0
s_and_b32 s{sg}, s2, 7
v_readfirstlane_b32 s{sw}, v30
s_lshr_b32 s{sU}, s2, 3               ; jj
s_lshr_b32 s{sb}, s{sU}, 4
s_and_b32 s{sj}, s{sU}, 15
s_and_b32 s3, s{sj}, 6
s_cmp_eq_u32 s3, 6
s_cselect_b32 s3, 8, 0
s_xor_b32 s{sjf}, s{sj}, s3
v_and_b32 v{tn}, 15, v{vL}
v_lshrrev_b32 v{tq}, 4, v{vL}
s_mul_i32 s{sT0}, s{sU}, {ABC[0]}
s_mul_i32 s3, s{sw}, {ABC[1]}
s_add_u32 s{sT0}, s{sT0}, s3
s_mul_i32 s3, s{sg}, {ABC[2]}
s_add_u32 s{sT0}, s{sT0}, s3
s_and_b32 s{sT0}, s{sT0}, 31      ; r
s_lshl_b32 s{sT1}, s{sb}, 3
s_add_u32 s{sT1}, s{sT1}, s{sg}   ; bg
s_lshl_b32 s{sVb}, s{sT1}, 21
s_lshl_b32 s3, s{sj}, 17
s_add_u32 s{sVb}, s{sVb}, s3
s_lshl_b32 s3, s{sw}, 15
s_add_u32 s{sVb}, s{sVb}, s3
s_add_u32 s{sKm}, s3, {KST}
s_lshl_b32 s3, s{sT0}, 10
s_add_u32 s{sVb}, s{sVb}, s3
v_lshlrev_b32 v{vVo}, 4, v{vL}
v_mov_b32 v{vKo}, v{vVo}
v_xor_b32 v{vKo+1}, 64, v{vVo}
v_xor_b32 v{vKo+2}, 128, v{vVo}
v_xor_b32 v{vKo+3}, 192, v{vVo}
v_lshrrev_b32 v35, 3, v{vL}
v_and_b32 v36, 7, v{vL}
v_lshlrev_b32 v36, 4, v36
v_lshl_add_u32 v{vWa}, v35, 13, v36
s_and_b32 s{sT1}, s{sU}, 3            ; kq
s_lshl_b32 s{sBUD}, s{sT1}, 20
s_lshl_b32 s3, s{sw}, 18
s_add_u32 s{sBUD}, s{sBUD}, s3
s_lshl_b32 s3, s{sg}, 10
s_add_u32 s{sBUD}, s{sBUD}, s3
s_lshr_b32 s{sT0}, s{sU}, 2           ; cb
s_lshl_b32 s3, s{sT0}, 7
s_add_u32 s{sBUD}, s{sBUD}, s3
s_lshl_b32 s{sLAYER}, s{sw}, 12
s_mov_b32 s{skq}, s{sT1}
s_lshl_b32 s{sQpub}, s{sg}, 13
s_lshl_b32 s3, s{sT0}, 8
s_add_u32 s{sQpub}, s{sQpub}, s3
s_lshl_b32 s3, s{sT1}, 11
s_add_u32 s{sQpub}, s{sQpub}, s3
; x addresses
v_and_b32 v33, 1, v{tq}
v_lshlrev_b32 v33, 3, v33
v_lshl_add_u32 v33, v{tn}, 4, v33      ; 16n+8(q&1)
s_lshl_b32 s3, s{sb}, 10
s_lshl_b32 s{sT0}, s{sw}, 8
s_add_u32 s3, s3, s{sT0}
v_add_u32 v34, s3, v33
v_lshrrev_b32 v35, 5, v{vL}
v_lshlrev_b32 v35, 10, v35
v_xor_b32 v34, v34, v35
v_mov_b32 v37, {EPO}
s_lshl_b32 s{sU}, s{sU}, 2
s_add_u32 s{sU}, s{sU}, s{sw}          ; u = jj*4+w
s_waitcnt lgkmcnt(0)
""")
def scalars():
    A(f"""
s_mov_b32 s{sSELLO}, 0x05040100
s_mov_b32 s{sSELHI}, 0x07060302
s_lshl_b32 s{sT1}, s{sg}, 1
s_add_u32 s{sT1}, s{sT1}, s{sb}          ; gb
s_lshl_b32 s{sQget}, s{sb}, 3
s_add_u32 s{sQget}, s{sQget}, s{sg}
s_lshl_b32 s{sQget}, s{sQget}, 13
s_lshl_b32 s3, s{sw}, 9
s_add_u32 s{sQget}, s{sQget}, s3
s_add_u32 s{sQget}, s{sQget}, {QP}
s_lshl_b32 s{sMLget}, s{sT1}, 9
s_add_u32 s{sHget}, s{sMLget}, {HS}
s_add_u32 s{sMLget}, s{sMLget}, {ML}
s_lshl_b32 s3, s{sj}, 5
s_add_u32 s{sT2}, s{sMLget}, s3
s_lshl_b32 s3, s{sjf}, 5
s_add_u32 s{sHpub}, s{sHget}, s3
s_lshl_b32 s3, s{sj}, 3
s_add_u32 s{sMLpub}, s{sMLget}, s3
s_lshl_b32 s3, s{sw}, 7
s_add_u32 s{sMLget}, s{sMLget}, s3
s_lshl_b32 s{sOget}, s{sT1}, 14
s_add_u32 s{sOget}, s{sOget}, {OS}
s_lshl_b32 s3, s{sj}, 10
s_add_u32 s{sOclr}, s{sOget}, s3
s_lshl_b32 s3, s{sj}, 4
s_add_u32 s{sOpub}, s{sOget}, s3
s_lshl_b32 s3, s{sw}, 10
s_add_u32 s{sOpub}, s{sOpub}, s3
s_lshl_b32 s3, s{sw}, 12
s_add_u32 s{sOget}, s{sOget}, s3
s_lshl_b32 s{sYget}, s{sb}, 13
s_add_u32 s{sYget}, s{sYget}, {YS}
s_add_u32 s{sYget1}, s{sYget}, 4096
s_add_u32 s{sZget}, s{sYget}, {ZS-YS}
s_add_u32 s{sZget1}, s{sZget}, 4096
s_lshl_b32 s3, s{sg}, 10
s_add_u32 s{sYpub}, s{sYget}, s3
s_lshl_b32 s3, s{sj}, 6
s_add_u32 s{sYpub}, s{sYpub}, s3
s_add_u32 s{sZpub}, s{sYpub}, {ZS-YS}
""")
def clears():
    A(f"""
v_mul_u32_u24 v47, {LS}, v{tq}
v_mov_b32 v45, s{sYpub}
v_mov_b32 v46, s{sT2}
v_subrev_u32 v46, 64, v46
v_cmp_le_u32 vcc, 4, v{tn}
v_cndmask_b32 v45, v45, v46, vcc
v_mov_b32 v46, s{sHpub}
v_subrev_u32 v46, 96, v46
v_cmp_le_u32 vcc, 6, v{tn}
v_cndmask_b32 v45, v45, v46, vcc
v_mov_b32 v46, s{sYpub}
v_subrev_u32 v46, 128, v46
v_cmp_le_u32 vcc, 8, v{tn}
v_cndmask_b32 v45, v45, v46, vcc
v_mov_b32 v46, s{sZpub}
v_subrev_u32 v46, 192, v46
v_cmp_le_u32 vcc, 12, v{tn}
v_cndmask_b32 v45, v45, v46, vcc
v_lshl_add_u32 v45, v{tn}, 4, v45
v_add_u32 v45, v45, v47
s_add_u32 s3, s{sQpub}, {CS}
v_lshlrev_b32 v46, 4, v{tn}
v_add_u32 v47, s3, v46
v_cmp_le_u32 vcc, 32, v{vL}
v_cndmask_b32 v45, v45, v47, vcc
v_and_b32 v47, 1, v{tq}
v_lshl_add_u32 v46, v47, 16, v46
v_lshrrev_b32 v47, 1, v{tq}
v_mul_u32_u24 v47, {LS}, v47
v_add_u32 v46, v46, v47
s_add_u32 s{sT2}, s{sQpub}, {QP}
v_mov_b32 v48, -1
v_mov_b32 v49, -1
v_mov_b32 v50, -1
v_mov_b32 v51, -1
s_add_u32 s3, s{sOclr}, {LS}
""")
    exec_set(0xffffffff, 0xffff)
    A(f"buffer_store_dwordx4 v[48:51], v45, {srd(rWS)}, 0 offen{CLRP}", cond=True)
    exec_all()
    A(f"buffer_store_dwordx4 v[48:51], v46, {srd(rWS)}, s{sT2} offen{CLRP}", cond=True)
    A(f"buffer_store_dwordx4 v[48:51], v{vVo}, {srd(rWS)}, s{sOclr} offen{CLRP}", cond=True)
    A(f"buffer_store_dwordx4 v[48:51], v{vVo}, {srd(rWS)}, s3 offen{CLRP}", tag="clr", cond=True)
def tags():
    A(f"""
v_readfirstlane_b32 s{sTAG0}, v{vEP}
v_readfirstlane_b32 s{sTAG1}, v{vEP+1}
s_add_u32 s{sTAG0}, s{sTAG0}, 1
s_andn2_b32 s{sTAG1}, s{sTAG1}, 15""")
def flag():
    with (ool if opt("ool", 0) else only)("eq", sw, CW):
        A.vwait("clr")
        tags()
        A(f"""
s_getreg_b32 s3, hwreg(HW_REG_XCC_ID, 0, 4)
s_or_b32 s3, s3, s{sTAG1}
v_mov_b32 v46, s{sTAG0}
v_mov_b32 v47, s3
s_lshl_b32 s3, s{sb}, 3
s_add_u32 s3, s3, s{sg}
s_lshl_b32 s3, s3, 4
s_add_u32 s3, s3, s{sj}
s_lshl_b32 s3, s3, 3
s_add_u32 s3, s3, {FLG}
v_mov_b32 v45, 0""")
        exec_set(1, 0)
        A(f"buffer_store_dwordx2 v[46:47], v45, {srd(rWS)}, s3 offen sc1", cond=True)
        exec_all()
def kdma(n):
    A(f"s_add_u32 m0, s{sKm}, {n*1024}\ns_xor_b32 s{sT0}, s{sVb}, {n*1024}")
    A(f"buffer_load_dwordx4 v{vKo+(n&3)}, {srd(rK)}, s{sT0} offen{POL[opt('kvpol','nt')]} lds", tag=f"K{n}")
def kread(k):
    A.vwait(f"K{4*k+3}")
    for s in range(4): A(f"ds_read_b128 {aq(aK+16*k+4*s)}, v{vKr+s} offset:{k*4096}")
def vload(n):
    A(f"s_xor_b32 s{sT1}, s{sVb}, {n*1024}")
    A(f"buffer_load_dwordx4 {vq(vR+32+4*n)}, v{vVo}, {srd(rV)}, s{sT1} offen{POL[opt('kvpol','nt')]}", tag=f"V{n}")
base = [("K", n) for n in range(32)] + [("V", n) for n in range(32)]
wl = []
if IN12: wl += [("W1", i) for i in range(4)] + [("W2", i) for i in range(4)]
if INO: wl = [("WO", i) for i in range(8)] + wl if opt("worder", 0) == 0 else wl + [("WO", i) for i in range(8)]
pend = []
for kind, n in base:
    pend.append((kind, n))
    pos = n if kind == "K" else 32 + n
    if wl and pos >= WPOS0 and (pos - WPOS0) % WSTEP == 0:
        pend.append(wl.pop(0)); assert pos < 32 + 8*MBG + 7
assert not wl
kr = [0]; allow_kread = [False]; wfirst = [True]
THR = opt("thr", 0); THR0 = opt("thr0", 16); sXC = 19
sWOb, sW1b, sW2b = 8, 9, 10
def wdma(kind, n):
    if "w" in DROP:
        if opt("fakew", 0):
            A(f"s_lshl_b32 s3, s{sU}, 12\ns_lshl_b32 s{sWOb}, s{sg}, 19\ns_add_u32 s{sWOb}, s{sWOb}, s3")
            fk = [("WO", i) for i in range(4)] + [("W1", 0), ("W1", 1), ("W2", 0), ("W2", 1)]
            if kind == "WO" and n < 4: A(f"buffer_load_dwordx4 {DUMMY}, v{vVo}, {srd(rWO)}, s{sWOb} offen offset:{1024*n} nt")
            if kind == "W1":
                A(f"s_lshl_b32 s3, s2, 2\ns_add_u32 s3, s3, s{sw}\ns_mul_i32 s3, s3, 1792")
                if n < 2: A(f"buffer_load_dwordx4 {DUMMY}, v{vVo}, {srd(rW1)}, s3 offen offset:{768*n} nt")
                else: A(f"buffer_load_dwordx4 {DUMMY}, v{vVo}, {srd(rW2)}, s3 offen offset:{768*(n-2)} nt")
        return
    if wfirst[0]:
        wfirst[0] = False
        assert kr[0] >= 4
        A(f"""s_waitcnt lgkmcnt(0)
v_lshrrev_b32 v111, 2, v{vL}
v_and_b32 v112, 3, v{vL}
v_lshlrev_b32 v112, 4, v112
v_lshl_add_u32 v111, v111, 10, v112
v_lshrrev_b32 v112, 1, v{vL}
v_mul_u32_u24 v112, 3584, v112
v_and_b32 v113, 1, v{vL}
v_lshl_add_u32 v112, v113, 4, v112
s_lshl_b32 s{sWOb}, s{sg}, 19
s_lshl_b32 s3, s{sw}, 17
s_add_u32 s{sWOb}, s{sWOb}, s3
s_lshl_b32 s3, s{sj}, 6
s_add_u32 s{sWOb}, s{sWOb}, s3
s_mul_i32 s{sW2b}, s{sg}, {224*1024}
s_add_u32 s{sW2b}, s{sW2b}, s3
s_lshl_b32 s3, s{sw}, 14
s_add_u32 s{sW2b}, s{sW2b}, s3
s_mul_i32 s{sW1b}, s{sw}, {128*3584}
s_mul_i32 s3, s{sg}, 448
s_add_u32 s{sW1b}, s{sW1b}, s3
s_lshl_b32 s3, s{sjf}, 5
s_add_u32 s{sW1b}, s{sW1b}, s3""")
    if kind == "WO": dma(111, rWO, sWOb, sKm, 1024*n, n << 14, f"WO{n}", " nt")
    elif kind == "W1":
        with only("lt", sjf, 14): dma(112, rW1, sW1b, sKm, 8192 + 1024*n, n*32*3584, "W1", " nt", cond=True)
    elif n < 3: dma(111, rW2, sW2b, sKm, 12288 + 1024*n, n*64*1024, "W2", " nt")
    else:
        with only("lt", sw, 2): dma(111, rW2, sW2b, sKm, 12288 + 1024*n, n*64*1024, "W2", " nt", cond=True)
def stream(k=1, upto=None):
    if upto is None and k <= 0: return
    if upto is not None:
        nxt = [n if kd == "K" else 32 + n for kd, n in pend if kd in "KV"][0]
        if nxt > upto: return
    while pend and (k > 0 or upto is not None):
        kind, n = pend.pop(0)
        if kind[0] == "W":
            wdma(kind, n); continue
        pos = n if kind == "K" else 32 + n
        if THR and THR0 <= pos < THR0 + THR:
            with only("lt", sXC, opt("thrx", 4)): A(f"s_waitcnt vmcnt({opt('thrn', 4)})")
        kdma(n) if kind == "K" else vload(n)
        if PFOPOS > 0 and pos == PFOPOS: pf_wo()
        if allow_kread[0]:
            while kr[0] < 8 and 4*kr[0] + 3 + opt("klag", 16) <= pos:
                kread(kr[0]); kr[0] += 1
        k -= 1
        if upto is not None and pos == upto: break
        if upto is None and k <= 0: break

def pf_wo():
    A(f"s_lshl_b32 s3, s{sU}, 12\ns_lshl_b32 s{sT2}, s{sg}, 19\ns_add_u32 s{sT2}, s{sT2}, s3")
    for i in range(4): A(f"buffer_load_dwordx4 {DUMMY}, v{vVo}, {srd(rWO)}, s{sT2} offen offset:{1024*i}{PFO}")
    for x in [int(c) for c in opt("xg", "")]:
        A(f"s_xor_b32 s3, s{sT2}, {x << 19}")
        for i in range(4): A(f"buffer_load_dwordx4 {DUMMY}, v{vVo}, {srd(rWO)}, s3 offen offset:{1024*i}{PFO}")
    for x in range(1, opt("redo", 1)):
        A(f"s_xor_b32 s3, s{sT2}, {[0, 64, 32, 96][x] << 12}")
        for i in range(4): A(f"buffer_load_dwordx4 {DUMMY}, v{vVo}, {srd(rWO)}, s3 offen offset:{1024*i}{PFO}")
PFOPOS = opt('pfopos', -1)
mksrd(rK, sK, 1 << 25)
stream(opt("kf", 0))
mksrd(rWQ, sWQ, 512*4096*2); mksrd(rWS, sWS, WS_BYTES)
if PFOPOS >= 0: mksrd(rWO, sWO, 4096*512*2)
A(f"global_load_dwordx2 {vq(vEP,2)}, v37, {sp(sWS)} sc1", tag="ep")
with (ool if opt("ool", 0) else only)("eq", sw, CW):
    scalars()
    if "clr" not in DROP: clears()
    else: A.vq.append(("clr", True))
if "wa" not in DROP:
    for i in range(4): dma(vWa, rWQ, sBUD, sLAYER, LWQ + 1024*i, i << 16, f"WA{i}", " nt")
A(f"global_load_dwordx2 {vq(vXr,2)}, v34, {sp(sX)}", tag="x")
if PFOPOS == 0: pf_wo()
stream(opt("k0", 6) - opt("kf", 0))
stamp(1)
mksrd(rV, sV, 1 << 25); mksrd(rWO, sWO, 4096*512*2); mksrd(rW1, sW1, 512*1792*2); mksrd(rW2, sW2, 1792*512*2)
if opt("ool", 0): scalars()
else:
    with only("lg", sw, CW): scalars()
A(f"s_mov_b32 s{sLAYER}, 0\ns_mov_b32 s{sBUD}, 400000")
if THR: A(f"s_getreg_b32 s{sXC}, hwreg(HW_REG_XCC_ID, 0, 4)")
TLB = opt("tlb", 1)
if TLB:
    exec_set(1, 0)
    A(f"v_mov_b32 v44, 0")
    A(f"buffer_load_dword a255, v44, {srd(rV)}, s{sVb} offen nt")
    if TLB in (2, 3):
        A(f"s_lshl_b32 s3, s{sg}, 19")
        A(f"buffer_load_dword a255, v44, {srd(rWO)}, s3 offen nt")
        A(f"s_mul_i32 s3, s{sw}, {128*3584}")
        A(f"buffer_load_dword a255, v44, {srd(rW1)}, s3 offen nt")
        A(f"s_mul_i32 s3, s{sg}, {224*1024}")
        A(f"buffer_load_dword a255, v44, {srd(rW2)}, s3 offen nt")
    if TLB == 3:
        A(f"global_load_dword a255, v44, {sp(sOUT)} nt")
    if TLB == 4:
        A(f"s_or_b32 s3, s{sg}, s{sj}")
        with only("eq", 3, 0): A(f"global_load_dword a255, v44, {sp(sOUT)} nt", cond=True)
    exec_all()
A(f"""
s_lshl_b32 s3, s{sw}, 9
s_add_u32 s3, s3, {XB}
v_add_u32 v{vXBw}, s3, v33
v_lshrrev_b32 v44, 3, v{tn}
v_lshlrev_b32 v44, 8, v44
v_lshl_add_u32 v44, v{tq}, 4, v44
v_add_u32 v{vXBr}, s3, v44
v_lshlrev_b32 v47, 2, v{vL}                ; 4l
v_add_u32 v44, s3, v47
v_mov_b32 v41, 0x3f803f80
ds_write_b32 v44, v41 offset:256
s_lshl_b32 s3, s{sw}, 2
s_add_u32 s{sT1}, s3, {RED1}
v_add_u32 v{vRED}, s{sT1}, v{vVo}
v_lshrrev_b32 v46, 5, v{vL}
v_lshl_add_u32 v46, v46, 4, v{tn}
v_lshlrev_b32 v46, 4, v46
s_add_u32 s{sT1}, s3, {REDA}
v_add_u32 v{vREDA}, s{sT1}, v46
s_add_u32 s{sT1}, s3, {ST0}
v_mov_b32 v{vST}, s{sT1}
v_and_b32 v42, 3, v{vL}                    ; l&3
v_lshlrev_b32 v43, 4, v42
v_add_u32 v{vMBw}, {MB}, v43
v_add_u32 v{vMBw}, s3, v{vMBw}
s_lshl_b32 s3, s{sw}, 8
v_lshlrev_b32 v43, 4, v{tq}                ; 16q
v_add_u32 v{vMBr}, {MB}, v43
v_and_b32 v44, 1, v{tq}
v_lshlrev_b32 v44, 16, v44
v_lshl_add_u32 v{vQP}, v{tn}, 2, v44       ; batch*65536 + 4n
v_lshrrev_b32 v44, 5, v{vL}
v_xor_b32 v44, s{sb}, v44
v_lshlrev_b32 v44, 8, v44
v_add_u32 v44, {XQ}, v44
v_add_u32 v{vXQw}, v44, v33
v_bfe_u32 v44, v{vL}, 2, 1
v_lshlrev_b32 v44, 8, v44
v_add3_u32 v44, v44, v43, 0
v_add_u32 v44, {XQ}, v44
v_accvgpr_write_b32 a{aXQr}, v44
v_lshrrev_b32 v44, 2, v{vL}
v_lshlrev_b32 v44, 6, v44
v_lshl_add_u32 v44, v42, 2, v44
s_lshl_b32 s{sT1}, s{sw}, 4
s_add_u32 s{sT1}, s{sT1}, {QB}
v_add_u32 v44, s{sT1}, v44
v_accvgpr_write_b32 a{aQBw}, v44
v_lshlrev_b32 v44, 4, v{tn}
v_lshl_add_u32 v44, v{tq}, 10, v44
v_add_u32 v{vGad}, s3, v44
v_mov_b32 v{vHad}, v43
v_lshlrev_b32 v44, 4, v42
v_lshl_add_u32 v{vQad}, v{tq}, 6, v44
v_add_u32 v{vQad}, {QB}, v{vQad}
v_lshl_add_u32 v44, v{tq}, 2, v42
v_lshlrev_b32 v{vMLad}, 3, v44
v_lshlrev_b32 v{vPAIR}, 1, v{vL}
s_lshl_b32 s3, s{sw}, 11
s_add_u32 s3, s3, {OB}
v_lshlrev_b32 v44, 4, v{tn}
v_add_u32 v{vOBw}, s3, v{vVo}
s_lshl_b32 s3, s{sw}, 9
s_add_u32 s3, s3, {OB}
v_lshl_add_u32 v44, v{tq}, 2, v44
v_add_u32 v{vOBr}, s3, v44
v_lshrrev_b32 v45, 2, v{tn}                ; n>>2
v_lshlrev_b32 v44, 8, v45
v_lshl_add_u32 v44, v42, 2, v44
v_lshl_add_u32 v{vOpub}, v{tq}, 12, v44
s_and_b32 s3, s{sw}, 1
s_lshl_b32 s3, s3, 5
v_lshlrev_b32 v44, 3, v{tq}
v_add_u32 v{vZpub}, s3, v44
{"v_and_b32 v46, 4, v%d" % tn if Z1W else ""}
{"v_lshl_add_u32 v%d, v46, 3, v44" % vZpub if Z1W else ""}
v_mul_u32_u24 v44, 1088, v42
v_lshl_add_u32 v44, v45, 8, v44
v_add_u32 v44, v44, v43
""")
for s in range(4): A(f"v_xor_b32 v46, {64*s}, v44\nv_add_u32 v{vKr+s}, s{sKm}, v46")
A(f"""
v_and_b32 v44, 1, v{tn}
v_lshlrev_b32 v44, 4, v44
v_mov_b32 v46, 0x3f80
v_lshlrev_b32 v46, v44, v46
v_lshrrev_b32 v44, 1, v{tn}
""")
for i in range(4): A(f"v_cmp_eq_u32 vcc, {i}, v44\nv_cndmask_b32 v{vSEL+i}, 0, v46, vcc")
A(f"""
v_lshl_add_u32 v46, v{tq}, 3, v45          ; 8q+r
v_lshlrev_b32 v46, 7, v46
v_lshl_add_u32 v46, v42, 3, v46
s_lshl_b32 s3, s{sw}, 5
v_add_u32 v{vTa}, s3, v46
""")
stream(opt("k1", 2))
if opt("fpos", 12) < 0: flag()

vXP = 28; vXA = 32; vG0 = 48
vS, vSQ, vTm = 30, 31, 56
vMean, vRs = 62, 63
def unpack_x():
    A(f"""
v_lshlrev_b32 v{vX}, 16, v{vXP}
v_and_b32 v{vX+1}, 0xffff0000, v{vXP}
v_lshlrev_b32 v{vX+2}, 16, v{vXP+1}
v_and_b32 v{vX+3}, 0xffff0000, v{vXP+1}""")
def stat_ops():
    o = [f"v_add_f32 v{vS}, v{vX}, v{vX+1}", f"v_mul_f32 v{vSQ}, v{vX}, v{vX}", f"v_add_f32 v{vTm}, v{vX+2}, v{vX+3}",
         f"v_fmac_f32 v{vSQ}, v{vX+1}, v{vX+1}", f"v_add_f32 v{vS}, v{vS}, v{vTm}",
         f"v_fmac_f32 v{vSQ}, v{vX+2}, v{vX+2}", f"v_fmac_f32 v{vSQ}, v{vX+3}, v{vX+3}"]
    for c in ("row_ror:8 " + DPPF, "row_ror:4 " + DPPF, "row_ror:2 " + DPPF, "row_ror:1 " + DPPF, "row_bcast:15 row_mask:0xa bank_mask:0xf"):
        o += [f"v_add_f32_dpp v{vS}, v{vS}, v{vS} {c}", f"v_add_f32_dpp v{vSQ}, v{vSQ}, v{vSQ} {c}"]
    return o
def stat_write(st_off):
    exec_set(0x10000, 0)
    A(f"ds_write2_b32 v{vST}, v{vS}, v{vSQ} offset0:{st_off//4} offset1:{st_off//4+4}")
    exec_all()
def qproj(first):
    with only("eq", sw, f"s{skq}"): A(f"ds_write_b64 v{vXQw}, v[{vXP}:{vXP+1}]")
    A(f"v_accvgpr_read_b32 v57, a{aXQr}")
    unpack_x()
    for i in stat_ops(): A(i)
    stat_write(0)
    A("s_waitcnt lgkmcnt(0)\ns_barrier")
    if first:
        tr_reads(aWQ, vTa, 4, 1, 4096, 0, 512, base=LWQ)
        stream(2)
    for s_ in range(4): A(f"ds_read_b128 {vq(vXA+4*s_)}, v57 offset:{64*s_}")
    A(f"v_mov_b32 v58, {ST0}")
    A(f"ds_read_b128 v[52:55], v58\nds_read_b128 v[56:59], v58 offset:16")
    A(f"s_lshl_b32 s3, s{sw}, 6\ns_add_u32 s3, s3, s{sQpub}\ns_add_u32 s{sT2}, s3, {CS}\ns_add_u32 s3, s3, {QP}")
    for s_ in range(4):
        A(f"s_waitcnt lgkmcnt({0 if (PROF or first) else 5-s_})")
        A(f"v_mfma_f32_16x16x32_bf16 {vq(vG0)}, {vq(vXA+4*s_)}, {aq(aWQ+4*s_)}, {'0' if s_ == 0 else vq(vG0)}")
    A(f"""s_waitcnt lgkmcnt(0)
v_add_f32 v52, v52, v53
v_add_f32 v54, v54, v55
v_add_f32 v56, v56, v57
v_add_f32 v58, v58, v59
v_add_f32 v52, v52, v54
v_add_f32 v56, v56, v58""")
    if not first:
        exec_set(0xffffffff, 0)
        pub_store(f"buffer_store_dword v{vG0}, v{vQP}, {srd(rWS)}, s3 offen")
        exec_all()
    else: stream(2)
    A(f"""
v_mul_f32 v{vMean}, {f2u(1.0/512):#x}, v52
v_mul_f32 v56, {f2u(1.0/512):#x}, v56
v_fma_f32 v56, -v{vMean}, v{vMean}, v56
v_max_f32 v56, 0, v56
v_add_f32 v56, {f2u(1e-5):#x}, v56
v_rsq_f32 v56, v56
v_mul_f32 v{vRs}, {f2u(QSCALE):#x}, v56""")
    if first:
        for i in range(4): A(f"v_mov_b32 v{vXA+i}, 0x3f803f80")
        for s_ in range(4):
            A(f"v_mfma_f32_16x16x32_bf16 v[52:55], {vq(vXA)}, {aq(aWQ+4*s_)}, {'0' if s_ == 0 else 'v[52:55]'}")
        if opt("fpos", 12) >= 0:
            stream(upto=opt("fpos", 12))
            flag()
            stream(upto=opt("b2pos", 16))
            A("s_barrier")
        A(f"s_lshl_b32 s3, s{sw}, 6\ns_add_u32 s3, s3, s{sQpub}\ns_add_u32 s{sT2}, s3, {CS}\ns_add_u32 s3, s3, {QP}")
        exec_set(0xffffffff, 0)
        A(f"buffer_store_dword v{vG0}, v{vQP}, {srd(rWS)}, s3 offen sc1")
        exec_set(0xffff, 0)
        A(f"buffer_store_dword v52, v{vQP}, {srd(rWS)}, s{sT2} offen sc1")
        exec_all()
def q_loads(dst, soff, tag=None, cond=False):
    for k in range(4): A(f"buffer_load_dwordx2 v[{dst+2*k}:{dst+2*k+1}], v60, {srd(rWS)}, s{soff} offen offset:{2048*k if k < 2 else 2048*(k-2)} sc1" if k < 2 else
                         f"buffer_load_dwordx2 v[{dst+2*k}:{dst+2*k+1}], v61, {srd(rWS)}, s{soff} offen offset:{2048*(k-2)} sc1", tag=tag, cond=cond)
def q_addr(): A(f"v_lshlrev_b32 v60, 3, v{vL}\nv_add_u32 v61, 4096, v60")
def sum4(d):
    A(f"v_add_f32 v{d}, v{d}, v{d+2}\nv_add_f32 v{d+1}, v{d+1}, v{d+3}\nv_add_f32 v{d+4}, v{d+4}, v{d+6}\nv_add_f32 v{d+5}, v{d+5}, v{d+7}\nv_add_f32 v{d}, v{d}, v{d+4}\nv_add_f32 v{d+1}, v{d+1}, v{d+5}")
def q_finish(cs):
    A(f"""
v_fma_f32 v44, -v{vMean}, v{cs}, v44
v_fma_f32 v45, -v{vMean}, v{cs+1}, v45
v_mul_f32 v44, v44, v{vRs}
v_mul_f32 v45, v45, v{vRs}
v_cvt_pk_bf16_f32 v44, v44, v45
ds_write_b32 v59, v44
s_waitcnt lgkmcnt(0)
s_barrier""")
    for s_ in range(4): A(f"ds_read_b128 {vq(vQ+4*s_)}, v{vQad} offset:{256*s_}")
A.vwait("x")
stamp(2)
tags()
A(f"""
s_cmp_eq_u32 s{sw}, s{skq}
s_cselect_b32 s3, 64, 32
v_cmp_gt_u32 vcc, s3, v{vL}
v_cndmask_b32 v{vXP}, 0, v{vXr}, vcc
v_cndmask_b32 v{vXP+1}, 0, v{vXr+1}, vcc
s_xor_b32 s{sYo}, s{sYget}, 8192
s_xor_b32 s{sZo}, s{sZget}, 8192""")
qproj(True)
stamp(3)
allow_kread[0] = True
stream(upto=opt("cenpos", 30))
A.raw("; ---- census of the flags")
def cen_loads(cond):
    A(f"s_mov_b32 s3, {FLG}")
    A(f"buffer_load_dwordx4 v[32:35], v{vVo}, {srd(rWS)}, s3 offen sc1", cond=cond)
    A(f"buffer_load_dwordx4 v[36:39], v{vVo}, {srd(rWS)}, s3 offen offset:1024 sc1", tag="cen", cond=cond)
if "cen" not in DROP: cen_loads(False)
else: A.vq.append(("cen", True))
stream(opt("cenlag", 10))
A.vwait("cen")
lcen, lcok = lab("cen"), lab("cok")
A(f"{lcen}:")
if "cen" in DROP or "clr" in DROP: A(f"s_branch {lcok}")
for i in range(4):
    A(f"v_xor_b32 v{32+2*i}, s{sTAG0}, v{32+2*i}\nv_xor_b32 v{33+2*i}, s{sTAG1}, v{33+2*i}")
CSPLIT = opt("csplit", 1)
A(f"""
v_or3_b32 v40, v33, v35, v37
v_or3_b32 v42, v32, v34, v36
v_or_b32 v40, v40, v39
v_and_b32 v40, -16, v40
v_or3_b32 v40, v40, v42, v38
v_cmp_ne_u32 vcc, 0, v40""")
if CSPLIT: A(f"""s_or_b32 s{sCEN}, vcc_lo, vcc_hi
s_lshl_b32 s3, s{sg}, 3
s_lshr_b64 s[{sT2}:{sT2+1}], vcc, s3
s_and_b32 s{sT2}, s{sT2}, 0xff
s_cbranch_scc0 {lcok}
s_sleep 4""")
else: A(f"s_cbranch_vccz {lcok}\ns_sleep 4")
cen_loads(True)
A("s_waitcnt vmcnt(0)")
retry(lcen)
A(f"{lcok}:")
stamp(4)
if PROF: A(f"s_mov_b32 s12, s{sBUD}")
A(f"""
s_getreg_b32 s3, hwreg(HW_REG_XCC_ID, 0, 4)
v_xor_b32 v33, s3, v33
v_xor_b32 v35, s3, v35
v_xor_b32 v37, s3, v37
v_xor_b32 v39, s3, v39
v_or_b32 v33, v33, v35
v_or3_b32 v33, v33, v37, v39
v_cmp_eq_u32 vcc, 0, v33
s_lshl_b32 s3, s{sg}, 3
s_lshr_b64 s[{sT2}:{sT2+1}], vcc, s3
s_and_b32 s{sT2}, s{sT2}, 0xff
s_cmp_eq_u32 s{sT2}, 0xff
s_cselect_b32 s{sFAST}, {0 if FORCE_SLOW else 1}, 0
s_lshl_b32 s{sT3}, s{sg}, 13
s_lshl_b32 s3, s{sw}, 9
s_add_u32 s{sT3}, s{sT3}, s3
s_add_u32 s{sT3}, s{sT3}, {CS}""")
q_addr()
stream(upto=opt("qpos", 42))
if "q" not in DROP: q_loads(44, sQget); q_loads(32, sT3, tag="Q")
else: A.vq.append(("Q", True))
stream(opt("qlag", 8))
A.vwait("Q")
lq1, lq1ok = lab("ql"), lab("qlok")
A(f"{lq1}:")
if DROP != [""] and DROP != ["w"]: A(f"s_branch {lq1ok}")
sum4(44); sum4(32)
A(f"""v_add_f32 v40, v44, v45
v_add_f32 v41, v32, v33
v_cmp_u_f32 vcc, v40, v41
s_cbranch_vccz {lq1ok}""")
q_loads(44, sQget, cond=True); q_loads(32, sT3, cond=True)
A("s_waitcnt vmcnt(0)")
retry(lq1)
A(f"""{lq1ok}:
v_accvgpr_write_b32 a{aCS}, v32
v_accvgpr_write_b32 a{aCS+1}, v33
v_accvgpr_read_b32 v59, a{aQBw}
v_mov_b32 v56, v32
v_mov_b32 v57, v33""")
assert kr[0] == 8
if PROF: A(f"s_mov_b32 s13, s{sBUD}")
q_finish(56)
stream(1)
A(f"s_waitcnt lgkmcnt(0)")
stamp(5)

def qk(filler=None):
    tiles = [(t, u) for t in range(4) for u in range(2)]
    def dreg(k):
        t, u = tiles[k]
        return (vD0 if u == 0 else vD1) if t == 0 else vROT + 4*(k % 3)
    def sel(k):
        t, u = tiles[k]
        if t == 0: return []
        return [f"v_mov_b32_dpp v{(vD0 if u == 0 else vD1)+r}, v{dreg(k)+r} quad_perm:[0,1,2,3] row_mask:0xf bank_mask:{1 << t:#x}" for r in range(4)]
    for k in range(8):
        ex = sel(k-2) if k >= 2 else []
        for s in range(4):
            c = "0" if s == 0 else vq(dreg(k))
            A(f"v_mfma_f32_16x16x32_bf16 {vq(dreg(k))}, {aq(aK+16*k+4*s)}, {vq(vQ+4*s)}, {c}")
            if ex: A(ex.pop(0))
        if filler: filler(k)
    for k in (6, 7):
        for i in sel(k): A(i)
vM, vTt, vLs, vP = 32, 33, 34, 28
vF = 36; vMM = 40
def softmax():
    A(f"""
v_max3_f32 v{vM}, v{vD0}, v{vD0+1}, v{vD0+2}
v_max3_f32 v{vTt}, v{vD0+3}, v{vD1}, v{vD1+1}
v_max3_f32 v{vM}, v{vM}, v{vD1+2}, v{vD1+3}
v_max_f32 v{vM}, v{vM}, v{vTt}
v_max_f32_dpp v{vM}, v{vM}, v{vM} row_ror:4 {DPPF}
v_max_f32_dpp v{vM}, v{vM}, v{vM} row_ror:8 {DPPF}
v_mov_b32 v{vTt}, v{vM}
v_permlane16_swap_b32 v{vM}, v{vTt}
v_max_f32 v{vM}, v{vM}, v{vTt}
v_mov_b32 v{vTt}, v{vM}
v_permlane32_swap_b32 v{vM}, v{vTt}
v_max_f32 v{vM}, v{vM}, v{vTt}""")
    for r in range(8): A(f"v_sub_f32 v{vD0+r}, v{vD0+r}, v{vM}")
    A(f"ds_write_b32 v{vMBw}, v{vM}")
    for r in range(8): A(f"v_exp_f32 v{vD0+r}, v{vD0+r}")
    for p in range(4): A(f"v_cvt_pk_bf16_f32 v{vP+p}, v{vD0+2*p}, v{vD0+2*p+1}")
def aop(t): return vP if t == 0 else vROT + 4*(t-1)
def shifts(t): return [f"v_mov_b32_dpp v{aop(t)+p}, v{vP+p} row_ror:{16-4*t} {DPPF}" for p in range(4)]
def lsum_ops():
    return [f"v_add_f32 v{vLs}, v{vD0}, v{vD0+1}", f"v_add_f32 v{vTt}, v{vD0+2}, v{vD0+3}",
            f"v_add_f32 v{vLs}, v{vLs}, v{vD1}", f"v_add_f32 v{vTt}, v{vTt}, v{vD1+1}",
            f"v_add_f32 v{vLs}, v{vLs}, v{vD1+2}", f"v_add_f32 v{vTt}, v{vTt}, v{vD1+3}",
            f"v_add_f32 v{vLs}, v{vLs}, v{vTt}",
            f"v_add_f32_dpp v{vLs}, v{vLs}, v{vLs} row_ror:4 {DPPF}",
            f"v_add_f32_dpp v{vLs}, v{vLs}, v{vLs} row_ror:8 {DPPF}",
            f"v_mov_b32 v{vTt}, v{vLs}", f"v_permlane16_swap_b32 v{vLs}, v{vTt}", f"v_add_f32 v{vLs}, v{vLs}, v{vTt}",
            f"v_mov_b32 v{vTt}, v{vLs}", f"v_permlane32_swap_b32 v{vLs}, v{vTt}", f"v_add_f32 v{vLs}, v{vLs}, v{vTt}",
            f"ds_write_b32 v{vMBw}, v{vLs} offset:64"]
MLE = opt("mle", 0)
vLq = 44
def ml_pub():
    with only("eq", sw, 0):
        A(f"""
v_mul_f32 v{vMM+1}, v{vF}, v{vLq}
v_fmac_f32 v{vMM+1}, v{vF+1}, v{vLq+1}
v_fmac_f32 v{vMM+1}, v{vF+2}, v{vLq+2}
v_fmac_f32 v{vMM+1}, v{vF+3}, v{vLq+3}
v_lshlrev_b32 v48, 3, v{vL}""")
        exec_set(0x00010001, 0x00010001)
        pub_store(f"buffer_store_dwordx2 v[{vMM}:{vMM+1}], v48, {srd(rWS)}, s{sMLpub} offen")
        exec_all()
def fw_ops():
    return [f"ds_read_b128 {vq(vF)}, v{vMBr}", "s_waitcnt lgkmcnt(0)",
            f"v_max3_f32 v{vMM}, v{vF}, v{vF+1}, v{vF+2}", f"v_max_f32 v{vMM}, v{vMM}, v{vF+3}"] + \
           [f"v_sub_f32 v{vF+i}, v{vF+i}, v{vMM}" for i in range(4)] + [f"v_exp_f32 v{vF+i}, v{vF+i}" for i in range(4)]
def owrite(half): return f"ds_write_b128 v{vOBw}, {vq(vACC+16*half)} offset:{1024*half}"
sROW = {1: 28, 2: 30, 3: 36}
def row_masks():
    A(f"s_mov_b32 s28, 0xffff0000\ns_mov_b32 s29, 0\ns_mov_b32 s30, 0\ns_mov_b32 s31, 0xffff\ns_mov_b32 s36, 0\ns_mov_b32 s37, 0xffff0000")
def merge(jd):
    d = vACC + 16*(jd >> 2)
    return [f"v_cndmask_b32 v{d+h}, v{d+h}, v{vACC+4*jd+h}, {sp(sROW[jd & 3])}" for h in range(4)]
def pv_mfma(t, jd, first):
    c = "0" if first else vq(vACC+4*jd)
    A(f"v_mfma_f32_16x16x32_bf16 {vq(vACC+4*jd)}, {vq(aop((t - jd) & 3))}, {vq(vR+32*t+4*jd)}, {c}")

def pf_w12(t0, t1):
    pf_w12_(t0, t1)
    if opt("red12", 1) > 1:
        A(f"s_xor_b32 s{sU}, s{sU}, 64"); pf_w12_(t0, t1)
def pf_w12_(t0, t1, which=3):
    A(f"""
s_mul_i32 s{sT2}, s{sU}, {4*3584}
s_mul_i32 s3, s{sg}, 448
s_add_u32 s{sT2}, s{sT2}, s3
v_lshrrev_b32 v{t0}, 5, v{vL}
v_mul_u32_u24 v{t0}, 3584, v{t0}
v_and_b32 v{t1}, 31, v{vL}
v_lshl_add_u32 v{t0}, v{t1}, 4, v{t0}
s_add_u32 s3, s{sT2}, {2*3584}""")
    exec_set(0x0fffffff, 0x0fffffff)
    if which & 1:
        A(f"buffer_load_dwordx4 {DUMMY}, v{t0}, {srd(rW1)}, s{sT2} offen{PF12}")
        A(f"buffer_load_dwordx4 {DUMMY}, v{t0}, {srd(rW1)}, s3 offen{PF12}")
    A(f"""
s_mul_i32 s{sT2}, s{sU}, {14*128}
s_mul_i32 s3, s{sg}, {224*1024}
s_add_u32 s{sT2}, s{sT2}, s3""")
    exec_set(0xffffffff, 0x00ffffff)
    if which & 2:
        A(f"buffer_load_dwordx4 {DUMMY}, v{vVo}, {srd(rW2)}, s{sT2} offen{PF12}")
        A(f"buffer_load_dwordx4 {DUMMY}, v{vVo}, {srd(rW2)}, s{sT2} offen offset:896{PF12}")
    exec_all()
def tail_pf():
    if "tail" in DROP: return
    if not INO and PFOPOS == -1: pf_wo()
    if W12PF == 0 and not IN12: pf_w12(41, 42)
    if W12PF == 5: pf_w12_(41, 42, 1)
    lw = lab("wu"); lw2 = lab("wu")
    A(f"""
v_lshlrev_b32 v35, 7, v{vL}
s_and_b32 s3, s{sw}, 1
s_mul_i32 s3, s3, {LS}
s_cmp_ge_u32 s{sw}, 2
s_cbranch_scc1 {lw}
s_add_u32 s3, s3, s{sOclr}
v_and_b32 v41, 0x380, v35
s_branch {lw2}
{lw}:
v_and_b32 v41, 1, v{vL}
v_lshlrev_b32 v41, 7, v41
v_bfe_u32 v42, v{vL}, 1, 1
v_lshl_add_u32 v41, v42, 16, v41
s_add_u32 s{sT2}, s{sQpub}, {QP}
v_add_u32 v41, s{sT2}, v41
s_sub_u32 s{sT2}, s{sMLpub}, 512
v_add_u32 v42, s{sT2}, v35
v_cmp_le_u32 vcc, 4, v{vL}
v_cndmask_b32 v41, v41, v42, vcc
v_mov_b32 v42, s{sHpub}
v_cmp_le_u32 vcc, 8, v{vL}
v_cndmask_b32 v41, v41, v42, vcc
{lw2}:""")
    exec_set(0x1ff, 0)
    if not opt("nowu", 0): A(f"buffer_load_dword a253, v41, {srd(rWS)}, s3 offen sc1")
    A(f"""
s_getpc_b64 s[{sT2}:{sT2+1}]
L_pc:
s_add_u32 s{sT2}, s{sT2}, L_comb-L_pc
s_addc_u32 s{sT2+1}, s{sT2+1}, 0""")
    exec_all()
    A(f"v_min_u32 v42, L_end-L_comb, v35")
    A(f"s_nop 0")
    if not opt("nocode", 0): A(f"global_load_dword a254, v42, s[{sT2}:{sT2+1}]{POL[opt('cpol','none')]}")

A.raw("; ---- attention, layer 1 (overlaps the rest of the V stream)")
qk(filler=lambda k: stream(2))
stream(40)
softmax()
for t in (1, 2, 3):
    for i in shifts(t): A(i)
for i in lsum_ops(): A(i)
row_masks()
WOEARLY = opt("woearly", 0)
def wo_burst(t0, t1, vo):
    A(f"""
v_lshrrev_b32 v{t0}, 2, v{vL}
v_and_b32 v{t1}, 3, v{vL}
v_lshlrev_b32 v{t1}, 4, v{t1}
v_lshl_add_u32 v{vo}, v{t0}, 10, v{t1}
s_lshl_b32 s{sT2}, s{sg}, 19
s_lshl_b32 s3, s{sw}, 17
s_add_u32 s{sT2}, s{sT2}, s3
s_lshl_b32 s3, s{sj}, 6
s_add_u32 s{sT2}, s{sT2}, s3""")
    for n in range(WOEARLY): dma(vo, rWO, sT2, sKm, 1024*n, n << 14, f"WO{n}", WPOL)
WOG = opt('wog', 3)
stamp(6)
for t in range(4):
    A.vwait(f"V{8*t+7}")
    raw = vR + 32*(t+1); dst = vR + 32*t
    for jd in range(8):
        for p in range(4):
            A(f"v_perm_b32 v{dst+4*jd+p}, v{raw+4*(2*p+1)+(jd>>1)}, v{raw+4*(2*p)+(jd>>1)}, s{sSELHI if jd & 1 else sSELLO}")
        if jd: pv_mfma(t, jd-1, t == 0)
        if t == 3:
            for i in {4: merge(1), 5: merge(2), 6: merge(3) + [owrite(0)]}.get(jd, []): A(i)
    pv_mfma(t, 7, t == 0)
    if t == 3:
        for i in merge(5) + merge(6): A(i)
    if t == MBG:
        A("s_waitcnt lgkmcnt(0)\ns_barrier")
        if MLE: A(f"ds_read_b128 {vq(vLq)}, v{vMBr} offset:64")
        for i in fw_ops(): A(i)
        if MLE: A(f"v_mul_f32 v43, v{vF}, v{vLq}\nv_fmac_f32 v43, v{vF+1}, v{vLq+1}\nv_fmac_f32 v43, v{vF+2}, v{vLq+2}\nv_fmac_f32 v43, v{vF+3}, v{vLq+3}")
        if INO or IN12:
            A(f"""
v_lshrrev_b32 v44, 2, v{vL}
v_and_b32 v44, 3, v44                     ; r
v_and_b32 v45, 3, v{vL}
v_lshlrev_b32 v45, 3, v45                 ; 8c
v_lshrrev_b32 v46, 4, v{vL}               ; q
v_lshl_add_u32 v47, v46, 3, v44           ; 8q+r
v_lshl_add_u32 v47, v47, 5, v45
v_add_u32 v47, s{sKm}, v47                ; w1
v_and_b32 v48, 1, v44
v_lshrrev_b32 v49, 1, v44
v_lshl_add_u32 v48, v49, 3, v48
v_lshl_add_u32 v48, v46, 5, v48
v_lshl_add_u32 v48, v48, 6, v45
v_add_u32 v48, s{sKm}, v48                ; wo
v_and_b32 v49, 1, v46
v_lshl_add_u32 v44, v49, 3, v44
v_lshl_add_u32 v44, v44, 6, v45
v_lshrrev_b32 v46, 1, v46
v_lshl_add_u32 v44, v46, 15, v44
s_and_b32 s3, s{sw}, 1
s_lshl_b32 s3, s3, 5
s_add_u32 s3, s3, {KST + 12288}
v_add_u32 v44, s3, v44                    ; w2
v_add_u32 v45, 65536, v44""")
            if "w" in DROP:
                for i in range(aWO, 236): A(f"v_accvgpr_write_b32 a{i}, 0")
            if INO and "w" not in DROP: tr_reads(aWO, 48, 4, 2, 128, 32, 1024)
            if IN12 and "w" not in DROP:
                tr_reads(aW1, 47, 4, 1, 1024, 0, 128, base=8192)
                for st in range(7):
                    o_ = (st >> 1)*1024; r_ = 45 if st & 1 else 44
                    A(f"ds_read_b64_tr_b16 a[{aW2+4*st}:{aW2+4*st+1}], v{r_} offset:{o_}")
                    A(f"ds_read_b64_tr_b16 a[{aW2+4*st+2}:{aW2+4*st+3}], v{r_} offset:{o_+256}")
    if t == opt("pfg", 3): tail_pf()
    if WOEARLY and t == WOG and t < 3: wo_burst(41, 42, 43)
for i in merge(7) + [owrite(1)]: A(i)
if MLE:
    with only("eq", sw, 0):
        A(f"v_mov_b32 v{vMM+1}, v43\nv_lshlrev_b32 v48, 3, v{vL}")
        exec_set(0x00010001, 0x00010001)
        pub_store(f"buffer_store_dwordx2 v[{vMM}:{vMM+1}], v48, {srd(rWS)}, s{sMLpub} offen")
        exec_all()
if opt("pfg", 3) == 4: tail_pf()
if WOEARLY and WOG == 3: wo_burst(41, 42, 43)
stamp(7)
flush_stamps(0, 8)
if PROF: A(f"v_writelane_b32 v{vPROF}, s12, 8\nv_writelane_b32 v{vPROF}, s13, 9\ns_getreg_b32 s12, hwreg(HW_REG_XCC_ID, 0, 4)\nv_writelane_b32 v{vPROF}, s12, 10")
if EXP == "stream": A("s_branch L_done")

def xproc(aW, tiles, red_off, st_off, skip_label=None, pre=None):
    exec_set(0xffffffff, 0)
    A(f"ds_write_b64 v{vXBw}, v[{vXP}:{vXP+1}]")
    exec_all()
    for s in range(4): A(f"ds_read_b128 {vq(vXA+4*s)}, v{vXBr} offset:{64*s}")
    unpack_x()
    if skip_label: A(f"s_cbranch_scc1 {skip_label}")
    dp = stat_ops()
    for _ in range(11): A(dp.pop(0))
    if pre: pre()
    A("s_waitcnt lgkmcnt(0)")
    for s in range(4):
        A(f"v_mfma_f32_16x16x32_bf16 {vq(vG0)}, {vq(vXA+4*s)}, {aq(aW+4*s)}, {'0' if s == 0 else vq(vG0)}")
        for _ in range(2):
            if dp: A(dp.pop(0))
    stat_write(st_off)
    A(f"ds_write_b32 v{vRED}, v{vG0} offset:{red_off}")
def ln_final(red_off, st_off):
    A(f"""
ds_read_b128 v[36:39], v{vST} offset:{st_off}
ds_read_b128 v[40:43], v{vST} offset:{st_off+16}
ds_read_b128 v[28:31], v{vRED} offset:{red_off}
ds_read_b128 v[32:35], v{vRED} offset:{red_off+512}
s_mov_b32 s3, {f2u(1.0/512):#x}
v_mov_b32 v44, {f2u(1e-5):#x}""")
    exec_set(0xffff, 0)
    A(f"""
s_waitcnt lgkmcnt({0 if PROF else 2})
v_add_f32 v36, v36, v37
v_add_f32 v38, v38, v39
v_add_f32 v40, v40, v41
v_add_f32 v42, v42, v43
v_add_f32 v36, v36, v38
v_add_f32 v40, v40, v42
v_mul_f32 v36, s3, v36                ; mean
v_fma_f32 v41, s3, v40, v44           ; E[x^2] + eps
s_waitcnt lgkmcnt(0)
v_add_f32 v32, v32, v33
v_fma_f32 v41, -v36, v36, v41
v_add_f32 v34, v34, v35
v_max_f32 v41, v44, v41
v_add_f32 v28, v28, v29
v_rsq_f32 v41, v41
v_add_f32 v30, v30, v31
v_add_f32 v32, v32, v34
v_add_f32 v28, v28, v30
v_mul_f32 v42, {f2u(-LOG2E):#x}, v41
v_fma_f32 v28, -v36, v32, v28
v_mul_f32 v29, v28, v42
""")

A.raw("; ---- per-layer chain: merge the four waves' partial outputs and publish them")
A("L_comb:")
A("s_waitcnt lgkmcnt(0)\ns_barrier")
for w in range(4): A(f"ds_read2st64_b32 v[{44+2*w}:{45+2*w}], v{vOBr} offset0:{8*w} offset1:{8*w+1}")
if not MLE: A(f"ds_read_b128 v[52:55], v{vMBr} offset:64")
A("s_waitcnt lgkmcnt(1)" if not (PROF or MLE) else "s_waitcnt lgkmcnt(0)")
A(f"v_mul_f32 v44, v{vF}, v44\nv_mul_f32 v45, v{vF}, v45")
for w in range(1, 4): A(f"v_fmac_f32 v44, v{vF+w}, v{44+2*w}\nv_fmac_f32 v45, v{vF+w}, v{45+2*w}")
A("v_cvt_pk_bf16_f32 v44, v44, v45")
pub_store(f"buffer_store_dword v44, v{vOpub}, {srd(rWS)}, s{sOpub} offen")
if not MLE:
    with only("eq", sw, 0):
        A(f"""
s_waitcnt lgkmcnt(0)
v_mul_f32 v{vMM+1}, v{vF}, v52
v_fmac_f32 v{vMM+1}, v{vF+1}, v53
v_fmac_f32 v{vMM+1}, v{vF+2}, v54
v_fmac_f32 v{vMM+1}, v{vF+3}, v55
v_lshlrev_b32 v46, 3, v{vL}""")
        exec_set(0x00010001, 0x00010001)
        pub_store(f"buffer_store_dwordx2 v[{vMM}:{vMM+1}], v46, {srd(rWS)}, s{sMLpub} offen")
        exec_all()
stamp(0)
vO = 28; vml = 44; vDy = 48
la, laok, la0 = lab("pa"), lab("paok"), lab("pa0")
def a_loads():
    A(f"buffer_load_dwordx2 v[{vml}:{vml+1}], v{vMLad}, {srd(rWS)}, s{sMLget} offen sc1")
    for s in range(4): A(f"buffer_load_dwordx4 {vq(vO+4*s)}, v{vVo}, {srd(rWS)}, s{sOget} offen offset:{1024*s} sc1")
las = lab("as")
A(f"s_cmp_lg_u32 s{sLAYER}, 0\ns_cbranch_scc1 {las}")
A(f"""
v_lshrrev_b32 v56, 2, v{vL}
v_and_b32 v57, 3, v{vL}
v_lshlrev_b32 v58, 4, v57
v_lshl_add_u32 v{vW2o}, v56, 10, v58
s_lshl_b32 s{sT2}, s{sg}, 19
s_lshl_b32 s3, s{sw}, 17
s_add_u32 s{sT2}, s{sT2}, s3
s_lshl_b32 s3, s{sj}, 6
s_add_u32 s{sT2}, s{sT2}, s3""")
if not INO:
    for n in range(WOEARLY, 8): dma(vW2o, rWO, sT2, sKm, 1024*n, n << 14, f"WO{n}", WPOL)
if W12PF == 6: pf_w12_(62, 63, 1)
a_loads()
NX = 0
A(f"""
v_lshrrev_b32 v58, 1, v{vL}
v_mul_u32_u24 v{vW1o}, 3584, v58
v_and_b32 v58, 1, v{vL}
v_lshl_add_u32 v{vW1o}, v58, 4, v{vW1o}
v_and_b32 v56, 3, v56                     ; r
v_lshrrev_b32 v58, 4, v{vL}               ; q
v_lshlrev_b32 v57, 3, v57                 ; 8c
v_and_b32 v59, 1, v56
v_lshrrev_b32 v60, 1, v56
v_lshl_add_u32 v59, v60, 3, v59
v_lshl_add_u32 v59, v58, 5, v59
v_lshl_add_u32 v59, v59, 6, v57
v_add_u32 v{vTrO}, s{sKm}, v59
v_lshl_add_u32 v56, v58, 3, v56           ; 8q+r
v_lshl_add_u32 v58, v56, 5, v57
v_add_u32 v{vT1}, s{sKm}, v58
v_lshl_add_u32 v58, v56, 6, v57
s_and_b32 s3, s{sw}, 1
s_lshl_b32 s3, s3, 5
s_add_u32 s3, s3, {LW2}
v_add_u32 v{vT2}, s3, v58
v_mov_b32_dpp v{vSEL2}, v{vSEL} row_ror:8 {DPPF}
v_mov_b32_dpp v{vSEL2+1}, v{vSEL+1} row_ror:8 {DPPF}
v_mov_b32_dpp v{vSEL2+2}, v{vSEL+2} row_ror:8 {DPPF}
v_mov_b32_dpp v{vSEL2+3}, v{vSEL+3} row_ror:8 {DPPF}
s_waitcnt vmcnt({5+NX})""")
if PROF == 2: stamp(4)
if not INO: tr_reads(aWO, vTrO, 4, 2, 128, 32, 1024)
A(f"s_waitcnt lgkmcnt(0)\ns_branch {la0}")
A(f"{las}:")
if opt("sa", 4): A(f"s_sleep {opt('sa', 4)}")
A(f"{la}:")
a_loads()
A(f"{la0}:")
wc = [f"v_max_f32_dpp v57, v{vml}, v{vml} quad_perm:[1,0,3,2] {DPPF}",
      f"v_max_f32_dpp v57, v57, v57 quad_perm:[2,3,0,1] {DPPF}",
      "v_mov_b32 v58, v57", "v_permlane16_swap_b32 v57, v58", "v_max_f32 v57, v57, v58",
      "v_mov_b32 v58, v57", "v_permlane32_swap_b32 v57, v58", "v_max_f32 v57, v57, v58",
      f"v_sub_f32 v57, v{vml}, v57", "v_exp_f32 v57, v57", f"v_mul_f32 v58, v57, v{vml+1}",
      f"v_add_f32_dpp v58, v58, v58 quad_perm:[1,0,3,2] {DPPF}", f"v_add_f32_dpp v58, v58, v58 quad_perm:[2,3,0,1] {DPPF}",
      "v_mov_b32 v59, v58"]
A(f"s_waitcnt vmcnt(4)\nv_cmp_u_f32 vcc, v{vml}, v{vml+1}")
A(wc.pop(0))
A(f"s_cbranch_vccnz L_aretry")
A(wc.pop(0)); A(wc.pop(0))
for s in range(4):
    A(f"s_waitcnt vmcnt({3-s})")
    for t in range(2):
        c = "0" if s == 0 else vq(vDy+4*t)
        A(f"v_mfma_f32_16x16x32_bf16 {vq(vDy+4*t)}, {vq(vO+4*s)}, {aq(aWO+(t*4+s)*4)}, {c}")
        for _ in range(1 if s < 3 else 2):
            if wc: A(wc.pop(0))
while wc: A(wc.pop(0))
A(f"""
v_mul_f32_dpp v60, v57, v{vDy} quad_perm:[0,0,0,0] {DPPF}
s_nop 0
v_permlane16_swap_b32 v58, v59
v_mul_f32_dpp v61, v57, v{vDy+4} quad_perm:[0,0,0,0] {DPPF}
v_fmac_f32_dpp v60, v57, v{vDy+1} quad_perm:[1,1,1,1] {DPPF}
v_add_f32 v58, v58, v59
v_fmac_f32_dpp v61, v57, v{vDy+5} quad_perm:[1,1,1,1] {DPPF}
v_fmac_f32_dpp v60, v57, v{vDy+2} quad_perm:[2,2,2,2] {DPPF}
v_mov_b32 v59, v58
v_fmac_f32_dpp v61, v57, v{vDy+6} quad_perm:[2,2,2,2] {DPPF}
v_fmac_f32_dpp v60, v57, v{vDy+3} quad_perm:[3,3,3,3] {DPPF}
v_permlane32_swap_b32 v58, v59
v_fmac_f32_dpp v61, v57, v{vDy+7} quad_perm:[3,3,3,3] {DPPF}
v_add_f32 v58, v58, v59
v_rcp_f32 v58, v58
v_permlane32_swap_b32 v60, v61
v_add_f32 v60, v60, v61
v_mov_b32 v61, v60
v_permlane16_swap_b32 v60, v61
v_add_f32 v60, v60, v61
v_mul_f32 v60, v60, v58
v_cmp_u_f32 vcc, v60, v60
ds_write_b32 v{vREDA}, v60
s_cbranch_vccz {laok}
L_aretry:""")
if opt("adrain", 1): A("s_waitcnt vmcnt(0)")
if opt("alight", 0):
    lal = lab("al")
    A(f"s_cmp_lg_u32 s{sLAYER}, 0\ns_cbranch_scc1 {lal}x")
    A(f"{lal}:\ns_sub_u32 s{sBUD}, s{sBUD}, 1\ns_cbranch_scc1 {lal}g")
    if opt("abo", 0): A(f"s_sleep {opt('abo', 0)}")
    A(f"buffer_load_dwordx2 v[{vml}:{vml+1}], v{vMLad}, {srd(rWS)}, s{sMLget} offen sc1")
    A(f"""s_waitcnt vmcnt(0)
v_cmp_u_f32 vcc, v{vml}, v{vml+1}
s_cbranch_vccnz {lal}
s_branch {la}
{lal}g:
s_mov_b32 s{sBUD}, 0
{lal}x:""")
elif opt("abo", 0):
    with only("eq", sLAYER, 0): A(f"s_sleep {opt('abo', 0)}")
retry(la)
A(f"{laok}:")
stamp(1)
if W12PF == 1 and not IN12:
    with only("eq", sLAYER, 0): pf_w12(62, 63)
if W12PF in (5, 6):
    with only("eq", sLAYER, 0): pf_w12_(62, 63, 2)
A("s_waitcnt lgkmcnt(0)\ns_barrier")
ly, ly2 = lab("y"), lab("y2")
A(f"s_cmp_lg_u32 s{sw}, 0\ns_cbranch_scc1 {ly}")
A(f"ds_read_b128 v[28:31], v{vRED} offset:{REDA-RED1}")
exec_set(0xffffffff, 0)
A(f"""
s_waitcnt lgkmcnt(0)
v_add_f32 v28, v28, v29
v_add_f32 v30, v30, v31
v_add_f32 v28, v28, v30""")
A("v_cvt_pk_bf16_f32 v28, v28, v28")
A(f"buffer_store_short v28, v{vPAIR}, {srd(rWS)}, s{sYpub} offen sc1")
exec_all()
A(f"s_branch {ly2}\n{ly}:")
if opt("wb", 0) == 2:
    with only("eq", sw, 3):
        with only("eq", sLAYER, 1): A("buffer_wbl2 sc1")
A(f"s_sleep 2\n{ly2}:")
stamp(2)
def gather(s0, s1, lp, so=None, after=None):
    lg, lok, lchk, lo = lab(lp), lab(lp + "ok"), lab(lp + "ck"), lab(lp + "o")
    A(f"{lg}:")
    A(f"buffer_load_dwordx4 v[32:35], v{vGad}, {srd(rWS)}, s{s0} offen sc1")
    A(f"buffer_load_dwordx4 v[36:39], v{vGad}, {srd(rWS)}, s{s1} offen sc1")
    if so is not None:
        if opt("allso", 0) and lp == "gb": A(f"s_branch {lo}")
        A(f"s_cmp_eq_u32 s{sw}, s{skq}\ns_cbranch_scc1 {lo}")
    A(f"""s_waitcnt vmcnt(1)
v_mfma_f32_16x16x32_bf16 v[40:43], {vq(vSEL)}, v[32:35], {vq(vX)}
s_waitcnt vmcnt(0)
v_mfma_f32_16x16x32_bf16 v[40:43], {vq(vSEL)}, v[36:39], v[40:43]""")
    if so is not None:
        A(f"{'' if after else 's_nop 6'}\ns_branch {lchk}\n{lo}:\ns_add_u32 s3, s{so}, 4096")
        A(f"buffer_load_dwordx4 v[44:47], v{vGad}, {srd(rWS)}, s{so} offen sc1")
        A(f"buffer_load_dwordx4 v[48:51], v{vGad}, {srd(rWS)}, s3 offen sc1")
        A(f"""s_waitcnt vmcnt(3)
v_mfma_f32_16x16x32_bf16 v[40:43], {vq(vSEL)}, v[32:35], {vq(vX)}
s_waitcnt vmcnt(2)
v_mfma_f32_16x16x32_bf16 v[40:43], {vq(vSEL)}, v[36:39], v[40:43]
s_waitcnt vmcnt(1)
v_mfma_f32_16x16x32_bf16 v[40:43], {vq(vSEL2)}, v[44:47], v[40:43]
s_waitcnt vmcnt(0)
v_mfma_f32_16x16x32_bf16 v[40:43], {vq(vSEL2)}, v[48:51], v[40:43]""")
    A(f"{lchk}:")
    if after:
        A("s_nop 3"); after()
    A(f"v_cmp_u_f32 vcc, v40, v40\ns_cbranch_vccz {lok}")
    if opt("gsleep", 0): A(f"s_sleep {opt('gsleep', 0)}")
    retry(lg)
    A(f"{lok}:")
    A(f"v_cvt_pk_bf16_f32 v{vXP}, v40, v41\nv_cvt_pk_bf16_f32 v{vXP+1}, v42, v43")
def w12_burst():
    A(f"""
s_mul_i32 s{sT2}, s{sw}, {128*3584}
s_mul_i32 s3, s{sg}, 448
s_add_u32 s{sT2}, s{sT2}, s3
s_lshl_b32 s3, s{sjf}, 5
s_add_u32 s{sT2}, s{sT2}, s3""")
    for i in range(4): dma(vW1o, rW1, sT2, sKm, 8192 + 1024*i, i*32*3584, "W1", WPOL)
    A(f"""
s_mul_i32 s{sT2}, s{sg}, {224*1024}
s_lshl_b32 s3, s{sj}, 6
s_add_u32 s{sT2}, s{sT2}, s3
s_lshl_b32 s3, s{sw}, 14
s_add_u32 s{sT2}, s{sT2}, s3
s_lshl_b32 s{sT3}, s{sw}, 10""")
    if not opt("w2late", 4):
        for i in range(4): dma(vW2o, rW2, sT2, sT3, LW2 + 4096*i, i*64*1024, "W2", WPOL)
    return 8
l1, l2 = lab("b"), lab("b")
if CSPLIT:
    A(f"s_cmp_lg_u32 s{sCEN}, 0\ns_cbranch_scc1 L_cen2\nL_cen2_back:")
if IN12: A(f"s_sleep {SLEEP_B}")
else:
    A(f"s_cmp_lg_u32 s{sLAYER}, 0\ns_cbranch_scc1 {l1}")
    w12_burst()
    A(f"s_sleep {opt('sb0', 10)}\ns_branch {l2}\n{l1}:\ns_sleep {SLEEP_B}\n{l2}:")
def w1_early():
    with only("eq", sLAYER, 0): tr_reads(aW1, vT1, 4, 1, 1024, 0, 128, base=8192)
    A("s_nop 1")
gather(sYget, sYget1, "gb", so=sYo, after=w1_early if opt("w1e", 1) else None)
stamp(3)
NB = 0
W2L = opt("w2late", 4)
if W2L == 1:
    with only("eq", sLAYER, 0):
        for i in range(4): dma(vW2o, rW2, sT2, sT3, LW2 + 4096*i, i*64*1024, "W2", WPOL)
def w2_own():
    A(f"""
s_mul_i32 s{sT2}, s{sg}, {224*1024}
s_lshl_b32 s3, s{sj}, 6
s_add_u32 s{sT2}, s{sT2}, s3
s_and_b32 s3, s{sw}, 1
s_lshl_b32 s3, s3, 5
s_add_u32 s{sT2}, s{sT2}, s3
v_lshrrev_b32 v56, 1, v{vL}
v_and_b32 v57, 1, v{vL}
v_lshlrev_b32 v57, 4, v57
v_lshl_add_u32 v56, v56, 10, v57""")
    for i in range(7): dma(56, rW2, sT2, sKm, 16384 + 1024*i, i*32*1024, "W2", WPOL)
if W2L >= 2: NB = 63
if W2L == 2:
    with only("eq", sLAYER, 0):
        with only("ge", sw, 2): w2_own()
def w1_land():
    with only("eq", sLAYER, 0):
        A(f"s_waitcnt vmcnt({min(63, 4+NB)})")
        tr_reads(aW1, vT1, 4, 1, 1024, 0, 128, base=8192)
lb = lab("nof")
A(f"s_cmp_ge_u32 s{sjf}, 14")
xproc(aW1, 1, 0, 32, skip_label=lb, pre=None if (IN12 or opt('w1e', 1)) else w1_land)
A(f"{lb}:")
if W2L == 4:
    with only("eq", sLAYER, 0):
        for i in range(4): dma(vW2o, rW2, sT2, sT3, LW2 + 4096*i, i*64*1024, "W2", WPOL)
A(f"s_waitcnt vmcnt({NB}) lgkmcnt(0)\ns_barrier")
if opt("clean", 0):
    with only("eq", sw, 1):
        for i in range(4): A(f"v_mov_b32 v{28+i}, -1")
        A(f"buffer_store_dwordx4 v[28:31], v{vVo}, {srd(rWS)}, s{sOclr} offen sc1")
        if opt("clean", 0) >= 2:
            A(f"""v_and_b32 v32, 15, v{vL}
v_lshlrev_b32 v32, 4, v32
s_lshl_b32 s3, s{sb}, 16
s_add_u32 s3, s3, s{sQpub}
s_add_u32 s3, s3, {QP}""")
            A(f"v_and_b32 v33, 16, v{vL}\nv_lshlrev_b32 v33, 6, v33\nv_add_u32 v32, v32, v33\ns_and_b32 s3, s3, 0xfffffbff")
            exec_set(0xffffffff, 0)
            A(f"buffer_store_dwordx4 v[28:31], v32, {srd(rWS)}, s3 offen sc1")
            exec_all()
lh = lab("h")
A(f"s_cmp_lg_u32 s{sw}, 0\ns_cbranch_scc1 {lh}\ns_cmp_ge_u32 s{sjf}, 14\ns_cbranch_scc1 {lh}")
ln_final(0, 32)
A(f"""
v_exp_f32 v29, v29
v_mul_f32 v28, v28, v41
v_add_f32 v29, 1.0, v29
v_rcp_f32 v29, v29
s_cmp_eq_u32 s{sFAST}, 0
v_mul_f32 v28, v28, v29
v_cvt_pk_bf16_f32 v28, v28, v28""")
pub_store(f"buffer_store_short v28, v{vPAIR}, {srd(rWS)}, s{sHpub} offen")
exec_all()
A(f"{lh}:")
if PROF != 2: stamp(4)
if W2L == 4:
    with only("eq", sLAYER, 0): A("s_waitcnt vmcnt(0)\ns_barrier")
ld, ldok, ldsk = lab("pd"), lab("pdok"), lab("pdsk")
if Z1W:
    A(f"s_cmp_lg_u32 s{sw}, 2\ns_cbranch_scc1 {ldsk}")
    A(f"s_cmp_lg_u32 s{sLAYER}, 0\ns_cbranch_scc1 {ld}")
    tr_reads(aW2, vT2, 7, 1, 2048, 0, 256)
    for s in range(7): tr_reads(aW2b[s], vT2, 1, 1, 0, 0, 256, base=2048*s + 32)
    A("s_waitcnt lgkmcnt(0)")
    A(f"{ld}:")
    for s in range(7): A(f"buffer_load_dwordx4 {vq(28+4*s)}, v{vHad}, {srd(rWS)}, s{sHget} offen offset:{64*s} sc1")
    for s in range(7):
        A(f"s_waitcnt vmcnt({6-s})")
        A(f"v_mfma_f32_16x16x32_bf16 v[56:59], {aq(aW2+4*s)}, {vq(28+4*s)}, {'0' if s == 0 else 'v[56:59]'}")
        A(f"v_mfma_f32_16x16x32_bf16 v[60:63], {aq(aW2b[s])}, {vq(28+4*s)}, {'0' if s == 0 else 'v[60:63]'}")
    A(f"v_cmp_u_f32 vcc, v56, v56\nv_cvt_pk_bf16_f32 v56, v56, v57\nv_cvt_pk_bf16_f32 v57, v58, v59\ns_cbranch_vccz {ldok}")
    retry(ld)
    A(f"{ldok}:")
    exec_set(0x00f000f0, 0x00f000f0)
    A("v_cvt_pk_bf16_f32 v56, v60, v61\nv_cvt_pk_bf16_f32 v57, v62, v63")
    exec_set(0x00110011, 0x00110011)
    A(f"buffer_store_dwordx2 v[56:57], v{vZpub}, {srd(rWS)}, s{sZpub} offen sc1")
    exec_all()
else:
    A(f"s_cmp_lt_u32 s{sw}, 2\ns_cbranch_scc1 {ldsk}")
    if not IN12:
        lds_ = lab("ds")
        A(f"s_cmp_lg_u32 s{sLAYER}, 0\ns_cbranch_scc1 {lds_}")
        if W2L in (2, 3):
            if W2L == 3: w2_own()
            A("s_waitcnt vmcnt(0)")
            tr_reads(aW2, vT1, 7, 1, 1024, 0, 128, base=16384)
        else: tr_reads(aW2, vT2, 7, 1, 2048, 0, 256)
        A(f"s_waitcnt lgkmcnt(0)\ns_branch {ld}\n{lds_}:")
        if opt("sd", 6): A(f"s_sleep {opt('sd', 6)}")
    A(f"{ld}:")
    if opt("dmask", 1): exec_set(0x00010001, 0x00010001)
    for s in range(7): A(f"buffer_load_dwordx4 {vq(28+4*s)}, v{vHad}, {srd(rWS)}, s{sHget} offen offset:{64*s} sc1")
    for s in range(7):
        A(f"s_waitcnt vmcnt({6-s})")
        A(f"v_mfma_f32_16x16x32_bf16 v[56:59], {aq(aW2+4*s)}, {vq(28+4*s)}, {'0' if s == 0 else 'v[56:59]'}")
    A(f"v_cmp_u_f32 vcc, v56, v56\nv_cvt_pk_bf16_f32 v56, v56, v57\nv_cvt_pk_bf16_f32 v57, v58, v59\ns_cbranch_vccz {ldok}")
    retry(ld)
    A(f"{ldok}:")
    exec_set(0x00010001, 0x00010001)
    A(f"buffer_store_dwordx2 v[56:57], v{vZpub}, {srd(rWS)}, s{sZpub} offen sc1")
    exec_all()
A(f"{ldsk}:")
stamp(5)
A(f"s_cmp_lg_u32 s{sLAYER}, 0\ns_cbranch_scc1 L_final")
A("s_barrier")
A(f"s_sleep {SLEEP_E}")
gather(sZget, sZget1, "ge", so=sZo)
stamp(6)
if opt("q2", 1):
    with only("eq", sw, f"s{skq}"): A(f"ds_write_b64 v{vXQw}, v[{vXP}:{vXP+1}]")
    A(f"v_accvgpr_read_b32 v57, a{aXQr}")
    A(f"s_add_u32 s{rWS}, s{rWS}, {LS}\ns_addc_u32 s{rWS+1}, s{rWS+1}, 0\ns_mov_b32 s{rWS+2}, {WS_BYTES-LS:#x}\ns_mov_b32 s{sLAYER}, 1")
    A(f"s_lshl_b32 s3, s{sw}, 6\ns_add_u32 s3, s3, s{sQpub}\ns_add_u32 s3, s3, {QP}")
    A("s_waitcnt lgkmcnt(0)\ns_barrier")
    for s_ in range(4): A(f"ds_read_b128 {vq(vXA+4*s_)}, v57 offset:{64*s_}")
    unpack_x()
    so = stat_ops()
    for _ in range(7): A(so.pop(0))
    for s_ in range(4):
        A(f"s_waitcnt lgkmcnt({0 if PROF else 3-s_})")
        A(f"v_mfma_f32_16x16x32_bf16 {vq(vG0)}, {vq(vXA+4*s_)}, {aq(aWQ+4*s_)}, {'0' if s_ == 0 else vq(vG0)}")
    for _ in range(4): A(so.pop(0))
    exec_set(0xffffffff, 0)
    pub_store(f"buffer_store_dword v{vG0}, v{vQP}, {srd(rWS)}, s3 offen")
    exec_all()
    if PROF: stamp(7)
    for i in so: A(i)
    stat_write(0)
    A(f"v_mov_b32 v58, {ST0}\ns_waitcnt lgkmcnt(0)\ns_barrier")
    A(f"ds_read_b128 v[52:55], v58\nds_read_b128 v[56:59], v58 offset:16")
    q_addr()
    q_loads(44, sQget)
    A(f"""s_waitcnt lgkmcnt(0)
v_add_f32 v52, v52, v53
v_add_f32 v54, v54, v55
v_add_f32 v56, v56, v57
v_add_f32 v58, v58, v59
v_add_f32 v52, v52, v54
v_add_f32 v56, v56, v58
v_mul_f32 v{vMean}, {f2u(1.0/512):#x}, v52
v_mul_f32 v56, {f2u(1.0/512):#x}, v56
v_fma_f32 v56, -v{vMean}, v{vMean}, v56
v_max_f32 v56, 0, v56
v_add_f32 v56, {f2u(1e-5):#x}, v56
v_rsq_f32 v56, v56
v_mul_f32 v{vRs}, {f2u(QSCALE):#x}, v56""")
else:
    A(f"s_add_u32 s{rWS}, s{rWS}, {LS}\ns_addc_u32 s{rWS+1}, s{rWS+1}, 0\ns_mov_b32 s{rWS+2}, {WS_BYTES-LS:#x}\ns_mov_b32 s{sLAYER}, 1")
    qproj(False)
A(f"s_mov_b32 s{skq}, 99")
if not opt("q2", 1):
    stamp(7)
    q_addr()
A(f"v_accvgpr_read_b32 v56, a{aCS}\nv_accvgpr_read_b32 v57, a{aCS+1}\nv_accvgpr_read_b32 v59, a{aQBw}")
lg, lgok = lab("pg"), lab("pgok")
lg0 = lab("pg0")
if opt("q2", 1): A(f"s_branch {lg0}")
elif opt("sg", 2): A(f"s_sleep {opt('sg', 2)}")
A(f"{lg}:")
q_loads(44, sQget)
A(f"{lg0}:\ns_waitcnt vmcnt(0)")
sum4(44)
A(f"v_cmp_u_f32 vcc, v44, v45\ns_cbranch_vccz {lgok}")
retry(lg)
A(f"{lgok}:")
stamp(8)
q_finish(56)
if opt("wb", 0):
    with only("eq", sw, 3): A("buffer_wbl2 sc1")
A("s_waitcnt lgkmcnt(0)")
if PROF in (3, 4): stamp(1)
qk()
if PROF in (3, 4): stamp(2)
softmax()
if PROF in (3, 4): stamp(3)
order = [((jd + k) & 3, jd) for k in range(4) for jd in range(4)] + [((jd + k) & 3, jd) for jd in range(4, 8) for k in range(4)]
ls = lsum_ops(); fw = fw_ops()
sh = shifts(1) + shifts(2) + shifts(3)
slow = lambda x: "_dpp" in x or "permlane" in x or "v_exp" in x
ex = ls[:7] + ["s_waitcnt lgkmcnt(0)", "s_barrier", fw[0]] + ls[7:] + ["s_waitcnt lgkmcnt(2)" if not PROF else "s_waitcnt lgkmcnt(0)"] + fw[2:4]
if MLE: ex = ls + ["HOLD", "s_waitcnt lgkmcnt(0)", "s_barrier", fw[0], f"ds_read_b128 {vq(vLq)}, v{vMBr} offset:64",
                   "HOLD2", "s_waitcnt lgkmcnt(1)" if not PROF else "s_waitcnt lgkmcnt(0)"] + fw[2:8]
post = {1: merge(1), 2: merge(2), 3: merge(3) + [owrite(0)], 5: merge(5), 6: merge(6), 7: merge(7) + [owrite(1)]}
seen = set(); cnt = {}; done = {}; ready = []
for i, (t, jd) in enumerate(order):
    pv_mfma(t, jd, jd not in seen); seen.add(jd)
    cnt[jd] = cnt.get(jd, 0) + 1
    if cnt[jd] == 4 and jd in post: done[jd] = len(A.L)
    for j2, p2 in list(done.items()):
        if sum(x.states() for x in A.L[p2:]) >= 8:
            ready += post[j2]; del done[j2]
    if sh:
        A(sh.pop(0))
        if i % 4 == 3:
            A(ex.pop(0)); A(ex.pop(0))
        continue
    budget = 2
    while budget > 0 and (ex or ready):
        if ex and ex[0] == "HOLD":
            if i < opt("mlbar", 22):
                if not ready or ready[0].startswith("ds_write"): break
                x = ready.pop(0); A(x); budget -= 1; continue
            ex.pop(0)
        if ex and ex[0] == "HOLD2":
            if i < 28:
                if not ready: break
                x = ready.pop(0); A(x); budget -= 1; continue
            assert any(z.mn == "ds_write_b128" for z in A.L[-30:])
            ex.pop(0)
        q_ = ex if (ex and (i < 20 or (MLE and not (i >= 28 and len(ready) > 1)) or not ready)) else ready
        x = q_.pop(0); A(x); budget -= 2 if slow(x) else 1
while ex: A(ex.pop(0))
for i in ready: A(i)
for j2 in done:
    for i in post[j2]: A(i)
if MLE:
    for i in fw[8:]: A(i)
    ml_pub()
else:
    for i in fw[4:]: A(i)
stamp(9)
flush_stamps(16, 10)
A("s_branch L_comb")
A("L_final:")
if opt("wb", 0) == 1:
    with only("eq", sw, 0): A("buffer_wbl2 sc1")
A(f"s_or_b32 s3, s{sg}, s{sj}\ns_cmp_lg_u32 s3, 0\ns_cbranch_scc1 L_done")
if opt("fbar", 1): A("s_barrier")
A(f"s_sleep {SLEEP_F}")
gather(sZget, sZget1, "gf")
A(f"""
s_lshl_b32 s3, s{sb}, 10
s_lshl_b32 s{sT0}, s{sw}, 8
s_add_u32 s3, s3, s{sT0}
s_lshl_b32 s{sT0}, s{sw}, 9
s_add_u32 s{sT0}, s{sT0}, {XB}
s_sub_u32 s3, s3, s{sT0}
v_add_u32 v30, s3, v{vXBw}""")
exec_set(0xffffffff, 0)
A(f"global_store_dwordx2 v30, v[{vXP}:{vXP+1}], {sp(sOUT)}")
with only("eq", sb, 0):
    A(f"v_mov_b32 v30, {EPO}\nv_mov_b32 v31, s{sTAG0}")
    exec_set(1, 0)
    A(f"global_store_dword v30, v31, {sp(sWS)} sc1")
exec_all()
if CSPLIT:
    A("s_branch L_done\nL_cen2:")
    cen_loads(True)
    A("s_waitcnt vmcnt(0)")
    for i in range(4):
        A(f"v_xor_b32 v{32+2*i}, s{sTAG0}, v{32+2*i}\nv_xor_b32 v{33+2*i}, s{sTAG1}, v{33+2*i}")
    A(f"""
v_or3_b32 v40, v33, v35, v37
v_or3_b32 v42, v32, v34, v36
v_or_b32 v40, v40, v39
v_and_b32 v40, -16, v40
v_or3_b32 v40, v40, v42, v38
v_cmp_ne_u32 vcc, 0, v40
s_cbranch_vccz L_cen2_ok""")
    retry("L_cen2")
    A(f"L_cen2_ok:\ns_mov_b32 s{sCEN}, 0\ns_branch L_cen2_back")
A("L_done:")
if PROF:
    stamp(6)
    flush_stamps(32, 7)
    A(f"""
s_lshl_b32 s3, s2, 2
s_add_u32 s3, s3, s{sw}
s_lshl_b32 s3, s3, 8
s_add_u32 s3, s3, {PROF_OFF}
v_lshlrev_b32 v30, 2, v{vL}
v_add_u32 v30, s3, v30
global_store_dword v30, v{vPROF}, {sp(sWS)}""")
A("L_end:\ns_endpgm")
A.L.extend(OOL)
A.raw('.section .rodata,"a"'); A.raw(".p2align 6"); A.raw(f".amdhsa_kernel {NAME}_kernel")
for l in ["next_free_vgpr 512", "next_free_sgpr 102", "accum_offset 256", "group_segment_fixed_size 0", "kernarg_size 88",
          "user_sgpr_count 2", "user_sgpr_kernarg_segment_ptr 1", "system_sgpr_workgroup_id_x 1"]:
    A.raw("  .amdhsa_" + l)
A.raw(".end_amdhsa_kernel")
text = "\n".join(H) + "\n" + A.text()
if opt("al", 3):
    from align8 import align
    text, wd, np_ = align(text, None, opt("al", 3))
    print("aligned: widened", wd, "nops", np_, file=sys.stderr)
open(out, "w").write(text)
print("instrs", len(A.L), "nops inserted", A.nopcount, file=sys.stderr)
```
